```python
import torch

def _softmax(x, axis=-1):
    return torch.softmax(x, dim=axis)
def _gelu(x):
    return torch.nn.functional.gelu(x, approximate="tanh")
def _silu(x):
    return torch.nn.functional.silu(x)
def _sigmoid(x):
    return torch.sigmoid(x)
def _layernorm(x, axis=-1, eps=1e-5):
    m = x.mean(dim=axis, keepdim=True)
    v = x.var(dim=axis, keepdim=True, unbiased=False)
    return (x - m) / torch.sqrt(v + eps)
def _scatter_add(tgt, idx, src, axis=0):
    return tgt.clone().index_add_(axis, idx, src)
def _segment_sum(src, seg, n):
    out = torch.zeros((n,) + src.shape[1:], dtype=src.dtype)
    return out.index_add_(0, seg, src)
def _pad(x, pw):
    flat = tuple(v for pair in reversed(pw) for v in pair)
    return torch.nn.functional.pad(x, flat)

kernel_name = 'gated_mix__sliding_block__mixer_s_mlp__prompt'

def setup_inputs():

    _w = (lambda a: (lambda t: t.to(torch.bfloat16) if t.is_floating_point() else t)(torch.as_tensor(a)))
    def _A_setup():
        B, S, D = 1, 2048, 448
        return {
            "x": _w((lambda *s: torch.randn(*s, dtype=torch.bfloat16) * 0.05)(B, S, D)),
            "wqkv": _w((lambda *s: torch.randn(*s, dtype=torch.bfloat16) * 3.2)(D, 3 * D)),
            "wo": _w((lambda *s: torch.randn(*s, dtype=torch.bfloat16) * 0.05)(D, D)),
        }
    _A_in = _A_setup()

    def _B_setup():
        B, S, D, F = 1, 2048, 448, 1792
        return {
            "x":  _w((lambda *s: torch.randn(*s, dtype=torch.bfloat16) * 0.05)(B, S, D)),
            "w1": _w((lambda *s: torch.randn(*s, dtype=torch.bfloat16) * 3.2)(D, D) * (D ** -0.5)),
            "w2": _w((lambda *s: torch.randn(*s, dtype=torch.bfloat16) * 3.2)(D, D) * (D ** -0.5)),
            "w3": _w((lambda *s: torch.randn(*s, dtype=torch.bfloat16) * 3.2)(D, F) * (D ** -0.5)),
            "w4": _w((lambda *s: torch.randn(*s, dtype=torch.bfloat16) * 3.2)(F, D) * (F ** -0.5)),
        }
    _B_in = _B_setup()

    return {
        "A_x": _A_in["x"],
        "A_wqkv": _A_in["wqkv"],
        "A_wo": _A_in["wo"],
        "B_x": _B_in["x"],
        "B_w1": _B_in["w1"],
        "B_w2": _B_in["w2"],
        "B_w3": _B_in["w3"],
        "B_w4": _B_in["w4"],
        "gate_w": _w((lambda *s: torch.randn(*s, dtype=torch.bfloat16) * 0.05)(448) * 16.0),
    }

def reference(A_x, A_wqkv, A_wo, B_x, B_w1, B_w2, B_w3, B_w4, gate_w):
    def _A_ref(x, wqkv, wo):
        B, S, D = x.shape
        H = 16; Dh = D // H; W = 256
        qkv = (lambda x, *d: x.permute(*d))((x @ wqkv).reshape(B, S, 3, H, Dh), 2, 0, 3, 1, 4)
        q, k, v = qkv[0], qkv[1], qkv[2]
        scores = torch.einsum("bhqd,bhkd->bhqk", q, k) * (Dh ** -0.5)
        idx = torch.arange(S)
        mask = (idx[:, None] - idx[None, :] >= 0) & (idx[:, None] - idx[None, :] < W)
        scores = torch.where(mask[None, None], scores, -1e9)
        p = _softmax(scores, axis=-1)
        o = torch.einsum("bhqk,bhkd->bhqd", p, v)
        return (lambda x, *d: x.permute(*d))(o, 0, 2, 1, 3).reshape(B, S, D) @ wo

    def _B_ref(x, w1, w2, w3, w4):
        B, S, D = x.shape
        h = _gelu(_layernorm(x, axis=-1) @ w1)
        c = D // 4
        g0 = _pad(h[:, :, 0*c:1*c], ((0, 0), (1, 0), (0, 0)))[:, :S, :]
        g1 = _pad(h[:, :, 1*c:2*c], ((0, 0), (0, 1), (0, 0)))[:, 1:, :]
        g2 = _pad(h[:, :, 2*c:3*c], ((0, 0), (2, 0), (0, 0)))[:, :S, :]
        g3 = _pad(h[:, :, 3*c:   ], ((0, 0), (0, 2), (0, 0)))[:, 2:, :]
        hs = torch.concatenate([g0, g1, g2, g3], axis=-1) @ w2
        x1 = x + hs
        h2 = _gelu(_layernorm(x1, axis=-1) @ w3) @ w4
        return x1 + h2

    x = A_x
    g = _sigmoid((x * gate_w).sum(-1, keepdims=True))
    a = _A_ref(x, A_wqkv, A_wo)
    b = _B_ref(x, B_w1, B_w2, B_w3, B_w4)
    return g * a + (1 - g) * b
```

```python
import struct


def f32bits(x):
    return struct.unpack("<I", struct.pack("<f", x))[0]


class Asm:
    def __init__(self):
        self.lines = []
        self.vm = []
        self._lab = 0

    def __call__(self, s):
        for ln in s.split("\n"):
            ln = ln.strip()
            if ln:
                self.lines.append("    " + ln)

    def label(self, name):
        self.lines.append(name + ":")

    def newlabel(self, pfx="L"):
        Asm._cnt = getattr(Asm, "_cnt", 0) + 1
        return f"{pfx}_{Asm._cnt}"

    def comment(self, s):
        self.lines.append("    ; " + s)

    def text(self):
        return "\n".join(self.lines) + "\n"

    def vmem(self, s, tag):
        self(s)
        self.vm.append(tag)

    def vm_count_after(self, tags):
        if not isinstance(tags, (list, set)):
            tags = [tags]
        last = -1
        for i, t in enumerate(self.vm):
            if t in tags:
                last = i
        assert last >= 0, f"no op with tags {tags}"
        return len(self.vm) - 1 - last

    def vm_wait(self, tags, extra=""):
        n = self.vm_count_after(tags)
        assert n <= 63, n
        self(f"s_waitcnt vmcnt({n}){extra}")

    def vm_snapshot(self):
        return list(self.vm)

    def vm_restore(self, snap):
        self.vm = list(snap)

    def srd(self, d, lo, hi, nbytes):
        self(f"s_mov_b32 s{d}, s{lo}")
        self(f"s_and_b32 s{d+1}, s{hi}, 0xffff")
        self(f"s_mov_b32 s{d+2}, {nbytes}")
        self(f"s_mov_b32 s{d+3}, 0x00020000")

    def srd_off(self, d, lo, hi, off, nbytes):
        self(f"s_add_u32 s{d}, s{lo}, {off}")
        self(f"s_addc_u32 s{d+1}, s{hi}, 0")
        self(f"s_and_b32 s{d+1}, s{d+1}, 0xffff")
        self(f"s_mov_b32 s{d+2}, {nbytes}")
        self(f"s_mov_b32 s{d+3}, 0x00020000")


def v(i, n=1):
    return f"v{i}" if n == 1 else f"v[{i}:{i+n-1}]"


def a(i, n=1):
    return f"a{i}" if n == 1 else f"a[{i}:{i+n-1}]"


def s(i, n=1):
    return f"s{i}" if n == 1 else f"s[{i}:{i+n-1}]"


def kernel_desc(name, vgpr, accum, sgpr=102):
    return f""".p2align 6
.amdhsa_kernel {name}
  .amdhsa_next_free_vgpr {vgpr}
  .amdhsa_next_free_sgpr {sgpr}
  .amdhsa_accum_offset {accum}
  .amdhsa_group_segment_fixed_size 0
  .amdhsa_kernarg_size 96
  .amdhsa_user_sgpr_count 2
  .amdhsa_user_sgpr_kernarg_segment_ptr 1
  .amdhsa_system_sgpr_workgroup_id_x 1
.end_amdhsa_kernel
"""


def kernel_head(name):
    return f""".globl {name}
.p2align 8
.type {name},@function
{name}:
"""
```

```python
import math
import sys
from asmlib import Asm, v, a, s, f32bits, kernel_desc, kernel_head

S, D, F = 2048, 448, 1792
MB = 1 << 20
WS_Q = 0
WS_K = 2 * MB
WS_V = 4 * MB
WS_HS = 6 * MB
WS_X1 = 8 * MB
WS_O = 10 * MB
WS_A = 12 * MB
WS_H3 = 16 * MB
WS_G = 24 * MB
WS_ST = 25 * MB
WS_SIZE = 32 * MB
ACT_BYTES = S * D * 2
RT_BYTES = 16 * D * 2
H3_RT_BYTES = 16 * F * 2

LOG2E = 1.4426950408889634
GELU_C0 = -2.0 * math.sqrt(2.0 / math.pi) * LOG2E
GELU_C1 = GELU_C0 * 0.044715
SCALE = 28 ** -0.5
MASK56 = (1 << 56) - 1


def set_exec56(A):
    A("s_mov_b32 exec_lo, -1")
    A("s_mov_b32 exec_hi, 0x00ffffff")


def set_exec_all(A):
    A("s_mov_b64 exec, -1")


def lane_setup(A, vl, vi, vg, swave):
    A(f"v_and_b32 {v(vl)}, 63, v0")
    A(f"v_lshrrev_b32 {v(vi)}, 6, v0")
    A("s_nop 0")
    A(f"v_readfirstlane_b32 {s(swave)}, {v(vi)}")
    A(f"v_and_b32 {v(vi)}, 15, {v(vl)}")
    A(f"v_lshrrev_b32 {v(vg)}, 4, {v(vl)}")


def xlane_g(A, op, x, t1, t2):
    A(f"v_mov_b32 {v(t1)}, {v(x)}")
    A(f"v_mov_b32 {v(t2)}, {v(x)}")
    A("s_nop 1")
    A(f"v_permlane16_swap_b32 {v(t1)}, {v(t2)}")
    A("s_nop 1")
    A(f"{op} {v(x)}, {v(t1)}, {v(t2)}")
    A(f"v_mov_b32 {v(t1)}, {v(x)}")
    A(f"v_mov_b32 {v(t2)}, {v(x)}")
    A("s_nop 1")
    A(f"v_permlane32_swap_b32 {v(t1)}, {v(t2)}")
    A("s_nop 1")
    A(f"{op} {v(x)}, {v(t1)}, {v(t2)}")


def round_bf16(A, x, t):
    A(f"v_cvt_pk_bf16_f32 {v(x)}, 0, {v(x)}")


def gelu_pairs(A, pairs, outs, tmp, c0, c1, one, pre_round=True):
    n = len(pairs)
    if pre_round:
        for i, p in enumerate(pairs):
            A(f"v_cvt_pk_bf16_f32 {v(p)}, 0, {v(p)}")
            A(f"v_cvt_pk_bf16_f32 {v(p+1)}, 0, {v(p+1)}")
    for i, p in enumerate(pairs):
        A(f"v_pk_mul_f32 {v(tmp+2*i,2)}, {v(p,2)}, {v(p,2)}")
    for i, p in enumerate(pairs):
        A(f"v_pk_fma_f32 {v(tmp+2*i,2)}, {v(tmp+2*i,2)}, {v(c1,2)}, {v(c0,2)}")
    for i, p in enumerate(pairs):
        A(f"v_pk_mul_f32 {v(tmp+2*i,2)}, {v(tmp+2*i,2)}, {v(p,2)}")
    for i, p in enumerate(pairs):
        A(f"v_exp_f32 {v(tmp+2*i)}, {v(tmp+2*i)}")
        A(f"v_exp_f32 {v(tmp+2*i+1)}, {v(tmp+2*i+1)}")
    if n == 1:
        A("s_nop 0")
    for i, p in enumerate(pairs):
        A(f"v_pk_add_f32 {v(tmp+2*i,2)}, {v(tmp+2*i,2)}, {v(one,2)}")
    for i, p in enumerate(pairs):
        A(f"v_rcp_f32 {v(tmp+2*i)}, {v(tmp+2*i)}")
        A(f"v_rcp_f32 {v(tmp+2*i+1)}, {v(tmp+2*i+1)}")
    if n == 1:
        A("s_nop 0")
    for i, p in enumerate(pairs):
        A(f"v_pk_mul_f32 {v(p,2)}, {v(p,2)}, {v(tmp+2*i,2)}")
    for i, p in enumerate(pairs):
        A(f"v_cvt_pk_bf16_f32 {v(outs[i])}, {v(p)}, {v(p+1)}")


def ln_finish(A, mean, var, t):
    round_bf16(A, mean, t)
    round_bf16(A, var, t)
    A(f"v_add_f32 {v(var)}, {f32bits(1e-5):#x}, {v(var)}")
    round_bf16(A, var, t)
    A(f"v_sqrt_f32 {v(var)}, {v(var)}")
    A("s_nop 0")
    round_bf16(A, var, t)
    A(f"v_rcp_f32 {v(var)}, {v(var)}")
    A("s_nop 0")


XF = 32
WF = 144
ONES = 200
ACC_OFF = 208
LDS_W = 0
LDS_W_BYTES = 14 * 7168
LDS_CS = LDS_W_BYTES


def xf(sx, rt):
    return XF + (sx * 2 + rt) * 4


def wf(buf, t):
    return WF + buf * 28 + t * 4


def acc(rt, t):
    return (rt * 7 + t) * 4


A_RS = 56
A_SQ = 64
A_CS = 72
N_AGPR = 80


def big_tr_reads(A, sx, mode, vb):
    buf = sx & 1
    hi = 1 if sx >= 7 else 0
    so = (sx - 7 * hi) * 7168
    for t in range(7):
        for hh in range(2):
            if mode == "qk":
                d0 = 8 * (t // 2) + 4 * (t & 1) if t < 6 else 24
                base, off = vb["qk"][hi], 2 * d0
            elif mode == "nat":
                base, off = vb["nat"][hi], 32 * t
            else:
                if t < 6:
                    base, off = vb["pair"][hi], 64 * (t // 2) + 8 * (t & 1)
                else:
                    base, off = vb["nat"][hi], 192
            A(f"ds_read_b64_tr_b16 {v(wf(buf,t)+2*hh,2)}, {v(base)} offset:{so + hh*3584 + off}")


def big_mfmas(sx, mode, stats, cs_tiles):
    buf = sx & 1
    out = []
    for t in range(7):
        for rt in range(2):
            c = a(acc(rt, t), 4)
            if mode == "nat":
                out.append(f"v_mfma_f32_16x16x32_bf16 {c}, {v(xf(sx,rt),4)}, {v(wf(buf,t),4)}, {c}")
            else:
                out.append(f"v_mfma_f32_16x16x32_bf16 {c}, {v(wf(buf,t),4)}, {v(xf(sx,rt),4)}, {c}")
    if stats:
        for rt in range(2):
            c = a(A_RS + 4 * rt, 4)
            out.append(f"v_mfma_f32_16x16x32_bf16 {c}, {v(ONES,4)}, {v(xf(sx,rt),4)}, {c}")
            c = a(A_SQ + 4 * rt, 4)
            out.append(f"v_mfma_f32_16x16x32_bf16 {c}, {v(xf(sx,rt),4)}, {v(xf(sx,rt),4)}, {c}")
    for i, t in enumerate(cs_tiles):
        c = a(A_CS + 4 * i, 4)
        out.append(f"v_mfma_f32_16x16x32_bf16 {c}, {v(wf(buf,t),4)}, {v(ONES,4)}, {c}")
    return out


def big_mainloop(A, mode, vb, stats=False, cs_tiles=()):
    A.vm_wait(("ld", 0))
    A("s_barrier")
    big_tr_reads(A, 0, mode, vb)
    for sx in range(14):
        A("s_waitcnt lgkmcnt(0)")
        mf = big_mfmas(sx, mode, stats, cs_tiles)
        h = len(mf) // 2
        for m in mf[:h]:
            A(m)
        if sx < 13:
            A.vm_wait(("ld", sx + 1))
            A("s_barrier")
            big_tr_reads(A, sx + 1, mode, vb)
        for m in mf[h:]:
            A(m)


def big_zero_acc(A, n):
    for i in range(n):
        A(f"v_accvgpr_write_b32 {a(i)}, 0")


def big_tr_bases(A, vi, vg, t0, t1):
    A(f"v_lshrrev_b32 {v(t0)}, 2, {v(vi)}")
    A(f"v_lshl_add_u32 {v(t0)}, {v(vg)}, 2, {v(t0)}")
    A(f"v_mul_u32_u24 {v(t0)}, 224, {v(t0)}")
    A(f"v_and_b32 {v(t1)}, 3, {v(vi)}")
    A(f"v_mul_u32_u24 {v(6)}, 56, {v(t1)}")
    A(f"v_add_u32 {v(6)}, {v(6)}, {v(t0)}")
    A(f"v_add_u32 {v(7)}, {7*7168}, {v(6)}")
    A(f"v_lshl_add_u32 {v(8)}, {v(t1)}, 3, {v(t0)}")
    A(f"v_add_u32 {v(9)}, {7*7168}, {v(8)}")
    A(f"v_lshl_add_u32 {v(10)}, {v(t1)}, 4, {v(t0)}")
    A(f"v_add_u32 {v(11)}, {7*7168}, {v(10)}")
    return {"qk": (6, 7), "nat": (8, 9), "pair": (10, 11)}


def big_w_dma(A, sx, srdw, vw, s_soff, s_m0, pitch_s):
    A(f"s_mov_b32 m0, {s(s_m0)}")
    A("s_nop 0")
    A.vmem(f"buffer_load_dwordx4 {v(vw)}, {s(srdw,4)}, {s(s_soff)} offen lds", ("ld", sx))
    A(f"s_add_u32 m0, {s(s_m0)}, 3584")
    A(f"s_add_u32 {s(s_soff)}, {s(s_soff)}, {s(pitch_s)}")
    A.vmem(f"buffer_load_dwordx4 {v(vw)}, {s(srdw,4)}, {s(s_soff)} offen lds", ("ld", sx))
    A(f"s_add_u32 {s(s_soff)}, {s(s_soff)}, {s(pitch_s+1)}")
    A(f"s_add_u32 {s(s_m0)}, {s(s_m0)}, 7168")


def colsum_exchange(A, wv, vi, vg, dst, t0):
    tiles = [t for t in (wv, wv + 4) if t < 7]
    A("s_nop 7")
    A("s_nop 1")
    for i, t in enumerate(tiles):
        for r in range(4):
            A(f"v_accvgpr_read_b32 {v(t0+4*i+r)}, {a(A_CS+4*i+r)}")
    A(f"v_lshlrev_b32 {v(t0+8)}, 4, {v(vg)}")
    A(f"v_add_u32 {v(t0+8)}, {LDS_CS}, {v(t0+8)}")
    A(f"v_cmp_eq_u32 vcc, 0, {v(vi)}")
    A("s_and_saveexec_b64 s[40:41], vcc")
    for i, t in enumerate(tiles):
        A(f"ds_write_b128 {v(t0+8)}, {v(t0+4*i,4)} offset:{64*t}")
    A("s_mov_b64 exec, s[40:41]")
    A("s_waitcnt lgkmcnt(0)")
    A("s_barrier")
    for t in range(7):
        A(f"ds_read_b128 {v(dst+4*t,4)}, {v(t0+8)} offset:{64*t}")


def gelu_epilogue(A, cs, mreg, rsreg, consts, tmp, outb, store_fn):
    c0, c1, one = consts
    for rt in range(2):
        w = outb
        for t in range(7):
            for r in range(4):
                A(f"v_accvgpr_read_b32 {v(w+4*t+r)}, {a(acc(rt,t)+r)}")
        for t in range(7):
            for h in range(2):
                p = w + 4 * t + 2 * h
                A(f"v_pk_fma_f32 {v(p,2)}, {v(cs+4*t+2*h,2)}, {v(mreg[rt],2)}, {v(p,2)}")
        for t in range(7):
            for h in range(2):
                p = w + 4 * t + 2 * h
                A(f"v_pk_mul_f32 {v(p,2)}, {v(p,2)}, {v(rsreg[rt],2)}")
        pk = outb + 28 + 16 * rt
        pairs = [w + 2 * i for i in range(14)]
        outs = [pk + i for i in range(14)]
        gelu_pairs(A, pairs[:7], outs[:7], tmp, c0, c1, one)
        gelu_pairs(A, pairs[7:], outs[7:], tmp, c0, c1, one)
        store_fn(rt, pk)


def gen_k1():
    A = Asm()
    name = "k1_kernel"
    Lend = "k1_end"
    A("s_cmp_ge_u32 s2, 256")
    A(f"s_cbranch_scc1 {Lend}")
    A("s_load_dwordx4 s[4:7], s[0:1], 0")
    A("s_load_dwordx2 s[8:9], s[0:1], 32")
    A("s_load_dwordx2 s[10:11], s[0:1], 64")
    A("s_load_dwordx2 s[12:13], s[0:1], 88")
    VL, VI, VG = 1, 2, 3
    SW = 19
    lane_setup(A, VL, VI, VG, SW)
    A("s_and_b32 s14, s2, 7")
    A("s_lshr_b32 s15, s2, 3")
    A("s_lshr_b32 s16, s15, 4")
    A("s_lshl_b32 s17, s14, 1")
    A("s_add_u32 s17, s17, s16")
    A("s_and_b32 s18, s15, 15")
    A("s_sub_u32 s33, s18, 12")
    A("s_movk_i32 s32, 896")
    A("s_cmp_lt_u32 s18, 12")
    A("s_cselect_b32 s32, 2688, s32")
    A("s_cselect_b32 s33, s18, s33")
    A("s_mul_i32 s33, s33, 224")
    A("s_lshl_b32 s34, s19, 3")
    A("s_mul_i32 s34, s34, s32")
    A("s_add_u32 s34, s34, s33")
    A("s_lshl_b32 s36, s32, 2")
    A("s_mul_i32 s37, s32, 28")
    A("s_mul_i32 s35, s19, 896")
    A(f"v_mul_u32_u24 v12, 4682, {v(VL)}")
    A("v_lshrrev_b32 v12, 16, v12")
    A("v_mul_u32_u24 v13, 14, v12")
    A(f"v_sub_u32 v13, {v(VL)}, v13")
    A("v_mul_lo_u32 v5, v12, s32")
    A("v_lshl_add_u32 v5, v13, 4, v5")
    A("s_lshl_b32 s38, s17, 7")
    A("s_lshl_b32 s39, s19, 5")
    A("s_add_u32 s38, s38, s39")
    A(f"v_add_u32 v4, s38, {v(VI)}")
    A("v_mul_u32_u24 v4, 896, v4")
    A(f"v_lshl_add_u32 v4, {v(VG)}, 4, v4")
    A("s_mov_b32 s39, 14336")
    A("s_lshl_b32 s42, s17, 7")
    A("s_lshl_b32 s43, s18, 3")
    A("s_add_u32 s42, s42, s43")
    A("s_lshl_b32 s43, s19, 1")
    A("s_add_u32 s42, s42, s43")
    A("s_mul_i32 s43, s42, 896")
    A(f"v_lshlrev_b32 v14, 4, {v(VL)}")
    for r in range(16, 28):
        A(f"v_mov_b32 v{r}, 0")
    vb = big_tr_bases(A, VI, VG, 12, 13)
    A("s_waitcnt lgkmcnt(0)")
    A.srd(20, 4, 5, ACT_BYTES)
    A(f"s_mov_b32 s26, {D*D*2}")
    A("s_cmp_lt_u32 s18, 12")
    A("s_cselect_b32 s24, s6, s8")
    A("s_cselect_b32 s25, s7, s9")
    A(f"s_cselect_b32 s26, {D*3*D*2}, s26")
    A("s_and_b32 s25, s25, 0xffff")
    A("s_mov_b32 s27, 0x00020000")
    A.srd(28, 12, 13, WS_SIZE)
    A.srd(44, 10, 11, D * 2)
    set_exec56(A)
    A.vmem("buffer_load_dwordx4 v[16:19], v14, s[20:23], s43 offen", "gate")
    A.vmem("buffer_load_dwordx4 v[20:23], v14, s[20:23], s43 offen offset:896", "gate")
    A.vmem("buffer_load_dwordx4 v[24:27], v14, s[44:47], 0 offen", "gate")
    for sx in range(14):
        set_exec_all(A)
        A.vmem(f"buffer_load_dwordx4 {v(xf(sx,0),4)}, v4, s[20:23], 0 offen offset:{64*sx}", ("ld", sx))
        A.vmem(f"buffer_load_dwordx4 {v(xf(sx,1),4)}, v4, s[20:23], s39 offen offset:{64*sx}", ("ld", sx))
        set_exec56(A)
        big_w_dma(A, sx, 24, 5, 34, 35, 36)
    set_exec_all(A)
    big_zero_acc(A, N_AGPR)
    for r in range(4):
        A(f"v_mov_b32 {v(ONES+r)}, 0x3f803f80")
    A.vm_wait("gate")
    T = 144
    for j in range(4):
        A(f"v_lshlrev_b32 {v(T+2*j)}, 16, {v(24+j)}")
        A(f"v_and_b32 {v(T+2*j+1)}, 0xffff0000, {v(24+j)}")
    for rr in range(2):
        xb = 16 + 4 * rr
        U = T + 8
        for j in range(4):
            A(f"v_lshlrev_b32 {v(U+2*j)}, 16, {v(xb+j)}")
            A(f"v_and_b32 {v(U+2*j+1)}, 0xffff0000, {v(xb+j)}")
        for j in range(4):
            A(f"v_pk_mul_f32 {v(U+2*j,2)}, {v(U+2*j,2)}, {v(T+2*j,2)}")
        for j in range(8):
            A(f"v_cvt_pk_bf16_f32 {v(U+j)}, 0, {v(U+j)}")
        z = 28 + rr
        A(f"v_add_f32 {v(z)}, {v(U)}, {v(U+1)}")
        for j in range(2, 8):
            A(f"v_add_f32 {v(z)}, {v(z)}, {v(U+j)}")
        for ror in (8, 4, 2, 1):
            A("s_nop 1")
            A(f"v_add_f32_dpp {v(z)}, {v(z)}, {v(z)} row_ror:{ror} row_mask:0xf bank_mask:0xf")
        xlane_g(A, "v_add_f32", z, U, U + 1)
        round_bf16(A, z, U)
        A(f"v_mul_f32 {v(z)}, {f32bits(-LOG2E):#x}, {v(z)}")
        A(f"v_exp_f32 {v(z)}, {v(z)}")
        A("s_nop 0")
        A(f"v_add_f32 {v(z)}, 1.0, {v(z)}")
        A(f"v_rcp_f32 {v(z)}, {v(z)}")
        A("s_nop 0")
        round_bf16(A, z, U)
    A("s_lshl_b32 s43, s42, 2")
    A(f"s_add_u32 s43, s43, {WS_G}")
    A("v_mov_b32 v30, 0")
    A("s_mov_b64 exec, 1")
    A.vmem("buffer_store_dwordx2 v[28:29], v30, s[28:31], s43 offen", "st")
    set_exec_all(A)
    snap = A.vm_snapshot()
    A("s_cmp_ge_u32 s18, 12")
    A("s_cbranch_scc1 k1_w1")
    A("s_cmp_ge_u32 s18, 8")
    A("s_cbranch_scc1 k1_v")
    big_mainloop(A, "qk", vb)
    A(f"v_mul_u32_u24 v12, 131072, {v(VG)}")
    A(f"v_lshl_add_u32 v12, {v(VI)}, 4, v12")
    A("s_lshr_b32 s40, s18, 2")
    A("s_lshl_b32 s40, s40, 21")
    A("s_and_b32 s41, s18, 3")
    A("s_lshl_b32 s41, s41, 19")
    A("s_add_u32 s40, s40, s41")
    A("s_lshl_b32 s41, s38, 6")
    A("s_add_u32 s40, s40, s41")
    A("s_nop 7")
    A("s_nop 1")
    W0 = 32
    for rt in range(2):
        for t in range(7):
            for r in range(4):
                A(f"v_accvgpr_read_b32 {v(W0+28*rt+4*t+r)}, {a(acc(rt,t)+r)}")
    P0 = 96
    for rt in range(2):
        for tp in range(4):
            pk = P0 + 16 * rt + 4 * tp
            src = W0 + 28 * rt + 8 * tp
            A(f"v_cvt_pk_bf16_f32 {v(pk)}, {v(src)}, {v(src+1)}")
            A(f"v_cvt_pk_bf16_f32 {v(pk+1)}, {v(src+2)}, {v(src+3)}")
            if tp < 3:
                A(f"v_cvt_pk_bf16_f32 {v(pk+2)}, {v(src+4)}, {v(src+5)}")
                A(f"v_cvt_pk_bf16_f32 {v(pk+3)}, {v(src+6)}, {v(src+7)}")
            else:
                A(f"v_mov_b32 {v(pk+2)}, 0")
                A(f"v_mov_b32 {v(pk+3)}, 0")
            A(f"buffer_store_dwordx4 {v(pk,4)}, v12, s[28:31], s40 offen offset:{1024*rt+256*tp}")
    A("s_endpgm")
    A.label("k1_v")
    A.vm_restore(snap)
    big_mainloop(A, "nat", vb)
    A("s_and_b32 s41, s18, 3")
    A("s_lshl_b32 s41, s41, 19")
    A(f"s_add_u32 s40, s41, {WS_V}")
    A("s_lshl_b32 s41, s38, 6")
    A("s_add_u32 s40, s40, s41")
    for t in range(7):
        o = 12 + t
        A(f"v_add_u32 v20, {16*t}, {v(VI)}")
        A("v_mul_u32_u24 v21, 2341, v20")
        A("v_lshrrev_b32 v21, 16, v21")
        A("v_mul_u32_u24 v22, 28, v21")
        A("v_sub_u32 v22, v20, v22")
        A(f"v_lshlrev_b32 {v(o)}, 17, v21")
        A("v_lshrrev_b32 v23, 4, v22")
        A(f"v_lshl_add_u32 {v(o)}, v23, 10, {v(o)}")
        A("v_and_b32 v23, 15, v22")
        A(f"v_lshl_add_u32 {v(o)}, v23, 4, {v(o)}")
        A(f"v_lshl_add_u32 {v(o)}, {v(VG)}, 8, {v(o)}")
    A("s_nop 1")
    for rt in range(2):
        for t in range(7):
            for r in range(4):
                A(f"v_accvgpr_read_b32 {v(W0+28*rt+4*t+r)}, {a(acc(rt,t)+r)}")
    for t in range(7):
        pk = P0 + 4 * t
        for rt in range(2):
            src = W0 + 28 * rt + 4 * t
            A(f"v_cvt_pk_bf16_f32 {v(pk+2*rt)}, {v(src)}, {v(src+1)}")
            A(f"v_cvt_pk_bf16_f32 {v(pk+2*rt+1)}, {v(src+2)}, {v(src+3)}")
        A(f"buffer_store_dwordx4 {v(pk,4)}, {v(12+t)}, s[28:31], s40 offen")
    A("s_endpgm")
    A.label("k1_w1")
    for wv in range(1, 4):
        A(f"s_cmp_eq_u32 s19, {wv}")
        A(f"s_cbranch_scc1 k1_w1_{wv}")
    CS = 144
    for wv in range(4):
        if wv:
            A.label(f"k1_w1_{wv}")
        A.vm_restore(snap)
        big_mainloop(A, "pair", vb, stats=True, cs_tiles=[t for t in (wv, wv + 4) if t < 7])
        colsum_exchange(A, wv, VI, VG, CS, 12)
        if wv < 3:
            A("s_branch k1_w1_epi")
    A.label("k1_w1_epi")
    MR = [24, 26]
    RS = [28, 30]
    A(f"v_and_b32 v12, 3, {v(VI)}")
    A(f"v_lshrrev_b32 v13, 2, {v(VI)}")
    A(f"v_lshl_add_u32 v13, v13, 4, {v(VI)}")
    A("v_lshlrev_b32 v13, 2, v13")
    for rt in range(2):
        for r in range(4):
            A(f"v_accvgpr_read_b32 {v(16+r)}, {a(A_SQ+4*rt+r)}")
        A(f"v_accvgpr_read_b32 {v(MR[rt])}, {a(A_RS+4*rt)}")
        A("v_cmp_eq_u32 vcc, 1, v12")
        A("s_nop 1")
        A("v_cndmask_b32 v16, v16, v17, vcc")
        A("v_cmp_eq_u32 vcc, 2, v12")
        A("s_nop 1")
        A("v_cndmask_b32 v16, v16, v18, vcc")
        A("v_cmp_eq_u32 vcc, 3, v12")
        A("s_nop 1")
        A("v_cndmask_b32 v16, v16, v19, vcc")
        A(f"ds_bpermute_b32 {v(RS[rt])}, v13, v16")
        A("s_waitcnt lgkmcnt(0)")
        A(f"v_mul_f32 {v(MR[rt])}, {f32bits(1.0/448):#x}, {v(MR[rt])}")
        A(f"v_mul_f32 {v(RS[rt])}, {f32bits(1.0/448):#x}, {v(RS[rt])}")
        A(f"v_fma_f32 {v(RS[rt])}, -{v(MR[rt])}, {v(MR[rt])}, {v(RS[rt])}")
        A(f"v_max_f32 {v(RS[rt])}, 0, {v(RS[rt])}")
        ln_finish(A, MR[rt], RS[rt], 16)
        A(f"v_sub_f32 {v(MR[rt])}, 0, {v(MR[rt])}")
        A(f"v_mov_b32 {v(MR[rt]+1)}, {v(MR[rt])}")
        A(f"v_mov_b32 {v(RS[rt]+1)}, {v(RS[rt])}")
    C0, C1, ONE = 16, 18, 20
    for r in range(2):
        A(f"v_mov_b32 {v(C0+r)}, {f32bits(GELU_C0):#x}")
        A(f"v_mov_b32 {v(C1+r)}, {f32bits(GELU_C1):#x}")
        A(f"v_mov_b32 {v(ONE+r)}, 1.0")
    A("s_sub_u32 s40, s18, 12")
    A("s_lshr_b32 s41, s40, 1")
    A("s_add_u32 s41, s41, 1")
    A("s_sub_u32 s48, 0, s41")
    A("s_bitcmp1_b32 s40, 0")
    A("s_cselect_b32 s41, s48, s41")
    A("s_add_u32 s41, s41, s38")
    A.srd_off(44, 12, 13, WS_HS, ACT_BYTES)
    A("s_mul_i32 s48, s40, 3584")
    for rt in range(2):
        A(f"v_add_u32 v12, s41, {v(VI)}")
        if rt:
            A("v_add_u32 v12, 16, v12")
        A("v_lshrrev_b32 v13, 4, v12")
        A("v_mul_u32_u24 v13, 14336, v13")
        A("v_and_b32 v14, 15, v12")
        A("v_lshl_add_u32 v13, v14, 4, v13")
        A("v_cmp_gt_u32 vcc, 2048, v12")
        A("v_mov_b32 v14, 0x80000000")
        A("s_nop 0")
        A("v_cndmask_b32 v13, v14, v13, vcc")
        A(f"v_lshl_add_u32 {v(4+rt)}, {v(VG)}, 8, v13")
        A(f"v_lshrrev_b32 v14, 1, {v(VG)}")
        A("v_lshl_add_u32 v13, v14, 8, v13")
        A(f"v_and_b32 v14, 1, {v(VG)}")
        A(f"v_lshl_add_u32 {v(6+rt)}, v14, 3, v13")

    def st(rt, pk):
        for tp in range(3):
            A(f"buffer_store_dwordx4 {v(pk+4*tp,4)}, {v(4+rt)}, s[44:47], s48 offen offset:{1024*tp}")
        A(f"buffer_store_dwordx2 {v(pk+12,2)}, {v(6+rt)}, s[44:47], s48 offen offset:3072")

    gelu_epilogue(A, CS, MR, RS, (C0, C1, ONE), 176, 32, st)
    A("s_cmp_lg_u32 s19, 0")
    A(f"s_cbranch_scc1 {Lend}")
    A("s_bitcmp1_b32 s40, 0")
    A("s_cselect_b32 s49, 15, 0")
    A("s_cmp_lg_u32 s17, s49")
    A(f"s_cbranch_scc1 {Lend}")
    A("s_lshr_b32 s49, s40, 1")
    A("s_add_u32 s49, s49, 1")
    A("s_sub_u32 s50, 2048, s49")
    A("s_bitcmp1_b32 s40, 0")
    A("s_cselect_b32 s50, s50, 0")
    A("s_mul_i32 s49, s49, 14")
    A(f"v_mul_u32_u24 v12, 4682, {v(VL)}")
    A("v_lshrrev_b32 v12, 16, v12")
    A("v_mul_u32_u24 v13, 14, v12")
    A(f"v_sub_u32 v13, {v(VL)}, v13")
    A("v_add_u32 v12, s50, v12")
    A("v_lshrrev_b32 v14, 4, v12")
    A("v_mul_u32_u24 v14, 14336, v14")
    A("v_and_b32 v12, 15, v12")
    A("v_lshl_add_u32 v14, v12, 4, v14")
    A("v_lshl_add_u32 v14, v13, 8, v14")
    for r in range(4):
        A(f"v_mov_b32 {v(16+r)}, 0")
    A(f"v_cmp_gt_u32 vcc, s49, {v(VL)}")
    A("s_and_saveexec_b64 s[50:51], vcc")
    A("buffer_store_dwordx4 v[16:19], v14, s[44:47], s48 offen")
    A.label(Lend)
    A("s_endpgm")
    return name, A.text(), ACC_OFF + N_AGPR, ACC_OFF, 256, LDS_W_BYTES + 512


def small_dma_voff(A, vl, dst, t0, t1, pitch):
    A(f"v_mul_u32_u24 {v(t0)}, 9363, {v(vl)}")
    A(f"v_lshrrev_b32 {v(t0)}, 16, {v(t0)}")
    A(f"v_mul_u32_u24 {v(t1)}, 7, {v(t0)}")
    A(f"v_sub_u32 {v(t1)}, {v(vl)}, {v(t1)}")
    A(f"v_lshrrev_b32 {v(dst)}, 1, {v(t0)}")
    A(f"v_and_b32 {v(t0)}, 1, {v(t0)}")
    A(f"v_lshl_add_u32 {v(dst)}, {v(t0)}, 2, {v(dst)}")
    A(f"v_mul_u32_u24 {v(dst)}, {pitch}, {v(dst)}")
    A(f"v_lshl_add_u32 {v(dst)}, {v(t1)}, 4, {v(dst)}")


def small_tr_base(A, vi, vg, dst, t0, ldsbase):
    A(f"v_lshrrev_b32 {v(t0)}, 2, {v(vi)}")
    A(f"v_lshl_add_u32 {v(t0)}, {v(vg)}, 2, {v(t0)}")
    A(f"v_mul_u32_u24 {v(dst)}, 224, {v(t0)}")
    A(f"v_and_b32 {v(t0)}, 3, {v(vi)}")
    A(f"v_lshl_add_u32 {v(dst)}, {v(t0)}, 4, {v(dst)}")
    if ldsbase:
        A(f"v_add_u32 {v(dst)}, {ldsbase}, {v(dst)}")


def small_tr_reads(A, vbase, off, dst):
    for t in range(4):
        for hh in range(2):
            A(f"ds_read_b64_tr_b16 {v(dst+4*t+2*hh,2)}, {v(vbase)} offset:{off + hh*112 + 64*(t//2) + 8*(t&1)}")


def small_gemm(A, vbase, af, wfb, accf):
    small_tr_reads(A, vbase, 0, wfb)
    for sx in range(14):
        if sx < 13:
            small_tr_reads(A, vbase, (sx + 1) * 3584, wfb + 16 * ((sx + 1) & 1))
            A("s_waitcnt lgkmcnt(8)")
        else:
            A("s_waitcnt lgkmcnt(0)")
        for t in range(4):
            c = accf(t)
            A(f"v_mfma_f32_16x16x32_bf16 {c}, {v(wfb+16*(sx&1)+4*t,4)}, {v(af(sx),4)}, {c}")


L2_K, L2_V, L2_W = 0, 24576, 49152
NEGBIG = f32bits(-1e30)


def gen_k2():
    A = Asm()
    name = "k2_kernel"
    Lend = "k2_end"
    A("s_cmp_ge_u32 s2, 256")
    A(f"s_cbranch_scc1 {Lend}")
    A("s_load_dwordx2 s[4:5], s[0:1], 0")
    A("s_load_dwordx2 s[6:7], s[0:1], 40")
    A("s_load_dwordx2 s[12:13], s[0:1], 88")
    VL, VI, VG = 1, 2, 3
    lane_setup(A, VL, VI, VG, 19)
    A("s_and_b32 s14, s2, 7")
    A("s_lshr_b32 s15, s2, 3")
    A(f"v_lshlrev_b32 v7, 4, {v(VL)}")
    A("s_waitcnt lgkmcnt(0)")
    A.srd(28, 12, 13, WS_SIZE)
    A("s_cmp_ge_u32 s19, 8")
    A("s_cbranch_scc1 k2_gemm")
    A("s_lshr_b32 s16, s15, 4")
    A("s_lshl_b32 s17, s14, 1")
    A("s_add_u32 s17, s17, s16")
    A("s_and_b32 s18, s15, 15")
    A("s_lshl_b32 s20, s18, 17")
    A("s_lshl_b32 s21, s17, 13")
    A("s_add_u32 s20, s20, s21")
    A("s_mul_i32 s21, s19, 3072")
    A("s_add_u32 s22, s20, s21")
    A(f"s_add_u32 s23, s22, {WS_V - 16384}")
    A(f"s_add_u32 s22, s22, {WS_K - 16384}")
    A("s_mov_b32 m0, s21")
    A("s_lshl_b32 s24, s19, 10")
    A("s_add_u32 s24, s24, s20")
    for j in range(3):
        A.vmem(f"buffer_load_dwordx4 v7, s[28:31], s22 offen offset:{1024*j} lds", "kv")
    A(f"s_add_u32 m0, s21, {L2_V}")
    A("s_nop 0")
    for j in range(3):
        A.vmem(f"buffer_load_dwordx4 v7, s[28:31], s23 offen offset:{1024*j} lds", "kv")
    QF, C0, C16, FB, SC, PB, TM, OA = 8, 12, 16, 20, 36, 104, 140, 160
    A.vmem(f"buffer_load_dwordx4 {v(QF,4)}, v7, s[28:31], s24 offen", "kv")
    for r in range(4):
        A(f"v_lshl_add_u32 {v(TM)}, {v(VG)}, 2, {r}")
        A(f"v_mov_b32 {v(TM+1)}, {NEGBIG:#x}")
        A(f"v_cmp_gt_u32 vcc, {v(TM)}, {v(VI)}")
        A("s_nop 1")
        A(f"v_cndmask_b32 {v(C0+r)}, {v(TM+1)}, 0, vcc")
        A(f"v_cndmask_b32 {v(C16+r)}, 0, {v(TM+1)}, vcc")
    A("s_lshl_b32 s25, s19, 10")
    A("v_add_u32 v4, s25, v7")
    A("s_lshr_b32 s25, s19, 1")
    A("s_lshl_b32 s25, s25, 11")
    A(f"s_add_u32 s25, s25, {L2_V}")
    A("v_add_u32 v5, s25, v7")
    A("s_lshl_b32 s25, s17, 3")
    A("s_add_u32 s25, s25, s19")
    A("s_sub_i32 s25, 16, s25")
    A("s_mul_i32 s26, s18, 7")
    A(f"v_add_u32 v6, s26, {v(VG)}")
    A(f"v_and_b32 {v(TM)}, 1, v6")
    A("v_lshrrev_b32 v6, 1, v6")
    A("v_lshlrev_b32 v6, 8, v6")
    A(f"v_lshl_add_u32 v6, {v(TM)}, 3, v6")
    A(f"v_lshl_add_u32 v6, {v(VI)}, 4, v6")
    A("s_lshl_b32 s26, s17, 3")
    A("s_add_u32 s26, s26, s19")
    A(f"s_mul_i32 s26, s26, {RT_BYTES}")
    A(f"s_add_u32 s26, s26, {WS_O}")
    KSC, KL, NB = TM + 16, TM + 17, TM + 18
    A(f"v_mov_b32 {v(KSC)}, {f32bits(SCALE):#x}")
    A(f"v_mov_b32 {v(KL)}, {f32bits(LOG2E):#x}")
    for r in range(8):
        A(f"v_mov_b32 {v(OA+r)}, 0")
    A("s_waitcnt vmcnt(0)")
    A("s_barrier")
    for i in range(3):
        A(f"ds_read_b128 {v(FB+4*(i%4),4)}, v4 offset:{1024*i}")
    for i in range(17):
        if i + 3 < 17:
            A(f"ds_read_b128 {v(FB+4*((i+3)%4),4)}, v4 offset:{1024*(i+3)}")
        A(f"s_waitcnt lgkmcnt({min(3, 16-i)})")
        c = v(C0, 4) if i == 0 else (v(C16, 4) if i == 16 else "0")
        if i < 16:
            l1, l2 = A.newlabel("k2i"), A.newlabel("k2j")
            A(f"s_cmp_gt_i32 s25, {i}")
            A(f"s_cbranch_scc1 {l1}")
        A(f"v_mfma_f32_16x16x32_bf16 {v(SC+4*i,4)}, {v(FB+4*(i%4),4)}, {v(QF,4)}, {c}")
        if i < 16:
            A(f"s_branch {l2}")
            A.label(l1)
            for r in range(4):
                A(f"v_mov_b32 {v(SC+4*i+r)}, {NEGBIG:#x}")
            A.label(l2)
    A("s_barrier")
    A("s_nop 4")
    M = TM
    A(f"v_max3_f32 {v(M)}, {v(SC)}, {v(SC+1)}, {v(SC+2)}")
    A(f"v_max3_f32 {v(M+1)}, {v(SC+3)}, {v(SC+4)}, {v(SC+5)}")
    idx = 6
    k = 0
    while idx < 68:
        A(f"v_max3_f32 {v(M+k)}, {v(M+k)}, {v(SC+idx)}, {v(SC+idx+1)}")
        idx += 2
        k ^= 1
    A(f"v_max_f32 {v(M)}, {v(M)}, {v(M+1)}")
    xlane_g(A, "v_max_f32", M, M + 1, M + 2)
    round_bf16(A, M, 0)
    A(f"v_mul_f32 {v(M)}, {v(KSC)}, {v(M)}")
    round_bf16(A, M, 0)
    A(f"v_mul_f32 {v(NB)}, {v(KL)}, {v(M)}")
    A(f"v_sub_f32 {v(NB)}, 0, {v(NB)}")
    for j in range(2):
        A(f"ds_read_b128 {v(FB+4*j,4)}, v5 offset:{1024*j}")
    SUM = [TM + 4, TM + 5, TM + 6, TM + 7]
    G4 = 8
    first = True
    for b0 in range(0, 68, G4):
        el = [SC + e for e in range(b0, min(68, b0 + G4))]
        for e in el:
            A(f"v_cvt_pk_bf16_f32 {v(e)}, 0, {v(e)}")
        for e in el:
            A(f"v_mul_f32 {v(e)}, {v(KSC)}, {v(e)}")
        for e in el:
            A(f"v_cvt_pk_bf16_f32 {v(e)}, 0, {v(e)}")
        for e in el:
            A(f"v_fma_f32 {v(e)}, {v(e)}, {v(KL)}, {v(NB)}")
        for e in el:
            A(f"v_exp_f32 {v(e)}, {v(e)}")
        for n, e in enumerate(el):
            if first and n < 4:
                A(f"v_mov_b32 {v(SUM[n%4])}, {v(e)}")
            else:
                A(f"v_add_f32 {v(SUM[n%4])}, {v(SUM[n%4])}, {v(e)}")
        first = False
    A(f"v_add_f32 {v(SUM[0])}, {v(SUM[0])}, {v(SUM[1])}")
    A(f"v_add_f32 {v(SUM[2])}, {v(SUM[2])}, {v(SUM[3])}")
    A(f"v_add_f32 {v(SUM[0])}, {v(SUM[0])}, {v(SUM[2])}")
    xlane_g(A, "v_add_f32", SUM[0], M + 1, M + 2)
    A(f"v_rcp_f32 {v(SUM[0])}, {v(SUM[0])}")
    A("s_nop 0")
    RL = SUM[0]
    A("s_bitcmp1_b32 s19, 0")
    A("s_cbranch_scc1 k2_odd")
    for par in range(2):
        if par:
            A.label("k2_odd")
        zs = 17 if par == 0 else 0
        A(f"v_mov_b32 {v(PB+2*zs)}, 0")
        A(f"v_mov_b32 {v(PB+2*zs+1)}, 0")
        nread = 2
        for c in range(9):
            for half in range(2):
                slot = 2 * c + half
                if slot == zs:
                    continue
                i = slot - par
                for r in range(4):
                    A(f"v_mul_f32 {v(SC+4*i+r)}, {v(RL)}, {v(SC+4*i+r)}")
                A(f"v_cvt_pk_bf16_f32 {v(PB+2*slot)}, {v(SC+4*i)}, {v(SC+4*i+1)}")
                A(f"v_cvt_pk_bf16_f32 {v(PB+2*slot+1)}, {v(SC+4*i+2)}, {v(SC+4*i+3)}")
            while nread < min(18, 2 * c + 4):
                A(f"ds_read_b128 {v(FB+4*(nread%4),4)}, v5 offset:{1024*nread}")
                nread += 1
            A(f"s_waitcnt lgkmcnt({nread - (2*c+2)})")
            A("s_nop 0")
            for dt in range(2):
                A(f"v_mfma_f32_16x16x32_bf16 {v(OA+4*dt,4)}, {v(FB+4*((2*c+dt)%4),4)}, {v(PB+4*c,4)}, {v(OA+4*dt,4)}")
        if par == 0:
            A("s_branch k2_attn_out")
    A.label("k2_attn_out")
    A("s_nop 7")
    A("s_nop 1")
    A(f"v_cvt_pk_bf16_f32 {v(TM)}, {v(OA)}, {v(OA+1)}")
    A(f"v_cvt_pk_bf16_f32 {v(TM+1)}, {v(OA+2)}, {v(OA+3)}")
    A(f"v_cvt_pk_bf16_f32 {v(TM+2)}, {v(OA+4)}, {v(OA+5)}")
    A(f"v_cvt_pk_bf16_f32 {v(TM+3)}, {v(OA+6)}, {v(OA+7)}")
    A(f"buffer_store_dwordx2 {v(TM,2)}, v6, s[28:31], s26 offen")
    A("s_mov_b32 exec_hi, 0x0000ffff")
    A(f"buffer_store_dwordx2 {v(TM+2,2)}, v6, s[28:31], s26 offen offset:512")
    A("s_endpgm")
    A.label("k2_gemm")
    A.vm_restore([])
    A("s_sub_u32 s19, s19, 8")
    A("s_lshr_b32 s16, s15, 3")
    A("s_lshl_b32 s17, s14, 2")
    A("s_add_u32 s17, s17, s16")
    A("s_and_b32 s18, s15, 7")
    A.srd(20, 4, 5, ACT_BYTES)
    A.srd(24, 6, 7, D * D * 2)
    A("s_lshl_b32 s32, s17, 2")
    A("s_add_u32 s32, s32, s19")
    A(f"s_mul_i32 s33, s32, {RT_BYTES}")
    A(f"s_add_u32 s34, s33, {WS_HS}")
    for j in range(1, 4):
        A(f"s_add_u32 s{34+j}, s34, {4096*j}")
    AF, WFB, AC, XR = 32, 88, 120, 136
    small_dma_voff(A, VL, 5, 8, 9, 896)
    A("s_mul_i32 s38, s18, 112")
    A(f"s_mul_i32 s39, s19, {14*8*896}")
    A("s_add_u32 s38, s38, s39")
    A(f"s_mul_i32 s39, s19, {14*896}")
    A(f"s_add_u32 s39, s39, {L2_W}")
    set_exec56(A)
    for u in range(14):
        A("s_mov_b32 m0, s39")
        A("s_add_u32 s39, s39, 896")
        A.vmem("buffer_load_dwordx4 v5, s[24:27], s38 offen lds", "w")
        A(f"s_add_u32 s38, s38, {8*896}")
    set_exec_all(A)
    for sx in range(14):
        A.vmem(f"buffer_load_dwordx4 {v(AF+4*sx,4)}, v7, s[28:31], s{34+sx//4} offen offset:{1024*(sx%4)}", "a")
    A("s_lshl_b32 s40, s32, 4")
    A(f"v_add_u32 v8, s40, {v(VI)}")
    A("v_mul_u32_u24 v9, 896, v8")
    A(f"v_lshl_add_u32 v9, {v(VG)}, 4, v9")
    A("s_mul_i32 s40, s18, 112")
    A.vmem(f"buffer_load_dwordx4 {v(XR,4)}, v9, s[20:23], s40 offen", "x")
    A.vmem(f"buffer_load_dwordx4 {v(XR+4,4)}, v9, s[20:23], s40 offen offset:64", "x")
    for r in range(16):
        A(f"v_mov_b32 {v(AC+r)}, 0")
    small_tr_base(A, VI, VG, 6, 10, L2_W)
    A("s_barrier")
    A.vm_wait("w")
    A("s_barrier")
    A.vm_wait("a")
    small_gemm(A, 6, lambda sx: AF + 4 * sx, WFB, lambda t: v(AC + 4 * t, 4))
    A.vm_wait("x")
    A("s_nop 7")
    XU = 32
    for j in range(8):
        A(f"v_lshlrev_b32 {v(XU+2*j)}, 16, {v(XR+j)}")
        A(f"v_and_b32 {v(XU+2*j+1)}, 0xffff0000, {v(XR+j)}")
    for r in range(16):
        A(f"v_cvt_pk_bf16_f32 {v(AC+r)}, 0, {v(AC+r)}")
    for r in range(16):
        A(f"v_add_f32 {v(AC+r)}, {v(AC+r)}, {v(XU+r)}")
    PK = 48
    for j in range(8):
        A(f"v_cvt_pk_bf16_f32 {v(PK+j)}, {v(AC+2*j)}, {v(AC+2*j+1)}")
    for r in range(16):
        A(f"v_cvt_pk_bf16_f32 {v(AC+r)}, 0, {v(AC+r)}")
    A(f"v_lshlrev_b32 v10, 8, {v(VG)}")
    A(f"v_lshl_add_u32 v10, {v(VI)}, 4, v10")
    A("s_mul_i32 s40, s18, 1792")
    A("s_add_u32 s40, s40, s33")
    A(f"s_add_u32 s40, s40, {WS_X1}")
    A(f"buffer_store_dwordx4 {v(PK,4)}, v10, s[28:31], s40 offen")
    A("s_mov_b32 exec_hi, 0x0000ffff")
    A(f"buffer_store_dwordx4 {v(PK+4,4)}, v10, s[28:31], s40 offen offset:1024")
    A("s_mov_b64 exec, -1")
    A(f"v_add_f32 v12, {v(AC)}, {v(AC+1)}")
    for r in range(2, 8):
        A(f"v_add_f32 v12, v12, {v(AC+r)}")
    A("s_mov_b32 exec_hi, 0x0000ffff")
    for r in range(8, 16):
        A(f"v_add_f32 v12, v12, {v(AC+r)}")
    A("s_mov_b64 exec, -1")
    xlane_g(A, "v_add_f32", 12, 14, 15)
    A(f"v_mul_f32 v14, {f32bits(1.0/56):#x}, v12")
    for r in range(16):
        A(f"v_sub_f32 {v(AC+r)}, {v(AC+r)}, v14")
    A(f"v_mul_f32 v13, {v(AC)}, {v(AC)}")
    for r in range(1, 8):
        A(f"v_fmac_f32 v13, {v(AC+r)}, {v(AC+r)}")
    A("s_mov_b32 exec_hi, 0x0000ffff")
    for r in range(8, 16):
        A(f"v_fmac_f32 v13, {v(AC+r)}, {v(AC+r)}")
    A("s_mov_b64 exec, -1")
    xlane_g(A, "v_add_f32", 13, 14, 15)
    A("v_lshlrev_b32 v8, 6, v8")
    A("s_lshl_b32 s40, s18, 3")
    A(f"s_add_u32 s40, s40, {WS_ST}")
    A("s_mov_b64 exec, 0xffff")
    A("buffer_store_dwordx2 v[12:13], v8, s[28:31], s40 offen")
    A.label(Lend)
    A("s_endpgm")
    return name, A.text(), 168, 168, 768, L2_W + 14 * 3584


def gen_k3():
    A = Asm()
    name = "k3_kernel"
    Lend = "k3_end"
    A("s_cmp_ge_u32 s2, 256")
    A(f"s_cbranch_scc1 {Lend}")
    A("s_load_dwordx2 s[6:7], s[0:1], 48")
    A("s_load_dwordx2 s[12:13], s[0:1], 88")
    VL, VI, VG = 1, 2, 3
    lane_setup(A, VL, VI, VG, 19)
    A("s_and_b32 s14, s2, 7")
    A("s_lshr_b32 s15, s2, 3")
    A("s_lshr_b32 s16, s15, 4")
    A("s_lshl_b32 s17, s14, 1")
    A("s_add_u32 s17, s17, s16")
    A("s_and_b32 s18, s15, 15")
    PITCH = F * 2
    A("s_mul_i32 s33, s18, 224")
    A(f"s_mul_i32 s34, s19, {8*PITCH}")
    A("s_add_u32 s34, s34, s33")
    A(f"s_mov_b32 s36, {4*PITCH}")
    A(f"s_mov_b32 s37, {28*PITCH}")
    A("s_mul_i32 s35, s19, 896")
    A(f"v_mul_u32_u24 v12, 4682, {v(VL)}")
    A("v_lshrrev_b32 v12, 16, v12")
    A("v_mul_u32_u24 v13, 14, v12")
    A(f"v_sub_u32 v13, {v(VL)}, v13")
    A(f"v_mul_u32_u24 v5, {PITCH}, v12")
    A("v_lshl_add_u32 v5, v13, 4, v5")
    A(f"v_lshlrev_b32 v4, 4, {v(VL)}")
    A("s_lshl_b32 s38, s17, 3")
    A("s_lshl_b32 s39, s19, 1")
    A("s_add_u32 s38, s38, s39")
    A(f"s_mul_i32 s39, s38, {RT_BYTES}")
    A(f"s_add_u32 s48, s39, {WS_X1}")
    for j in range(1, 8):
        A(f"s_add_u32 s{48+j}, s48, {4096*(j%4) + RT_BYTES*(j//4)}")
    A("s_lshl_b32 s40, s38, 4")
    A(f"v_add_u32 v14, s40, {v(VI)}")
    A("v_lshlrev_b32 v14, 6, v14")
    A(f"v_lshl_add_u32 v14, {v(VG)}, 4, v14")
    A(f"s_mov_b32 s40, {WS_ST}")
    vb = big_tr_bases(A, VI, VG, 12, 13)
    A("s_waitcnt lgkmcnt(0)")
    A.srd(24, 6, 7, D * F * 2)
    A.srd(28, 12, 13, WS_SIZE)
    for sx in range(14):
        set_exec_all(A)
        for rt in range(2):
            A.vmem(f"buffer_load_dwordx4 {v(xf(sx,rt),4)}, v4, s[28:31], s{48+4*rt+sx//4} offen offset:{1024*(sx%4)}", ("ld", sx))
        set_exec56(A)
        big_w_dma(A, sx, 24, 5, 34, 35, 36)
    set_exec_all(A)
    A.vmem("buffer_load_dwordx4 v[16:19], v14, s[28:31], s40 offen", "st")
    A.vmem("buffer_load_dwordx4 v[20:23], v14, s[28:31], s40 offen offset:1024", "st")
    big_zero_acc(A, N_AGPR)
    for r in range(4):
        A(f"v_mov_b32 {v(ONES+r)}, 0x3f803f80")
    snap = A.vm_snapshot()
    for wv in range(1, 4):
        A(f"s_cmp_eq_u32 s19, {wv}")
        A(f"s_cbranch_scc1 k3_w{wv}")
    CS = 144
    for wv in range(4):
        if wv:
            A.label(f"k3_w{wv}")
        A.vm_restore(snap)
        big_mainloop(A, "pair", vb, stats=False, cs_tiles=[t for t in (wv, wv + 4) if t < 7])
        colsum_exchange(A, wv, VI, VG, CS, 4)
        if wv < 3:
            A("s_branch k3_epi")
    A.label("k3_epi")
    A("s_waitcnt vmcnt(0)")
    MR = [24, 26]
    RS = [28, 30]
    for rt in range(2):
        b = 16 + 4 * rt
        m, q = MR[rt], RS[rt]
        A(f"v_add_f32 {v(m)}, {v(b)}, {v(b+2)}")
        xlane_g(A, "v_add_f32", m, 12, 13)
        A(f"v_mul_f32 {v(m)}, {f32bits(1.0/448):#x}, {v(m)}")
        A(f"v_add_f32 {v(q)}, {v(b+1)}, {v(b+3)}")
        A(f"v_mul_f32 {v(b)}, {f32bits(1.0/56):#x}, {v(b)}")
        A(f"v_mul_f32 {v(b+2)}, {f32bits(1.0/56):#x}, {v(b+2)}")
        A(f"v_sub_f32 {v(b)}, {v(b)}, {v(m)}")
        A(f"v_sub_f32 {v(b+2)}, {v(b+2)}, {v(m)}")
        A(f"v_mul_f32 {v(b)}, {v(b)}, {v(b)}")
        A(f"v_fmac_f32 {v(b)}, {v(b+2)}, {v(b+2)}")
        A(f"v_fmamk_f32 {v(q)}, {v(b)}, {f32bits(56.0):#x}, {v(q)}")
        xlane_g(A, "v_add_f32", q, 12, 13)
        A(f"v_mul_f32 {v(q)}, {f32bits(1.0/448):#x}, {v(q)}")
        ln_finish(A, m, q, 12)
        A(f"v_sub_f32 {v(m)}, 0, {v(m)}")
        A(f"v_mov_b32 {v(m+1)}, {v(m)}")
        A(f"v_mov_b32 {v(q+1)}, {v(q)}")
    C0, C1, ONE = 16, 18, 20
    for r in range(2):
        A(f"v_mov_b32 {v(C0+r)}, {f32bits(GELU_C0):#x}")
        A(f"v_mov_b32 {v(C1+r)}, {f32bits(GELU_C1):#x}")
        A(f"v_mov_b32 {v(ONE+r)}, 1.0")
    A(f"v_lshlrev_b32 v4, 4, {v(VI)}")
    A(f"v_lshrrev_b32 v12, 1, {v(VG)}")
    A("v_lshl_add_u32 v5, v12, 8, v4")
    A(f"v_and_b32 v12, 1, {v(VG)}")
    A("v_lshl_add_u32 v5, v12, 3, v5")
    A(f"v_lshl_add_u32 v4, {v(VG)}, 8, v4")
    A(f"s_mul_i32 s40, s38, {H3_RT_BYTES}")
    A("s_mul_i32 s41, s18, 3584")
    A("s_add_u32 s40, s40, s41")
    A(f"s_add_u32 s40, s40, {WS_H3}")
    A(f"s_add_u32 s41, s40, {H3_RT_BYTES}")
    A("s_waitcnt lgkmcnt(0)")

    def st(rt, pk):
        for tp in range(3):
            A(f"buffer_store_dwordx4 {v(pk+4*tp,4)}, v4, s[28:31], s{40+rt} offen offset:{1024*tp}")
        A(f"buffer_store_dwordx2 {v(pk+12,2)}, v5, s[28:31], s{40+rt} offen offset:3072")

    gelu_epilogue(A, CS, MR, RS, (C0, C1, ONE), 176, 32, st)
    A.label(Lend)
    A("s_endpgm")
    return name, A.text(), ACC_OFF + N_AGPR, ACC_OFF, 256, LDS_W_BYTES + 512


RING = 7 * 3584
L4_WO = 4 * RING


def gen_k4():
    A = Asm()
    name = "k4_kernel"
    Lend = "k4_end"
    A("s_cmp_ge_u32 s2, 256")
    A(f"s_cbranch_scc1 {Lend}")
    A("s_load_dwordx2 s[4:5], s[0:1], 16")
    A("s_load_dwordx2 s[6:7], s[0:1], 56")
    A("s_load_dwordx2 s[8:9], s[0:1], 72")
    A("s_load_dwordx2 s[12:13], s[0:1], 88")
    VL, VI, VG = 1, 2, 3
    lane_setup(A, VL, VI, VG, 19)
    A("s_and_b32 s14, s2, 7")
    A("s_lshr_b32 s15, s2, 3")
    A("s_lshr_b32 s16, s15, 3")
    A("s_lshl_b32 s17, s14, 2")
    A("s_add_u32 s17, s17, s16")
    A("s_and_b32 s18, s15, 7")
    AFB, WFB, OFB, XR, GR = 32, 144, 176, 232, 240
    ACCO = 248
    af = lambda sx, rt: AFB + ((sx % 7) * 4 + rt) * 4
    ac = lambda rt, t: a((rt * 4 + t) * 4, 4)
    AWO = 64
    A(f"v_lshlrev_b32 v8, 4, {v(VL)}")
    for m in range(1, 4):
        A(f"v_add_u32 v{8+m}, {4096*m}, v8")
    small_dma_voff(A, VL, 5, 12, 13, 896)
    A(f"s_mul_i32 s32, s17, {4*H3_RT_BYTES}")
    A(f"s_mul_i32 s33, s19, {14*1024}")
    A("s_add_u32 s32, s32, s33")
    A(f"s_add_u32 s32, s32, {WS_H3}")
    for rt in range(1, 4):
        A(f"s_add_u32 s{32+rt}, s32, {rt*H3_RT_BYTES}")
    A("s_mul_i32 s38, s18, 112")
    A(f"s_mul_i32 s36, s19, {448*896}")
    A("s_add_u32 s36, s36, s38")
    A(f"s_mul_i32 s37, s19, {RING}")
    A(f"s_mul_i32 s39, s19, {14*8*896}")
    A("s_add_u32 s38, s38, s39")
    A(f"s_mul_i32 s39, s19, {14*896}")
    A(f"s_add_u32 s39, s39, {L4_WO}")
    A("s_lshl_b32 s40, s17, 2")
    A("s_add_u32 s40, s40, s19")
    A(f"s_mul_i32 s41, s40, {RT_BYTES}")
    A(f"s_add_u32 s42, s41, {WS_O}")
    A("s_mul_i32 s43, s18, 1792")
    A("s_add_u32 s43, s43, s41")
    A(f"s_add_u32 s43, s43, {WS_X1}")
    A("s_lshl_b32 s44, s40, 4")
    A(f"v_add_u32 v14, s44, {v(VI)}")
    A("v_lshlrev_b32 v15, 2, v14")
    A(f"s_mov_b32 s45, {WS_G}")
    A(f"v_lshlrev_b32 v16, 8, {v(VG)}")
    A(f"v_lshl_add_u32 v16, {v(VI)}, 4, v16")
    small_tr_base(A, VI, VG, 6, 12, 0)
    A(f"v_add_u32 v7, {L4_WO}, v6")
    A("v_add_u32 v6, s37, v6")
    A("s_waitcnt lgkmcnt(0)")
    A.srd(20, 4, 5, D * D * 2)
    A.srd(24, 6, 7, F * D * 2)
    A.srd(28, 12, 13, WS_SIZE)
    A.srd(48, 8, 9, ACT_BYTES)

    def issue(sx):
        for rt in range(4):
            A.vmem(f"buffer_load_dwordx4 {v(af(sx,rt),4)}, v{8+sx//4}, s[28:31], s{32+rt} offen offset:{1024*(sx%4)}", ("ld", sx))
        set_exec56(A)
        for j in range(4):
            A(f"s_add_u32 m0, s37, {(sx%7)*3584 + j*896}")
            A("s_nop 0")
            A.vmem("buffer_load_dwordx4 v5, s[24:27], s36 offen lds", ("ld", sx))
            A(f"s_add_u32 s36, s36, {8*896}")
        set_exec_all(A)

    extra = []
    for u in range(14):
        extra.append(("wo", u))
    for sx in range(14):
        extra.append(("of", sx))
    extra += [("x1", 0), ("x1", 1), ("g", 0)]

    def issue_extra(n):
        for _ in range(n):
            if not extra:
                return
            kind, u = extra.pop(0)
            if kind == "wo":
                set_exec56(A)
                A("s_mov_b32 m0, s39")
                A("s_add_u32 s39, s39, 896")
                A.vmem("buffer_load_dwordx4 v5, s[20:23], s38 offen lds", "wo")
                A(f"s_add_u32 s38, s38, {8*896}")
                set_exec_all(A)
            elif kind == "of":
                A.vmem(f"buffer_load_dwordx4 {v(OFB+4*u,4)}, v{8+u//4}, s[28:31], s42 offen offset:{1024*(u%4)}", "of")
            elif kind == "x1":
                A.vmem(f"buffer_load_dwordx4 {v(XR+4*u,4)}, v16, s[28:31], s43 offen offset:{1024*u}", "ep")
            else:
                A.vmem(f"buffer_load_dword {v(GR)}, v15, s[28:31], s45 offen", "ep")

    for sx in range(7):
        issue(sx)
    for i in range(80):
        A(f"v_accvgpr_write_b32 {a(i)}, 0")
    A.vm_wait(("ld", 0))
    small_tr_reads(A, 6, 0, WFB)
    for sx in range(14):
        if sx < 13:
            A.vm_wait(("ld", sx + 1))
            small_tr_reads(A, 6, ((sx + 1) % 7) * 3584, WFB + 16 * ((sx + 1) & 1))
            A("s_waitcnt lgkmcnt(8)")
        else:
            A("s_waitcnt lgkmcnt(0)")
        for rt in range(4):
            for t in range(4):
                A(f"v_mfma_f32_16x16x32_bf16 {ac(rt,t)}, {v(WFB+16*(sx&1)+4*t,4)}, {v(af(sx,rt),4)}, {ac(rt,t)}")
        if sx + 7 < 14:
            issue(sx + 7)
        else:
            issue_extra(5)
    assert not extra
    A("v_add_u32 v12, s37, v8")
    A("s_nop 7")
    for rt in range(4):
        for t in range(4):
            A(f"ds_write_b128 v12, {ac(rt,t)} offset:{(rt*4+t)*1024}")
    A.vm_wait("wo", " lgkmcnt(0)")
    A("s_barrier")
    A("s_lshl_b32 s46, s19, 12")
    A("v_add_u32 v12, s46, v8")
    A(f"v_add_u32 v13, {2*RING}, v12")
    RB = 32
    for w2 in range(4):
        for t in range(4):
            A(f"ds_read_b128 {v(RB+16*w2+4*t,4)}, v{12+w2//2} offset:{(w2%2)*RING + 1024*t}")
    A.vm_wait("of")
    small_gemm(A, 7, lambda sx: OFB + 4 * sx, WFB, lambda t: a(AWO + 4 * t, 4))
    for r in range(16):
        A(f"v_add_f32 {v(RB+r)}, {v(RB+r)}, {v(RB+16+r)}")
        A(f"v_add_f32 {v(RB+32+r)}, {v(RB+32+r)}, {v(RB+48+r)}")
    for r in range(16):
        A(f"v_add_f32 {v(RB+r)}, {v(RB+r)}, {v(RB+32+r)}")
    A.vm_wait("ep")
    XU, AU = 48, 64
    for r in range(16):
        A(f"v_cvt_pk_bf16_f32 {v(RB+r)}, 0, {v(RB+r)}")
    for j in range(8):
        A(f"v_lshlrev_b32 {v(XU+2*j)}, 16, {v(XR+j)}")
        A(f"v_and_b32 {v(XU+2*j+1)}, 0xffff0000, {v(XR+j)}")
    for r in range(16):
        A(f"v_accvgpr_read_b32 {v(AU+r)}, {a(AWO+r)}")
    A(f"v_sub_f32 v12, 1.0, {v(GR)}")
    A("v_cvt_pk_bf16_f32 v12, 0, v12")
    for r in range(16):
        A(f"v_add_f32 {v(RB+r)}, {v(RB+r)}, {v(XU+r)}")
    for r in range(16):
        A(f"v_cvt_pk_bf16_f32 {v(AU+r)}, 0, {v(AU+r)}")
    for r in range(16):
        A(f"v_cvt_pk_bf16_f32 {v(RB+r)}, 0, {v(RB+r)}")
    for r in range(16):
        A(f"v_mul_f32 {v(AU+r)}, {v(GR)}, {v(AU+r)}")
        A(f"v_mul_f32 {v(RB+r)}, v12, {v(RB+r)}")
    for r in range(16):
        A(f"v_cvt_pk_bf16_f32 {v(AU+r)}, 0, {v(AU+r)}")
        A(f"v_cvt_pk_bf16_f32 {v(RB+r)}, 0, {v(RB+r)}")
    for r in range(16):
        A(f"v_add_f32 {v(RB+r)}, {v(RB+r)}, {v(AU+r)}")
    for j in range(8):
        A(f"v_cvt_pk_bf16_f32 {v(XU+j)}, {v(RB+2*j)}, {v(RB+2*j+1)}")
    A("v_mul_u32_u24 v14, 896, v14")
    A(f"v_lshl_add_u32 v14, {v(VG)}, 4, v14")
    A("s_mul_i32 s46, s18, 112")
    A(f"buffer_store_dwordx4 {v(XU,4)}, v14, s[48:51], s46 offen")
    A("s_mov_b32 exec_hi, 0x0000ffff")
    A(f"buffer_store_dwordx4 {v(XU+4,4)}, v14, s[48:51], s46 offen offset:64")
    A.label(Lend)
    A("s_endpgm")
    return name, A.text(), ACCO + 80, ACCO, 256, L4_WO + 14 * 3584


KERNELS = [gen_k1, gen_k2, gen_k3, gen_k4]


def build(kernels):
    hdr = open("gated_mix__sliding_block__mixer_s_mlp__prompt.s.ref").read().split("; Override launch")[0]
    out = hdr
    gens = [g() for g in kernels]
    for name, txt, vg, acc_off, block, lds in gens:
        out += f"; @launch kernel={name} grid=(256,1,1) block=({block},1,1) lds={lds}\n"
    out += '.amdgcn_target "amdgcn-amd-amdhsa--gfx950"\n.text\n'
    for name, txt, vg, acc_off, block, lds in gens:
        out += kernel_head(name) + txt
    out += '.section .rodata,"a"\n'
    for name, txt, vg, acc_off, block, lds in gens:
        out += kernel_desc(name, vg, acc_off)
    return out


if __name__ == "__main__":
    dst = sys.argv[1] if len(sys.argv) > 1 else "gated_mix__sliding_block__mixer_s_mlp__prompt.s"
    open(dst, "w").write(build(KERNELS))
    print("wrote", dst)
```

```python
import math
import sys
from asmlib import Asm, v, a, s, f32bits, kernel_desc, kernel_head

S, D, F = 2048, 448, 1792
MB = 1 << 20
WS_Q = 0
WS_K = 2 * MB
WS_V = 4 * MB
WS_HS = 6 * MB
WS_X1 = 8 * MB
WS_O = 10 * MB
WS_A = 12 * MB
WS_H3 = 16 * MB
WS_G = 24 * MB
WS_ST = 25 * MB
WS_SIZE = 32 * MB
ACT_BYTES = S * D * 2
RT_BYTES = 16 * D * 2
H3_RT_BYTES = 16 * F * 2

LOG2E = 1.4426950408889634
GELU_C0 = -2.0 * math.sqrt(2.0 / math.pi) * LOG2E
GELU_C1 = GELU_C0 * 0.044715
SCALE = 28 ** -0.5
MASK56 = (1 << 56) - 1


import os
STAMPS = os.environ.get("STAMPS", "0") == "1"
WS_DBG = 28 * MB
ST0 = 70


def stamp(A, i):
    if STAMPS:
        A(f"s_memrealtime s[{ST0+2*i}:{ST0+2*i+1}]")


def stamp_store(A, kidx, n, wave_sgpr=19):
    if not STAMPS:
        return
    A("s_waitcnt lgkmcnt(0)")
    A("s_mov_b64 exec, 1")
    A(f"s_lshl_b32 s90, s2, 9")
    A(f"s_lshl_b32 s91, s{wave_sgpr}, 5")
    A("s_add_u32 s90, s90, s91")
    A(f"s_add_u32 s90, s90, {WS_DBG + kidx*(1<<18)}")
    A("v_mov_b32 v1, 0")
    for i in range(n):
        A(f"v_mov_b32 v2, s{ST0+2*i}")
        A(f"buffer_store_dword v2, v1, s[28:31], s90 offen offset:{4*i}")


def set_exec56(A):
    A("s_mov_b32 exec_lo, -1")
    A("s_mov_b32 exec_hi, 0x00ffffff")


def set_exec_all(A):
    A("s_mov_b64 exec, -1")


def lane_setup(A, vl, vi, vg, swave):
    A(f"v_and_b32 {v(vl)}, 63, v0")
    A(f"v_lshrrev_b32 {v(vi)}, 6, v0")
    A("s_nop 0")
    A(f"v_readfirstlane_b32 {s(swave)}, {v(vi)}")
    if STAMPS:
        A(f"v_readfirstlane_b32 s92, {v(vi)}")
    A(f"v_and_b32 {v(vi)}, 15, {v(vl)}")
    A(f"v_lshrrev_b32 {v(vg)}, 4, {v(vl)}")


def xlane_g(A, op, x, t1, t2):
    A(f"v_mov_b32 {v(t1)}, {v(x)}")
    A(f"v_mov_b32 {v(t2)}, {v(x)}")
    A("s_nop 1")
    A(f"v_permlane16_swap_b32 {v(t1)}, {v(t2)}")
    A("s_nop 1")
    A(f"{op} {v(x)}, {v(t1)}, {v(t2)}")
    A(f"v_mov_b32 {v(t1)}, {v(x)}")
    A(f"v_mov_b32 {v(t2)}, {v(x)}")
    A("s_nop 1")
    A(f"v_permlane32_swap_b32 {v(t1)}, {v(t2)}")
    A("s_nop 1")
    A(f"{op} {v(x)}, {v(t1)}, {v(t2)}")


def round_bf16(A, x, t):
    A(f"v_cvt_pk_bf16_f32 {v(x)}, 0, {v(x)}")


def gelu_pairs(A, pairs, outs, tmp, c0, c1, one, pre_round=True):
    n = len(pairs)
    if pre_round:
        for i, p in enumerate(pairs):
            A(f"v_cvt_pk_bf16_f32 {v(p)}, 0, {v(p)}")
            A(f"v_cvt_pk_bf16_f32 {v(p+1)}, 0, {v(p+1)}")
    for i, p in enumerate(pairs):
        A(f"v_pk_mul_f32 {v(tmp+2*i,2)}, {v(p,2)}, {v(p,2)}")
    for i, p in enumerate(pairs):
        A(f"v_pk_fma_f32 {v(tmp+2*i,2)}, {v(tmp+2*i,2)}, {v(c1,2)}, {v(c0,2)}")
    for i, p in enumerate(pairs):
        A(f"v_pk_mul_f32 {v(tmp+2*i,2)}, {v(tmp+2*i,2)}, {v(p,2)}")
    for i, p in enumerate(pairs):
        A(f"v_exp_f32 {v(tmp+2*i)}, {v(tmp+2*i)}")
        A(f"v_exp_f32 {v(tmp+2*i+1)}, {v(tmp+2*i+1)}")
    if n == 1:
        A("s_nop 0")
    for i, p in enumerate(pairs):
        A(f"v_pk_add_f32 {v(tmp+2*i,2)}, {v(tmp+2*i,2)}, {v(one,2)}")
    for i, p in enumerate(pairs):
        A(f"v_rcp_f32 {v(tmp+2*i)}, {v(tmp+2*i)}")
        A(f"v_rcp_f32 {v(tmp+2*i+1)}, {v(tmp+2*i+1)}")
    if n == 1:
        A("s_nop 0")
    for i, p in enumerate(pairs):
        A(f"v_pk_mul_f32 {v(p,2)}, {v(p,2)}, {v(tmp+2*i,2)}")
    for i, p in enumerate(pairs):
        A(f"v_cvt_pk_bf16_f32 {v(outs[i])}, {v(p)}, {v(p+1)}")


def ln_finish(A, mean, var, t):
    round_bf16(A, mean, t)
    round_bf16(A, var, t)
    A(f"v_add_f32 {v(var)}, {f32bits(1e-5):#x}, {v(var)}")
    round_bf16(A, var, t)
    A(f"v_sqrt_f32 {v(var)}, {v(var)}")
    A("s_nop 0")
    round_bf16(A, var, t)
    A(f"v_rcp_f32 {v(var)}, {v(var)}")
    A("s_nop 0")


XF = 32
WF = 144
ONES = 200
ACC_OFF = 208
LDS_W = 0
LDS_W_BYTES = 14 * 7168
LDS_CS = LDS_W_BYTES


def xf(sx, rt):
    return XF + (sx * 2 + rt) * 4


def wf(buf, t):
    return WF + buf * 28 + t * 4


def acc(rt, t):
    return (rt * 7 + t) * 4


A_RS = 56
A_SQ = 64
A_CS = 72
N_AGPR = 80


def big_tr_reads(A, sx, mode, vb):
    buf = sx & 1
    hi = 1 if sx >= 7 else 0
    so = (sx - 7 * hi) * 7168
    for t in range(7):
        for hh in range(2):
            if mode == "qk":
                d0 = 8 * (t // 2) + 4 * (t & 1) if t < 6 else 24
                base, off = vb["qk"][hi], 2 * d0
            elif mode == "nat":
                base, off = vb["nat"][hi], 32 * t
            else:
                if t < 6:
                    base, off = vb["pair"][hi], 64 * (t // 2) + 8 * (t & 1)
                else:
                    base, off = vb["nat"][hi], 192
            A(f"ds_read_b64_tr_b16 {v(wf(buf,t)+2*hh,2)}, {v(base)} offset:{so + hh*3584 + off}")


def big_mfmas(sx, mode, stats, cs_tiles):
    buf = sx & 1
    out = []
    for t in range(7):
        for rt in range(2):
            c = a(acc(rt, t), 4)
            if mode == "nat":
                out.append(f"v_mfma_f32_16x16x32_bf16 {c}, {v(xf(sx,rt),4)}, {v(wf(buf,t),4)}, {c}")
            else:
                out.append(f"v_mfma_f32_16x16x32_bf16 {c}, {v(wf(buf,t),4)}, {v(xf(sx,rt),4)}, {c}")
    if stats:
        for rt in range(2):
            c = a(A_RS + 4 * rt, 4)
            out.append(f"v_mfma_f32_16x16x32_bf16 {c}, {v(ONES,4)}, {v(xf(sx,rt),4)}, {c}")
            c = a(A_SQ + 4 * rt, 4)
            out.append(f"v_mfma_f32_16x16x32_bf16 {c}, {v(xf(sx,rt),4)}, {v(xf(sx,rt),4)}, {c}")
    for i, t in enumerate(cs_tiles):
        c = a(A_CS + 4 * i, 4)
        out.append(f"v_mfma_f32_16x16x32_bf16 {c}, {v(wf(buf,t),4)}, {v(ONES,4)}, {c}")
    return out


def big_mainloop(A, mode, vb, stats=False, cs_tiles=()):
    A.vm_wait(("ld", 0))
    A("s_barrier")
    stamp(A, 2)
    big_tr_reads(A, 0, mode, vb)
    for sx in range(14):
        A("s_waitcnt lgkmcnt(0)")
        mf = big_mfmas(sx, mode, stats, cs_tiles)
        h = len(mf) // 2
        for m in mf[:h]:
            A(m)
        if sx < 13:
            A.vm_wait(("ld", sx + 1))
            A("s_barrier")
            big_tr_reads(A, sx + 1, mode, vb)
        for m in mf[h:]:
            A(m)
    stamp(A, 3)


def big_zero_acc(A, n):
    for i in range(n):
        A(f"v_accvgpr_write_b32 {a(i)}, 0")


def big_tr_bases(A, vi, vg, t0, t1):
    A(f"v_lshrrev_b32 {v(t0)}, 2, {v(vi)}")
    A(f"v_lshl_add_u32 {v(t0)}, {v(vg)}, 2, {v(t0)}")
    A(f"v_mul_u32_u24 {v(t0)}, 224, {v(t0)}")
    A(f"v_and_b32 {v(t1)}, 3, {v(vi)}")
    A(f"v_mul_u32_u24 {v(6)}, 56, {v(t1)}")
    A(f"v_add_u32 {v(6)}, {v(6)}, {v(t0)}")
    A(f"v_add_u32 {v(7)}, {7*7168}, {v(6)}")
    A(f"v_lshl_add_u32 {v(8)}, {v(t1)}, 3, {v(t0)}")
    A(f"v_add_u32 {v(9)}, {7*7168}, {v(8)}")
    A(f"v_lshl_add_u32 {v(10)}, {v(t1)}, 4, {v(t0)}")
    A(f"v_add_u32 {v(11)}, {7*7168}, {v(10)}")
    return {"qk": (6, 7), "nat": (8, 9), "pair": (10, 11)}


def big_w_dma(A, sx, srdw, vw, s_soff, s_m0, pitch_s):
    A(f"s_mov_b32 m0, {s(s_m0)}")
    A("s_nop 0")
    A.vmem(f"buffer_load_dwordx4 {v(vw)}, {s(srdw,4)}, {s(s_soff)} offen lds", ("ld", sx))
    A(f"s_add_u32 m0, {s(s_m0)}, 3584")
    A(f"s_add_u32 {s(s_soff)}, {s(s_soff)}, {s(pitch_s)}")
    A.vmem(f"buffer_load_dwordx4 {v(vw)}, {s(srdw,4)}, {s(s_soff)} offen lds", ("ld", sx))
    A(f"s_add_u32 {s(s_soff)}, {s(s_soff)}, {s(pitch_s+1)}")
    A(f"s_add_u32 {s(s_m0)}, {s(s_m0)}, 7168")


def colsum_exchange(A, wv, vi, vg, dst, t0):
    tiles = [t for t in (wv, wv + 4) if t < 7]
    A("s_nop 7")
    A("s_nop 1")
    for i, t in enumerate(tiles):
        for r in range(4):
            A(f"v_accvgpr_read_b32 {v(t0+4*i+r)}, {a(A_CS+4*i+r)}")
    A(f"v_lshlrev_b32 {v(t0+8)}, 4, {v(vg)}")
    A(f"v_add_u32 {v(t0+8)}, {LDS_CS}, {v(t0+8)}")
    A(f"v_cmp_eq_u32 vcc, 0, {v(vi)}")
    A("s_and_saveexec_b64 s[40:41], vcc")
    for i, t in enumerate(tiles):
        A(f"ds_write_b128 {v(t0+8)}, {v(t0+4*i,4)} offset:{64*t}")
    A("s_mov_b64 exec, s[40:41]")
    A("s_waitcnt lgkmcnt(0)")
    A("s_barrier")
    for t in range(7):
        A(f"ds_read_b128 {v(dst+4*t,4)}, {v(t0+8)} offset:{64*t}")


def gelu_epilogue(A, cs, mreg, rsreg, consts, tmp, outb, store_fn):
    c0, c1, one = consts
    for rt in range(2):
        w = outb
        for t in range(7):
            for r in range(4):
                A(f"v_accvgpr_read_b32 {v(w+4*t+r)}, {a(acc(rt,t)+r)}")
        for t in range(7):
            for h in range(2):
                p = w + 4 * t + 2 * h
                A(f"v_pk_fma_f32 {v(p,2)}, {v(cs+4*t+2*h,2)}, {v(mreg[rt],2)}, {v(p,2)}")
        for t in range(7):
            for h in range(2):
                p = w + 4 * t + 2 * h
                A(f"v_pk_mul_f32 {v(p,2)}, {v(p,2)}, {v(rsreg[rt],2)}")
        pk = outb + 28 + 16 * rt
        pairs = [w + 2 * i for i in range(14)]
        outs = [pk + i for i in range(14)]
        gelu_pairs(A, pairs[:7], outs[:7], tmp, c0, c1, one)
        gelu_pairs(A, pairs[7:], outs[7:], tmp, c0, c1, one)
        store_fn(rt, pk)


def gen_k1():
    A = Asm()
    name = "k1_kernel"
    Lend = "k1_end"
    A("s_cmp_ge_u32 s2, 256")
    A(f"s_cbranch_scc1 {Lend}")
    stamp(A, 0)
    A("s_load_dwordx4 s[4:7], s[0:1], 0")
    A("s_load_dwordx2 s[8:9], s[0:1], 32")
    A("s_load_dwordx2 s[10:11], s[0:1], 64")
    A("s_load_dwordx2 s[12:13], s[0:1], 88")
    VL, VI, VG = 1, 2, 3
    SW = 19
    lane_setup(A, VL, VI, VG, SW)
    A("s_and_b32 s14, s2, 7")
    A("s_lshr_b32 s15, s2, 3")
    A("s_lshr_b32 s16, s15, 4")
    A("s_lshl_b32 s17, s14, 1")
    A("s_add_u32 s17, s17, s16")
    A("s_and_b32 s18, s15, 15")
    A("s_sub_u32 s33, s18, 12")
    A("s_movk_i32 s32, 896")
    A("s_cmp_lt_u32 s18, 12")
    A("s_cselect_b32 s32, 2688, s32")
    A("s_cselect_b32 s33, s18, s33")
    A("s_mul_i32 s33, s33, 224")
    A("s_lshl_b32 s34, s19, 3")
    A("s_mul_i32 s34, s34, s32")
    A("s_add_u32 s34, s34, s33")
    A("s_lshl_b32 s36, s32, 2")
    A("s_mul_i32 s37, s32, 28")
    A("s_mul_i32 s35, s19, 896")
    A(f"v_mul_u32_u24 v12, 4682, {v(VL)}")
    A("v_lshrrev_b32 v12, 16, v12")
    A("v_mul_u32_u24 v13, 14, v12")
    A(f"v_sub_u32 v13, {v(VL)}, v13")
    A("v_mul_lo_u32 v5, v12, s32")
    A("v_lshl_add_u32 v5, v13, 4, v5")
    A("s_lshl_b32 s38, s17, 7")
    A("s_lshl_b32 s39, s19, 5")
    A("s_add_u32 s38, s38, s39")
    A(f"v_add_u32 v4, s38, {v(VI)}")
    A("v_mul_u32_u24 v4, 896, v4")
    A(f"v_lshl_add_u32 v4, {v(VG)}, 4, v4")
    A("s_mov_b32 s39, 14336")
    A("s_lshl_b32 s42, s17, 7")
    A("s_lshl_b32 s43, s18, 3")
    A("s_add_u32 s42, s42, s43")
    A("s_lshl_b32 s43, s19, 1")
    A("s_add_u32 s42, s42, s43")
    A("s_mul_i32 s43, s42, 896")
    A(f"v_lshlrev_b32 v14, 4, {v(VL)}")
    for r in range(16, 28):
        A(f"v_mov_b32 v{r}, 0")
    vb = big_tr_bases(A, VI, VG, 12, 13)
    A("s_waitcnt lgkmcnt(0)")
    A.srd(20, 4, 5, ACT_BYTES)
    A(f"s_mov_b32 s26, {D*D*2}")
    A("s_cmp_lt_u32 s18, 12")
    A("s_cselect_b32 s24, s6, s8")
    A("s_cselect_b32 s25, s7, s9")
    A(f"s_cselect_b32 s26, {D*3*D*2}, s26")
    A("s_and_b32 s25, s25, 0xffff")
    A("s_mov_b32 s27, 0x00020000")
    A.srd(28, 12, 13, WS_SIZE)
    A.srd(44, 10, 11, D * 2)
    set_exec56(A)
    A.vmem("buffer_load_dwordx4 v[16:19], v14, s[20:23], s43 offen", "gate")
    A.vmem("buffer_load_dwordx4 v[20:23], v14, s[20:23], s43 offen offset:896", "gate")
    A.vmem("buffer_load_dwordx4 v[24:27], v14, s[44:47], 0 offen", "gate")
    for sx in range(14):
        set_exec_all(A)
        A.vmem(f"buffer_load_dwordx4 {v(xf(sx,0),4)}, v4, s[20:23], 0 offen offset:{64*sx}", ("ld", sx))
        A.vmem(f"buffer_load_dwordx4 {v(xf(sx,1),4)}, v4, s[20:23], s39 offen offset:{64*sx}", ("ld", sx))
        set_exec56(A)
        big_w_dma(A, sx, 24, 5, 34, 35, 36)
    set_exec_all(A)
    stamp(A, 1)
    big_zero_acc(A, N_AGPR)
    for r in range(4):
        A(f"v_mov_b32 {v(ONES+r)}, 0x3f803f80")
    A.vm_wait("gate")
    T = 144
    for j in range(4):
        A(f"v_lshlrev_b32 {v(T+2*j)}, 16, {v(24+j)}")
        A(f"v_and_b32 {v(T+2*j+1)}, 0xffff0000, {v(24+j)}")
    for rr in range(2):
        xb = 16 + 4 * rr
        U = T + 8
        for j in range(4):
            A(f"v_lshlrev_b32 {v(U+2*j)}, 16, {v(xb+j)}")
            A(f"v_and_b32 {v(U+2*j+1)}, 0xffff0000, {v(xb+j)}")
        for j in range(4):
            A(f"v_pk_mul_f32 {v(U+2*j,2)}, {v(U+2*j,2)}, {v(T+2*j,2)}")
        for j in range(8):
            A(f"v_cvt_pk_bf16_f32 {v(U+j)}, 0, {v(U+j)}")
        z = 28 + rr
        A(f"v_add_f32 {v(z)}, {v(U)}, {v(U+1)}")
        for j in range(2, 8):
            A(f"v_add_f32 {v(z)}, {v(z)}, {v(U+j)}")
        for ror in (8, 4, 2, 1):
            A("s_nop 1")
            A(f"v_add_f32_dpp {v(z)}, {v(z)}, {v(z)} row_ror:{ror} row_mask:0xf bank_mask:0xf")
        xlane_g(A, "v_add_f32", z, U, U + 1)
        round_bf16(A, z, U)
        A(f"v_mul_f32 {v(z)}, {f32bits(-LOG2E):#x}, {v(z)}")
        A(f"v_exp_f32 {v(z)}, {v(z)}")
        A("s_nop 0")
        A(f"v_add_f32 {v(z)}, 1.0, {v(z)}")
        A(f"v_rcp_f32 {v(z)}, {v(z)}")
        A("s_nop 0")
        round_bf16(A, z, U)
    A("s_lshl_b32 s43, s42, 2")
    A(f"s_add_u32 s43, s43, {WS_G}")
    A("v_mov_b32 v30, 0")
    A("s_mov_b64 exec, 1")
    A.vmem("buffer_store_dwordx2 v[28:29], v30, s[28:31], s43 offen", "st")
    set_exec_all(A)
    snap = A.vm_snapshot()
    A("s_cmp_ge_u32 s18, 12")
    A("s_cbranch_scc1 k1_w1")
    A("s_cmp_ge_u32 s18, 8")
    A("s_cbranch_scc1 k1_v")
    big_mainloop(A, "qk", vb)
    A(f"v_mul_u32_u24 v12, 131072, {v(VG)}")
    A(f"v_lshl_add_u32 v12, {v(VI)}, 4, v12")
    A("s_lshr_b32 s40, s18, 2")
    A("s_lshl_b32 s40, s40, 21")
    A("s_and_b32 s41, s18, 3")
    A("s_lshl_b32 s41, s41, 19")
    A("s_add_u32 s40, s40, s41")
    A("s_lshl_b32 s41, s38, 6")
    A("s_add_u32 s40, s40, s41")
    A("s_nop 7")
    A("s_nop 1")
    W0 = 32
    for rt in range(2):
        for t in range(7):
            for r in range(4):
                A(f"v_accvgpr_read_b32 {v(W0+28*rt+4*t+r)}, {a(acc(rt,t)+r)}")
    P0 = 96
    for rt in range(2):
        for tp in range(4):
            pk = P0 + 16 * rt + 4 * tp
            src = W0 + 28 * rt + 8 * tp
            A(f"v_cvt_pk_bf16_f32 {v(pk)}, {v(src)}, {v(src+1)}")
            A(f"v_cvt_pk_bf16_f32 {v(pk+1)}, {v(src+2)}, {v(src+3)}")
            if tp < 3:
                A(f"v_cvt_pk_bf16_f32 {v(pk+2)}, {v(src+4)}, {v(src+5)}")
                A(f"v_cvt_pk_bf16_f32 {v(pk+3)}, {v(src+6)}, {v(src+7)}")
            else:
                A(f"v_mov_b32 {v(pk+2)}, 0")
                A(f"v_mov_b32 {v(pk+3)}, 0")
            A(f"buffer_store_dwordx4 {v(pk,4)}, v12, s[28:31], s40 offen offset:{1024*rt+256*tp}")
    stamp(A, 4)
    if STAMPS:
        A("s_waitcnt vmcnt(0)")
    stamp(A, 5)
    stamp_store(A, 0, 6, 92)
    A("s_endpgm")
    A.label("k1_v")
    A.vm_restore(snap)
    big_mainloop(A, "nat", vb)
    A("s_and_b32 s41, s18, 3")
    A("s_lshl_b32 s41, s41, 19")
    A(f"s_add_u32 s40, s41, {WS_V}")
    A("s_lshl_b32 s41, s38, 6")
    A("s_add_u32 s40, s40, s41")
    for t in range(7):
        o = 12 + t
        A(f"v_add_u32 v20, {16*t}, {v(VI)}")
        A("v_mul_u32_u24 v21, 2341, v20")
        A("v_lshrrev_b32 v21, 16, v21")
        A("v_mul_u32_u24 v22, 28, v21")
        A("v_sub_u32 v22, v20, v22")
        A(f"v_lshlrev_b32 {v(o)}, 17, v21")
        A("v_lshrrev_b32 v23, 4, v22")
        A(f"v_lshl_add_u32 {v(o)}, v23, 10, {v(o)}")
        A("v_and_b32 v23, 15, v22")
        A(f"v_lshl_add_u32 {v(o)}, v23, 4, {v(o)}")
        A(f"v_lshl_add_u32 {v(o)}, {v(VG)}, 8, {v(o)}")
    A("s_nop 1")
    for rt in range(2):
        for t in range(7):
            for r in range(4):
                A(f"v_accvgpr_read_b32 {v(W0+28*rt+4*t+r)}, {a(acc(rt,t)+r)}")
    for t in range(7):
        pk = P0 + 4 * t
        for rt in range(2):
            src = W0 + 28 * rt + 4 * t
            A(f"v_cvt_pk_bf16_f32 {v(pk+2*rt)}, {v(src)}, {v(src+1)}")
            A(f"v_cvt_pk_bf16_f32 {v(pk+2*rt+1)}, {v(src+2)}, {v(src+3)}")
        A(f"buffer_store_dwordx4 {v(pk,4)}, {v(12+t)}, s[28:31], s40 offen")
    stamp(A, 4)
    if STAMPS:
        A("s_waitcnt vmcnt(0)")
    stamp(A, 5)
    stamp_store(A, 0, 6, 92)
    A("s_endpgm")
    A.label("k1_w1")
    for wv in range(1, 4):
        A(f"s_cmp_eq_u32 s19, {wv}")
        A(f"s_cbranch_scc1 k1_w1_{wv}")
    CS = 144
    for wv in range(4):
        if wv:
            A.label(f"k1_w1_{wv}")
        A.vm_restore(snap)
        big_mainloop(A, "pair", vb, stats=True, cs_tiles=[t for t in (wv, wv + 4) if t < 7])
        colsum_exchange(A, wv, VI, VG, CS, 12)
        if wv < 3:
            A("s_branch k1_w1_epi")
    A.label("k1_w1_epi")
    MR = [24, 26]
    RS = [28, 30]
    A(f"v_and_b32 v12, 3, {v(VI)}")
    A(f"v_lshrrev_b32 v13, 2, {v(VI)}")
    A(f"v_lshl_add_u32 v13, v13, 4, {v(VI)}")
    A("v_lshlrev_b32 v13, 2, v13")
    for rt in range(2):
        for r in range(4):
            A(f"v_accvgpr_read_b32 {v(16+r)}, {a(A_SQ+4*rt+r)}")
        A(f"v_accvgpr_read_b32 {v(MR[rt])}, {a(A_RS+4*rt)}")
        A("v_cmp_eq_u32 vcc, 1, v12")
        A("s_nop 1")
        A("v_cndmask_b32 v16, v16, v17, vcc")
        A("v_cmp_eq_u32 vcc, 2, v12")
        A("s_nop 1")
        A("v_cndmask_b32 v16, v16, v18, vcc")
        A("v_cmp_eq_u32 vcc, 3, v12")
        A("s_nop 1")
        A("v_cndmask_b32 v16, v16, v19, vcc")
        A(f"ds_bpermute_b32 {v(RS[rt])}, v13, v16")
        A("s_waitcnt lgkmcnt(0)")
        A(f"v_mul_f32 {v(MR[rt])}, {f32bits(1.0/448):#x}, {v(MR[rt])}")
        A(f"v_mul_f32 {v(RS[rt])}, {f32bits(1.0/448):#x}, {v(RS[rt])}")
        A(f"v_fma_f32 {v(RS[rt])}, -{v(MR[rt])}, {v(MR[rt])}, {v(RS[rt])}")
        A(f"v_max_f32 {v(RS[rt])}, 0, {v(RS[rt])}")
        ln_finish(A, MR[rt], RS[rt], 16)
        A(f"v_sub_f32 {v(MR[rt])}, 0, {v(MR[rt])}")
        A(f"v_mov_b32 {v(MR[rt]+1)}, {v(MR[rt])}")
        A(f"v_mov_b32 {v(RS[rt]+1)}, {v(RS[rt])}")
    C0, C1, ONE = 16, 18, 20
    for r in range(2):
        A(f"v_mov_b32 {v(C0+r)}, {f32bits(GELU_C0):#x}")
        A(f"v_mov_b32 {v(C1+r)}, {f32bits(GELU_C1):#x}")
        A(f"v_mov_b32 {v(ONE+r)}, 1.0")
    A("s_sub_u32 s40, s18, 12")
    A("s_lshr_b32 s41, s40, 1")
    A("s_add_u32 s41, s41, 1")
    A("s_sub_u32 s48, 0, s41")
    A("s_bitcmp1_b32 s40, 0")
    A("s_cselect_b32 s41, s48, s41")
    A("s_add_u32 s41, s41, s38")
    A.srd_off(44, 12, 13, WS_HS, ACT_BYTES)
    A("s_mul_i32 s48, s40, 3584")
    for rt in range(2):
        A(f"v_add_u32 v12, s41, {v(VI)}")
        if rt:
            A("v_add_u32 v12, 16, v12")
        A("v_lshrrev_b32 v13, 4, v12")
        A("v_mul_u32_u24 v13, 14336, v13")
        A("v_and_b32 v14, 15, v12")
        A("v_lshl_add_u32 v13, v14, 4, v13")
        A("v_cmp_gt_u32 vcc, 2048, v12")
        A("v_mov_b32 v14, 0x80000000")
        A("s_nop 0")
        A("v_cndmask_b32 v13, v14, v13, vcc")
        A(f"v_lshl_add_u32 {v(4+rt)}, {v(VG)}, 8, v13")
        A(f"v_lshrrev_b32 v14, 1, {v(VG)}")
        A("v_lshl_add_u32 v13, v14, 8, v13")
        A(f"v_and_b32 v14, 1, {v(VG)}")
        A(f"v_lshl_add_u32 {v(6+rt)}, v14, 3, v13")

    def st(rt, pk):
        for tp in range(3):
            A(f"buffer_store_dwordx4 {v(pk+4*tp,4)}, {v(4+rt)}, s[44:47], s48 offen offset:{1024*tp}")
        A(f"buffer_store_dwordx2 {v(pk+12,2)}, {v(6+rt)}, s[44:47], s48 offen offset:3072")

    gelu_epilogue(A, CS, MR, RS, (C0, C1, ONE), 176, 32, st)
    stamp(A, 4)
    if STAMPS:
        A("s_waitcnt vmcnt(0)")
    stamp(A, 5)
    stamp_store(A, 0, 6, 92)
    A("s_mov_b64 exec, -1")
    if STAMPS:
        lane_setup(A, VL, VI, VG, 19)
    A("s_cmp_lg_u32 s19, 0")
    A(f"s_cbranch_scc1 {Lend}")
    A("s_bitcmp1_b32 s40, 0")
    A("s_cselect_b32 s49, 15, 0")
    A("s_cmp_lg_u32 s17, s49")
    A(f"s_cbranch_scc1 {Lend}")
    A("s_lshr_b32 s49, s40, 1")
    A("s_add_u32 s49, s49, 1")
    A("s_sub_u32 s50, 2048, s49")
    A("s_bitcmp1_b32 s40, 0")
    A("s_cselect_b32 s50, s50, 0")
    A("s_mul_i32 s49, s49, 14")
    A(f"v_mul_u32_u24 v12, 4682, {v(VL)}")
    A("v_lshrrev_b32 v12, 16, v12")
    A("v_mul_u32_u24 v13, 14, v12")
    A(f"v_sub_u32 v13, {v(VL)}, v13")
    A("v_add_u32 v12, s50, v12")
    A("v_lshrrev_b32 v14, 4, v12")
    A("v_mul_u32_u24 v14, 14336, v14")
    A("v_and_b32 v12, 15, v12")
    A("v_lshl_add_u32 v14, v12, 4, v14")
    A("v_lshl_add_u32 v14, v13, 8, v14")
    for r in range(4):
        A(f"v_mov_b32 {v(16+r)}, 0")
    A(f"v_cmp_gt_u32 vcc, s49, {v(VL)}")
    A("s_and_saveexec_b64 s[50:51], vcc")
    A("buffer_store_dwordx4 v[16:19], v14, s[44:47], s48 offen")
    A.label(Lend)
    A("s_endpgm")
    return name, A.text(), ACC_OFF + N_AGPR, ACC_OFF, 256, LDS_W_BYTES + 512


def small_dma_voff(A, vl, dst, t0, t1, pitch):
    A(f"v_mul_u32_u24 {v(t0)}, 9363, {v(vl)}")
    A(f"v_lshrrev_b32 {v(t0)}, 16, {v(t0)}")
    A(f"v_mul_u32_u24 {v(t1)}, 7, {v(t0)}")
    A(f"v_sub_u32 {v(t1)}, {v(vl)}, {v(t1)}")
    A(f"v_lshrrev_b32 {v(dst)}, 1, {v(t0)}")
    A(f"v_and_b32 {v(t0)}, 1, {v(t0)}")
    A(f"v_lshl_add_u32 {v(dst)}, {v(t0)}, 2, {v(dst)}")
    A(f"v_mul_u32_u24 {v(dst)}, {pitch}, {v(dst)}")
    A(f"v_lshl_add_u32 {v(dst)}, {v(t1)}, 4, {v(dst)}")


def small_tr_base(A, vi, vg, dst, t0, ldsbase):
    A(f"v_lshrrev_b32 {v(t0)}, 2, {v(vi)}")
    A(f"v_lshl_add_u32 {v(t0)}, {v(vg)}, 2, {v(t0)}")
    A(f"v_mul_u32_u24 {v(dst)}, 224, {v(t0)}")
    A(f"v_and_b32 {v(t0)}, 3, {v(vi)}")
    A(f"v_lshl_add_u32 {v(dst)}, {v(t0)}, 4, {v(dst)}")
    if ldsbase:
        A(f"v_add_u32 {v(dst)}, {ldsbase}, {v(dst)}")


def small_tr_reads(A, vbase, off, dst):
    for t in range(4):
        for hh in range(2):
            A(f"ds_read_b64_tr_b16 {v(dst+4*t+2*hh,2)}, {v(vbase)} offset:{off + hh*112 + 64*(t//2) + 8*(t&1)}")


def small_gemm(A, vbase, af, wfb, accf):
    small_tr_reads(A, vbase, 0, wfb)
    for sx in range(14):
        if sx < 13:
            small_tr_reads(A, vbase, (sx + 1) * 3584, wfb + 16 * ((sx + 1) & 1))
            A("s_waitcnt lgkmcnt(8)")
        else:
            A("s_waitcnt lgkmcnt(0)")
        for t in range(4):
            c = accf(t)
            A(f"v_mfma_f32_16x16x32_bf16 {c}, {v(wfb+16*(sx&1)+4*t,4)}, {v(af(sx),4)}, {c}")


L2_K, L2_V, L2_W = 0, 24576, 49152
NEGBIG = f32bits(-1e30)


def gen_k2():
    A = Asm()
    name = "k2_kernel"
    Lend = "k2_end"
    A("s_cmp_ge_u32 s2, 256")
    A(f"s_cbranch_scc1 {Lend}")
    stamp(A, 0)
    A("s_load_dwordx2 s[4:5], s[0:1], 0")
    A("s_load_dwordx2 s[6:7], s[0:1], 40")
    A("s_load_dwordx2 s[12:13], s[0:1], 88")
    VL, VI, VG = 1, 2, 3
    lane_setup(A, VL, VI, VG, 19)
    A("s_and_b32 s14, s2, 7")
    A("s_lshr_b32 s15, s2, 3")
    A(f"v_lshlrev_b32 v7, 4, {v(VL)}")
    A("s_waitcnt lgkmcnt(0)")
    A.srd(28, 12, 13, WS_SIZE)
    A("s_cmp_ge_u32 s19, 8")
    A("s_cbranch_scc1 k2_gemm")
    A("s_lshr_b32 s16, s15, 4")
    A("s_lshl_b32 s17, s14, 1")
    A("s_add_u32 s17, s17, s16")
    A("s_and_b32 s18, s15, 15")
    A("s_lshl_b32 s20, s18, 17")
    A("s_lshl_b32 s21, s17, 13")
    A("s_add_u32 s20, s20, s21")
    A("s_mul_i32 s21, s19, 3072")
    A("s_add_u32 s22, s20, s21")
    A(f"s_add_u32 s23, s22, {WS_V - 16384}")
    A(f"s_add_u32 s22, s22, {WS_K - 16384}")
    A("s_mov_b32 m0, s21")
    A("s_lshl_b32 s24, s19, 10")
    A("s_add_u32 s24, s24, s20")
    for j in range(3):
        A.vmem(f"buffer_load_dwordx4 v7, s[28:31], s22 offen offset:{1024*j} lds", "kv")
    A(f"s_add_u32 m0, s21, {L2_V}")
    A("s_nop 0")
    for j in range(3):
        A.vmem(f"buffer_load_dwordx4 v7, s[28:31], s23 offen offset:{1024*j} lds", "kv")
    QF, C0, C16, FB, SC, PB, TM, OA = 8, 12, 16, 20, 36, 104, 140, 160
    A.vmem(f"buffer_load_dwordx4 {v(QF,4)}, v7, s[28:31], s24 offen", "kv")
    for r in range(4):
        A(f"v_lshl_add_u32 {v(TM)}, {v(VG)}, 2, {r}")
        A(f"v_mov_b32 {v(TM+1)}, {NEGBIG:#x}")
        A(f"v_cmp_gt_u32 vcc, {v(TM)}, {v(VI)}")
        A("s_nop 1")
        A(f"v_cndmask_b32 {v(C0+r)}, {v(TM+1)}, 0, vcc")
        A(f"v_cndmask_b32 {v(C16+r)}, 0, {v(TM+1)}, vcc")
    A("s_lshl_b32 s25, s19, 10")
    A("v_add_u32 v4, s25, v7")
    A("s_lshr_b32 s25, s19, 1")
    A("s_lshl_b32 s25, s25, 11")
    A(f"s_add_u32 s25, s25, {L2_V}")
    A("v_add_u32 v5, s25, v7")
    A("s_lshl_b32 s25, s17, 3")
    A("s_add_u32 s25, s25, s19")
    A("s_sub_i32 s25, 16, s25")
    A("s_mul_i32 s26, s18, 7")
    A(f"v_add_u32 v6, s26, {v(VG)}")
    A(f"v_and_b32 {v(TM)}, 1, v6")
    A("v_lshrrev_b32 v6, 1, v6")
    A("v_lshlrev_b32 v6, 8, v6")
    A(f"v_lshl_add_u32 v6, {v(TM)}, 3, v6")
    A(f"v_lshl_add_u32 v6, {v(VI)}, 4, v6")
    A("s_lshl_b32 s26, s17, 3")
    A("s_add_u32 s26, s26, s19")
    A(f"s_mul_i32 s26, s26, {RT_BYTES}")
    A(f"s_add_u32 s26, s26, {WS_O}")
    KSC, KL, NB = TM + 16, TM + 17, TM + 18
    A(f"v_mov_b32 {v(KSC)}, {f32bits(SCALE):#x}")
    A(f"v_mov_b32 {v(KL)}, {f32bits(LOG2E):#x}")
    for r in range(8):
        A(f"v_mov_b32 {v(OA+r)}, 0")
    stamp(A, 1)
    A("s_waitcnt vmcnt(0)")
    A("s_barrier")
    stamp(A, 2)
    for i in range(3):
        A(f"ds_read_b128 {v(FB+4*(i%4),4)}, v4 offset:{1024*i}")
    for i in range(17):
        if i + 3 < 17:
            A(f"ds_read_b128 {v(FB+4*((i+3)%4),4)}, v4 offset:{1024*(i+3)}")
        A(f"s_waitcnt lgkmcnt({min(3, 16-i)})")
        c = v(C0, 4) if i == 0 else (v(C16, 4) if i == 16 else "0")
        if i < 16:
            l1, l2 = A.newlabel("k2i"), A.newlabel("k2j")
            A(f"s_cmp_gt_i32 s25, {i}")
            A(f"s_cbranch_scc1 {l1}")
        A(f"v_mfma_f32_16x16x32_bf16 {v(SC+4*i,4)}, {v(FB+4*(i%4),4)}, {v(QF,4)}, {c}")
        if i < 16:
            A(f"s_branch {l2}")
            A.label(l1)
            for r in range(4):
                A(f"v_mov_b32 {v(SC+4*i+r)}, {NEGBIG:#x}")
            A.label(l2)
    A("s_barrier")
    stamp(A, 3)
    A("s_nop 4")
    M = TM
    A(f"v_max3_f32 {v(M)}, {v(SC)}, {v(SC+1)}, {v(SC+2)}")
    A(f"v_max3_f32 {v(M+1)}, {v(SC+3)}, {v(SC+4)}, {v(SC+5)}")
    idx = 6
    k = 0
    while idx < 68:
        A(f"v_max3_f32 {v(M+k)}, {v(M+k)}, {v(SC+idx)}, {v(SC+idx+1)}")
        idx += 2
        k ^= 1
    A(f"v_max_f32 {v(M)}, {v(M)}, {v(M+1)}")
    xlane_g(A, "v_max_f32", M, M + 1, M + 2)
    round_bf16(A, M, 0)
    A(f"v_mul_f32 {v(M)}, {v(KSC)}, {v(M)}")
    round_bf16(A, M, 0)
    A(f"v_mul_f32 {v(NB)}, {v(KL)}, {v(M)}")
    A(f"v_sub_f32 {v(NB)}, 0, {v(NB)}")
    for j in range(2):
        A(f"ds_read_b128 {v(FB+4*j,4)}, v5 offset:{1024*j}")
    SUM = [TM + 4, TM + 5, TM + 6, TM + 7]
    G4 = 8
    first = True
    for b0 in range(0, 68, G4):
        el = [SC + e for e in range(b0, min(68, b0 + G4))]
        for e in el:
            A(f"v_cvt_pk_bf16_f32 {v(e)}, 0, {v(e)}")
        for e in el:
            A(f"v_mul_f32 {v(e)}, {v(KSC)}, {v(e)}")
        for e in el:
            A(f"v_cvt_pk_bf16_f32 {v(e)}, 0, {v(e)}")
        for e in el:
            A(f"v_fma_f32 {v(e)}, {v(e)}, {v(KL)}, {v(NB)}")
        for e in el:
            A(f"v_exp_f32 {v(e)}, {v(e)}")
        for n, e in enumerate(el):
            if first and n < 4:
                A(f"v_mov_b32 {v(SUM[n%4])}, {v(e)}")
            else:
                A(f"v_add_f32 {v(SUM[n%4])}, {v(SUM[n%4])}, {v(e)}")
        first = False
    A(f"v_add_f32 {v(SUM[0])}, {v(SUM[0])}, {v(SUM[1])}")
    A(f"v_add_f32 {v(SUM[2])}, {v(SUM[2])}, {v(SUM[3])}")
    A(f"v_add_f32 {v(SUM[0])}, {v(SUM[0])}, {v(SUM[2])}")
    xlane_g(A, "v_add_f32", SUM[0], M + 1, M + 2)
    A(f"v_rcp_f32 {v(SUM[0])}, {v(SUM[0])}")
    A("s_nop 0")
    RL = SUM[0]
    stamp(A, 4)
    A("s_bitcmp1_b32 s19, 0")
    A("s_cbranch_scc1 k2_odd")
    for par in range(2):
        if par:
            A.label("k2_odd")
        zs = 17 if par == 0 else 0
        A(f"v_mov_b32 {v(PB+2*zs)}, 0")
        A(f"v_mov_b32 {v(PB+2*zs+1)}, 0")
        nread = 2
        for c in range(9):
            for half in range(2):
                slot = 2 * c + half
                if slot == zs:
                    continue
                i = slot - par
                for r in range(4):
                    A(f"v_mul_f32 {v(SC+4*i+r)}, {v(RL)}, {v(SC+4*i+r)}")
                A(f"v_cvt_pk_bf16_f32 {v(PB+2*slot)}, {v(SC+4*i)}, {v(SC+4*i+1)}")
                A(f"v_cvt_pk_bf16_f32 {v(PB+2*slot+1)}, {v(SC+4*i+2)}, {v(SC+4*i+3)}")
            while nread < min(18, 2 * c + 4):
                A(f"ds_read_b128 {v(FB+4*(nread%4),4)}, v5 offset:{1024*nread}")
                nread += 1
            A(f"s_waitcnt lgkmcnt({nread - (2*c+2)})")
            A("s_nop 0")
            for dt in range(2):
                A(f"v_mfma_f32_16x16x32_bf16 {v(OA+4*dt,4)}, {v(FB+4*((2*c+dt)%4),4)}, {v(PB+4*c,4)}, {v(OA+4*dt,4)}")
        if par == 0:
            A("s_branch k2_attn_out")
    A.label("k2_attn_out")
    A("s_nop 7")
    A("s_nop 1")
    A(f"v_cvt_pk_bf16_f32 {v(TM)}, {v(OA)}, {v(OA+1)}")
    A(f"v_cvt_pk_bf16_f32 {v(TM+1)}, {v(OA+2)}, {v(OA+3)}")
    A(f"v_cvt_pk_bf16_f32 {v(TM+2)}, {v(OA+4)}, {v(OA+5)}")
    A(f"v_cvt_pk_bf16_f32 {v(TM+3)}, {v(OA+6)}, {v(OA+7)}")
    A(f"buffer_store_dwordx2 {v(TM,2)}, v6, s[28:31], s26 offen")
    A("s_mov_b32 exec_hi, 0x0000ffff")
    A(f"buffer_store_dwordx2 {v(TM+2,2)}, v6, s[28:31], s26 offen offset:512")
    if STAMPS:
        A("s_waitcnt vmcnt(0)")
    stamp(A, 5)
    stamp_store(A, 1, 6, 92)
    A("s_endpgm")
    A.label("k2_gemm")
    A.vm_restore([])
    A("s_sub_u32 s19, s19, 8")
    A("s_lshr_b32 s16, s15, 3")
    A("s_lshl_b32 s17, s14, 2")
    A("s_add_u32 s17, s17, s16")
    A("s_and_b32 s18, s15, 7")
    A.srd(20, 4, 5, ACT_BYTES)
    A.srd(24, 6, 7, D * D * 2)
    A("s_lshl_b32 s32, s17, 2")
    A("s_add_u32 s32, s32, s19")
    A(f"s_mul_i32 s33, s32, {RT_BYTES}")
    A(f"s_add_u32 s34, s33, {WS_HS}")
    for j in range(1, 4):
        A(f"s_add_u32 s{34+j}, s34, {4096*j}")
    AF, WFB, AC, XR = 32, 88, 120, 136
    small_dma_voff(A, VL, 5, 8, 9, 896)
    A("s_mul_i32 s38, s18, 112")
    A(f"s_mul_i32 s39, s19, {14*8*896}")
    A("s_add_u32 s38, s38, s39")
    A(f"s_mul_i32 s39, s19, {14*896}")
    A(f"s_add_u32 s39, s39, {L2_W}")
    set_exec56(A)
    for u in range(14):
        A("s_mov_b32 m0, s39")
        A("s_add_u32 s39, s39, 896")
        A.vmem("buffer_load_dwordx4 v5, s[24:27], s38 offen lds", "w")
        A(f"s_add_u32 s38, s38, {8*896}")
    set_exec_all(A)
    for sx in range(14):
        A.vmem(f"buffer_load_dwordx4 {v(AF+4*sx,4)}, v7, s[28:31], s{34+sx//4} offen offset:{1024*(sx%4)}", "a")
    A("s_lshl_b32 s40, s32, 4")
    A(f"v_add_u32 v8, s40, {v(VI)}")
    A("v_mul_u32_u24 v9, 896, v8")
    A(f"v_lshl_add_u32 v9, {v(VG)}, 4, v9")
    A("s_mul_i32 s40, s18, 112")
    A.vmem(f"buffer_load_dwordx4 {v(XR,4)}, v9, s[20:23], s40 offen", "x")
    A.vmem(f"buffer_load_dwordx4 {v(XR+4,4)}, v9, s[20:23], s40 offen offset:64", "x")
    for r in range(16):
        A(f"v_mov_b32 {v(AC+r)}, 0")
    small_tr_base(A, VI, VG, 6, 10, L2_W)
    stamp(A, 1)
    A("s_barrier")
    A.vm_wait("w")
    stamp(A, 2)
    A("s_barrier")
    A.vm_wait("a")
    stamp(A, 3)
    small_gemm(A, 6, lambda sx: AF + 4 * sx, WFB, lambda t: v(AC + 4 * t, 4))
    stamp(A, 4)
    A.vm_wait("x")
    A("s_nop 7")
    XU = 32
    for j in range(8):
        A(f"v_lshlrev_b32 {v(XU+2*j)}, 16, {v(XR+j)}")
        A(f"v_and_b32 {v(XU+2*j+1)}, 0xffff0000, {v(XR+j)}")
    for r in range(16):
        A(f"v_cvt_pk_bf16_f32 {v(AC+r)}, 0, {v(AC+r)}")
    for r in range(16):
        A(f"v_add_f32 {v(AC+r)}, {v(AC+r)}, {v(XU+r)}")
    PK = 48
    for j in range(8):
        A(f"v_cvt_pk_bf16_f32 {v(PK+j)}, {v(AC+2*j)}, {v(AC+2*j+1)}")
    for r in range(16):
        A(f"v_cvt_pk_bf16_f32 {v(AC+r)}, 0, {v(AC+r)}")
    A(f"v_lshlrev_b32 v10, 8, {v(VG)}")
    A(f"v_lshl_add_u32 v10, {v(VI)}, 4, v10")
    A("s_mul_i32 s40, s18, 1792")
    A("s_add_u32 s40, s40, s33")
    A(f"s_add_u32 s40, s40, {WS_X1}")
    A(f"buffer_store_dwordx4 {v(PK,4)}, v10, s[28:31], s40 offen")
    A("s_mov_b32 exec_hi, 0x0000ffff")
    A(f"buffer_store_dwordx4 {v(PK+4,4)}, v10, s[28:31], s40 offen offset:1024")
    A("s_mov_b64 exec, -1")
    A(f"v_add_f32 v12, {v(AC)}, {v(AC+1)}")
    for r in range(2, 8):
        A(f"v_add_f32 v12, v12, {v(AC+r)}")
    A("s_mov_b32 exec_hi, 0x0000ffff")
    for r in range(8, 16):
        A(f"v_add_f32 v12, v12, {v(AC+r)}")
    A("s_mov_b64 exec, -1")
    xlane_g(A, "v_add_f32", 12, 14, 15)
    A(f"v_mul_f32 v14, {f32bits(1.0/56):#x}, v12")
    for r in range(16):
        A(f"v_sub_f32 {v(AC+r)}, {v(AC+r)}, v14")
    A(f"v_mul_f32 v13, {v(AC)}, {v(AC)}")
    for r in range(1, 8):
        A(f"v_fmac_f32 v13, {v(AC+r)}, {v(AC+r)}")
    A("s_mov_b32 exec_hi, 0x0000ffff")
    for r in range(8, 16):
        A(f"v_fmac_f32 v13, {v(AC+r)}, {v(AC+r)}")
    A("s_mov_b64 exec, -1")
    xlane_g(A, "v_add_f32", 13, 14, 15)
    A("v_lshlrev_b32 v8, 6, v8")
    A("s_lshl_b32 s40, s18, 3")
    A(f"s_add_u32 s40, s40, {WS_ST}")
    A("s_mov_b64 exec, 0xffff")
    A("buffer_store_dwordx2 v[12:13], v8, s[28:31], s40 offen")
    if STAMPS:
        A("s_waitcnt vmcnt(0)")
    stamp(A, 5)
    stamp_store(A, 1, 6, 92)
    A.label(Lend)
    A("s_endpgm")
    return name, A.text(), 168, 168, 768, L2_W + 14 * 3584


def gen_k3():
    A = Asm()
    name = "k3_kernel"
    Lend = "k3_end"
    A("s_cmp_ge_u32 s2, 256")
    A(f"s_cbranch_scc1 {Lend}")
    stamp(A, 0)
    A("s_load_dwordx2 s[6:7], s[0:1], 48")
    A("s_load_dwordx2 s[12:13], s[0:1], 88")
    VL, VI, VG = 1, 2, 3
    lane_setup(A, VL, VI, VG, 19)
    A("s_and_b32 s14, s2, 7")
    A("s_lshr_b32 s15, s2, 3")
    A("s_lshr_b32 s16, s15, 4")
    A("s_lshl_b32 s17, s14, 1")
    A("s_add_u32 s17, s17, s16")
    A("s_and_b32 s18, s15, 15")
    PITCH = F * 2
    A("s_mul_i32 s33, s18, 224")
    A(f"s_mul_i32 s34, s19, {8*PITCH}")
    A("s_add_u32 s34, s34, s33")
    A(f"s_mov_b32 s36, {4*PITCH}")
    A(f"s_mov_b32 s37, {28*PITCH}")
    A("s_mul_i32 s35, s19, 896")
    A(f"v_mul_u32_u24 v12, 4682, {v(VL)}")
    A("v_lshrrev_b32 v12, 16, v12")
    A("v_mul_u32_u24 v13, 14, v12")
    A(f"v_sub_u32 v13, {v(VL)}, v13")
    A(f"v_mul_u32_u24 v5, {PITCH}, v12")
    A("v_lshl_add_u32 v5, v13, 4, v5")
    A(f"v_lshlrev_b32 v4, 4, {v(VL)}")
    A("s_lshl_b32 s38, s17, 3")
    A("s_lshl_b32 s39, s19, 1")
    A("s_add_u32 s38, s38, s39")
    A(f"s_mul_i32 s39, s38, {RT_BYTES}")
    A(f"s_add_u32 s48, s39, {WS_X1}")
    for j in range(1, 8):
        A(f"s_add_u32 s{48+j}, s48, {4096*(j%4) + RT_BYTES*(j//4)}")
    A("s_lshl_b32 s40, s38, 4")
    A(f"v_add_u32 v14, s40, {v(VI)}")
    A("v_lshlrev_b32 v14, 6, v14")
    A(f"v_lshl_add_u32 v14, {v(VG)}, 4, v14")
    A(f"s_mov_b32 s40, {WS_ST}")
    vb = big_tr_bases(A, VI, VG, 12, 13)
    A("s_waitcnt lgkmcnt(0)")
    A.srd(24, 6, 7, D * F * 2)
    A.srd(28, 12, 13, WS_SIZE)
    for sx in range(14):
        set_exec_all(A)
        for rt in range(2):
            A.vmem(f"buffer_load_dwordx4 {v(xf(sx,rt),4)}, v4, s[28:31], s{48+4*rt+sx//4} offen offset:{1024*(sx%4)}", ("ld", sx))
        set_exec56(A)
        big_w_dma(A, sx, 24, 5, 34, 35, 36)
    set_exec_all(A)
    A.vmem("buffer_load_dwordx4 v[16:19], v14, s[28:31], s40 offen", "st")
    A.vmem("buffer_load_dwordx4 v[20:23], v14, s[28:31], s40 offen offset:1024", "st")
    stamp(A, 1)
    big_zero_acc(A, N_AGPR)
    for r in range(4):
        A(f"v_mov_b32 {v(ONES+r)}, 0x3f803f80")
    snap = A.vm_snapshot()
    for wv in range(1, 4):
        A(f"s_cmp_eq_u32 s19, {wv}")
        A(f"s_cbranch_scc1 k3_w{wv}")
    CS = 144
    for wv in range(4):
        if wv:
            A.label(f"k3_w{wv}")
        A.vm_restore(snap)
        big_mainloop(A, "pair", vb, stats=False, cs_tiles=[t for t in (wv, wv + 4) if t < 7])
        colsum_exchange(A, wv, VI, VG, CS, 4)
        if wv < 3:
            A("s_branch k3_epi")
    A.label("k3_epi")
    A("s_waitcnt vmcnt(0)")
    MR = [24, 26]
    RS = [28, 30]
    for rt in range(2):
        b = 16 + 4 * rt
        m, q = MR[rt], RS[rt]
        A(f"v_add_f32 {v(m)}, {v(b)}, {v(b+2)}")
        xlane_g(A, "v_add_f32", m, 12, 13)
        A(f"v_mul_f32 {v(m)}, {f32bits(1.0/448):#x}, {v(m)}")
        A(f"v_add_f32 {v(q)}, {v(b+1)}, {v(b+3)}")
        A(f"v_mul_f32 {v(b)}, {f32bits(1.0/56):#x}, {v(b)}")
        A(f"v_mul_f32 {v(b+2)}, {f32bits(1.0/56):#x}, {v(b+2)}")
        A(f"v_sub_f32 {v(b)}, {v(b)}, {v(m)}")
        A(f"v_sub_f32 {v(b+2)}, {v(b+2)}, {v(m)}")
        A(f"v_mul_f32 {v(b)}, {v(b)}, {v(b)}")
        A(f"v_fmac_f32 {v(b)}, {v(b+2)}, {v(b+2)}")
        A(f"v_fmamk_f32 {v(q)}, {v(b)}, {f32bits(56.0):#x}, {v(q)}")
        xlane_g(A, "v_add_f32", q, 12, 13)
        A(f"v_mul_f32 {v(q)}, {f32bits(1.0/448):#x}, {v(q)}")
        ln_finish(A, m, q, 12)
        A(f"v_sub_f32 {v(m)}, 0, {v(m)}")
        A(f"v_mov_b32 {v(m+1)}, {v(m)}")
        A(f"v_mov_b32 {v(q+1)}, {v(q)}")
    C0, C1, ONE = 16, 18, 20
    for r in range(2):
        A(f"v_mov_b32 {v(C0+r)}, {f32bits(GELU_C0):#x}")
        A(f"v_mov_b32 {v(C1+r)}, {f32bits(GELU_C1):#x}")
        A(f"v_mov_b32 {v(ONE+r)}, 1.0")
    A(f"v_lshlrev_b32 v4, 4, {v(VI)}")
    A(f"v_lshrrev_b32 v12, 1, {v(VG)}")
    A("v_lshl_add_u32 v5, v12, 8, v4")
    A(f"v_and_b32 v12, 1, {v(VG)}")
    A("v_lshl_add_u32 v5, v12, 3, v5")
    A(f"v_lshl_add_u32 v4, {v(VG)}, 8, v4")
    A(f"s_mul_i32 s40, s38, {H3_RT_BYTES}")
    A("s_mul_i32 s41, s18, 3584")
    A("s_add_u32 s40, s40, s41")
    A(f"s_add_u32 s40, s40, {WS_H3}")
    A(f"s_add_u32 s41, s40, {H3_RT_BYTES}")
    A("s_waitcnt lgkmcnt(0)")

    def st(rt, pk):
        for tp in range(3):
            A(f"buffer_store_dwordx4 {v(pk+4*tp,4)}, v4, s[28:31], s{40+rt} offen offset:{1024*tp}")
        A(f"buffer_store_dwordx2 {v(pk+12,2)}, v5, s[28:31], s{40+rt} offen offset:3072")

    gelu_epilogue(A, CS, MR, RS, (C0, C1, ONE), 176, 32, st)
    stamp(A, 4)
    if STAMPS:
        A("s_waitcnt vmcnt(0)")
    stamp(A, 5)
    stamp_store(A, 2, 6, 92)
    A.label(Lend)
    A("s_endpgm")
    return name, A.text(), ACC_OFF + N_AGPR, ACC_OFF, 256, LDS_W_BYTES + 512


RING = 7 * 3584
L4_WO = 4 * RING


def gen_k4():
    A = Asm()
    name = "k4_kernel"
    Lend = "k4_end"
    A("s_cmp_ge_u32 s2, 256")
    A(f"s_cbranch_scc1 {Lend}")
    stamp(A, 0)
    A("s_load_dwordx2 s[4:5], s[0:1], 16")
    A("s_load_dwordx2 s[6:7], s[0:1], 56")
    A("s_load_dwordx2 s[8:9], s[0:1], 72")
    A("s_load_dwordx2 s[12:13], s[0:1], 88")
    VL, VI, VG = 1, 2, 3
    lane_setup(A, VL, VI, VG, 19)
    A("s_and_b32 s14, s2, 7")
    A("s_lshr_b32 s15, s2, 3")
    A("s_lshr_b32 s16, s15, 3")
    A("s_lshl_b32 s17, s14, 2")
    A("s_add_u32 s17, s17, s16")
    A("s_and_b32 s18, s15, 7")
    AFB, WFB, OFB, XR, GR = 32, 144, 176, 232, 240
    ACCO = 248
    af = lambda sx, rt: AFB + ((sx % 7) * 4 + rt) * 4
    ac = lambda rt, t: a((rt * 4 + t) * 4, 4)
    AWO = 64
    A(f"v_lshlrev_b32 v8, 4, {v(VL)}")
    for m in range(1, 4):
        A(f"v_add_u32 v{8+m}, {4096*m}, v8")
    small_dma_voff(A, VL, 5, 12, 13, 896)
    A(f"s_mul_i32 s32, s17, {4*H3_RT_BYTES}")
    A(f"s_mul_i32 s33, s19, {14*1024}")
    A("s_add_u32 s32, s32, s33")
    A(f"s_add_u32 s32, s32, {WS_H3}")
    for rt in range(1, 4):
        A(f"s_add_u32 s{32+rt}, s32, {rt*H3_RT_BYTES}")
    A("s_mul_i32 s38, s18, 112")
    A(f"s_mul_i32 s36, s19, {448*896}")
    A("s_add_u32 s36, s36, s38")
    A(f"s_mul_i32 s37, s19, {RING}")
    A(f"s_mul_i32 s39, s19, {14*8*896}")
    A("s_add_u32 s38, s38, s39")
    A(f"s_mul_i32 s39, s19, {14*896}")
    A(f"s_add_u32 s39, s39, {L4_WO}")
    A("s_lshl_b32 s40, s17, 2")
    A("s_add_u32 s40, s40, s19")
    A(f"s_mul_i32 s41, s40, {RT_BYTES}")
    A(f"s_add_u32 s42, s41, {WS_O}")
    A("s_mul_i32 s43, s18, 1792")
    A("s_add_u32 s43, s43, s41")
    A(f"s_add_u32 s43, s43, {WS_X1}")
    A("s_lshl_b32 s44, s40, 4")
    A(f"v_add_u32 v14, s44, {v(VI)}")
    A("v_lshlrev_b32 v15, 2, v14")
    A(f"s_mov_b32 s45, {WS_G}")
    A(f"v_lshlrev_b32 v16, 8, {v(VG)}")
    A(f"v_lshl_add_u32 v16, {v(VI)}, 4, v16")
    small_tr_base(A, VI, VG, 6, 12, 0)
    A(f"v_add_u32 v7, {L4_WO}, v6")
    A("v_add_u32 v6, s37, v6")
    A("s_waitcnt lgkmcnt(0)")
    A.srd(20, 4, 5, D * D * 2)
    A.srd(24, 6, 7, F * D * 2)
    A.srd(28, 12, 13, WS_SIZE)
    A.srd(48, 8, 9, ACT_BYTES)

    def issue(sx):
        for rt in range(4):
            A.vmem(f"buffer_load_dwordx4 {v(af(sx,rt),4)}, v{8+sx//4}, s[28:31], s{32+rt} offen offset:{1024*(sx%4)}", ("ld", sx))
        set_exec56(A)
        for j in range(4):
            A(f"s_add_u32 m0, s37, {(sx%7)*3584 + j*896}")
            A("s_nop 0")
            A.vmem("buffer_load_dwordx4 v5, s[24:27], s36 offen lds", ("ld", sx))
            A(f"s_add_u32 s36, s36, {8*896}")
        set_exec_all(A)

    extra = []
    for u in range(14):
        extra.append(("wo", u))
    for sx in range(14):
        extra.append(("of", sx))
    extra += [("x1", 0), ("x1", 1), ("g", 0)]

    def issue_extra(n):
        for _ in range(n):
            if not extra:
                return
            kind, u = extra.pop(0)
            if kind == "wo":
                set_exec56(A)
                A("s_mov_b32 m0, s39")
                A("s_add_u32 s39, s39, 896")
                A.vmem("buffer_load_dwordx4 v5, s[20:23], s38 offen lds", "wo")
                A(f"s_add_u32 s38, s38, {8*896}")
                set_exec_all(A)
            elif kind == "of":
                A.vmem(f"buffer_load_dwordx4 {v(OFB+4*u,4)}, v{8+u//4}, s[28:31], s42 offen offset:{1024*(u%4)}", "of")
            elif kind == "x1":
                A.vmem(f"buffer_load_dwordx4 {v(XR+4*u,4)}, v16, s[28:31], s43 offen offset:{1024*u}", "ep")
            else:
                A.vmem(f"buffer_load_dword {v(GR)}, v15, s[28:31], s45 offen", "ep")

    for sx in range(7):
        issue(sx)
    stamp(A, 1)
    for i in range(80):
        A(f"v_accvgpr_write_b32 {a(i)}, 0")
    A.vm_wait(("ld", 0))
    stamp(A, 2)
    small_tr_reads(A, 6, 0, WFB)
    for sx in range(14):
        if sx < 13:
            A.vm_wait(("ld", sx + 1))
            small_tr_reads(A, 6, ((sx + 1) % 7) * 3584, WFB + 16 * ((sx + 1) & 1))
            A("s_waitcnt lgkmcnt(8)")
        else:
            A("s_waitcnt lgkmcnt(0)")
        for rt in range(4):
            for t in range(4):
                A(f"v_mfma_f32_16x16x32_bf16 {ac(rt,t)}, {v(WFB+16*(sx&1)+4*t,4)}, {v(af(sx,rt),4)}, {ac(rt,t)}")
        if sx + 7 < 14:
            issue(sx + 7)
        else:
            issue_extra(5)
    assert not extra
    stamp(A, 3)
    A("v_add_u32 v12, s37, v8")
    A("s_nop 7")
    for rt in range(4):
        for t in range(4):
            A(f"ds_write_b128 v12, {ac(rt,t)} offset:{(rt*4+t)*1024}")
    A.vm_wait("wo", " lgkmcnt(0)")
    A("s_barrier")
    A("s_lshl_b32 s46, s19, 12")
    A("v_add_u32 v12, s46, v8")
    A(f"v_add_u32 v13, {2*RING}, v12")
    RB = 32
    for w2 in range(4):
        for t in range(4):
            A(f"ds_read_b128 {v(RB+16*w2+4*t,4)}, v{12+w2//2} offset:{(w2%2)*RING + 1024*t}")
    A.vm_wait("of")
    small_gemm(A, 7, lambda sx: OFB + 4 * sx, WFB, lambda t: a(AWO + 4 * t, 4))
    for r in range(16):
        A(f"v_add_f32 {v(RB+r)}, {v(RB+r)}, {v(RB+16+r)}")
        A(f"v_add_f32 {v(RB+32+r)}, {v(RB+32+r)}, {v(RB+48+r)}")
    for r in range(16):
        A(f"v_add_f32 {v(RB+r)}, {v(RB+r)}, {v(RB+32+r)}")
    A.vm_wait("ep")
    XU, AU = 48, 64
    for r in range(16):
        A(f"v_cvt_pk_bf16_f32 {v(RB+r)}, 0, {v(RB+r)}")
    for j in range(8):
        A(f"v_lshlrev_b32 {v(XU+2*j)}, 16, {v(XR+j)}")
        A(f"v_and_b32 {v(XU+2*j+1)}, 0xffff0000, {v(XR+j)}")
    for r in range(16):
        A(f"v_accvgpr_read_b32 {v(AU+r)}, {a(AWO+r)}")
    A(f"v_sub_f32 v12, 1.0, {v(GR)}")
    A("v_cvt_pk_bf16_f32 v12, 0, v12")
    for r in range(16):
        A(f"v_add_f32 {v(RB+r)}, {v(RB+r)}, {v(XU+r)}")
    for r in range(16):
        A(f"v_cvt_pk_bf16_f32 {v(AU+r)}, 0, {v(AU+r)}")
    for r in range(16):
        A(f"v_cvt_pk_bf16_f32 {v(RB+r)}, 0, {v(RB+r)}")
    for r in range(16):
        A(f"v_mul_f32 {v(AU+r)}, {v(GR)}, {v(AU+r)}")
        A(f"v_mul_f32 {v(RB+r)}, v12, {v(RB+r)}")
    for r in range(16):
        A(f"v_cvt_pk_bf16_f32 {v(AU+r)}, 0, {v(AU+r)}")
        A(f"v_cvt_pk_bf16_f32 {v(RB+r)}, 0, {v(RB+r)}")
    for r in range(16):
        A(f"v_add_f32 {v(RB+r)}, {v(RB+r)}, {v(AU+r)}")
    for j in range(8):
        A(f"v_cvt_pk_bf16_f32 {v(XU+j)}, {v(RB+2*j)}, {v(RB+2*j+1)}")
    A("v_mul_u32_u24 v14, 896, v14")
    A(f"v_lshl_add_u32 v14, {v(VG)}, 4, v14")
    A("s_mul_i32 s46, s18, 112")
    A(f"buffer_store_dwordx4 {v(XU,4)}, v14, s[48:51], s46 offen")
    A("s_mov_b32 exec_hi, 0x0000ffff")
    A(f"buffer_store_dwordx4 {v(XU+4,4)}, v14, s[48:51], s46 offen offset:64")
    stamp(A, 4)
    if STAMPS:
        A("s_waitcnt vmcnt(0)")
    stamp(A, 5)
    stamp_store(A, 3, 6, 92)
    if STAMPS:
        A("s_cmp_lg_u32 s2, 0")
        A(f"s_cbranch_scc1 {Lend}")
        A("s_cmp_lg_u32 s92, 0")
        A(f"s_cbranch_scc1 {Lend}")
        A("s_load_dwordx2 s[88:89], s[0:1], 80")
        A("s_mov_b64 exec, 0xffff")
        A("s_waitcnt vmcnt(0) lgkmcnt(0)")
        A("v_and_b32 v1, 63, v0")
        A("v_lshrrev_b32 v2, 2, v1")
        A("v_lshlrev_b32 v2, 18, v2")
        A("v_and_b32 v3, 3, v1")
        A("v_lshl_add_u32 v4, v3, 1, 0")
        A("v_min_u32 v4, 5, v4")
        A("v_lshl_add_u32 v2, v4, 2, v2")
        A(f"s_mov_b32 s90, {WS_DBG}")
        A("buffer_load_dword v5, v2, s[28:31], s90 offen sc1")
        A("s_waitcnt vmcnt(0)")
        A("v_readfirstlane_b32 s90, v5")
        A("s_nop 1")
        A("v_subrev_u32 v5, s90, v5")
        A("v_lshlrev_b32 v1, 2, v1")
        A("global_store_dword v1, v5, s[88:89]")
    A.label(Lend)
    A("s_endpgm")
    return name, A.text(), ACCO + 80, ACCO, 256, L4_WO + 14 * 3584


KERNELS = [gen_k1, gen_k2, gen_k3, gen_k4]


def build(kernels):
    hdr = open("gated_mix__sliding_block__mixer_s_mlp__prompt.s.ref").read().split("; Override launch")[0]
    out = hdr
    gens = [g() for g in kernels]
    kl = os.environ.get("KLIST")
    order = [int(c) - 1 for c in kl.split(",")] if kl else range(len(gens))
    for i in order:
        name, txt, vg, acc_off, block, lds = gens[i]
        out += f"; @launch kernel={name} grid=(256,1,1) block=({block},1,1) lds={lds}\n"
    out += '.amdgcn_target "amdgcn-amd-amdhsa--gfx950"\n.text\n'
    for name, txt, vg, acc_off, block, lds in gens:
        out += kernel_head(name) + txt
    out += '.section .rodata,"a"\n'
    for name, txt, vg, acc_off, block, lds in gens:
        out += kernel_desc(name, vg, acc_off)
    return out


if __name__ == "__main__":
    dst = sys.argv[1] if len(sys.argv) > 1 else "gated_mix__sliding_block__mixer_s_mlp__prompt.s"
    open(dst, "w").write(build(KERNELS))
    print("wrote", dst)
```

```python
import math
import os
import sys
from asmlib import Asm, v, a, s, f32bits, kernel_desc, kernel_head

S, D, F = 2048, 448, 1792
MB = 1 << 20
WS_Q, WS_K, WS_V, WS_HS, WS_X1, WS_O, WS_A, WS_H3, WS_G, WS_ST = (x * MB for x in (0, 2, 4, 6, 8, 10, 12, 16, 24, 25))
WS_SIZE = 32 * MB
WS_DBG = 28 * MB
ACT_BYTES = S * D * 2
RT_BYTES = 16 * D * 2
H3_RT_BYTES = 16 * F * 2
LOG2E = 1.4426950408889634
GELU_C0 = -2.0 * math.sqrt(2.0 / math.pi) * LOG2E
GELU_C1 = GELU_C0 * 0.044715
SCALE = 28 ** -0.5
NEGBIG = f32bits(-1e30)
STAMPS = os.environ.get("STAMPS", "0") == "1"
ST0 = 70
VL, VI, VG = 1, 2, 3


def stamp(A, i):
    if STAMPS:
        A(f"s_memrealtime s[{ST0+2*i}:{ST0+2*i+1}]")


def stamp_end(A, kidx):
    if not STAMPS:
        return
    stamp(A, 4)
    A("s_waitcnt vmcnt(0)")
    stamp(A, 5)
    A("s_waitcnt lgkmcnt(0)")
    A("s_mov_b64 exec, 1")
    A("s_lshl_b32 s90, s2, 9")
    A("s_lshl_b32 s91, s92, 5")
    A("s_add_u32 s90, s90, s91")
    A(f"s_add_u32 s90, s90, {WS_DBG + kidx*(1<<18)}")
    A("v_mov_b32 v4, 0")
    for i in range(6):
        A(f"v_mov_b32 v5, s{ST0+2*i}")
        A(f"buffer_store_dword v5, v4, s[28:31], s90 offen offset:{4*i}")
    A("s_mov_b64 exec, -1")


def ex56(A):
    A("s_mov_b32 exec_hi, 0x00ffffff")


def ex48(A):
    A("s_mov_b32 exec_hi, 0x0000ffff")


def exall(A):
    A("s_mov_b32 exec_hi, -1")


def lane_setup(A, swave=19):
    A(f"v_and_b32 {v(VL)}, 63, v0")
    A(f"v_lshrrev_b32 {v(VI)}, 6, v0")
    A("s_nop 0")
    A(f"v_readfirstlane_b32 {s(swave)}, {v(VI)}")
    if STAMPS:
        A(f"v_readfirstlane_b32 s92, {v(VI)}")
    A(f"v_and_b32 {v(VI)}, 15, {v(VL)}")
    A(f"v_lshrrev_b32 {v(VG)}, 4, {v(VL)}")


def xlane_g(A, op, x, t1, t2):
    A(f"v_mov_b32 {v(t1)}, {v(x)}")
    A(f"v_mov_b32 {v(t2)}, {v(x)}")
    A("s_nop 1")
    A(f"v_permlane16_swap_b32 {v(t1)}, {v(t2)}")
    A("s_nop 1")
    A(f"{op} {v(x)}, {v(t1)}, {v(t2)}")
    A(f"v_mov_b32 {v(t1)}, {v(x)}")
    A(f"v_mov_b32 {v(t2)}, {v(x)}")
    A("s_nop 1")
    A(f"v_permlane32_swap_b32 {v(t1)}, {v(t2)}")
    A("s_nop 1")
    A(f"{op} {v(x)}, {v(t1)}, {v(t2)}")


def rbf(A, x):
    A(f"v_cvt_pk_bf16_f32 {v(x)}, 0, {v(x)}")


def gelu_pairs(A, pairs, outs, tmp, c0, c1, one):
    n = len(pairs)
    for i, p in enumerate(pairs):
        A(f"v_pk_mul_f32 {v(tmp+2*i,2)}, {v(p,2)}, {v(p,2)}")
    for i, p in enumerate(pairs):
        A(f"v_pk_fma_f32 {v(tmp+2*i,2)}, {v(tmp+2*i,2)}, {v(c1,2)}, {v(c0,2)}")
    for i, p in enumerate(pairs):
        A(f"v_pk_mul_f32 {v(tmp+2*i,2)}, {v(tmp+2*i,2)}, {v(p,2)}")
    for i, p in enumerate(pairs):
        A(f"v_exp_f32 {v(tmp+2*i)}, {v(tmp+2*i)}")
        A(f"v_exp_f32 {v(tmp+2*i+1)}, {v(tmp+2*i+1)}")
    for i, p in enumerate(pairs):
        A(f"v_pk_add_f32 {v(tmp+2*i,2)}, {v(tmp+2*i,2)}, {v(one,2)}")
    for i, p in enumerate(pairs):
        A(f"v_rcp_f32 {v(tmp+2*i)}, {v(tmp+2*i)}")
        A(f"v_rcp_f32 {v(tmp+2*i+1)}, {v(tmp+2*i+1)}")
    for i, p in enumerate(pairs):
        A(f"v_pk_mul_f32 {v(p,2)}, {v(p,2)}, {v(tmp+2*i,2)}")
    for i, p in enumerate(pairs):
        A(f"v_cvt_pk_bf16_f32 {v(outs[i])}, {v(p)}, {v(p+1)}")


def ln_finish(A, mean, var):
    rbf(A, mean)
    rbf(A, var)
    A(f"v_add_f32 {v(var)}, {f32bits(1e-5):#x}, {v(var)}")
    rbf(A, var)
    A(f"v_sqrt_f32 {v(var)}, {v(var)}")
    A(f"v_sub_f32 {v(mean)}, 0, {v(mean)}")
    rbf(A, var)
    A(f"v_rcp_f32 {v(var)}, {v(var)}")
    A("s_nop 0")


def swapped_chunk(u):
    c = u % 14
    return c < 12 and (c & 3) >= 2


NSLOT, SLOT, PFD = 8, 15360, int(os.environ.get('PFD', '5'))
L_EX = NSLOT * SLOT
BIG_LDS = L_EX + 512 + 1024
V_XD, V_WD = 4, 5
V_XR = (6, 7)
V_TA, V_TB, V_TS, V_TC = (8, 9), (10, 11), (12, 13), (14, 15)
XB = 32
WB = 48
CB = 80
ONES = 88
ACC = 92
ASTAT = 124
ACS = 132
BIG_NV = 200


def tiles_of(ch):
    return [0, 1, 2, 3] if ch == 0 else [4, 5, 6]


def tile_addr(mode, t):
    if mode == "qk":
        return V_TA, 2 * (8 * (t // 2) + 4 * (t & 1) if t < 6 else 24)
    if mode == "nat":
        return V_TS, 32 * t
    if t < 6:
        return (V_TA if (t & 1) == 0 else V_TB), 64 * (t // 2)
    return V_TS, 192


EXP = os.environ.get("EXP", "2")
RPM = int(os.environ.get("RPM", "3"))


def big_reads_list(sx, mode, ch, cs):
    if "r" in EXP:
        return []
    buf, slot = sx & 1, sx % NSLOT
    hi = slot // 4
    so = (slot % 4) * SLOT
    out = []
    for j in range(2):
        out.append(f"ds_read_b128 {v(XB+buf*8+4*j,4)}, {v(V_XR[hi])} offset:{so + 1024*j}")
    for k, t in enumerate(tiles_of(ch)):
        base, off = tile_addr(mode, t)
        for hh in range(2):
            out.append(f"ds_read_b64_tr_b16 {v(WB+buf*16+4*k+2*hh,2)}, {v(base[hi])} offset:{so + 8192 + hh*3584 + off}")
    if cs:
        for hh in range(2):
            out.append(f"ds_read_b64_tr_b16 {v(CB+buf*4+2*hh,2)}, {v(V_TC[hi])} offset:{so + 8192 + hh*3584}")
    return out


def big_reads(A, sx, mode, ch, cs):
    for r in big_reads_list(sx, mode, ch, cs):
        A(r)


def big_mfmas(sx, mode, ch, stats, cs):
    buf = sx & 1
    out = []
    for k, t in enumerate(tiles_of(ch)):
        for j in range(2):
            c = v(ACC + (j * 4 + k) * 4, 4)
            x, w = v(XB + buf * 8 + 4 * j, 4), v(WB + buf * 16 + 4 * k, 4)
            out.append(f"v_mfma_f32_16x16x32_bf16 {c}, {x}, {w}, {c}" if mode == "nat" else
                       f"v_mfma_f32_16x16x32_bf16 {c}, {w}, {x}, {c}")
    if stats:
        for j in range(2):
            c, x = v(ASTAT + 4 * j, 4), v(XB + buf * 8 + 4 * j, 4)
            a_ = v(ONES, 4) if ch == 0 else x
            out.append(f"v_mfma_f32_16x16x32_bf16 {c}, {a_}, {x}, {c}")
    if cs:
        c = v(ACS, 4)
        out.append(f"v_mfma_f32_16x16x32_bf16 {c}, {v(CB+buf*4,4)}, {v(ONES,4)}, {c}")
    return out


def big_dma_parts(A, sx, xstep):
    slot = sx % NSLOT

    def px():
        A(f"s_add_u32 m0, s36, {slot*SLOT}")
        A("s_nop 0")
        A.vmem(f"buffer_load_dwordx4 {v(V_XD)}, s[20:23], s35 offen lds", ("ld", sx))
        A(f"s_add_u32 s35, s35, {xstep}")

    def pw():
        A(f"s_add_u32 m0, s37, {slot*SLOT}")
        ex56(A)
        A.vmem(f"buffer_load_dwordx4 {v(V_WD)}, s[24:27], s34 offen lds", ("ld", sx))
        exall(A)
        A("s_add_u32 s34, s34, s38")
    return px, pw


def big_dma(A, sx, xstep):
    for p in big_dma_parts(A, sx, xstep):
        p()


def big_mainloop(A, mode, ch, xstep, stats=False, cs=False):
    A.vm_wait(("ld", 0))
    A("s_barrier")
    stamp(A, 2)
    big_reads(A, 0, mode, ch, cs)
    for sx in range(14):
        mf = big_mfmas(sx, mode, ch, stats, cs)
        rd = []
        B2 = "2" in EXP
        if sx < 13 and (not B2 or sx % 2 == 0):
            A.vm_wait(("ld", min(13, sx + 2) if B2 else sx + 1), " lgkmcnt(0)")
            if "b" not in EXP:
                A("s_barrier")
        else:
            A("s_waitcnt lgkmcnt(0)")
        if sx < 13:
            rd = big_reads_list(sx + 1, mode, ch, cs)
        parts = list(big_dma_parts(A, sx + 1 + PFD, xstep)) if sx + 1 + PFD < 14 else []
        nm = len(mf)
        for i, m in enumerate(mf):
            if "m" not in EXP:
                A(m)
            k = min(RPM, len(rd)) if i < nm - 1 else len(rd)
            for _ in range(k):
                A(rd.pop(0))
            if parts and i in (2, 5):
                parts.pop(0)()
        assert not rd and not parts
    stamp(A, 3)


def big_setup_common(A):
    A("s_and_b32 s40, s19, 3")
    A("s_lshr_b32 s41, s19, 2")
    A("s_lshl_b32 s36, s19, 10")
    A("s_mul_i32 s37, s19, 896")
    A("s_add_u32 s37, s37, 8192")
    A(f"v_lshrrev_b32 v16, 2, {v(VI)}")
    A(f"v_lshl_add_u32 v16, {v(VG)}, 2, v16")
    A("v_mul_u32_u24 v16, 224, v16")
    A(f"v_and_b32 v17, 3, {v(VI)}")
    A(f"v_lshl_add_u32 {v(V_TS[0])}, v17, 3, v16")
    A("v_lshl_add_u32 v18, v17, 4, v16")
    A("v_lshrrev_b32 v19, 1, v17")
    A(f"v_lshl_add_u32 {v(V_TA[0])}, v19, 3, v18")
    A("v_xor_b32 v19, 1, v19")
    A(f"v_lshl_add_u32 {v(V_TB[0])}, v19, 3, v18")


def big_finish_bases(A):
    for pr in (V_XR, V_TA, V_TB, V_TS, V_TC):
        A(f"v_add_u32 {v(pr[1])}, {4*SLOT}, {v(pr[0])}")


def big_cs_base(A):
    A("s_lshl_b32 s42, s41, 2")
    A("s_add_u32 s42, s42, s40")
    A("s_min_u32 s42, s42, 6")
    A("s_lshr_b32 s43, s42, 1")
    A("s_lshl_b32 s43, s43, 6")
    A(f"v_mov_b32 {v(V_TC[0])}, {v(V_TA[0])}")
    l1, l2 = A.newlabel("cs"), A.newlabel("cs")
    A("s_bitcmp1_b32 s42, 0")
    A(f"s_cbranch_scc0 {l1}")
    A(f"v_mov_b32 {v(V_TC[0])}, {v(V_TB[0])}")
    A.label(l1)
    A("s_cmp_eq_u32 s42, 6")
    A(f"s_cbranch_scc0 {l2}")
    A(f"v_mov_b32 {v(V_TC[0])}, {v(V_TS[0])}")
    A.label(l2)
    A(f"v_add_u32 {v(V_TC[0])}, s43, {v(V_TC[0])}")


def big_zero(A):
    for r in range(ACC, ACS + 4):
        A(f"v_mov_b32 {v(r)}, 0")
    for r in range(4):
        A(f"v_mov_b32 {v(ONES+r)}, 0x3f803f80")


def cs_write(A, t0):
    A(f"v_lshlrev_b32 {v(t0)}, 4, {v(VG)}")
    A("s_lshl_b32 s43, s42, 6")
    A(f"s_add_u32 s43, s43, {L_EX}")
    A(f"v_add_u32 {v(t0+1)}, s43, {v(t0)}")
    A(f"v_add_u32 {v(t0)}, {L_EX}, {v(t0)}")
    A(f"v_cmp_eq_u32 vcc, 0, {v(VI)}")
    A("s_and_saveexec_b64 s[44:45], vcc")
    A(f"ds_write_b128 {v(t0+1)}, {v(ACS,4)}")
    A("s_mov_b64 exec, s[44:45]")


def gelu_epilogue(A, ch, cs, mreg, rsreg, consts, tmp, pk, store_fn):
    c0, c1, one = consts
    nt = len(tiles_of(ch))
    for j in range(2):
        base = ACC + j * 16
        pairs = [base + 2 * i for i in range(2 * nt)]
        for i, p in enumerate(pairs):
            A(f"v_pk_fma_f32 {v(p,2)}, {v(cs+2*i,2)}, {v(mreg[j],2)}, {v(p,2)}")
        for i, p in enumerate(pairs):
            A(f"v_pk_mul_f32 {v(p,2)}, {v(p,2)}, {v(rsreg[j],2)}")
        outs = [pk + 8 * j + i for i in range(2 * nt)]
        gelu_pairs(A, pairs, outs, tmp, c0, c1, one)
        store_fn(j, pk + 8 * j)


def gelu_consts(A, base):
    for r in range(2):
        A(f"v_mov_b32 {v(base+r)}, {f32bits(GELU_C0):#x}")
        A(f"v_mov_b32 {v(base+2+r)}, {f32bits(GELU_C1):#x}")
        A(f"v_mov_b32 {v(base+4+r)}, 1.0")
    return base, base + 2, base + 4


def gen_k1():
    A = Asm()
    Lend = "k1_end"
    A("s_cmp_ge_u32 s2, 256")
    A(f"s_cbranch_scc1 {Lend}")
    stamp(A, 0)
    A("s_load_dwordx4 s[4:7], s[0:1], 0")
    A("s_load_dwordx2 s[8:9], s[0:1], 32")
    A("s_load_dwordx2 s[10:11], s[0:1], 64")
    A("s_load_dwordx2 s[12:13], s[0:1], 88")
    lane_setup(A)
    A("s_and_b32 s14, s2, 7")
    A("s_lshr_b32 s15, s2, 3")
    A("s_lshr_b32 s16, s15, 4")
    A("s_lshl_b32 s17, s14, 1")
    A("s_add_u32 s17, s17, s16")
    A("s_and_b32 s18, s15, 15")
    A("s_sub_u32 s33, s18, 12")
    A("s_movk_i32 s32, 896")
    A("s_cmp_lt_u32 s18, 12")
    A("s_cselect_b32 s32, 2688, s32")
    A("s_cselect_b32 s33, s18, s33")
    A("s_mul_i32 s33, s33, 224")
    big_setup_common(A)
    A("s_lshl_b32 s34, s40, 3")
    A("s_lshl_b32 s35, s41, 2")
    A("s_add_u32 s34, s34, s35")
    A("s_mul_i32 s34, s34, s32")
    A("s_add_u32 s34, s34, s33")
    A("s_lshl_b32 s38, s32, 5")
    A(f"v_mul_u32_u24 v16, 4682, {v(VL)}")
    A("v_lshrrev_b32 v16, 16, v16")
    A("v_mul_u32_u24 v17, 14, v16")
    A(f"v_sub_u32 v17, {v(VL)}, v17")
    A(f"v_mul_lo_u32 {v(V_WD)}, v16, s32")
    A(f"v_lshl_add_u32 {v(V_WD)}, v17, 4, {v(V_WD)}")
    A(f"v_lshrrev_b32 v16, 2, {v(VL)}")
    A(f"v_mul_u32_u24 {v(V_XD)}, 896, v16")
    A(f"v_sub_u32 v17, 4, {v(VG)}")
    A(f"v_xor_b32 v17, v17, {v(VL)}")
    A("v_and_b32 v17, 3, v17")
    A(f"v_lshl_add_u32 {v(V_XD)}, v17, 4, {v(V_XD)}")
    A("s_lshl_b32 s35, s17, 3")
    A("s_add_u32 s35, s35, s19")
    A(f"s_mul_i32 s35, s35, {RT_BYTES}")
    A(f"v_lshrrev_b32 v16, 2, {v(VI)}")
    A("v_sub_u32 v16, 4, v16")
    A(f"v_xor_b32 v16, v16, {v(VG)}")
    A("v_and_b32 v16, 3, v16")
    A(f"v_lshl_add_u32 v16, {v(VI)}, 2, v16")
    A("s_lshl_b32 s43, s40, 11")
    A(f"v_lshl_add_u32 {v(V_XR[0])}, v16, 4, s43")
    A("s_cmp_ge_u32 s18, 8")
    A("s_cbranch_scc1 k1_noqk")
    A(f"v_and_b32 v17, 3, {v(VI)}")
    A(f"v_mul_u32_u24 v17, 48, v17")
    A(f"v_add_u32 {v(V_TA[0])}, v17, {v(V_TS[0])}")
    A.label("k1_noqk")
    big_cs_base(A)
    big_finish_bases(A)
    A("s_lshl_b32 s46, s17, 7")
    A("s_lshl_b32 s47, s18, 3")
    A("s_add_u32 s46, s46, s47")
    A("s_add_u32 s46, s46, s19")
    A("s_mul_i32 s47, s46, 896")
    A(f"v_lshlrev_b32 v16, 4, {v(VL)}")
    for r in range(192, 200):
        A(f"v_mov_b32 v{r}, 0")
    A("s_lshl_b32 s39, s17, 7")
    A("s_lshl_b32 s43, s40, 5")
    A("s_add_u32 s39, s39, s43")
    A("s_waitcnt lgkmcnt(0)")
    A.srd(20, 4, 5, ACT_BYTES)
    A(f"s_mov_b32 s26, {D*D*2}")
    A("s_cmp_lt_u32 s18, 12")
    A("s_cselect_b32 s24, s6, s8")
    A("s_cselect_b32 s25, s7, s9")
    A(f"s_cselect_b32 s26, {D*3*D*2}, s26")
    A("s_and_b32 s25, s25, 0xffff")
    A("s_mov_b32 s27, 0x00020000")
    A.srd(28, 12, 13, WS_SIZE)
    A.srd(48, 10, 11, D * 2)
    for sx in range(PFD + 1):
        big_dma(A, sx, 64)
    ex56(A)
    A.vmem("buffer_load_dwordx4 v[192:195], v16, s[20:23], s47 offen", "gate")
    A.vmem("buffer_load_dwordx4 v[196:199], v16, s[48:51], 0 offen", "gate")
    exall(A)
    stamp(A, 1)
    big_zero(A)
    snap = A.vm_snapshot()

    def gate():
        T, U = 140, 148
        A.vm_wait("gate")
        for j in range(4):
            A(f"v_lshlrev_b32 {v(T+2*j)}, 16, {v(196+j)}")
            A(f"v_and_b32 {v(T+2*j+1)}, 0xffff0000, {v(196+j)}")
            A(f"v_lshlrev_b32 {v(U+2*j)}, 16, {v(192+j)}")
            A(f"v_and_b32 {v(U+2*j+1)}, 0xffff0000, {v(192+j)}")
        for j in range(4):
            A(f"v_pk_mul_f32 {v(U+2*j,2)}, {v(U+2*j,2)}, {v(T+2*j,2)}")
        for j in range(8):
            rbf(A, U + j)
        z = T
        A(f"v_add_f32 {v(z)}, {v(U)}, {v(U+1)}")
        for j in range(2, 8):
            A(f"v_add_f32 {v(z)}, {v(z)}, {v(U+j)}")
        for ror in (8, 4, 2, 1):
            A("s_nop 1")
            A(f"v_add_f32_dpp {v(z)}, {v(z)}, {v(z)} row_ror:{ror} row_mask:0xf bank_mask:0xf")
        xlane_g(A, "v_add_f32", z, U, U + 1)
        rbf(A, z)
        A(f"v_mul_f32 {v(z)}, {f32bits(-LOG2E):#x}, {v(z)}")
        A(f"v_exp_f32 {v(z)}, {v(z)}")
        A("s_nop 0")
        A(f"v_add_f32 {v(z)}, 1.0, {v(z)}")
        A(f"v_rcp_f32 {v(z)}, {v(z)}")
        A("s_nop 0")
        rbf(A, z)
        A("s_lshl_b32 s47, s46, 2")
        A(f"s_add_u32 s47, s47, {WS_G}")
        A(f"v_mov_b32 {v(U)}, 0")
        A("s_mov_b64 exec, 1")
        A(f"buffer_store_dword {v(z)}, {v(U)}, s[28:31], s47 offen")
        A("s_mov_b64 exec, -1")

    A("s_cmp_ge_u32 s18, 12")
    A("s_cbranch_scc1 k1_w1")
    A("s_cmp_ge_u32 s18, 8")
    A("s_cbranch_scc1 k1_v")
    PK = 32
    A("s_cmp_eq_u32 s41, 1")
    A("s_cbranch_scc1 k1_qk1")
    for ch in range(2):
        if ch:
            A.label("k1_qk1")
        A.vm_restore(snap)
        big_mainloop(A, "qk", ch, 64)
        A(f"v_mul_u32_u24 v16, 131072, {v(VG)}")
        A(f"v_lshl_add_u32 v16, {v(VI)}, 4, v16")
        A("s_lshr_b32 s42, s18, 2")
        A("s_lshl_b32 s42, s42, 21")
        A("s_and_b32 s43, s18, 3")
        A("s_lshl_b32 s43, s43, 19")
        A("s_add_u32 s42, s42, s43")
        A("s_lshl_b32 s43, s39, 6")
        A("s_add_u32 s42, s42, s43")
        A("s_nop 4")
        for j in range(2):
            for q in range(2):
                tp = 2 * ch + q
                pk = PK + 8 * j + 4 * q
                src = ACC + 16 * j + 8 * q
                A(f"v_cvt_pk_bf16_f32 {v(pk)}, {v(src)}, {v(src+1)}")
                A(f"v_cvt_pk_bf16_f32 {v(pk+1)}, {v(src+2)}, {v(src+3)}")
                if tp < 3:
                    A(f"v_cvt_pk_bf16_f32 {v(pk+2)}, {v(src+4)}, {v(src+5)}")
                    A(f"v_cvt_pk_bf16_f32 {v(pk+3)}, {v(src+6)}, {v(src+7)}")
                else:
                    A(f"v_mov_b32 {v(pk+2)}, 0")
                    A(f"v_mov_b32 {v(pk+3)}, 0")
                A(f"buffer_store_dwordx4 {v(pk,4)}, v16, s[28:31], s42 offen offset:{1024*j+256*tp}")
        A("s_branch k1_gate")
    A.label("k1_v")
    A("s_cmp_eq_u32 s41, 1")
    A("s_cbranch_scc1 k1_v1")
    for ch in range(2):
        if ch:
            A.label("k1_v1")
        A.vm_restore(snap)
        big_mainloop(A, "nat", ch, 64)
        A("s_and_b32 s43, s18, 3")
        A("s_lshl_b32 s43, s43, 19")
        A(f"s_add_u32 s42, s43, {WS_V}")
        A("s_lshl_b32 s43, s39, 6")
        A("s_add_u32 s42, s42, s43")
        for k, t in enumerate(tiles_of(ch)):
            o = 4 + k
            A(f"v_add_u32 v16, {16*t}, {v(VI)}")
            A("v_mul_u32_u24 v17, 2341, v16")
            A("v_lshrrev_b32 v17, 16, v17")
            A("v_mul_u32_u24 v18, 28, v17")
            A("v_sub_u32 v18, v16, v18")
            A(f"v_lshlrev_b32 {v(o)}, 17, v17")
            A("v_lshrrev_b32 v19, 4, v18")
            A(f"v_lshl_add_u32 {v(o)}, v19, 10, {v(o)}")
            A("v_and_b32 v19, 15, v18")
            A(f"v_lshl_add_u32 {v(o)}, v19, 4, {v(o)}")
            A(f"v_lshl_add_u32 {v(o)}, {v(VG)}, 8, {v(o)}")
        for k, t in enumerate(tiles_of(ch)):
            pk = PK + 4 * k
            for j in range(2):
                src = ACC + 16 * j + 4 * k
                A(f"v_cvt_pk_bf16_f32 {v(pk+2*j)}, {v(src)}, {v(src+1)}")
                A(f"v_cvt_pk_bf16_f32 {v(pk+2*j+1)}, {v(src+2)}, {v(src+3)}")
            A(f"buffer_store_dwordx4 {v(pk,4)}, {v(4+k)}, s[28:31], s42 offen")
        if ch == 1:
            A(f"v_lshlrev_b32 v16, 17, {v(VG)}")
            A(f"v_lshrrev_b32 v17, 2, {v(VI)}")
            A("v_lshl_add_u32 v16, v17, 4, v16")
            A(f"v_and_b32 v18, 3, {v(VI)}")
            A("v_lshl_add_u32 v16, v18, 8, v16")
            A("v_cmp_eq_u32 vcc, 0, v17")
            A("v_mov_b32 v18, 0x3f803f80")
            A("s_nop 0")
            A("v_cndmask_b32 v48, 0, v18, vcc")
            for r in range(1, 4):
                A(f"v_mov_b32 v{48+r}, v48")
            A(f"buffer_store_dwordx4 v[48:51], v16, s[28:31], s42 offen offset:{1024+12*16}")
        A("s_branch k1_gate")
    A.label("k1_w1")
    A("s_cmp_eq_u32 s41, 1")
    A("s_cbranch_scc1 k1_w11")
    MR, RS = [140, 142], [144, 146]
    CS = 48
    for ch in range(2):
        if ch:
            A.label("k1_w11")
        A.vm_restore(snap)
        big_mainloop(A, "pair", ch, 64, stats=True, cs=True)
        A(f"v_lshlrev_b32 v17, 3, {v(VI)}")
        A("s_lshl_b32 s43, s40, 8")
        A(f"s_add_u32 s43, s43, {L_EX+512}")
        A("v_add_u32 v17, s43, v17")
        A("s_nop 3")
        cs_write(A, 18)
        if ch == 0:
            A("s_mov_b64 exec, 0xffff")
            for j in range(2):
                A(f"ds_write_b32 v17, {v(ASTAT+4*j)} offset:{128*j}")
            A("s_mov_b64 exec, -1")
        else:
            A(f"v_lshrrev_b32 v20, 2, {v(VI)}")
            A(f"v_and_b32 v21, 3, {v(VI)}")
            for r in range(4):
                A(f"v_cmp_eq_u32 s[44:45], v20, {v(VG)}")
                A(f"v_cmp_eq_u32 vcc, {r}, v21")
                A("s_and_b64 exec, vcc, s[44:45]")
                for j in range(2):
                    A(f"ds_write_b32 v17, {v(ASTAT+4*j+r)} offset:{128*j+4}")
                A("s_mov_b64 exec, -1")
        A("s_waitcnt lgkmcnt(0)")
        A("s_barrier")
        for k, t in enumerate(tiles_of(ch)):
            A(f"ds_read_b128 {v(CS+4*k,4)}, v18 offset:{64*t}")
        for j in range(2):
            A(f"ds_read_b64 {v(20+2*j,2)}, v17 offset:{128*j}")
        consts = gelu_consts(A, 148)
        A("s_sub_u32 s42, s18, 12")
        A("s_lshr_b32 s43, s42, 1")
        A("s_add_u32 s43, s43, 1")
        A("s_sub_u32 s44, 0, s43")
        A("s_bitcmp1_b32 s42, 0")
        A("s_cselect_b32 s43, s44, s43")
        A("s_add_u32 s43, s43, s39")
        A.srd_off(52, 12, 13, WS_HS, ACT_BYTES)
        A("s_mul_i32 s44, s42, 3584")
        for j in range(2):
            A(f"v_add_u32 v24, s43, {v(VI)}")
            if j:
                A("v_add_u32 v24, 16, v24")
            A("v_lshrrev_b32 v25, 4, v24")
            A("v_mul_u32_u24 v25, 14336, v25")
            A("v_and_b32 v26, 15, v24")
            A("v_lshl_add_u32 v25, v26, 4, v25")
            A("v_cmp_gt_u32 vcc, 2048, v24")
            A("v_mov_b32 v26, 0x80000000")
            A("s_nop 0")
            A("v_cndmask_b32 v25, v26, v25, vcc")
            A(f"v_lshl_add_u32 {v(4+j)}, {v(VG)}, 8, v25")
            A(f"v_lshrrev_b32 v26, 1, {v(VG)}")
            A("v_lshl_add_u32 v25, v26, 8, v25")
            A(f"v_and_b32 v26, 1, {v(VG)}")
            A(f"v_lshl_add_u32 {v(6+j)}, v26, 3, v25")
        A("s_waitcnt lgkmcnt(0)")
        for j in range(2):
            m, q = MR[j], RS[j]
            A(f"v_mul_f32 {v(m)}, {f32bits(1.0/448):#x}, {v(20+2*j)}")
            A(f"v_mul_f32 {v(q)}, {f32bits(1.0/448):#x}, {v(21+2*j)}")
            A(f"v_fma_f32 {v(q)}, -{v(m)}, {v(m)}, {v(q)}")
            A(f"v_max_f32 {v(q)}, 0, {v(q)}")
            ln_finish(A, m, q)
            A(f"v_mov_b32 {v(m+1)}, {v(m)}")
            A(f"v_mov_b32 {v(q+1)}, {v(q)}")

        def st(j, pk, ch=ch):
            if ch == 0:
                for q in range(2):
                    A(f"buffer_store_dwordx4 {v(pk+4*q,4)}, {v(4+j)}, s[52:55], s44 offen offset:{1024*q}")
            else:
                A(f"buffer_store_dwordx4 {v(pk,4)}, {v(4+j)}, s[52:55], s44 offen offset:2048")
                A(f"buffer_store_dwordx2 {v(pk+4,2)}, {v(6+j)}, s[52:55], s44 offen offset:3072")

        gelu_epilogue(A, ch, CS, MR, RS, consts, 156, 32, st)
        if ch == 0:
            A("s_branch k1_zero")
    A.label("k1_zero")
    A("s_cmp_lg_u32 s19, 0")
    A("s_cbranch_scc1 k1_gate")
    A("s_bitcmp1_b32 s42, 0")
    A("s_cselect_b32 s45, 15, 0")
    A("s_cmp_lg_u32 s17, s45")
    A("s_cbranch_scc1 k1_gate")
    A("s_lshr_b32 s45, s42, 1")
    A("s_add_u32 s45, s45, 1")
    A("s_sub_u32 s56, 2048, s45")
    A("s_bitcmp1_b32 s42, 0")
    A("s_cselect_b32 s56, s56, 0")
    A("s_mul_i32 s45, s45, 14")
    A(f"v_mul_u32_u24 v12, 4682, {v(VL)}")
    A("v_lshrrev_b32 v12, 16, v12")
    A("v_mul_u32_u24 v13, 14, v12")
    A(f"v_sub_u32 v13, {v(VL)}, v13")
    A("v_add_u32 v12, s56, v12")
    A("v_lshrrev_b32 v14, 4, v12")
    A("v_mul_u32_u24 v14, 14336, v14")
    A("v_and_b32 v12, 15, v12")
    A("v_lshl_add_u32 v14, v12, 4, v14")
    A("v_lshl_add_u32 v14, v13, 8, v14")
    for r in range(4):
        A(f"v_mov_b32 {v(16+r)}, 0")
    A(f"v_cmp_gt_u32 vcc, s45, {v(VL)}")
    A("s_and_saveexec_b64 s[56:57], vcc")
    A("buffer_store_dwordx4 v[16:19], v14, s[52:55], s44 offen")
    A("s_mov_b64 exec, -1")
    A.label("k1_gate")
    A.vm_restore(["gate"])
    gate()
    stamp_end(A, 0)
    A.label(Lend)
    A("s_endpgm")
    return "k1_kernel", A.text(), BIG_NV, BIG_NV, 512, BIG_LDS


def small_dma_voff(A, dst, dst_sw, t0, t1, pitch):
    A(f"v_mul_u32_u24 {v(t0)}, 9363, {v(VL)}")
    A(f"v_lshrrev_b32 {v(t0)}, 16, {v(t0)}")
    A(f"v_mul_u32_u24 {v(t1)}, 7, {v(t0)}")
    A(f"v_sub_u32 {v(t1)}, {v(VL)}, {v(t1)}")
    A(f"v_lshrrev_b32 {v(dst)}, 1, {v(t0)}")
    A(f"v_and_b32 {v(t0)}, 1, {v(t0)}")
    if dst_sw is not None:
        A(f"v_xor_b32 {v(dst_sw)}, 1, {v(t0)}")
        A(f"v_lshl_add_u32 {v(dst_sw)}, {v(dst_sw)}, 2, {v(dst)}")
        A(f"v_mul_u32_u24 {v(dst_sw)}, {pitch}, {v(dst_sw)}")
        A(f"v_lshl_add_u32 {v(dst_sw)}, {v(t1)}, 4, {v(dst_sw)}")
    A(f"v_lshl_add_u32 {v(dst)}, {v(t0)}, 2, {v(dst)}")
    A(f"v_mul_u32_u24 {v(dst)}, {pitch}, {v(dst)}")
    A(f"v_lshl_add_u32 {v(dst)}, {v(t1)}, 4, {v(dst)}")


def small_tr_base(A, dst, t0, ldsbase):
    A(f"v_lshrrev_b32 {v(t0)}, 2, {v(VI)}")
    A(f"v_lshl_add_u32 {v(t0)}, {v(VG)}, 2, {v(t0)}")
    A(f"v_mul_u32_u24 {v(dst)}, 224, {v(t0)}")
    A(f"v_and_b32 {v(t0)}, 3, {v(VI)}")
    A(f"v_lshl_add_u32 {v(dst)}, {v(t0)}, 4, {v(dst)}")
    if ldsbase:
        A(f"v_add_u32 {v(dst)}, {ldsbase}, {v(dst)}")


def small_tr_reads(A, vbase, off, dst):
    for t in range(4):
        for hh in range(2):
            A(f"ds_read_b64_tr_b16 {v(dst+4*t+2*hh,2)}, {v(vbase)} offset:{off + hh*112 + 64*(t//2) + 8*(t&1)}")


def small_gemm(A, vbase, af, wfb, accf, pre=None):
    small_tr_reads(A, vbase, 0, wfb)
    for sx in range(14):
        if pre:
            pre(sx)
        if sx < 13:
            small_tr_reads(A, vbase, (sx + 1) * 3584, wfb + 16 * ((sx + 1) & 1))
            A("s_waitcnt lgkmcnt(8)")
        else:
            A("s_waitcnt lgkmcnt(0)")
        for t in range(4):
            c = accf(t)
            A(f"v_mfma_f32_16x16x32_bf16 {c}, {v(wfb+16*(sx&1)+4*t,4)}, {v(af(sx),4)}, {c}")


L2_K, L2_V, L2_W = 0, 24576, 49152
L2_CNT = L2_W + 14 * 3584


def gen_k2():
    A = Asm()
    Lend = "k2_end"
    A("s_cmp_ge_u32 s2, 256")
    A(f"s_cbranch_scc1 {Lend}")
    stamp(A, 0)
    A("s_load_dwordx2 s[4:5], s[0:1], 0")
    A("s_load_dwordx2 s[6:7], s[0:1], 40")
    A("s_load_dwordx2 s[12:13], s[0:1], 88")
    lane_setup(A)
    A("s_and_b32 s14, s2, 7")
    A("s_lshr_b32 s15, s2, 3")
    A(f"v_lshlrev_b32 v7, 4, {v(VL)}")
    A("s_cmp_ge_u32 s19, 8")
    A("s_cbranch_scc1 k2_gemm")
    A("s_lshr_b32 s16, s15, 4")
    A("s_lshl_b32 s17, s14, 1")
    A("s_add_u32 s17, s17, s16")
    A("s_and_b32 s18, s15, 15")
    A("s_lshl_b32 s20, s18, 17")
    A("s_lshl_b32 s21, s17, 13")
    A("s_add_u32 s20, s20, s21")
    A("s_mul_i32 s21, s19, 3072")
    A("s_add_u32 s22, s20, s21")
    A(f"s_add_u32 s23, s22, {WS_V - 16384}")
    A(f"s_add_u32 s22, s22, {WS_K - 16384}")
    A("s_mov_b32 m0, s21")
    A("s_lshl_b32 s24, s19, 10")
    A("s_add_u32 s24, s24, s20")
    A("s_waitcnt lgkmcnt(0)")
    A.srd(28, 12, 13, WS_SIZE)
    QF, C0, C16, FB, SC, PB, TM, OA = 8, 12, 16, 20, 36, 104, 140, 160
    for j in range(3):
        A.vmem(f"buffer_load_dwordx4 v7, s[28:31], s22 offen offset:{1024*j} lds", "k")
    A.vmem(f"buffer_load_dwordx4 {v(QF,4)}, v7, s[28:31], s24 offen", "k")
    A(f"s_add_u32 m0, s21, {L2_V}")
    A("s_nop 0")
    for j in range(3):
        A.vmem(f"buffer_load_dwordx4 v7, s[28:31], s23 offen offset:{1024*j} lds", "v")
    for r in range(4):
        A(f"v_lshl_add_u32 {v(TM)}, {v(VG)}, 2, {r}")
        A(f"v_mov_b32 {v(TM+1)}, {NEGBIG:#x}")
        A(f"v_cmp_gt_u32 vcc, {v(TM)}, {v(VI)}")
        A("s_nop 1")
        A(f"v_cndmask_b32 {v(C0+r)}, {v(TM+1)}, 0, vcc")
        A(f"v_cndmask_b32 {v(C16+r)}, 0, {v(TM+1)}, vcc")
    A("s_lshl_b32 s25, s19, 10")
    A("v_add_u32 v4, s25, v7")
    A("s_lshr_b32 s25, s19, 1")
    A("s_lshl_b32 s25, s25, 11")
    A(f"s_add_u32 s25, s25, {L2_V}")
    A("v_add_u32 v5, s25, v7")
    A("s_lshl_b32 s25, s17, 3")
    A("s_add_u32 s25, s25, s19")
    A("s_sub_i32 s25, 16, s25")
    A("s_mul_i32 s26, s18, 7")
    A(f"v_add_u32 v6, s26, {v(VG)}")
    A(f"v_and_b32 {v(TM)}, 1, v6")
    A("v_lshrrev_b32 v6, 1, v6")
    A("v_lshlrev_b32 v6, 8, v6")
    A(f"v_lshl_add_u32 v6, {v(TM)}, 3, v6")
    A(f"v_lshl_add_u32 v6, {v(VI)}, 4, v6")
    A("s_lshl_b32 s26, s17, 3")
    A("s_add_u32 s26, s26, s19")
    A(f"s_mul_i32 s26, s26, {RT_BYTES}")
    A(f"s_add_u32 s26, s26, {WS_O}")
    KL, NB = TM + 17, TM + 18
    A(f"v_mov_b32 {v(KL)}, {f32bits(SCALE*LOG2E):#x}")
    for r in range(8):
        A(f"v_mov_b32 {v(OA+r)}, 0")
    stamp(A, 1)
    A.vm_wait("v")
    A("s_barrier")
    stamp(A, 2)
    for i in range(3):
        A(f"ds_read_b128 {v(FB+4*(i%4),4)}, v4 offset:{1024*i}")
    for i in range(17):
        if i + 3 < 17:
            A(f"ds_read_b128 {v(FB+4*((i+3)%4),4)}, v4 offset:{1024*(i+3)}")
        A(f"s_waitcnt lgkmcnt({min(3, 16-i)})")
        c = v(C0, 4) if i == 0 else (v(C16, 4) if i == 16 else "0")
        if i < 16:
            l1, l2 = A.newlabel("k2i"), A.newlabel("k2j")
            A(f"s_cmp_gt_i32 s25, {i}")
            A(f"s_cbranch_scc1 {l1}")
        A(f"v_mfma_f32_16x16x32_bf16 {v(SC+4*i,4)}, {v(FB+4*(i%4),4)}, {v(QF,4)}, {c}")
        if i < 16:
            A(f"s_branch {l2}")
            A.label(l1)
            for r in range(4):
                A(f"v_mov_b32 {v(SC+4*i+r)}, {NEGBIG:#x}")
            A.label(l2)
    stamp(A, 3)
    A("s_nop 4")
    M = TM
    A(f"v_max3_f32 {v(M)}, {v(SC)}, {v(SC+1)}, {v(SC+2)}")
    A(f"v_max3_f32 {v(M+1)}, {v(SC+3)}, {v(SC+4)}, {v(SC+5)}")
    idx, k = 6, 0
    while idx < 68:
        A(f"v_max3_f32 {v(M+k)}, {v(M+k)}, {v(SC+idx)}, {v(SC+idx+1)}")
        idx += 2
        k ^= 1
    A(f"v_max_f32 {v(M)}, {v(M)}, {v(M+1)}")
    xlane_g(A, "v_max_f32", M, M + 1, M + 2)
    A(f"v_mul_f32 {v(NB)}, {v(KL)}, {v(M)}")
    A(f"v_sub_f32 {v(NB)}, 0, {v(NB)}")
    for j in range(2):
        A(f"ds_read_b128 {v(FB+4*j,4)}, v5 offset:{1024*j}")
    A("s_bitcmp1_b32 s19, 0")
    A("s_cbranch_scc1 k2_odd")
    for par in range(2):
        if par:
            A.label("k2_odd")
        zs = 17 if par == 0 else 0
        A(f"v_mov_b32 {v(PB+2*zs)}, 0")
        A(f"v_mov_b32 {v(PB+2*zs+1)}, 0")
        nread = 2
        for c in range(9):
            els = []
            for half in range(2):
                slot = 2 * c + half
                if slot != zs:
                    els += [SC + 4 * (slot - par) + r for r in range(4)]
            for e in els:
                A(f"v_fma_f32 {v(e)}, {v(e)}, {v(KL)}, {v(NB)}")
            for e in els:
                A(f"v_exp_f32 {v(e)}, {v(e)}")
            while nread < min(18, 2 * c + 4):
                A(f"ds_read_b128 {v(FB+4*(nread%4),4)}, v5 offset:{1024*nread}")
                nread += 1
            A("s_nop 0")
            for half in range(2):
                slot = 2 * c + half
                if slot == zs:
                    continue
                i = slot - par
                A(f"v_cvt_pk_bf16_f32 {v(PB+2*slot)}, {v(SC+4*i)}, {v(SC+4*i+1)}")
                A(f"v_cvt_pk_bf16_f32 {v(PB+2*slot+1)}, {v(SC+4*i+2)}, {v(SC+4*i+3)}")
            A(f"s_waitcnt lgkmcnt({nread - (2*c+2)})")
            A("s_nop 0")
            for dt in range(2):
                A(f"v_mfma_f32_16x16x32_bf16 {v(OA+4*dt,4)}, {v(FB+4*((2*c+dt)%4),4)}, {v(PB+4*c,4)}, {v(OA+4*dt,4)}")
        if par == 0:
            A("s_branch k2_attn_out")
    A.label("k2_attn_out")
    A("s_nop 7")
    A(f"v_mov_b32 {v(TM)}, 0")
    A("s_mov_b32 exec_lo, 0")
    A("s_mov_b32 exec_hi, 0xffff0000")
    A(f"v_mov_b32 {v(TM)}, {v(OA+4)}")
    A("s_mov_b64 exec, -1")
    xlane_g(A, "v_add_f32", TM, TM + 1, TM + 2)
    A(f"v_rcp_f32 {v(TM)}, {v(TM)}")
    A("s_nop 0")
    for r in range(8):
        A(f"v_mul_f32 {v(OA+r)}, {v(TM)}, {v(OA+r)}")
    for r in range(4):
        A(f"v_cvt_pk_bf16_f32 {v(TM+4+r)}, {v(OA+2*r)}, {v(OA+2*r+1)}")
    A(f"buffer_store_dwordx2 {v(TM+4,2)}, v6, s[28:31], s26 offen")
    ex48(A)
    A(f"buffer_store_dwordx2 {v(TM+6,2)}, v6, s[28:31], s26 offen offset:512")
    stamp_end(A, 1)
    A("s_endpgm")
    A.label("k2_gemm")
    A.vm_restore([])
    A("s_setprio 2")
    A("s_sub_u32 s19, s19, 8")
    A("s_lshr_b32 s16, s15, 3")
    A("s_lshl_b32 s17, s14, 2")
    A("s_add_u32 s17, s17, s16")
    A("s_and_b32 s18, s15, 7")
    A("s_lshl_b32 s32, s17, 2")
    A("s_add_u32 s32, s32, s19")
    A(f"s_mul_i32 s33, s32, {RT_BYTES}")
    A(f"s_add_u32 s34, s33, {WS_HS}")
    for j in range(1, 4):
        A(f"s_add_u32 s{34+j}, s34, {4096*j}")
    AF, WFB, AC, XR = 32, 88, 120, 136
    small_dma_voff(A, 5, 4, 8, 9, 896)
    A("s_mul_i32 s38, s18, 112")
    A(f"s_mul_i32 s39, s19, {14*8*896}")
    A("s_add_u32 s38, s38, s39")
    A(f"s_mul_i32 s39, s19, {14*896}")
    A(f"s_add_u32 s39, s39, {L2_W}")
    A("s_lshl_b32 s40, s32, 4")
    A(f"v_add_u32 v8, s40, {v(VI)}")
    A("v_mul_u32_u24 v9, 896, v8")
    A(f"v_lshl_add_u32 v9, {v(VG)}, 4, v9")
    A("s_mul_i32 s40, s18, 112")
    for r in range(16):
        A(f"v_mov_b32 {v(AC+r)}, 0")
    small_tr_base(A, 6, 10, L2_W)
    A(f"v_mov_b32 v10, {L2_CNT}")
    A("v_mov_b32 v11, 0")
    A("ds_write_b32 v10, v11")
    A("s_waitcnt lgkmcnt(0)")
    A.srd(20, 4, 5, ACT_BYTES)
    A.srd(24, 6, 7, D * D * 2)
    A.srd(28, 12, 13, WS_SIZE)
    A("s_barrier")
    stamp(A, 1)
    ex56(A)
    for u in range(14):
        A("s_mov_b32 m0, s39")
        A("s_add_u32 s39, s39, 896")
        A.vmem(f"buffer_load_dwordx4 {v(4 if swapped_chunk(u) else 5)}, s[24:27], s38 offen lds", "w")
        A(f"s_add_u32 s38, s38, {8*896}")
    exall(A)
    for sx in range(14):
        A.vmem(f"buffer_load_dwordx4 {v(AF+4*sx,4)}, v7, s[28:31], s{34+sx//4} offen offset:{1024*(sx%4)}", ("a", sx))
    A.vmem(f"buffer_load_dwordx4 {v(XR,4)}, v9, s[20:23], s40 offen", "x")
    A.vmem(f"buffer_load_dwordx4 {v(XR+4,4)}, v9, s[20:23], s40 offen offset:64", "x")
    A.vm_wait("w")
    A("v_mov_b32 v11, 1")
    A("s_mov_b64 exec, 1")
    A("ds_add_u32 v10, v11")
    A("s_mov_b64 exec, -1")
    A.label("k2_spin")
    A("ds_read_b32 v11, v10")
    A("s_waitcnt lgkmcnt(0)")
    A("v_readfirstlane_b32 s41, v11")
    A("s_cmp_lt_u32 s41, 4")
    A("s_cbranch_scc1 k2_spin")
    stamp(A, 2)
    small_gemm(A, 6, lambda sx: AF + 4 * sx, WFB, lambda t: v(AC + 4 * t, 4), pre=lambda sx: A.vm_wait(("a", sx)))
    stamp(A, 3)
    A.vm_wait("x")
    XU = 32
    for j in range(8):
        A(f"v_lshlrev_b32 {v(XU+2*j)}, 16, {v(XR+j)}")
        A(f"v_and_b32 {v(XU+2*j+1)}, 0xffff0000, {v(XR+j)}")
    for r in range(16):
        rbf(A, AC + r)
    for r in range(16):
        A(f"v_add_f32 {v(AC+r)}, {v(AC+r)}, {v(XU+r)}")
    PK = 48
    for j in range(8):
        A(f"v_cvt_pk_bf16_f32 {v(PK+j)}, {v(AC+2*j)}, {v(AC+2*j+1)}")
    for r in range(16):
        rbf(A, AC + r)
    A(f"v_lshlrev_b32 v10, 8, {v(VG)}")
    A(f"v_lshl_add_u32 v10, {v(VI)}, 4, v10")
    A("s_mul_i32 s40, s18, 1792")
    A("s_add_u32 s40, s40, s33")
    A(f"s_add_u32 s40, s40, {WS_X1}")
    A(f"buffer_store_dwordx4 {v(PK,4)}, v10, s[28:31], s40 offen")
    ex48(A)
    A(f"buffer_store_dwordx4 {v(PK+4,4)}, v10, s[28:31], s40 offen offset:1024")
    exall(A)
    A(f"v_add_f32 v12, {v(AC)}, {v(AC+1)}")
    for r in range(2, 8):
        A(f"v_add_f32 v12, v12, {v(AC+r)}")
    ex48(A)
    for r in range(8, 16):
        A(f"v_add_f32 v12, v12, {v(AC+r)}")
    exall(A)
    xlane_g(A, "v_add_f32", 12, 14, 15)
    A(f"v_mul_f32 v14, {f32bits(1.0/56):#x}, v12")
    for r in range(16):
        A(f"v_sub_f32 {v(AC+r)}, {v(AC+r)}, v14")
    A(f"v_mul_f32 v13, {v(AC)}, {v(AC)}")
    for r in range(1, 8):
        A(f"v_fmac_f32 v13, {v(AC+r)}, {v(AC+r)}")
    ex48(A)
    for r in range(8, 16):
        A(f"v_fmac_f32 v13, {v(AC+r)}, {v(AC+r)}")
    exall(A)
    xlane_g(A, "v_add_f32", 13, 14, 15)
    A("v_lshlrev_b32 v8, 6, v8")
    A("s_lshl_b32 s40, s18, 3")
    A(f"s_add_u32 s40, s40, {WS_ST}")
    A("s_mov_b64 exec, 0xffff")
    A("buffer_store_dwordx2 v[12:13], v8, s[28:31], s40 offen")
    stamp_end(A, 1)
    A.label(Lend)
    A("s_endpgm")
    return "k2_kernel", A.text(), 168, 168, 768, L2_CNT + 64


def gen_k3():
    A = Asm()
    Lend = "k3_end"
    A("s_cmp_ge_u32 s2, 256")
    A(f"s_cbranch_scc1 {Lend}")
    stamp(A, 0)
    A("s_load_dwordx2 s[6:7], s[0:1], 48")
    A("s_load_dwordx2 s[12:13], s[0:1], 88")
    lane_setup(A)
    A("s_and_b32 s14, s2, 7")
    A("s_lshr_b32 s15, s2, 3")
    A("s_lshr_b32 s16, s15, 4")
    A("s_lshl_b32 s17, s14, 1")
    A("s_add_u32 s17, s17, s16")
    A("s_and_b32 s18, s15, 15")
    PITCH = F * 2
    big_setup_common(A)
    A("s_lshl_b32 s34, s40, 3")
    A("s_lshl_b32 s35, s41, 2")
    A("s_add_u32 s34, s34, s35")
    A(f"s_mul_i32 s34, s34, {PITCH}")
    A("s_mul_i32 s33, s18, 224")
    A("s_add_u32 s34, s34, s33")
    A(f"s_mov_b32 s38, {32*PITCH}")
    A(f"v_mul_u32_u24 v16, 4682, {v(VL)}")
    A("v_lshrrev_b32 v16, 16, v16")
    A("v_mul_u32_u24 v17, 14, v16")
    A(f"v_sub_u32 v17, {v(VL)}, v17")
    A(f"v_mul_u32_u24 {v(V_WD)}, {PITCH}, v16")
    A(f"v_lshl_add_u32 {v(V_WD)}, v17, 4, {v(V_WD)}")
    A(f"v_lshlrev_b32 {v(V_XD)}, 4, {v(VL)}")
    A("s_lshl_b32 s35, s17, 3")
    A("s_add_u32 s35, s35, s19")
    A(f"s_mul_i32 s35, s35, {RT_BYTES}")
    A(f"s_add_u32 s35, s35, {WS_X1}")
    A("s_lshl_b32 s43, s40, 11")
    A(f"v_add_u32 {v(V_XR[0])}, s43, {v(V_XD)}")
    big_cs_base(A)
    big_finish_bases(A)
    A("s_lshl_b32 s39, s17, 3")
    A("s_lshl_b32 s43, s40, 1")
    A("s_add_u32 s39, s39, s43")
    A("s_lshl_b32 s43, s39, 4")
    A(f"v_add_u32 v16, s43, {v(VI)}")
    A("v_lshlrev_b32 v16, 6, v16")
    A(f"v_lshl_add_u32 v16, {v(VG)}, 4, v16")
    A(f"s_mov_b32 s46, {WS_ST}")
    A("s_waitcnt lgkmcnt(0)")
    A.srd(24, 6, 7, D * F * 2)
    A.srd(28, 12, 13, WS_SIZE)
    A.srd(20, 12, 13, WS_SIZE)
    for sx in range(PFD + 1):
        big_dma(A, sx, 1024)
    A.vmem("buffer_load_dwordx4 v[20:23], v16, s[28:31], s46 offen", "st")
    A.vmem("buffer_load_dwordx4 v[24:27], v16, s[28:31], s46 offen offset:1024", "st")
    stamp(A, 1)
    big_zero(A)
    snap = A.vm_snapshot()
    A("s_cmp_eq_u32 s41, 1")
    A("s_cbranch_scc1 k3_1")
    MR, RS = [140, 142], [144, 146]
    CS = 48
    for ch in range(2):
        if ch:
            A.label("k3_1")
        A.vm_restore(snap)
        big_mainloop(A, "pair", ch, 1024, cs=True)
        for j in range(2):
            b = 20 + 4 * j
            m, q = MR[j], RS[j]
            A(f"v_add_f32 {v(m)}, {v(b)}, {v(b+2)}")
            xlane_g(A, "v_add_f32", m, 16, 17)
            A(f"v_mul_f32 {v(m)}, {f32bits(1.0/448):#x}, {v(m)}")
            A(f"v_add_f32 {v(q)}, {v(b+1)}, {v(b+3)}")
            A(f"v_mul_f32 {v(b)}, {f32bits(1.0/56):#x}, {v(b)}")
            A(f"v_mul_f32 {v(b+2)}, {f32bits(1.0/56):#x}, {v(b+2)}")
            A(f"v_sub_f32 {v(b)}, {v(b)}, {v(m)}")
            A(f"v_sub_f32 {v(b+2)}, {v(b+2)}, {v(m)}")
            A(f"v_mul_f32 {v(b)}, {v(b)}, {v(b)}")
            A(f"v_fmac_f32 {v(b)}, {v(b+2)}, {v(b+2)}")
            A(f"v_fmamk_f32 {v(q)}, {v(b)}, {f32bits(56.0):#x}, {v(q)}")
            if j == 0:
                cs_write(A, 18)
                A("s_waitcnt lgkmcnt(0)")
                A("s_barrier")
                for k, t in enumerate(tiles_of(ch)):
                    A(f"ds_read_b128 {v(CS+4*k,4)}, v18 offset:{64*t}")
            xlane_g(A, "v_add_f32", q, 16, 17)
            A(f"v_mul_f32 {v(q)}, {f32bits(1.0/448):#x}, {v(q)}")
            ln_finish(A, m, q)
            A(f"v_mov_b32 {v(m+1)}, {v(m)}")
            A(f"v_mov_b32 {v(q+1)}, {v(q)}")
        consts = gelu_consts(A, 148)
        A(f"v_lshlrev_b32 v4, 4, {v(VI)}")
        A(f"v_lshrrev_b32 v16, 1, {v(VG)}")
        A("v_lshl_add_u32 v5, v16, 8, v4")
        A(f"v_and_b32 v16, 1, {v(VG)}")
        A("v_lshl_add_u32 v5, v16, 3, v5")
        A(f"v_lshl_add_u32 v4, {v(VG)}, 8, v4")
        A(f"s_mul_i32 s42, s39, {H3_RT_BYTES}")
        A("s_mul_i32 s43, s18, 3584")
        A("s_add_u32 s42, s42, s43")
        A(f"s_add_u32 s42, s42, {WS_H3}")
        A(f"s_add_u32 s43, s42, {H3_RT_BYTES}")
        A("s_waitcnt lgkmcnt(0)")

        def st(j, pk, ch=ch):
            if ch == 0:
                for q in range(2):
                    A(f"buffer_store_dwordx4 {v(pk+4*q,4)}, v4, s[28:31], s{42+j} offen offset:{1024*q}")
            else:
                A(f"buffer_store_dwordx4 {v(pk,4)}, v4, s[28:31], s{42+j} offen offset:2048")
                A(f"buffer_store_dwordx2 {v(pk+4,2)}, v5, s[28:31], s{42+j} offen offset:3072")

        gelu_epilogue(A, ch, CS, MR, RS, consts, 156, 32, st)
        stamp_end(A, 2)
        if ch == 0:
            A("s_endpgm")
    A.label(Lend)
    A("s_endpgm")
    return "k3_kernel", A.text(), BIG_NV, BIG_NV, 512, BIG_LDS


RS4 = 6
RING = RS4 * 3584
L4_WO = 4 * RING
PF4 = 4


def swap_pattern(sx):
    p = tuple(swapped_chunk(4 * sx + g) for g in range(4))
    return {(False,) * 4: 0, (False, False, True, True): 1, (True, True, False, False): 2}[p]


def sw_reads_list(vb3, off, dst, pat, reg=v):
    out = []
    for t in range(4):
        for hh in range(2):
            o = off + 64 * (t // 2) + 8 * (t & 1)
            if pat == 0:
                b, o = vb3[0], o + 112 * hh
            else:
                b = vb3[1 + (hh ^ (pat - 1))]
            out.append(f"ds_read_b64_tr_b16 {reg(dst+4*t+2*hh,2)}, {v(b)} offset:{o}")
    return out


def sw_bases(A, base, b1, b2, t0):
    A(f"v_lshrrev_b32 {v(t0)}, 1, {v(VG)}")
    A(f"v_mul_u32_u24 {v(b1)}, 112, {v(t0)}")
    A(f"v_sub_u32 {v(b2)}, 112, {v(b1)}")
    A(f"v_add_u32 {v(b1)}, {v(b1)}, {v(base)}")
    A(f"v_add_u32 {v(b2)}, {v(b2)}, {v(base)}")


def gen_k4():
    A = Asm()
    Lend = "k4_end"
    A("s_cmp_ge_u32 s2, 256")
    A(f"s_cbranch_scc1 {Lend}")
    stamp(A, 0)
    A("s_load_dwordx2 s[4:5], s[0:1], 16")
    A("s_load_dwordx2 s[6:7], s[0:1], 56")
    A("s_load_dwordx2 s[8:9], s[0:1], 72")
    A("s_load_dwordx2 s[12:13], s[0:1], 88")
    lane_setup(A)
    A("s_and_b32 s14, s2, 7")
    A("s_lshr_b32 s15, s2, 3")
    A("s_lshr_b32 s16, s15, 3")
    A("s_lshl_b32 s17, s14, 2")
    A("s_add_u32 s17, s17, s16")
    A("s_and_b32 s18, s15, 7")
    A("s_and_b32 s46, s19, 3")
    A("s_lshr_b32 s47, s19, 2")
    NA = PF4 + 2
    AFB = 32
    WFB = AFB + NA * 8
    ACB = WFB + 32
    OFB = ACB + 32
    AWO = OFB + 28
    WOF = AWO + 16
    XR = WOF + 32
    GR = XR + 4
    NV = (GR + 8) // 8 * 8
    af = lambda sx, j: AFB + ((sx % NA) * 2 + j) * 4
    ac = lambda j, t: v(ACB + (j * 4 + t) * 4, 4)
    A(f"v_lshlrev_b32 v8, 4, {v(VL)}")
    for m in range(1, 4):
        A(f"v_add_u32 v{8+m}, {4096*m}, v8")
    small_dma_voff(A, 5, None, 12, 13, 896)
    A("s_lshl_b32 s32, s17, 2")
    A("s_lshl_b32 s33, s47, 1")
    A("s_add_u32 s32, s32, s33")
    A(f"s_mul_i32 s32, s32, {H3_RT_BYTES}")
    A(f"s_mul_i32 s33, s46, {14*1024}")
    A("s_add_u32 s32, s32, s33")
    A(f"s_add_u32 s32, s32, {WS_H3}")
    A(f"s_add_u32 s33, s32, {H3_RT_BYTES}")
    A("s_mul_i32 s38, s18, 112")
    A(f"s_mul_i32 s36, s46, {448*896}")
    A(f"s_mul_i32 s34, s47, {16*896}")
    A("s_add_u32 s36, s36, s34")
    A("s_add_u32 s36, s36, s38")
    A(f"s_mul_i32 s35, s46, {RING}")
    A("s_mul_i32 s37, s47, 1792")
    A("s_add_u32 s37, s37, s35")
    A(f"s_mul_i32 s39, s19, {7*8*896}")
    A("s_add_u32 s38, s38, s39")
    A(f"s_mul_i32 s39, s19, {7*896}")
    A(f"s_add_u32 s39, s39, {L4_WO}")
    A("s_lshl_b32 s40, s17, 2")
    A("s_add_u32 s40, s40, s46")
    A(f"s_mul_i32 s41, s40, {RT_BYTES}")
    A(f"s_mul_i32 s42, s47, {7*1024}")
    A("s_add_u32 s42, s42, s41")
    A(f"s_add_u32 s42, s42, {WS_O}")
    A("s_mul_i32 s43, s18, 1792")
    A("s_add_u32 s43, s43, s41")
    A("s_lshl_b32 s44, s47, 10")
    A("s_add_u32 s43, s43, s44")
    A(f"s_add_u32 s43, s43, {WS_X1}")
    A("s_lshl_b32 s44, s40, 4")
    A(f"v_add_u32 v14, s44, {v(VI)}")
    A("v_lshlrev_b32 v15, 2, v14")
    A(f"s_mov_b32 s45, {WS_G}")
    A(f"v_lshlrev_b32 v16, 8, {v(VG)}")
    A(f"v_lshl_add_u32 v16, {v(VI)}, 4, v16")
    small_tr_base(A, 6, 12, 0)
    A(f"s_mul_i32 s44, s47, {7*3584}")
    A(f"s_add_u32 s44, s44, {L4_WO}")
    A("v_add_u32 v7, s44, v6")
    A("v_add_u32 v6, s35, v6")
    sw_bases(A, 6, 17, 18, 12)
    VB3 = (6, 17, 18)
    A("s_waitcnt lgkmcnt(0)")
    A.srd(20, 4, 5, D * D * 2)
    A.srd(24, 6, 7, F * D * 2)
    A.srd(28, 12, 13, WS_SIZE)
    A.srd(48, 8, 9, ACT_BYTES)

    def issue_parts(sx):
        parts = []
        for j in range(2):
            def p(j=j):
                A(f"s_add_u32 m0, s37, {(sx%RS4)*3584 + j*896}")
                ex56(A)
                A.vmem("buffer_load_dwordx4 v5, s[24:27], s36 offen lds", ("ld", sx))
                exall(A)
                A(f"s_add_u32 s36, s36, {8*896 if j == 0 else 24*896}")
            parts.append(p)
        for j in range(2):
            parts.append(lambda j=j: A.vmem(f"buffer_load_dwordx4 {v(af(sx,j),4)}, v{8+sx//4}, s[28:31], s{32+j} offen offset:{1024*(sx%4)}", ("ld", sx)))
        return parts

    extra = [("wo", u) for u in range(7)] + [("of", u) for u in range(7)] + [("x1", 0), ("g", 0)]

    def issue_extra():
        if not extra:
            return
        kind, u = extra.pop(0)
        if kind == "wo":
            A("s_mov_b32 m0, s39")
            ex56(A)
            A.vmem("buffer_load_dwordx4 v5, s[20:23], s38 offen lds", "wo")
            exall(A)
            A("s_add_u32 s39, s39, 896")
            A(f"s_add_u32 s38, s38, {8*896}")
        elif kind == "of":
            A.vmem(f"buffer_load_dwordx4 {v(OFB+4*u,4)}, v{8+u//4}, s[28:31], s42 offen offset:{1024*(u%4)}", "of")
        elif kind == "x1":
            A.vmem(f"buffer_load_dwordx4 {v(XR,4)}, v16, s[28:31], s43 offen", "ep")
        else:
            A.vmem(f"buffer_load_dword {v(GR)}, v15, s[28:31], s45 offen", "ep")

    for sx in range(PF4 + 1):
        for p in issue_parts(sx):
            p()
    stamp(A, 1)
    for r in range(ACB, ACB + 32):
        A(f"v_mov_b32 {v(r)}, 0")
    for r in range(AWO, AWO + 16):
        A(f"v_mov_b32 {v(r)}, 0")
    A.vm_wait(("ld", 0))
    A("s_barrier")
    stamp(A, 2)
    for r in sw_reads_list(VB3, 0, WFB, swap_pattern(0)):
        A(r)
    WO0 = 7
    for sx in range(14):
        rd = []
        if sx < 13:
            tags = [("ld", sx + 1)] + (["of"] if sx + 1 == WO0 else [])
            A.vm_wait(tags, " lgkmcnt(0)")
            A("s_barrier")
            rd = sw_reads_list(VB3, ((sx + 1) % RS4) * 3584, WFB + 16 * ((sx + 1) & 1), swap_pattern(sx + 1))
            if sx + 1 >= WO0:
                rd += sw_reads_list((7,), (sx + 1 - WO0) * 3584, WOF + 16 * ((sx + 1) & 1), 0)
        else:
            A("s_waitcnt lgkmcnt(0)")
        parts = issue_parts(sx + 1 + PF4) if sx + 1 + PF4 < 14 else []
        parts += [issue_extra] * 3
        mf = [f"v_mfma_f32_16x16x32_bf16 {ac(j,t)}, {v(WFB+16*(sx&1)+4*t,4)}, {v(af(sx,j),4)}, {ac(j,t)}" for t in range(4) for j in range(2)]
        if sx >= WO0:
            assert not [e for e in extra if e[0] in ("wo", "of")]
            mf += [f"v_mfma_f32_16x16x32_bf16 {v(AWO+4*t,4)}, {v(WOF+16*(sx&1)+4*t,4)}, {v(OFB+4*(sx-WO0),4)}, {v(AWO+4*t,4)}" for t in range(4)]
        for i, m in enumerate(mf):
            A(m)
            for _ in range(2):
                if rd:
                    A(rd.pop(0))
            if parts:
                parts.pop(0)()
        assert not rd and not parts
    assert not extra
    stamp(A, 3)
    A("s_lshl_b32 s52, s46, 14")
    A("s_lshl_b32 s53, s47, 13")
    A("s_add_u32 s52, s52, s53")
    A("v_add_u32 v12, s52, v8")
    A("s_lshl_b32 s52, s47, 14")
    A("s_lshl_b32 s53, s46, 12")
    A("s_add_u32 s52, s52, s53")
    A("s_add_u32 s52, s52, 65536")
    A("v_add_u32 v13, s52, v8")
    A("s_barrier")
    for j in range(2):
        for t in range(4):
            A(f"ds_write_b128 v12, {ac(j,t)} offset:{(j*4+t)*1024}")
    for t in range(4):
        A(f"ds_write_b128 v13, {v(AWO+4*t,4)} offset:{t*1024}")
    A("s_lshl_b32 s52, s46, 12")
    A("s_lshl_b32 s53, s47, 11")
    A("s_add_u32 s52, s52, s53")
    A("v_add_u32 v12, s52, v8")
    A("v_add_u32 v13, 65536, v12")
    XU = OFB
    A.vm_wait("ep")
    for j in range(4):
        A(f"v_lshlrev_b32 {v(XU+2*j)}, 16, {v(XR+j)}")
        A(f"v_and_b32 {v(XU+2*j+1)}, 0xffff0000, {v(XR+j)}")
    A(f"v_sub_f32 v19, 1.0, {v(GR)}")
    rbf(A, 19)
    A("v_mul_u32_u24 v14, 896, v14")
    A(f"v_lshl_add_u32 v14, {v(VG)}, 4, v14")
    A("s_mul_i32 s52, s18, 112")
    A("s_lshl_b32 s53, s47, 6")
    A("s_add_u32 s52, s52, s53")
    A("s_waitcnt lgkmcnt(0)")
    A("s_barrier")
    RB = 32
    for q in range(4):
        for t in range(2):
            A(f"ds_read_b128 {v(RB+8*q+4*t,4)}, v12 offset:{16384*q + 1024*t}")
    for q in range(2):
        for t in range(2):
            A(f"ds_read_b128 {v(RB+32+8*q+4*t,4)}, v13 offset:{16384*q + 1024*t}")
    A("s_waitcnt lgkmcnt(4)")
    for r in range(8):
        A(f"v_add_f32 {v(RB+r)}, {v(RB+r)}, {v(RB+8+r)}")
        A(f"v_add_f32 {v(RB+16+r)}, {v(RB+16+r)}, {v(RB+24+r)}")
    for r in range(8):
        A(f"v_add_f32 {v(RB+r)}, {v(RB+r)}, {v(RB+16+r)}")
    for r in range(8):
        rbf(A, RB + r)
    for r in range(8):
        A(f"v_add_f32 {v(RB+r)}, {v(RB+r)}, {v(XU+r)}")
    for r in range(8):
        rbf(A, RB + r)
    A("s_waitcnt lgkmcnt(0)")
    AU = RB + 32
    for r in range(8):
        A(f"v_add_f32 {v(AU+r)}, {v(AU+r)}, {v(AU+8+r)}")
        A(f"v_mul_f32 {v(RB+r)}, v19, {v(RB+r)}")
    for r in range(8):
        rbf(A, AU + r)
        rbf(A, RB + r)
    for r in range(8):
        A(f"v_mul_f32 {v(AU+r)}, {v(GR)}, {v(AU+r)}")
    for r in range(8):
        rbf(A, AU + r)
    for r in range(8):
        A(f"v_add_f32 {v(RB+r)}, {v(RB+r)}, {v(AU+r)}")
    for j in range(4):
        A(f"v_cvt_pk_bf16_f32 {v(XU+j)}, {v(RB+2*j)}, {v(RB+2*j+1)}")
    A("s_cmp_eq_u32 s47, 0")
    A("s_cselect_b32 exec_hi, -1, 0x0000ffff")
    A(f"buffer_store_dwordx4 {v(XU,4)}, v14, s[48:51], s52 offen")
    stamp_end(A, 3)
    A.label(Lend)
    A("s_endpgm")
    return "k4_kernel", A.text(), NV, NV, 512, L4_WO + 14 * 3584


KERNELS = [gen_k1, gen_k2, gen_k3, gen_k4]


def build(kernels):
    hdr = open("gated_mix__sliding_block__mixer_s_mlp__prompt.s.ref").read().split("; Override launch")[0]
    out = hdr
    gens = [g() for g in kernels]
    kl = os.environ.get("KLIST")
    order = [int(c) - 1 for c in kl.split(",")] if kl else range(len(gens))
    for i in order:
        name, txt, vg, acc_off, block, lds = gens[i]
        out += f"; @launch kernel={name} grid=(256,1,1) block=({block},1,1) lds={lds}\n"
    out += '.amdgcn_target "amdgcn-amd-amdhsa--gfx950"\n.text\n'
    for name, txt, vg, acc_off, block, lds in gens:
        out += kernel_head(name) + txt
    out += '.section .rodata,"a"\n'
    for name, txt, vg, acc_off, block, lds in gens:
        out += kernel_desc(name, vg, acc_off)
    return out


if __name__ == "__main__":
    dst = sys.argv[1] if len(sys.argv) > 1 else "gated_mix__sliding_block__mixer_s_mlp__prompt.s"
    open(dst, "w").write(build(KERNELS))
    print("wrote", dst)
```

```python
import math
import os
import sys
from asmlib import Asm, v, a, s, f32bits, kernel_desc, kernel_head
from gen2 import (stamp, stamp_end, lane_setup, xlane_g, rbf, gelu_pairs, ln_finish, gelu_consts, ex48, ex56, exall,
                  S, D, F, MB, WS_Q, WS_K, WS_V, WS_HS, WS_X1, WS_O, WS_H3, WS_G, WS_ST, WS_SIZE, ACT_BYTES, RT_BYTES,
                  H3_RT_BYTES, LOG2E, SCALE, NEGBIG, STAMPS, VL, VI, VG)

NWG = 224


def div7(A, dst, src):
    A(f"v_mul_u32_u24 {v(dst)}, 9363, {v(src)}")
    A(f"v_lshrrev_b32 {v(dst)}, 16, {v(dst)}")


def unit_bases(A, dst, mode, t0, t1, t2):
    A(f"v_lshrrev_b32 {v(t0)}, 2, {v(VI)}")
    A(f"v_lshl_add_u32 {v(t1)}, {v(VG)}, 3, {v(t0)}")
    A(f"v_lshlrev_b32 {v(t1)}, 7, {v(t1)}")
    A(f"v_and_b32 {v(t0)}, 2, {v(t0)}")
    A(f"v_and_b32 {v(t2)}, 1, {v(VG)}")
    A(f"v_lshl_add_u32 {v(t0)}, {v(t2)}, 2, {v(t0)}")
    A(f"v_and_b32 {v(t2)}, 3, {v(VI)}")
    if mode == "pair":
        A(f"v_xor_b32 {v(t0)}, {v(t0)}, {v(t2)}")
        A(f"v_lshl_add_u32 {v(dst)}, {v(t0)}, 4, {v(t1)}")
        A(f"v_xor_b32 {v(dst+2)}, 64, {v(dst)}")
        A(f"v_lshrrev_b32 {v(t2)}, 1, {v(t2)}")
        A(f"v_lshlrev_b32 {v(t2)}, 3, {v(t2)}")
        A(f"v_xor_b32 {v(t0)}, 8, {v(t2)}")
        A(f"v_add_u32 {v(dst+1)}, {v(dst)}, {v(t0)}")
        A(f"v_add_u32 {v(dst+3)}, {v(dst+2)}, {v(t0)}")
        A(f"v_add_u32 {v(dst)}, {v(dst)}, {v(t2)}")
        A(f"v_add_u32 {v(dst+2)}, {v(dst+2)}, {v(t2)}")
    else:
        A(f"v_lshlrev_b32 {v(t0)}, 4, {v(t0)}")
        A(f"v_lshl_add_u32 {v(t1)}, {v(t2)}, 3, {v(t1)}")
        for t in range(4):
            A(f"v_xor_b32 {v(dst+t)}, {32*t}, {v(t0)}")
            A(f"v_add_u32 {v(dst+t)}, {v(dst+t)}, {v(t1)}")


def unit_dma_voff(A, dst, qodd_s, swap_s, pitch, t0, t1):
    A(f"v_lshrrev_b32 {v(t0)}, 3, {v(VL)}")
    A(f"v_and_b32 {v(t1)}, 2, {v(t0)}")
    A(f"v_add_u32 {v(t1)}, {qodd_s}, {v(t1)}")
    A(f"v_xor_b32 {v(t1)}, {v(t1)}, {v(VL)}")
    A(f"v_and_b32 {v(t1)}, 7, {v(t1)}")
    if swap_s is not None:
        A(f"v_xor_b32 {v(t0)}, {swap_s}, {v(t0)}")
    if isinstance(pitch, int):
        A(f"v_mul_u32_u24 {v(dst)}, {pitch}, {v(t0)}")
    else:
        A(f"v_mul_lo_u32 {v(dst)}, {v(t0)}, {pitch}")
    A(f"v_lshl_add_u32 {v(dst)}, {v(t1)}, 4, {v(dst)}")


def unit_reads(bases, off, dst, reg=v):
    return [f"ds_read_b64_tr_b16 {reg(dst+4*t+2*hh,2)}, {v(bases+t)} offset:{off + 512*hh}" for t in range(4) for hh in range(2)]


def interleave(A, mf, fill):
    fill = list(fill)
    n = len(mf)
    for i, m in enumerate(mf):
        A(m)
        k = -(-len(fill) // max(1, n - 2 - i)) if i < n - 2 else len(fill)
        for _ in range(min(k, len(fill))):
            f = fill.pop(0)
            if callable(f):
                f()
            else:
                A(f)


SLOT = 32768
L_EX = 4 * SLOT
BIG_LDS = L_EX + 2048
V_XD, V_XD2, V_WD = 4, 5, 6
V_XR = (7, 8, 9, 10)
V_TB = (12, 16)
V_TC = (20, 21)
XB, WB, CB, ONES, ACC, ASTAT, ACS = 32, 48, 80, 88, 92, 124, 132
BIG_NV = 200


def big_reads_list(sx, cs, xpar):
    buf, par, slot = sx & 1, sx & 1, (sx // 2) % 4
    hi, so = slot // 2, (slot % 2) * SLOT
    out = []
    for j in range(2):
        if xpar:
            out.append(f"ds_read_b128 {v(XB+buf*8+4*j,4)}, {v(V_XR[2*par+hi])} offset:{so + 2048*j}")
        else:
            out.append(f"ds_read_b128 {v(XB+buf*8+4*j,4)}, {v(V_XR[hi])} offset:{so + 2048*j + 1024*par}")
    out += unit_reads(V_TB[hi], so + 4096 * par, WB + buf * 16)
    if cs:
        for hh in range(2):
            out.append(f"ds_read_b64_tr_b16 {v(CB+buf*4+2*hh,2)}, {v(V_TC[hi])} offset:{so + 4096*par + 512*hh}")
    return out


def big_mfmas(sx, normal, stat, cs):
    buf = sx & 1
    out = []
    for k in range(4):
        for j in range(2):
            c = v(ACC + (j * 4 + k) * 4, 4)
            x, w = v(XB + buf * 8 + 4 * j, 4), v(WB + buf * 16 + 4 * k, 4)
            out.append(f"v_mfma_f32_16x16x32_bf16 {c}, {x}, {w}, {c}" if normal else f"v_mfma_f32_16x16x32_bf16 {c}, {w}, {x}, {c}")
    if stat:
        for j in range(2):
            c, x = v(ASTAT + 4 * j, 4), v(XB + buf * 8 + 4 * j, 4)
            out.append(f"v_mfma_f32_16x16x32_bf16 {c}, {v(ONES,4) if stat == 'sum' else x}, {x}, {c}")
    if cs:
        c = v(ACS, 4)
        out.append(f"v_mfma_f32_16x16x32_bf16 {c}, {v(CB+buf*4,4)}, {v(ONES,4)}, {c}")
    return out


def big_dma_parts(A, ds, xstep, x2):
    slot = ds % 4

    def px():
        A(f"s_add_u32 m0, s36, {slot*SLOT}")
        A("s_nop 0")
        A.vmem(f"buffer_load_dwordx4 {v(V_XD)}, s[20:23], s35 offen lds", ("ld", ds))
        A.vmem(f"buffer_load_dwordx4 {v(x2)}, s[20:23], s35 offen offset:1024 lds", ("ld", ds))
        A(f"s_add_u32 s35, s35, {xstep}")

    def pw(h):
        A(f"s_add_u32 m0, s37, {slot*SLOT + 4096*h}")
        A("s_nop 0")
        A.vmem(f"buffer_load_dwordx4 {v(V_WD)}, s[24:27], s34 offen lds", ("ld", ds))
        A("s_add_u32 s34, s34, s38")
    return [px, lambda: pw(0), lambda: pw(1)]


DMA_AT = {0: 2, 1: 3, 2: 4, 4: 5, 6: 6}


def big_mainloop(A, normal, xstep, x2, xpar, stat=None, cs=False):
    A.vm_wait(("ld", 0))
    A("s_barrier")
    stamp(A, 2)
    for r in big_reads_list(0, cs, xpar):
        A(r)
    for sx in range(14):
        mf = big_mfmas(sx, normal, stat, cs)
        parts = []
        if sx % 2 == 1 and sx < 13:
            A.vm_wait(("ld", (sx + 1) // 2), " lgkmcnt(0)")
            A("s_barrier")
        else:
            A("s_waitcnt lgkmcnt(0)")
        if sx in DMA_AT:
            parts = big_dma_parts(A, DMA_AT[sx], xstep, x2)
        rd = big_reads_list(sx + 1, cs, xpar) if sx < 13 else []
        interleave(A, mf, rd + parts)
    stamp(A, 3)


def big_decode(A):
    A("s_and_b32 s14, s2, 7")
    A("s_lshr_b32 s15, s2, 3")
    A("s_mul_i32 s16, s15, 9363")
    A("s_lshr_b32 s16, s16, 16")
    A("s_mul_i32 s18, s16, 7")
    A("s_sub_u32 s18, s15, s18")
    A("s_lshr_b32 s17, s14, 1")
    A("s_lshl_b32 s17, s17, 2")
    A("s_add_u32 s17, s17, s16")
    A("s_and_b32 s16, s14, 1")
    A("s_mul_i32 s16, s16, 7")
    A("s_add_u32 s18, s18, s16")
    A("s_and_b32 s40, s19, 3")
    A("s_lshr_b32 s41, s19, 2")
    A("s_lshl_b32 s36, s19, 11")
    A("s_lshl_b32 s37, s41, 13")
    A("s_lshl_b32 s42, s40, 10")
    A("s_add_u32 s37, s37, s42")
    A("s_add_u32 s37, s37, 16384")
    A("s_lshl_b32 s33, s18, 1")
    A("s_add_u32 s33, s33, s41")
    A("s_and_b32 s43, s40, 1")
    A("s_lshl_b32 s43, s43, 2")


def big_bases_finish(A):
    A("s_lshl_b32 s42, s41, 13")
    A("s_add_u32 s42, s42, 16384")
    for t in range(4):
        A(f"v_add_u32 {v(V_TB[0]+t)}, s42, {v(V_TB[0]+t)}")
        A(f"v_add_u32 {v(V_TB[1]+t)}, {2*SLOT}, {v(V_TB[0]+t)}")
    A(f"v_mov_b32 {v(V_TC[0])}, {v(V_TB[0])}")
    for t in range(1, 4):
        l = A.newlabel("cs")
        A(f"s_cmp_lg_u32 s40, {t}")
        A(f"s_cbranch_scc1 {l}")
        A(f"v_mov_b32 {v(V_TC[0])}, {v(V_TB[0]+t)}")
        A.label(l)
    A(f"v_add_u32 {v(V_TC[1])}, {2*SLOT}, {v(V_TC[0])}")


def big_zero(A):
    for r in range(ACC, ACS + 4):
        A(f"v_mov_b32 {v(r)}, 0")
    for r in range(4):
        A(f"v_mov_b32 {v(ONES+r)}, 0x3f803f80")


def cs_write(A, t0):
    A(f"v_lshlrev_b32 {v(t0)}, 4, {v(VG)}")
    A("s_lshl_b32 s43, s41, 8")
    A(f"s_add_u32 s43, s43, {L_EX}")
    A(f"v_add_u32 {v(t0)}, s43, {v(t0)}")
    A("s_lshl_b32 s43, s40, 6")
    A(f"v_add_u32 {v(t0+1)}, s43, {v(t0)}")
    A(f"v_cmp_eq_u32 vcc, 0, {v(VI)}")
    A("s_and_saveexec_b64 s[44:45], vcc")
    A(f"ds_write_b128 {v(t0+1)}, {v(ACS,4)}")
    A("s_mov_b64 exec, s[44:45]")


def gelu_epilogue(A, cs, mreg, rsreg, consts, tmp, pk, store_fn):
    c0, c1, one = consts
    for j in range(2):
        base = ACC + j * 16
        pairs = [base + 2 * i for i in range(8)]
        for i, p in enumerate(pairs):
            A(f"v_pk_fma_f32 {v(p,2)}, {v(cs+2*i,2)}, {v(mreg[j],2)}, {v(p,2)}")
        for i, p in enumerate(pairs):
            A(f"v_pk_mul_f32 {v(p,2)}, {v(p,2)}, {v(rsreg[j],2)}")
        gelu_pairs(A, pairs, [pk + 8 * j + i for i in range(8)], tmp, c0, c1, one)
        store_fn(j, pk + 8 * j)


def gen_k1():
    A = Asm()
    Lend = "k1_end"
    A(f"s_cmp_ge_u32 s2, {NWG}")
    A("s_cbranch_scc1 k1_pf")
    stamp(A, 0)
    A("s_load_dwordx4 s[4:7], s[0:1], 0")
    A("s_load_dwordx2 s[8:9], s[0:1], 32")
    A("s_load_dwordx2 s[10:11], s[0:1], 64")
    A("s_load_dwordx2 s[12:13], s[0:1], 88")
    lane_setup(A)
    big_decode(A)
    A("s_sub_u32 s46, s33, 21")
    A("s_movk_i32 s32, 896")
    A("s_cmp_lt_u32 s33, 21")
    A("s_cselect_b32 s32, 2688, s32")
    A("s_cselect_b32 s34, s33, s46")
    A("s_lshl_b32 s34, s34, 7")
    A("s_lshl_b32 s35, s40, 3")
    A("s_mul_i32 s35, s35, s32")
    A("s_add_u32 s34, s34, s35")
    A("s_lshl_b32 s38, s32, 5")
    unit_dma_voff(A, V_WD, "s43", None, "s32", 24, 25)
    A(f"v_lshrrev_b32 v24, 3, {v(VL)}")
    A("v_lshrrev_b32 v25, 1, v24")
    A(f"v_xor_b32 v25, v25, {v(VL)}")
    A("v_and_b32 v25, 7, v25")
    A(f"v_mul_u32_u24 {v(V_XD)}, 896, v24")
    A(f"v_lshl_add_u32 {v(V_XD)}, v25, 4, {v(V_XD)}")
    A(f"v_xor_b32 {v(V_XD2)}, 64, {v(V_XD)}")
    A(f"v_add_u32 {v(V_XD2)}, {8*896-1024}, {v(V_XD2)}")
    A("s_lshl_b32 s35, s17, 3")
    A("s_add_u32 s35, s35, s19")
    A(f"s_mul_i32 s35, s35, {RT_BYTES}")
    A(f"v_lshrrev_b32 v24, 1, {v(VI)}")
    A(f"v_xor_b32 v24, v24, {v(VG)}")
    A("v_lshlrev_b32 v24, 4, v24")
    A(f"v_lshl_add_u32 v24, {v(VI)}, 7, v24")
    A("s_lshl_b32 s42, s40, 12")
    A(f"v_add_u32 {v(V_XR[0])}, s42, v24")
    A(f"v_xor_b32 {v(V_XR[2])}, 64, {v(V_XR[0])}")
    A(f"v_add_u32 {v(V_XR[1])}, {2*SLOT}, {v(V_XR[0])}")
    A(f"v_add_u32 {v(V_XR[3])}, {2*SLOT}, {v(V_XR[2])}")
    A("s_cmp_lt_u32 s33, 21")
    A("s_cbranch_scc1 k1_natb")
    unit_bases(A, V_TB[0], "pair", 24, 25, 26)
    A("s_branch k1_basesdone")
    A.label("k1_natb")
    unit_bases(A, V_TB[0], "nat", 24, 25, 26)
    A.label("k1_basesdone")
    big_bases_finish(A)
    A("s_lshl_b32 s47, s2, 3")
    A("s_add_u32 s47, s47, s19")
    A("s_mul_i32 s56, s47, 896")
    A(f"s_add_u32 s57, s56, {1792*896}")
    A(f"v_lshlrev_b32 v24, 4, {v(VL)}")
    for r in range(188, 200):
        A(f"v_mov_b32 v{r}, 0")
    A("s_lshl_b32 s39, s17, 7")
    A("s_lshl_b32 s42, s40, 5")
    A("s_add_u32 s39, s39, s42")
    A("s_waitcnt lgkmcnt(0)")
    A.srd(20, 4, 5, ACT_BYTES)
    A(f"s_mov_b32 s26, {D*D*2}")
    A("s_cmp_lt_u32 s33, 21")
    A("s_cselect_b32 s24, s6, s8")
    A("s_cselect_b32 s25, s7, s9")
    A(f"s_cselect_b32 s26, {D*3*D*2}, s26")
    A("s_and_b32 s25, s25, 0xffff")
    A("s_mov_b32 s27, 0x00020000")
    A.srd(28, 12, 13, WS_SIZE)
    A.srd(48, 10, 11, D * 2)
    ex56(A)
    A.vmem("buffer_load_dwordx4 v[188:191], v24, s[20:23], s56 offen", "gate")
    A.vmem("buffer_load_dwordx4 v[192:195], v24, s[20:23], s57 offen", "gate")
    A.vmem("buffer_load_dwordx4 v[196:199], v24, s[48:51], 0 offen", "gate")
    exall(A)
    for ds in range(2):
        for p in big_dma_parts(A, ds, 128, V_XD2):
            p()
    stamp(A, 1)
    big_zero(A)
    A.vm_wait("gate")
    T, U = 140, 148
    for j in range(4):
        A(f"v_lshlrev_b32 {v(T+2*j)}, 16, {v(196+j)}")
        A(f"v_and_b32 {v(T+2*j+1)}, 0xffff0000, {v(196+j)}")
    for rr in range(2):
        for j in range(4):
            A(f"v_lshlrev_b32 {v(U+2*j)}, 16, {v(188+4*rr+j)}")
            A(f"v_and_b32 {v(U+2*j+1)}, 0xffff0000, {v(188+4*rr+j)}")
        for j in range(4):
            A(f"v_pk_mul_f32 {v(U+2*j,2)}, {v(U+2*j,2)}, {v(T+2*j,2)}")
        for j in range(8):
            rbf(A, U + j)
        z = 160
        A(f"v_add_f32 {v(z)}, {v(U)}, {v(U+1)}")
        for j in range(2, 8):
            A(f"v_add_f32 {v(z)}, {v(z)}, {v(U+j)}")
        for ror in (8, 4, 2, 1):
            A("s_nop 1")
            A(f"v_add_f32_dpp {v(z)}, {v(z)}, {v(z)} row_ror:{ror} row_mask:0xf bank_mask:0xf")
        xlane_g(A, "v_add_f32", z, U, U + 1)
        rbf(A, z)
        A(f"v_mul_f32 {v(z)}, {f32bits(-LOG2E):#x}, {v(z)}")
        A(f"v_exp_f32 {v(z)}, {v(z)}")
        A("s_nop 0")
        A(f"v_add_f32 {v(z)}, 1.0, {v(z)}")
        A(f"v_rcp_f32 {v(z)}, {v(z)}")
        A("s_nop 0")
        rbf(A, z)
        A("s_lshl_b32 s56, s47, 2")
        A(f"s_add_u32 s56, s56, {WS_G + 1792*4*rr}")
        A(f"v_mov_b32 {v(U)}, 0")
        A("s_mov_b64 exec, 1")
        A(f"buffer_store_dword {v(z)}, {v(U)}, s[28:31], s56 offen")
        if rr == 0:
            A.vm.append("gst")
        A("s_mov_b64 exec, -1")
        if rr == 0:
            A("s_cmp_ge_u32 s2, 32")
            A("s_cbranch_scc1 k1_gdone")
    A.label("k1_gdone")
    snap = A.vm_snapshot()
    PK = 32
    A("s_cmp_ge_u32 s33, 21")
    A("s_cbranch_scc1 k1_w1")
    A("s_cmp_ge_u32 s33, 14")
    A("s_cbranch_scc1 k1_v")

    def head_end(base_unit_s):
        A(f"s_lshl_b32 s58, {base_unit_s}, 4")
        A("s_mul_i32 s59, s58, 9363")
        A("s_lshr_b32 s59, s59, 16")

    A.vm_restore(snap)
    big_mainloop(A, False, 128, V_XD2, True)
    A("s_barrier")
    A("s_cmp_ge_u32 s33, 7")
    A("s_cselect_b32 s43, 7, 0")
    A(f"s_cselect_b32 s42, {WS_K}, 0")
    A("s_sub_u32 s46, s33, s43")
    A("s_lshl_b32 s43, s39, 6")
    A("s_add_u32 s42, s42, s43")
    A("s_lshl_b32 s43, s46, 4")
    for t in range(4):
        A(f"v_add_u32 v24, s43, {v(VG)}")
        A(f"v_add_u32 v24, {4*t}, v24")
        div7(A, 25, 24)
        A("v_mul_u32_u24 v26, 7, v25")
        A("v_sub_u32 v26, v24, v26")
        A(f"v_lshlrev_b32 {v(4+t)}, 17, v25")
        A("v_lshrrev_b32 v24, 1, v26")
        A(f"v_lshl_add_u32 {v(4+t)}, v24, 8, {v(4+t)}")
        A("v_and_b32 v26, 1, v26")
        A(f"v_lshl_add_u32 {v(4+t)}, v26, 3, {v(4+t)}")
        A(f"v_lshl_add_u32 {v(4+t)}, {v(VI)}, 4, {v(4+t)}")
    for j in range(2):
        for t in range(4):
            pk, src = PK + 8 * j + 2 * t, ACC + 16 * j + 4 * t
            A(f"v_cvt_pk_bf16_f32 {v(pk)}, {v(src)}, {v(src+1)}")
            A(f"v_cvt_pk_bf16_f32 {v(pk+1)}, {v(src+2)}, {v(src+3)}")
            A(f"buffer_store_dwordx2 {v(pk,2)}, {v(4+t)}, s[28:31], s42 offen offset:{1024*j}")
    head_end("s46")
    A(f"v_add_u32 v24, s59, {v(VG)}")
    A("v_mul_u32_u24 v25, 7, v24")
    A("v_add_u32 v25, 6, v25")
    A("s_add_u32 s58, s58, 16")
    A("v_cmp_gt_u32 vcc, s58, v25")
    A("v_lshlrev_b32 v24, 17, v24")
    A(f"v_lshl_add_u32 v24, {v(VI)}, 4, v24")
    A("v_mov_b32 v26, 0")
    A("v_mov_b32 v27, 0")
    A("s_and_saveexec_b64 s[44:45], vcc")
    for j in range(2):
        A(f"buffer_store_dwordx2 v[26:27], v24, s[28:31], s42 offen offset:{1024*j+776}")
    A("s_mov_b64 exec, -1")
    A("s_branch k1_gate")
    A.label("k1_v")
    A("s_cmp_eq_u32 s33, 20")
    A("s_cbranch_scc1 k1_vs")
    for st in (None, "sum"):
        if st:
            A.label("k1_vs")
        A.vm_restore(snap)
        big_mainloop(A, True, 128, V_XD2, True, stat=st)
        if st:
            A(f"v_lshlrev_b32 v24, 3, {v(VI)}")
            A("s_lshl_b32 s43, s40, 8")
            A(f"s_add_u32 s43, s43, {L_EX+512}")
            A("v_add_u32 v24, s43, v24")
            A("s_nop 7")
            A("s_mov_b64 exec, 0xffff")
            for j in range(2):
                A(f"ds_write_b32 v24, {v(ASTAT+4*j)} offset:{128*j}")
            A("s_mov_b64 exec, -1")
            A("s_waitcnt lgkmcnt(0)")
        A("s_barrier")
        if not st:
            A("s_branch k1_vepi")
    A.label("k1_vepi")
    A("s_sub_u32 s46, s33, 14")
    A("s_lshl_b32 s43, s39, 6")
    A(f"s_add_u32 s42, s43, {WS_V}")
    A("s_lshl_b32 s43, s46, 6")
    for t in range(4):
        o = 4 + t
        A(f"v_add_u32 v24, s43, {v(VI)}")
        A(f"v_add_u32 v24, {16*t}, v24")
        A("v_mul_u32_u24 v25, 2341, v24")
        A("v_lshrrev_b32 v25, 16, v25")
        A("v_mul_u32_u24 v26, 28, v25")
        A("v_sub_u32 v26, v24, v26")
        A(f"v_lshlrev_b32 {v(o)}, 17, v25")
        A("v_lshrrev_b32 v27, 4, v26")
        A(f"v_lshl_add_u32 {v(o)}, v27, 10, {v(o)}")
        A("v_and_b32 v27, 15, v26")
        A(f"v_lshl_add_u32 {v(o)}, v27, 4, {v(o)}")
        A(f"v_lshl_add_u32 {v(o)}, {v(VG)}, 8, {v(o)}")
    for t in range(4):
        pk = PK + 4 * t
        for j in range(2):
            src = ACC + 16 * j + 4 * t
            A(f"v_cvt_pk_bf16_f32 {v(pk+2*j)}, {v(src)}, {v(src+1)}")
            A(f"v_cvt_pk_bf16_f32 {v(pk+2*j+1)}, {v(src+2)}, {v(src+3)}")
        A(f"buffer_store_dwordx4 {v(pk,4)}, {v(4+t)}, s[28:31], s42 offen")
    head_end("s46")
    A(f"v_add_u32 v24, s59, {v(VG)}")
    A("v_mul_u32_u24 v25, 7, v24")
    A("v_add_u32 v25, 6, v25")
    A("s_add_u32 s58, s58, 16")
    A("v_lshlrev_b32 v24, 17, v24")
    A(f"v_lshrrev_b32 v26, 2, {v(VI)}")
    A("v_lshl_add_u32 v24, v26, 4, v24")
    A(f"v_and_b32 v27, 3, {v(VI)}")
    A("v_lshl_add_u32 v24, v27, 8, v24")
    A("v_cmp_eq_u32 vcc, 0, v26")
    A("v_mov_b32 v27, 0x3f803f80")
    A("s_nop 0")
    A("v_cndmask_b32 v48, 0, v27, vcc")
    for r in range(1, 4):
        A(f"v_mov_b32 v{48+r}, v48")
    A("v_cmp_gt_u32 vcc, s58, v25")
    A("s_and_saveexec_b64 s[44:45], vcc")
    A(f"buffer_store_dwordx4 v[48:51], v24, s[28:31], s42 offen offset:{1024+12*16}")
    A("s_mov_b64 exec, -1")
    A("s_branch k1_gate")
    A.label("k1_w1")
    A("s_cmp_eq_u32 s41, 1")
    A("s_cbranch_scc1 k1_w11")
    MR, RS, CS = [140, 142], [144, 146], 48
    for ch in range(2):
        if ch:
            A.label("k1_w11")
        A.vm_restore(snap)
        big_mainloop(A, False, 128, V_XD2, True, stat=("sum", "sq")[ch], cs=True)
        A(f"v_lshlrev_b32 v24, 3, {v(VI)}")
        A("s_lshl_b32 s43, s40, 8")
        A(f"s_add_u32 s43, s43, {L_EX+512}")
        A("v_add_u32 v24, s43, v24")
        A("s_nop 3")
        cs_write(A, 25)
        if ch == 0:
            A("s_mov_b64 exec, 0xffff")
            for j in range(2):
                A(f"ds_write_b32 v24, {v(ASTAT+4*j)} offset:{128*j}")
            A("s_mov_b64 exec, -1")
            A("s_branch k1_w1x")
        else:
            A(f"v_lshrrev_b32 v27, 2, {v(VI)}")
            A(f"v_and_b32 v28, 3, {v(VI)}")
            for r in range(4):
                A(f"v_cmp_eq_u32 s[44:45], v27, {v(VG)}")
                A(f"v_cmp_eq_u32 vcc, {r}, v28")
                A("s_and_b64 exec, vcc, s[44:45]")
                for j in range(2):
                    A(f"ds_write_b32 v24, {v(ASTAT+4*j+r)} offset:{128*j+4}")
                A("s_mov_b64 exec, -1")
    A.label("k1_w1x")
    A("s_waitcnt lgkmcnt(0)")
    A("s_barrier")
    for k in range(4):
        A(f"ds_read_b128 {v(CS+4*k,4)}, v25 offset:{64*k}")
    for j in range(2):
        A(f"ds_read_b64 {v(28+2*j,2)}, v24 offset:{128*j}")
    consts = gelu_consts(A, 148)
    A.srd_off(52, 12, 13, WS_HS, ACT_BYTES)
    A("s_lshl_b32 s43, s46, 3")
    for tp in range(2):
        A(f"v_add_u32 v24, s43, {v(VG)}")
        if tp:
            A("v_add_u32 v24, 4, v24")
        A("v_mul_u32_u24 v25, 4682, v24")
        A("v_lshrrev_b32 v25, 16, v25")
        A("v_lshrrev_b32 v26, 1, v25")
        A("v_add_u32 v26, 1, v26")
        A("v_and_b32 v25, 1, v25")
        A("v_sub_u32 v27, 0, v25")
        A("v_xor_b32 v26, v26, v27")
        A("v_add_u32 v26, v26, v25")
        A(f"v_add_u32 v26, v26, {v(VI)}")
        A("v_add_u32 v26, s39, v26")
        for j in range(2):
            o = 4 + 2 * j + tp
            if j:
                A("v_add_u32 v26, 16, v26")
            A("v_lshrrev_b32 v25, 4, v26")
            A("v_mul_u32_u24 v25, 14336, v25")
            A("v_and_b32 v27, 15, v26")
            A("v_lshl_add_u32 v25, v27, 4, v25")
            A("v_lshl_add_u32 v25, v24, 8, v25")
            A("v_cmp_gt_u32 vcc, 2048, v26")
            A("v_mov_b32 v27, 0x80000000")
            A("s_nop 0")
            A(f"v_cndmask_b32 {v(o)}, v27, v25, vcc")
    A("s_waitcnt lgkmcnt(0)")
    for j in range(2):
        m, q = MR[j], RS[j]
        A(f"v_mul_f32 {v(m)}, {f32bits(1.0/448):#x}, {v(28+2*j)}")
        A(f"v_mul_f32 {v(q)}, {f32bits(1.0/448):#x}, {v(29+2*j)}")
        A(f"v_fma_f32 {v(q)}, -{v(m)}, {v(m)}, {v(q)}")
        A(f"v_max_f32 {v(q)}, 0, {v(q)}")
        ln_finish(A, m, q)
        A(f"v_mov_b32 {v(m+1)}, {v(m)}")
        A(f"v_mov_b32 {v(q+1)}, {v(q)}")

    def st(j, pk):
        for tp in range(2):
            A(f"buffer_store_dwordx4 {v(pk+4*tp,4)}, {v(4+2*j+tp)}, s[52:55], 0 offen")

    gelu_epilogue(A, CS, MR, RS, consts, 156, 32, st)
    A("s_cmp_lg_u32 s40, 0")
    A("s_cbranch_scc1 k1_gate")
    A("s_cmp_eq_u32 s17, 0")
    A("s_cselect_b32 s44, 0, 1")
    A("s_cbranch_scc1 k1_z")
    A("s_cmp_lg_u32 s17, 15")
    A("s_cbranch_scc1 k1_gate")
    A.label("k1_z")
    A(f"v_and_b32 v24, 7, {v(VL)}")
    A("v_add_u32 v24, s43, v24")
    A("v_mul_u32_u24 v25, 4682, v24")
    A("v_lshrrev_b32 v25, 16, v25")
    A(f"v_lshrrev_b32 v26, 3, {v(VL)}")
    A("v_lshrrev_b32 v27, 1, v25")
    A("v_cmp_le_u32 s[58:59], v26, v27")
    A("v_and_b32 v25, 1, v25")
    A("v_cmp_eq_u32 vcc, s44, v25")
    A("s_and_b64 s[58:59], s[58:59], vcc")
    A("v_sub_u32 v27, 15, v26")
    A("s_cmp_eq_u32 s44, 0")
    A(f"s_cselect_b32 s45, 0, {127*14336}")
    A("s_cbranch_scc1 k1_z2")
    A("v_mov_b32 v26, v27")
    A.label("k1_z2")
    A("v_lshlrev_b32 v26, 4, v26")
    A("v_lshl_add_u32 v26, v24, 8, v26")
    for r in range(4):
        A(f"v_mov_b32 {v(28+r)}, 0")
    A("s_mov_b64 exec, s[58:59]")
    A("buffer_store_dwordx4 v[28:31], v26, s[52:55], s45 offen")
    A("s_mov_b64 exec, -1")
    A.label("k1_gate")
    stamp_end(A, 0)
    A.label(Lend)
    A("s_endpgm")
    A.label("k1_pf")
    A("s_cmp_ge_u32 s2, 256")
    A(f"s_cbranch_scc1 {Lend}")
    A("s_load_dwordx2 s[4:5], s[0:1], 16")
    A("s_load_dwordx2 s[6:7], s[0:1], 40")
    A("s_load_dwordx4 s[8:11], s[0:1], 48")
    A(f"s_sub_u32 s14, s2, {NWG}")
    A("s_lshl_b32 s14, s14, 13")
    A("v_lshlrev_b32 v1, 4, v0")
    A("v_add_u32 v1, s14, v1")
    A("s_waitcnt lgkmcnt(0)")
    n = 0
    for lo, hi, size in ((6, 7, D * D * 2), (8, 9, D * F * 2), (4, 5, D * D * 2), (10, 11, D * F * 2)):
        A.srd(20, lo, hi, size)
        for off in range(0, size, 262144):
            A(f"s_mov_b32 s15, {off}")
            A(f"buffer_load_dwordx4 {v(4+4*n,4)}, v1, s[20:23], s15 offen")
            n += 1
    A("s_endpgm")
    return "k1_kernel", A.text(), BIG_NV, BIG_NV, 512, BIG_LDS, 256


def gen_k3():
    A = Asm()
    Lend = "k3_end"
    A(f"s_cmp_ge_u32 s2, {NWG}")
    A(f"s_cbranch_scc1 {Lend}")
    stamp(A, 0)
    A("s_load_dwordx2 s[6:7], s[0:1], 48")
    A("s_load_dwordx2 s[12:13], s[0:1], 88")
    lane_setup(A)
    big_decode(A)
    PITCH = F * 2
    A(f"s_mul_i32 s34, s40, {8*PITCH}")
    A("s_lshl_b32 s35, s33, 7")
    A("s_add_u32 s34, s34, s35")
    A(f"s_mov_b32 s38, {32*PITCH}")
    A("s_and_b32 s42, s40, 2")
    A("s_lshl_b32 s42, s42, 1")
    unit_dma_voff(A, V_WD, "s43", "s42", PITCH, 24, 25)
    A(f"v_lshlrev_b32 {v(V_XD)}, 4, {v(VL)}")
    A("s_lshl_b32 s35, s17, 3")
    A("s_add_u32 s35, s35, s19")
    A(f"s_mul_i32 s35, s35, {RT_BYTES}")
    A(f"s_add_u32 s35, s35, {WS_X1}")
    A("s_lshl_b32 s42, s40, 12")
    A(f"v_add_u32 {v(V_XR[0])}, s42, {v(V_XD)}")
    A(f"v_add_u32 {v(V_XR[1])}, {2*SLOT}, {v(V_XR[0])}")
    unit_bases(A, V_TB[0], "pair", 24, 25, 26)
    big_bases_finish(A)
    A("s_lshl_b32 s39, s17, 3")
    A("s_lshl_b32 s42, s40, 1")
    A("s_add_u32 s39, s39, s42")
    A("s_lshl_b32 s42, s39, 4")
    A(f"v_add_u32 v24, s42, {v(VI)}")
    A("v_lshlrev_b32 v24, 6, v24")
    A(f"v_lshl_add_u32 v24, {v(VG)}, 4, v24")
    A(f"s_mov_b32 s46, {WS_ST}")
    A("s_waitcnt lgkmcnt(0)")
    A.srd(24, 6, 7, D * F * 2)
    A.srd(28, 12, 13, WS_SIZE)
    A.srd(20, 12, 13, WS_SIZE)
    for ds in range(2):
        for p in big_dma_parts(A, ds, 2048, V_XD):
            p()
    A.vmem("buffer_load_dwordx4 v[192:195], v24, s[28:31], s46 offen", "st")
    A.vmem("buffer_load_dwordx4 v[196:199], v24, s[28:31], s46 offen offset:1024", "st")
    stamp(A, 1)
    big_zero(A)
    big_mainloop(A, False, 2048, V_XD, False, cs=True)
    MR, RS, CS = [140, 142], [144, 146], 48
    A("s_mov_b32 exec_lo, 0")
    A("s_mov_b32 exec_hi, 0xffff0000")
    for r in (194, 195, 198, 199):
        A(f"v_mov_b32 v{r}, 0")
    A("s_mov_b64 exec, -1")
    for j in range(2):
        b = 192 + 4 * j
        m, q = MR[j], RS[j]
        A(f"v_add_f32 {v(m)}, {v(b)}, {v(b+2)}")
        xlane_g(A, "v_add_f32", m, 24, 25)
        A(f"v_mul_f32 {v(m)}, {f32bits(1.0/448):#x}, {v(m)}")
        A(f"v_add_f32 {v(q)}, {v(b+1)}, {v(b+3)}")
        A(f"v_mul_f32 {v(b)}, {f32bits(1.0/64):#x}, {v(b)}")
        A(f"v_mul_f32 {v(b+2)}, {f32bits(1.0/64):#x}, {v(b+2)}")
        A(f"v_sub_f32 {v(b)}, {v(b)}, {v(m)}")
        A(f"v_sub_f32 {v(b+2)}, {v(b+2)}, {v(m)}")
        A(f"v_mul_f32 {v(b)}, {v(b)}, {v(b)}")
        ex48(A)
        A(f"v_fmac_f32 {v(b)}, {v(b+2)}, {v(b+2)}")
        exall(A)
        A(f"v_fmamk_f32 {v(q)}, {v(b)}, {f32bits(64.0):#x}, {v(q)}")
        if j == 0:
            cs_write(A, 26)
            A("s_waitcnt lgkmcnt(0)")
            A("s_barrier")
            for k in range(4):
                A(f"ds_read_b128 {v(CS+4*k,4)}, v26 offset:{64*k}")
        xlane_g(A, "v_add_f32", q, 24, 25)
        A(f"v_mul_f32 {v(q)}, {f32bits(1.0/448):#x}, {v(q)}")
        ln_finish(A, m, q)
        A(f"v_mov_b32 {v(m+1)}, {v(m)}")
        A(f"v_mov_b32 {v(q+1)}, {v(q)}")
    consts = gelu_consts(A, 148)
    A(f"s_mul_i32 s42, s39, {H3_RT_BYTES}")
    A("s_lshl_b32 s43, s33, 11")
    A("s_add_u32 s42, s42, s43")
    A(f"s_add_u32 s42, s42, {WS_H3}")
    A(f"s_add_u32 s43, s42, {H3_RT_BYTES}")
    A("s_waitcnt lgkmcnt(0)")

    def st(j, pk):
        for tp in range(2):
            A(f"buffer_store_dwordx4 {v(pk+4*tp,4)}, {v(V_XD)}, s[28:31], s{42+j} offen offset:{1024*tp}")

    gelu_epilogue(A, CS, MR, RS, consts, 156, 32, st)
    stamp_end(A, 2)
    A.label(Lend)
    A("s_endpgm")
    return "k3_kernel", A.text(), BIG_NV, BIG_NV, 512, BIG_LDS, NWG


def small_decode(A):
    A("s_mul_i32 s16, s15, 9363")
    A("s_lshr_b32 s16, s16, 16")
    A("s_mul_i32 s18, s16, 7")
    A("s_sub_u32 s18, s15, s18")
    A("s_lshl_b32 s17, s14, 2")
    A("s_add_u32 s17, s17, s16")


L2_K, L2_V, L2_W = 0, 24576, 49152
L2_CNT = L2_W + 14 * 4096


def gen_k2():
    A = Asm()
    Lend = "k2_end"
    A("s_cmp_ge_u32 s2, 256")
    A(f"s_cbranch_scc1 {Lend}")
    stamp(A, 0)
    A("s_load_dwordx2 s[4:5], s[0:1], 0")
    A("s_load_dwordx2 s[6:7], s[0:1], 40")
    A("s_load_dwordx2 s[12:13], s[0:1], 88")
    lane_setup(A)
    A("s_and_b32 s14, s2, 7")
    A("s_lshr_b32 s15, s2, 3")
    A(f"v_lshlrev_b32 v7, 4, {v(VL)}")
    A("s_cmp_ge_u32 s19, 8")
    A("s_cbranch_scc1 k2_gemm")
    A("s_lshr_b32 s16, s15, 4")
    A("s_lshl_b32 s18, s14, 1")
    A("s_add_u32 s18, s18, s16")
    A("s_and_b32 s17, s15, 15")
    A("s_lshl_b32 s20, s18, 17")
    A("s_lshl_b32 s21, s17, 13")
    A("s_add_u32 s20, s20, s21")
    A("s_mul_i32 s21, s19, 3072")
    A("s_add_u32 s22, s20, s21")
    A(f"s_add_u32 s23, s22, {WS_V - 16384}")
    A(f"s_add_u32 s22, s22, {WS_K - 16384}")
    A("s_mov_b32 m0, s21")
    A("s_lshl_b32 s24, s19, 10")
    A("s_add_u32 s24, s24, s20")
    A("s_waitcnt lgkmcnt(0)")
    A.srd(28, 12, 13, WS_SIZE)
    QF, C0, C16, FB, SC, PB, TM, OA = 8, 12, 16, 20, 36, 104, 140, 160
    for j in range(3):
        A.vmem(f"buffer_load_dwordx4 v7, s[28:31], s22 offen offset:{1024*j} lds", "k")
    A.vmem(f"buffer_load_dwordx4 {v(QF,4)}, v7, s[28:31], s24 offen", "k")
    A(f"s_add_u32 m0, s21, {L2_V}")
    A("s_nop 0")
    for j in range(3):
        A.vmem(f"buffer_load_dwordx4 v7, s[28:31], s23 offen offset:{1024*j} lds", "v")
    for r in range(4):
        A(f"v_lshl_add_u32 {v(TM)}, {v(VG)}, 2, {r}")
        A(f"v_mov_b32 {v(TM+1)}, {NEGBIG:#x}")
        A(f"v_cmp_gt_u32 vcc, {v(TM)}, {v(VI)}")
        A("s_nop 1")
        A(f"v_cndmask_b32 {v(C0+r)}, {v(TM+1)}, 0, vcc")
        A(f"v_cndmask_b32 {v(C16+r)}, 0, {v(TM+1)}, vcc")
    A("s_lshl_b32 s25, s19, 10")
    A("v_add_u32 v4, s25, v7")
    A("s_lshr_b32 s25, s19, 1")
    A("s_lshl_b32 s25, s25, 11")
    A(f"s_add_u32 s25, s25, {L2_V}")
    A("v_add_u32 v5, s25, v7")
    A("s_lshl_b32 s25, s17, 3")
    A("s_add_u32 s25, s25, s19")
    A("s_sub_i32 s25, 16, s25")
    A("s_mul_i32 s26, s18, 7")
    A(f"v_add_u32 v6, s26, {v(VG)}")
    A(f"v_and_b32 {v(TM)}, 1, v6")
    A("v_lshrrev_b32 v6, 1, v6")
    A("v_lshlrev_b32 v6, 8, v6")
    A(f"v_lshl_add_u32 v6, {v(TM)}, 3, v6")
    A(f"v_lshl_add_u32 v6, {v(VI)}, 4, v6")
    A("s_lshl_b32 s26, s17, 3")
    A("s_add_u32 s26, s26, s19")
    A(f"s_mul_i32 s26, s26, {RT_BYTES}")
    A(f"s_add_u32 s26, s26, {WS_O}")
    KL, NB = TM + 17, TM + 18
    A(f"v_mov_b32 {v(KL)}, {f32bits(SCALE*LOG2E):#x}")
    for r in range(8):
        A(f"v_mov_b32 {v(OA+r)}, 0")
    stamp(A, 1)
    A.vm_wait("v")
    A("s_barrier")
    stamp(A, 2)
    for i in range(3):
        A(f"ds_read_b128 {v(FB+4*(i%4),4)}, v4 offset:{1024*i}")
    for i in range(17):
        if i + 3 < 17:
            A(f"ds_read_b128 {v(FB+4*((i+3)%4),4)}, v4 offset:{1024*(i+3)}")
        A(f"s_waitcnt lgkmcnt({min(3, 16-i)})")
        c = v(C0, 4) if i == 0 else (v(C16, 4) if i == 16 else "0")
        if i < 16:
            l1, l2 = A.newlabel("k2i"), A.newlabel("k2j")
            A(f"s_cmp_gt_i32 s25, {i}")
            A(f"s_cbranch_scc1 {l1}")
        A(f"v_mfma_f32_16x16x32_bf16 {v(SC+4*i,4)}, {v(FB+4*(i%4),4)}, {v(QF,4)}, {c}")
        if i < 16:
            A(f"s_branch {l2}")
            A.label(l1)
            for r in range(4):
                A(f"v_mov_b32 {v(SC+4*i+r)}, {NEGBIG:#x}")
            A.label(l2)
    stamp(A, 3)
    A("s_nop 4")
    M = TM
    A(f"v_max3_f32 {v(M)}, {v(SC)}, {v(SC+1)}, {v(SC+2)}")
    A(f"v_max3_f32 {v(M+1)}, {v(SC+3)}, {v(SC+4)}, {v(SC+5)}")
    idx, k = 6, 0
    while idx < 68:
        A(f"v_max3_f32 {v(M+k)}, {v(M+k)}, {v(SC+idx)}, {v(SC+idx+1)}")
        idx += 2
        k ^= 1
    A(f"v_max_f32 {v(M)}, {v(M)}, {v(M+1)}")
    xlane_g(A, "v_max_f32", M, M + 1, M + 2)
    A(f"v_mul_f32 {v(NB)}, {v(KL)}, {v(M)}")
    A(f"v_sub_f32 {v(NB)}, 0, {v(NB)}")
    for j in range(2):
        A(f"ds_read_b128 {v(FB+4*j,4)}, v5 offset:{1024*j}")
    A("s_bitcmp1_b32 s19, 0")
    A("s_cbranch_scc1 k2_odd")
    for par in range(2):
        if par:
            A.label("k2_odd")
        zs = 17 if par == 0 else 0
        A(f"v_mov_b32 {v(PB+2*zs)}, 0")
        A(f"v_mov_b32 {v(PB+2*zs+1)}, 0")
        nread = 2
        for c in range(9):
            els = []
            for half in range(2):
                slot = 2 * c + half
                if slot != zs:
                    els += [SC + 4 * (slot - par) + r for r in range(4)]
            for e in els:
                A(f"v_fma_f32 {v(e)}, {v(e)}, {v(KL)}, {v(NB)}")
            for e in els:
                A(f"v_exp_f32 {v(e)}, {v(e)}")
            while nread < min(18, 2 * c + 4):
                A(f"ds_read_b128 {v(FB+4*(nread%4),4)}, v5 offset:{1024*nread}")
                nread += 1
            A("s_nop 0")
            for half in range(2):
                slot = 2 * c + half
                if slot == zs:
                    continue
                i = slot - par
                A(f"v_cvt_pk_bf16_f32 {v(PB+2*slot)}, {v(SC+4*i)}, {v(SC+4*i+1)}")
                A(f"v_cvt_pk_bf16_f32 {v(PB+2*slot+1)}, {v(SC+4*i+2)}, {v(SC+4*i+3)}")
            A(f"s_waitcnt lgkmcnt({nread - (2*c+2)})")
            A("s_nop 0")
            for dt in range(2):
                A(f"v_mfma_f32_16x16x32_bf16 {v(OA+4*dt,4)}, {v(FB+4*((2*c+dt)%4),4)}, {v(PB+4*c,4)}, {v(OA+4*dt,4)}")
        if par == 0:
            A("s_branch k2_attn_out")
    A.label("k2_attn_out")
    A("s_nop 7")
    A(f"v_mov_b32 {v(TM)}, 0")
    A("s_mov_b32 exec_lo, 0")
    A("s_mov_b32 exec_hi, 0xffff0000")
    A(f"v_mov_b32 {v(TM)}, {v(OA+4)}")
    A("s_mov_b64 exec, -1")
    xlane_g(A, "v_add_f32", TM, TM + 1, TM + 2)
    A(f"v_rcp_f32 {v(TM)}, {v(TM)}")
    A("s_nop 0")
    for r in range(8):
        A(f"v_mul_f32 {v(OA+r)}, {v(TM)}, {v(OA+r)}")
    for r in range(4):
        A(f"v_cvt_pk_bf16_f32 {v(TM+4+r)}, {v(OA+2*r)}, {v(OA+2*r+1)}")
    A(f"buffer_store_dwordx2 {v(TM+4,2)}, v6, s[28:31], s26 offen")
    ex48(A)
    A(f"buffer_store_dwordx2 {v(TM+6,2)}, v6, s[28:31], s26 offen offset:512")
    stamp_end(A, 1)
    A("s_endpgm")
    A.label("k2_gemm")
    A.vm_restore([])
    A(f"s_cmp_ge_u32 s2, {NWG}")
    A(f"s_cbranch_scc1 {Lend}")
    A("s_setprio 2")
    A("s_sub_u32 s19, s19, 8")
    small_decode(A)
    A("s_lshl_b32 s32, s17, 2")
    A("s_add_u32 s32, s32, s19")
    A(f"s_mul_i32 s33, s32, {RT_BYTES}")
    A(f"s_add_u32 s34, s33, {WS_HS}")
    for j in range(1, 4):
        A(f"s_add_u32 s{34+j}, s34, {4096*j}")
    AF, WFB, AC, XR, TB = 32, 88, 120, 136, 16
    A("s_and_b32 s38, s19, 1")
    A("s_lshl_b32 s38, s38, 2")
    A("s_and_b32 s39, s19, 2")
    A("s_lshl_b32 s39, s39, 1")
    unit_dma_voff(A, 5, "s38", "s39", 896, 8, 9)
    A("s_lshl_b32 s38, s18, 7")
    A(f"s_mul_i32 s39, s19, {8*896}")
    A("s_add_u32 s38, s38, s39")
    A("s_lshl_b32 s39, s19, 10")
    A(f"s_add_u32 s39, s39, {L2_W}")
    A("s_lshl_b32 s40, s32, 4")
    A(f"v_add_u32 v8, s40, {v(VI)}")
    A("v_mul_u32_u24 v9, 896, v8")
    A(f"v_lshl_add_u32 v9, {v(VG)}, 4, v9")
    A(f"v_lshrrev_b32 v10, 1, {v(VG)}")
    A("v_lshlrev_b32 v10, 3, v10")
    A("v_xor_b32 v11, 8, v10")
    A("v_add_u32 v11, v11, v9")
    A("v_add_u32 v9, v10, v9")
    A("s_lshl_b32 s40, s18, 7")
    for r in range(16):
        A(f"v_mov_b32 {v(AC+r)}, 0")
    unit_bases(A, TB, "pair", 12, 13, 14)
    for t in range(4):
        A(f"v_add_u32 {v(TB+t)}, {L2_W}, {v(TB+t)}")
    A(f"v_mov_b32 v10, {L2_CNT}")
    A("v_mov_b32 v12, 0")
    A("ds_write_b32 v10, v12")
    A("s_waitcnt lgkmcnt(0)")
    A.srd(20, 4, 5, ACT_BYTES)
    A.srd(24, 6, 7, D * D * 2)
    A.srd(28, 12, 13, WS_SIZE)
    A("s_barrier")
    stamp(A, 1)
    for u in range(14):
        A("s_mov_b32 m0, s39")
        A("s_add_u32 s39, s39, 4096")
        A.vmem("buffer_load_dwordx4 v5, s[24:27], s38 offen lds", "w")
        A(f"s_add_u32 s38, s38, {32*896}")
    for sx in range(14):
        A.vmem(f"buffer_load_dwordx4 {v(AF+4*sx,4)}, v7, s[28:31], s{34+sx//4} offen offset:{1024*(sx%4)}", ("a", sx))
    for tp in range(2):
        A.vmem(f"buffer_load_dwordx2 {v(XR+4*tp,2)}, v9, s[20:23], s40 offen offset:{64*tp}", "x")
        A.vmem(f"buffer_load_dwordx2 {v(XR+4*tp+2,2)}, v11, s[20:23], s40 offen offset:{64*tp}", "x")
    A.vm_wait("w")
    A("v_mov_b32 v12, 1")
    A("s_mov_b64 exec, 1")
    A("ds_add_u32 v10, v12")
    A("s_mov_b64 exec, -1")
    A.label("k2_spin")
    A("ds_read_b32 v12, v10")
    A("s_waitcnt lgkmcnt(0)")
    A("v_readfirstlane_b32 s41, v12")
    A("s_cmp_lt_u32 s41, 4")
    A("s_cbranch_scc1 k2_spin")
    stamp(A, 2)
    for r in unit_reads(TB, 0, WFB):
        A(r)
    for sx in range(14):
        A.vm_wait(("a", sx), " lgkmcnt(0)")
        rd = unit_reads(TB, (sx + 1) * 4096, WFB + 16 * ((sx + 1) & 1)) if sx < 13 else []
        for t in range(4):
            A(f"v_mfma_f32_16x16x32_bf16 {v(AC+4*t,4)}, {v(WFB+16*(sx&1)+4*t,4)}, {v(AF+4*sx,4)}, {v(AC+4*t,4)}")
            for r in rd[4*t:4*t+4] if t < 2 else []:
                A(r)
    stamp(A, 3)
    A.vm_wait("x")
    XU = 32
    for j in range(8):
        A(f"v_lshlrev_b32 {v(XU+2*j)}, 16, {v(XR+j)}")
        A(f"v_and_b32 {v(XU+2*j+1)}, 0xffff0000, {v(XR+j)}")
    for r in range(16):
        rbf(A, AC + r)
    for r in range(16):
        A(f"v_add_f32 {v(AC+r)}, {v(AC+r)}, {v(XU+r)}")
    PK = 48
    for j in range(8):
        A(f"v_cvt_pk_bf16_f32 {v(PK+j)}, {v(AC+2*j)}, {v(AC+2*j+1)}")
    for r in range(16):
        rbf(A, AC + r)
    A("s_lshl_b32 s40, s18, 11")
    A("s_add_u32 s40, s40, s33")
    A(f"s_add_u32 s40, s40, {WS_X1}")
    A(f"buffer_store_dwordx4 {v(PK,4)}, v7, s[28:31], s40 offen")
    A(f"buffer_store_dwordx4 {v(PK+4,4)}, v7, s[28:31], s40 offen offset:1024")
    A(f"v_add_f32 v12, {v(AC)}, {v(AC+1)}")
    for r in range(2, 16):
        A(f"v_add_f32 v12, v12, {v(AC+r)}")
    xlane_g(A, "v_add_f32", 12, 14, 15)
    A(f"v_mul_f32 v14, {f32bits(1.0/64):#x}, v12")
    for r in range(16):
        A(f"v_sub_f32 {v(AC+r)}, {v(AC+r)}, v14")
    A(f"v_mul_f32 v13, {v(AC)}, {v(AC)}")
    for r in range(1, 16):
        A(f"v_fmac_f32 v13, {v(AC+r)}, {v(AC+r)}")
    xlane_g(A, "v_add_f32", 13, 14, 15)
    A("v_lshlrev_b32 v8, 6, v8")
    A("s_lshl_b32 s40, s18, 3")
    A(f"s_add_u32 s40, s40, {WS_ST}")
    A("s_mov_b64 exec, 0xffff")
    A("buffer_store_dwordx2 v[12:13], v8, s[28:31], s40 offen")
    stamp_end(A, 1)
    A.label(Lend)
    A("s_endpgm")
    return "k2_kernel", A.text(), 168, 168, 768, L2_CNT + 64, 256


RS4 = 6
RING = RS4 * 4096
L4_WO = 4 * RING
PF4 = 4


def gen_k4():
    A = Asm()
    Lend = "k4_end"
    A(f"s_cmp_ge_u32 s2, {NWG}")
    A(f"s_cbranch_scc1 {Lend}")
    stamp(A, 0)
    A("s_load_dwordx2 s[4:5], s[0:1], 16")
    A("s_load_dwordx2 s[6:7], s[0:1], 56")
    A("s_load_dwordx2 s[8:9], s[0:1], 72")
    A("s_load_dwordx2 s[12:13], s[0:1], 88")
    lane_setup(A)
    A("s_and_b32 s14, s2, 7")
    A("s_lshr_b32 s15, s2, 3")
    small_decode(A)
    A("s_and_b32 s46, s19, 3")
    A("s_lshr_b32 s47, s19, 2")
    NA = PF4 + 2
    AFB = 32
    WFB = AFB + NA * 8
    ACB = WFB + 32
    OFB = ACB + 32
    AWO = OFB + 28
    WOF = AWO + 16
    XR = WOF + 32
    GR = XR + 4
    NV = (GR + 8) // 8 * 8
    TB, TO = 20, 24
    af = lambda sx, j: AFB + ((sx % NA) * 2 + j) * 4
    ac = lambda j, t: v(ACB + (j * 4 + t) * 4, 4)
    A(f"v_lshlrev_b32 v8, 4, {v(VL)}")
    for m in range(1, 4):
        A(f"v_add_u32 v{8+m}, {4096*m}, v8")
    A("s_lshl_b32 s32, s47, 2")
    unit_dma_voff(A, 4, "0", "s32", 896, 12, 13)
    A("v_xor_b32 v5, 64, v4")
    unit_dma_voff(A, 6, "0", None, 896, 12, 13)
    A("v_xor_b32 v7, 64, v6")
    A("s_lshl_b32 s32, s17, 2")
    A("s_lshl_b32 s33, s47, 1")
    A("s_add_u32 s32, s32, s33")
    A(f"s_mul_i32 s32, s32, {H3_RT_BYTES}")
    A(f"s_mul_i32 s33, s46, {14*1024}")
    A("s_add_u32 s32, s32, s33")
    A(f"s_add_u32 s32, s32, {WS_H3}")
    A(f"s_add_u32 s33, s32, {H3_RT_BYTES}")
    A("s_lshl_b32 s38, s18, 7")
    A(f"s_mul_i32 s36, s46, {448*896}")
    A(f"s_mul_i32 s34, s47, {16*896}")
    A("s_add_u32 s36, s36, s34")
    A("s_add_u32 s36, s36, s38")
    A(f"s_mul_i32 s35, s46, {RING}")
    A("s_lshl_b32 s37, s47, 11")
    A("s_add_u32 s37, s37, s35")
    A(f"s_mul_i32 s39, s19, {7*8*896}")
    A("s_add_u32 s38, s38, s39")
    A("s_mul_i32 s39, s19, 7168")
    A(f"s_add_u32 s39, s39, {L4_WO}")
    l = A.newlabel("k4p")
    A("s_bitcmp1_b32 s19, 0")
    A(f"s_cbranch_scc0 {l}")
    A("v_swap_b32 v6, v7")
    A.label(l)
    A("s_lshl_b32 s40, s17, 2")
    A("s_add_u32 s40, s40, s46")
    A(f"s_mul_i32 s41, s40, {RT_BYTES}")
    A(f"s_mul_i32 s42, s47, {7*1024}")
    A("s_add_u32 s42, s42, s41")
    A(f"s_add_u32 s42, s42, {WS_O}")
    A("s_lshl_b32 s43, s18, 11")
    A("s_add_u32 s43, s43, s41")
    A("s_lshl_b32 s44, s47, 10")
    A("s_add_u32 s43, s43, s44")
    A(f"s_add_u32 s43, s43, {WS_X1}")
    A("s_lshl_b32 s44, s40, 4")
    A(f"v_add_u32 v14, s44, {v(VI)}")
    A("v_lshlrev_b32 v15, 2, v14")
    A(f"s_mov_b32 s45, {WS_G}")
    unit_bases(A, TB, "pair", 12, 13, 16)
    A(f"s_mul_i32 s44, s47, {7*4096}")
    A(f"s_add_u32 s44, s44, {L4_WO}")
    for t in range(4):
        A(f"v_add_u32 {v(TO+t)}, s44, {v(TB+t)}")
        A(f"v_add_u32 {v(TB+t)}, s35, {v(TB+t)}")
    A("s_waitcnt lgkmcnt(0)")
    A.srd(20, 4, 5, D * D * 2)
    A.srd(24, 6, 7, F * D * 2)
    A.srd(28, 12, 13, WS_SIZE)
    A.srd(48, 8, 9, ACT_BYTES)

    def issue_parts(sx):
        parts = []
        for j in range(2):
            def p(j=j):
                A(f"s_add_u32 m0, s37, {(sx%RS4)*4096 + j*1024}")
                A("s_nop 0")
                A.vmem(f"buffer_load_dwordx4 v{4+j}, s[24:27], s36 offen lds", ("ld", sx))
                A(f"s_add_u32 s36, s36, {8*896 if j == 0 else 24*896}")
            parts.append(p)
        for j in range(2):
            parts.append(lambda j=j: A.vmem(f"buffer_load_dwordx4 {v(af(sx,j),4)}, v{8+sx//4}, s[28:31], s{32+j} offen offset:{1024*(sx%4)}", ("ld", sx)))
        return parts

    extra = [("wo", u) for u in range(7)] + [("of", u) for u in range(7)] + [("x1", 0), ("g", 0)]

    def issue_extra():
        if not extra:
            return
        kind, u = extra.pop(0)
        if kind == "wo":
            A("s_mov_b32 m0, s39")
            A("s_add_u32 s39, s39, 1024")
            A.vmem(f"buffer_load_dwordx4 v{6+(u&1)}, s[20:23], s38 offen lds", "wo")
            A(f"s_add_u32 s38, s38, {8*896}")
        elif kind == "of":
            A.vmem(f"buffer_load_dwordx4 {v(OFB+4*u,4)}, v{8+u//4}, s[28:31], s42 offen offset:{1024*(u%4)}", "of")
        elif kind == "x1":
            A.vmem(f"buffer_load_dwordx4 {v(XR,4)}, v8, s[28:31], s43 offen", "ep")
        else:
            A.vmem(f"buffer_load_dword {v(GR)}, v15, s[28:31], s45 offen", "ep")

    nxt = [0]

    def take(n, limit):
        out = []
        while n > 0 and nxt[0] < 14 and nxt[0] <= limit:
            out += issue_parts(nxt[0])
            nxt[0] += 1
            n -= 1
        return out

    for p in take(2, 1):
        p()
    stamp(A, 1)
    for r in range(ACB, ACB + 32):
        A(f"v_mov_b32 {v(r)}, 0")
    for r in range(AWO, AWO + 16):
        A(f"v_mov_b32 {v(r)}, 0")
    A.vm_wait(("ld", 0))
    A("s_barrier")
    stamp(A, 2)
    for r in unit_reads(TB, 0, WFB):
        A(r)
    WO0 = 7
    WOK = 14 - WO0
    for sx in range(14):
        rd = []
        if sx < 13:
            tags = [("ld", sx + 1)] + (["of"] if sx + 1 == WO0 else [])
            A.vm_wait(tags, " lgkmcnt(0)")
            A("s_barrier")
            rd = unit_reads(TB, ((sx + 1) % RS4) * 4096, WFB + 16 * ((sx + 1) & 1))
            if sx + 1 >= WO0:
                rd += unit_reads(TO, (sx + 1 - WO0) * 4096, WOF + 16 * ((sx + 1) & 1))
        else:
            A("s_waitcnt lgkmcnt(0)")
        parts = take(2, sx + 1 + PF4)
        parts += [issue_extra] * (4 if len(parts) <= 4 else 1)
        mf = [f"v_mfma_f32_16x16x32_bf16 {ac(j,t)}, {v(WFB+16*(sx&1)+4*t,4)}, {v(af(sx,j),4)}, {ac(j,t)}" for t in range(4) for j in range(2)]
        if sx >= WO0:
            assert not [e for e in extra if e[0] in ("wo", "of")]
            mf += [f"v_mfma_f32_16x16x32_bf16 {v(AWO+4*t,4)}, {v(WOF+16*(sx&1)+4*t,4)}, {v(OFB+4*(sx-WO0),4)}, {v(AWO+4*t,4)}" for t in range(4)]
        for i, m in enumerate(mf):
            A(m)
            for _ in range(2):
                if rd:
                    A(rd.pop(0))
            for _ in range(-(-len(parts) // (len(mf) - i))):
                parts.pop(0)()
        assert not rd and not parts
    assert not extra
    stamp(A, 3)
    A("s_lshl_b32 s52, s46, 14")
    A("s_lshl_b32 s53, s47, 13")
    A("s_add_u32 s52, s52, s53")
    A("v_add_u32 v12, s52, v8")
    A("s_lshl_b32 s52, s47, 14")
    A("s_lshl_b32 s53, s46, 12")
    A("s_add_u32 s52, s52, s53")
    A("s_add_u32 s52, s52, 65536")
    A("v_add_u32 v13, s52, v8")
    A("s_barrier")
    for j in range(2):
        for t in range(4):
            A(f"ds_write_b128 v12, {ac(j,t)} offset:{(j*4+t)*1024}")
    for t in range(4):
        A(f"ds_write_b128 v13, {v(AWO+4*t,4)} offset:{t*1024}")
    A("s_lshl_b32 s52, s46, 12")
    A("s_lshl_b32 s53, s47, 11")
    A("s_add_u32 s52, s52, s53")
    A("v_add_u32 v12, s52, v8")
    A("v_add_u32 v13, 65536, v12")
    XU = OFB
    A.vm_wait("ep")
    for j in range(4):
        A(f"v_lshlrev_b32 {v(XU+2*j)}, 16, {v(XR+j)}")
        A(f"v_and_b32 {v(XU+2*j+1)}, 0xffff0000, {v(XR+j)}")
    A(f"v_sub_f32 v19, 1.0, {v(GR)}")
    rbf(A, 19)
    A("v_mul_u32_u24 v14, 896, v14")
    A(f"v_lshl_add_u32 v14, {v(VG)}, 4, v14")
    A(f"v_lshrrev_b32 v16, 1, {v(VG)}")
    A("v_lshlrev_b32 v16, 3, v16")
    A("v_xor_b32 v15, 8, v16")
    A("v_add_u32 v15, v15, v14")
    A("v_add_u32 v14, v16, v14")
    A("s_lshl_b32 s52, s18, 7")
    A("s_lshl_b32 s53, s47, 6")
    A("s_add_u32 s52, s52, s53")
    A("s_waitcnt lgkmcnt(0)")
    A("s_barrier")
    RB = 32
    for q in range(4):
        for t in range(2):
            A(f"ds_read_b128 {v(RB+8*q+4*t,4)}, v12 offset:{16384*q + 1024*t}")
    for q in range(2):
        for t in range(2):
            A(f"ds_read_b128 {v(RB+32+8*q+4*t,4)}, v13 offset:{16384*q + 1024*t}")
    A("s_waitcnt lgkmcnt(4)")
    for r in range(8):
        A(f"v_add_f32 {v(RB+r)}, {v(RB+r)}, {v(RB+8+r)}")
        A(f"v_add_f32 {v(RB+16+r)}, {v(RB+16+r)}, {v(RB+24+r)}")
    for r in range(8):
        A(f"v_add_f32 {v(RB+r)}, {v(RB+r)}, {v(RB+16+r)}")
    for r in range(8):
        rbf(A, RB + r)
    for r in range(8):
        A(f"v_add_f32 {v(RB+r)}, {v(RB+r)}, {v(XU+r)}")
    for r in range(8):
        rbf(A, RB + r)
    A("s_waitcnt lgkmcnt(0)")
    AU = RB + 32
    for r in range(8):
        A(f"v_add_f32 {v(AU+r)}, {v(AU+r)}, {v(AU+8+r)}")
        A(f"v_mul_f32 {v(RB+r)}, v19, {v(RB+r)}")
    for r in range(8):
        rbf(A, AU + r)
        rbf(A, RB + r)
    for r in range(8):
        A(f"v_mul_f32 {v(AU+r)}, {v(GR)}, {v(AU+r)}")
    for r in range(8):
        rbf(A, AU + r)
    for r in range(8):
        A(f"v_add_f32 {v(RB+r)}, {v(RB+r)}, {v(AU+r)}")
    for j in range(4):
        A(f"v_cvt_pk_bf16_f32 {v(XU+j)}, {v(RB+2*j)}, {v(RB+2*j+1)}")
    A(f"buffer_store_dwordx2 {v(XU,2)}, v14, s[48:51], s52 offen")
    A(f"buffer_store_dwordx2 {v(XU+2,2)}, v15, s[48:51], s52 offen")
    stamp_end(A, 3)
    A.label(Lend)
    A("s_endpgm")
    return "k4_kernel", A.text(), NV, NV, 512, L4_WO + 14 * 4096, NWG


KERNELS = [gen_k1, gen_k2, gen_k3, gen_k4]


def build(kernels):
    hdr = open("gated_mix__sliding_block__mixer_s_mlp__prompt.s.ref").read().split("; Override launch")[0]
    out = hdr
    gens = [g() for g in kernels]
    kl = os.environ.get("KLIST")
    order = [int(c) - 1 for c in kl.split(",")] if kl else range(len(gens))
    for i in order:
        name, txt, vg, acc_off, block, lds, grid = gens[i]
        out += f"; @launch kernel={name} grid=({grid},1,1) block=({block},1,1) lds={lds}\n"
    out += '.amdgcn_target "amdgcn-amd-amdhsa--gfx950"\n.text\n'
    for g in gens:
        out += kernel_head(g[0]) + g[1]
    out += '.section .rodata,"a"\n'
    for g in gens:
        out += kernel_desc(g[0], g[2], g[3])
    return out


if __name__ == "__main__":
    dst = sys.argv[1] if len(sys.argv) > 1 else "gated_mix__sliding_block__mixer_s_mlp__prompt.s"
    open(dst, "w").write(build(KERNELS))
    print("wrote", dst)
```

```python
import math
import os
import sys
from asmlib import Asm, v, a, s, f32bits, kernel_desc, kernel_head
from gen2 import (stamp, stamp_end, lane_setup, xlane_g, rbf, gelu_pairs, ln_finish, gelu_consts, ex48, ex56, exall,
                  S, D, F, MB, WS_Q, WS_K, WS_V, WS_HS, WS_X1, WS_O, WS_H3, WS_G, WS_ST, WS_SIZE, ACT_BYTES, RT_BYTES,
                  H3_RT_BYTES, LOG2E, SCALE, NEGBIG, STAMPS, VL, VI, VG)

NWG = 224
XSC = [""]


def div7(A, dst, src):
    A(f"v_mul_u32_u24 {v(dst)}, 9363, {v(src)}")
    A(f"v_lshrrev_b32 {v(dst)}, 16, {v(dst)}")


def unit_bases(A, dst, mode, t0, t1, t2):
    A(f"v_lshrrev_b32 {v(t0)}, 2, {v(VI)}")
    A(f"v_lshl_add_u32 {v(t1)}, {v(VG)}, 3, {v(t0)}")
    A(f"v_lshlrev_b32 {v(t1)}, 7, {v(t1)}")
    A(f"v_and_b32 {v(t0)}, 2, {v(t0)}")
    A(f"v_and_b32 {v(t2)}, 1, {v(VG)}")
    A(f"v_lshl_add_u32 {v(t0)}, {v(t2)}, 2, {v(t0)}")
    A(f"v_and_b32 {v(t2)}, 3, {v(VI)}")
    if mode == "pair":
        A(f"v_xor_b32 {v(t0)}, {v(t0)}, {v(t2)}")
        A(f"v_lshl_add_u32 {v(dst)}, {v(t0)}, 4, {v(t1)}")
        A(f"v_xor_b32 {v(dst+2)}, 64, {v(dst)}")
        A(f"v_lshrrev_b32 {v(t2)}, 1, {v(t2)}")
        A(f"v_lshlrev_b32 {v(t2)}, 3, {v(t2)}")
        A(f"v_xor_b32 {v(t0)}, 8, {v(t2)}")
        A(f"v_add_u32 {v(dst+1)}, {v(dst)}, {v(t0)}")
        A(f"v_add_u32 {v(dst+3)}, {v(dst+2)}, {v(t0)}")
        A(f"v_add_u32 {v(dst)}, {v(dst)}, {v(t2)}")
        A(f"v_add_u32 {v(dst+2)}, {v(dst+2)}, {v(t2)}")
    else:
        A(f"v_lshlrev_b32 {v(t0)}, 4, {v(t0)}")
        A(f"v_lshl_add_u32 {v(t1)}, {v(t2)}, 3, {v(t1)}")
        for t in range(4):
            A(f"v_xor_b32 {v(dst+t)}, {32*t}, {v(t0)}")
            A(f"v_add_u32 {v(dst+t)}, {v(dst+t)}, {v(t1)}")


def unit_dma_voff(A, dst, qodd_s, swap_s, pitch, t0, t1):
    A(f"v_lshrrev_b32 {v(t0)}, 3, {v(VL)}")
    A(f"v_and_b32 {v(t1)}, 2, {v(t0)}")
    A(f"v_add_u32 {v(t1)}, {qodd_s}, {v(t1)}")
    A(f"v_xor_b32 {v(t1)}, {v(t1)}, {v(VL)}")
    A(f"v_and_b32 {v(t1)}, 7, {v(t1)}")
    if swap_s is not None:
        A(f"v_xor_b32 {v(t0)}, {swap_s}, {v(t0)}")
    if isinstance(pitch, int):
        A(f"v_mul_u32_u24 {v(dst)}, {pitch}, {v(t0)}")
    else:
        A(f"v_mul_lo_u32 {v(dst)}, {v(t0)}, {pitch}")
    A(f"v_lshl_add_u32 {v(dst)}, {v(t1)}, 4, {v(dst)}")


def unit_reads(bases, off, dst, reg=v):
    return [f"ds_read_b64_tr_b16 {reg(dst+4*t+2*hh,2)}, {v(bases+t)} offset:{off + 512*hh}" for t in range(4) for hh in range(2)]


def interleave(A, mf, fill):
    fill = list(fill)
    n = len(mf)
    for i, m in enumerate(mf):
        A(m)
        k = -(-len(fill) // max(1, n - 2 - i)) if i < n - 2 else len(fill)
        for _ in range(min(k, len(fill))):
            f = fill.pop(0)
            if callable(f):
                f()
            else:
                A(f)


SLOT = 32768
L_EX = 4 * SLOT
BIG_LDS = L_EX + 2048
V_XD, V_XD2, V_WD = 4, 5, 6
V_XR = (7, 8, 9, 10)
V_TB = (12, 16)
V_TC = (20, 21)
XB, WB, CB, ONES, ACC, ASTAT, ACS = 32, 48, 80, 88, 92, 124, 132
BIG_NV = 200


def big_reads_list(sx, cs, xpar):
    buf, par, slot = sx & 1, sx & 1, (sx // 2) % 4
    hi, so = slot // 2, (slot % 2) * SLOT
    out = []
    for j in range(2):
        if xpar:
            out.append(f"ds_read_b128 {v(XB+buf*8+4*j,4)}, {v(V_XR[2*par+hi])} offset:{so + 2048*j}")
        else:
            out.append(f"ds_read_b128 {v(XB+buf*8+4*j,4)}, {v(V_XR[hi])} offset:{so + 2048*j + 1024*par}")
    out += unit_reads(V_TB[hi], so + 4096 * par, WB + buf * 16)
    if cs:
        for hh in range(2):
            out.append(f"ds_read_b64_tr_b16 {v(CB+buf*4+2*hh,2)}, {v(V_TC[hi])} offset:{so + 4096*par + 512*hh}")
    return out


def big_mfmas(sx, normal, stat, cs):
    buf = sx & 1
    out = []
    for k in range(4):
        for j in range(2):
            c = v(ACC + (j * 4 + k) * 4, 4)
            x, w = v(XB + buf * 8 + 4 * j, 4), v(WB + buf * 16 + 4 * k, 4)
            out.append(f"v_mfma_f32_16x16x32_bf16 {c}, {x}, {w}, {c}" if normal else f"v_mfma_f32_16x16x32_bf16 {c}, {w}, {x}, {c}")
    if stat:
        for j in range(2):
            c, x = v(ASTAT + 4 * j, 4), v(XB + buf * 8 + 4 * j, 4)
            out.append(f"v_mfma_f32_16x16x32_bf16 {c}, {v(ONES,4) if stat == 'sum' else x}, {x}, {c}")
    if cs:
        c = v(ACS, 4)
        out.append(f"v_mfma_f32_16x16x32_bf16 {c}, {v(CB+buf*4,4)}, {v(ONES,4)}, {c}")
    return out


def big_dma_parts(A, ds, xstep, x2):
    slot = ds % 4

    def px():
        A(f"s_add_u32 m0, s36, {slot*SLOT}")
        A("s_nop 0")
        A.vmem(f"buffer_load_dwordx4 {v(V_XD)}, s[20:23], s35 offen{XSC[0]} lds", ("ld", ds))
        A.vmem(f"buffer_load_dwordx4 {v(x2)}, s[20:23], s35 offen offset:1024{XSC[0]} lds", ("ld", ds))
        A(f"s_add_u32 s35, s35, {xstep}")

    def pw(h):
        A(f"s_add_u32 m0, s37, {slot*SLOT + 4096*h}")
        A("s_nop 0")
        A.vmem(f"buffer_load_dwordx4 {v(V_WD)}, s[24:27], s34 offen lds", ("ld", ds))
        A("s_add_u32 s34, s34, s38")
    return [px, lambda: pw(0), lambda: pw(1)]


DMA_AT = {0: 2, 1: 3, 2: 4, 4: 5, 6: 6}


def big_mainloop(A, normal, xstep, x2, xpar, stat=None, cs=False, wdone=(), hook=None):
    A.vm_wait(("ld", 0))
    A("s_barrier")
    if hook:
        hook()
    stamp(A, 2)
    for r in big_reads_list(0, cs, xpar):
        A(r)
    for sx in range(14):
        mf = big_mfmas(sx, normal, stat, cs)
        parts = []
        if sx % 2 == 1 and sx < 13:
            A.vm_wait(("ld", (sx + 1) // 2), " lgkmcnt(0)")
            A("s_barrier")
        else:
            A("s_waitcnt lgkmcnt(0)")
        if sx in DMA_AT:
            parts = big_dma_parts(A, DMA_AT[sx], xstep, x2)
            if DMA_AT[sx] in wdone:
                parts = parts[:1]
        rd = big_reads_list(sx + 1, cs, xpar) if sx < 13 else []
        interleave(A, mf, rd + parts)
    stamp(A, 3)


def big_decode(A):
    A("s_and_b32 s14, s2, 7")
    A("s_lshr_b32 s15, s2, 3")
    A("s_mul_i32 s16, s15, 9363")
    A("s_lshr_b32 s16, s16, 16")
    A("s_mul_i32 s18, s16, 7")
    A("s_sub_u32 s18, s15, s18")
    A("s_lshr_b32 s17, s14, 1")
    A("s_lshl_b32 s17, s17, 2")
    A("s_add_u32 s17, s17, s16")
    A("s_and_b32 s16, s14, 1")
    A("s_mul_i32 s16, s16, 7")
    A("s_add_u32 s18, s18, s16")
    A("s_and_b32 s40, s19, 3")
    A("s_lshr_b32 s41, s19, 2")
    A("s_lshl_b32 s36, s19, 11")
    A("s_lshl_b32 s37, s41, 13")
    A("s_lshl_b32 s42, s40, 10")
    A("s_add_u32 s37, s37, s42")
    A("s_add_u32 s37, s37, 16384")
    A("s_lshl_b32 s33, s18, 1")
    A("s_add_u32 s33, s33, s41")
    A("s_and_b32 s43, s40, 1")
    A("s_lshl_b32 s43, s43, 2")


def big_bases_finish(A):
    A("s_lshl_b32 s42, s41, 13")
    A("s_add_u32 s42, s42, 16384")
    for t in range(4):
        A(f"v_add_u32 {v(V_TB[0]+t)}, s42, {v(V_TB[0]+t)}")
        A(f"v_add_u32 {v(V_TB[1]+t)}, {2*SLOT}, {v(V_TB[0]+t)}")
    A(f"v_mov_b32 {v(V_TC[0])}, {v(V_TB[0])}")
    for t in range(1, 4):
        l = A.newlabel("cs")
        A(f"s_cmp_lg_u32 s40, {t}")
        A(f"s_cbranch_scc1 {l}")
        A(f"v_mov_b32 {v(V_TC[0])}, {v(V_TB[0]+t)}")
        A.label(l)
    A(f"v_add_u32 {v(V_TC[1])}, {2*SLOT}, {v(V_TC[0])}")


def big_zero(A):
    for r in range(ACC, ACS + 4):
        A(f"v_mov_b32 {v(r)}, 0")
    for r in range(4):
        A(f"v_mov_b32 {v(ONES+r)}, 0x3f803f80")


def cs_write(A, t0):
    A(f"v_lshlrev_b32 {v(t0)}, 4, {v(VG)}")
    A("s_lshl_b32 s43, s41, 8")
    A(f"s_add_u32 s43, s43, {L_EX}")
    A(f"v_add_u32 {v(t0)}, s43, {v(t0)}")
    A("s_lshl_b32 s43, s40, 6")
    A(f"v_add_u32 {v(t0+1)}, s43, {v(t0)}")
    A(f"v_cmp_eq_u32 vcc, 0, {v(VI)}")
    A("s_and_saveexec_b64 s[44:45], vcc")
    A(f"ds_write_b128 {v(t0+1)}, {v(ACS,4)}")
    A("s_mov_b64 exec, s[44:45]")


def gelu_epilogue(A, cs, mreg, rsreg, consts, tmp, pk, store_fn):
    c0, c1, one = consts
    for j in range(2):
        base = ACC + j * 16
        pairs = [base + 2 * i for i in range(8)]
        for i, p in enumerate(pairs):
            A(f"v_pk_fma_f32 {v(p,2)}, {v(cs+2*i,2)}, {v(mreg[j],2)}, {v(p,2)}")
        for i, p in enumerate(pairs):
            A(f"v_pk_mul_f32 {v(p,2)}, {v(p,2)}, {v(rsreg[j],2)}")
        gelu_pairs(A, pairs, [pk + 8 * j + i for i in range(8)], tmp, c0, c1, one)
        store_fn(j, pk + 8 * j)


def gen_k1():
    A = Asm()
    Lend = "k1_end"
    A(f"s_cmp_ge_u32 s2, {NWG}")
    A("s_cbranch_scc1 k1_pf")
    stamp(A, 0)
    A("s_load_dwordx4 s[4:7], s[0:1], 0")
    A("s_load_dwordx2 s[8:9], s[0:1], 32")
    A("s_load_dwordx2 s[10:11], s[0:1], 64")
    A("s_load_dwordx2 s[12:13], s[0:1], 88")
    lane_setup(A)
    big_decode(A)
    A("s_sub_u32 s46, s33, 21")
    A("s_movk_i32 s32, 896")
    A("s_cmp_lt_u32 s33, 21")
    A("s_cselect_b32 s32, 2688, s32")
    A("s_cselect_b32 s34, s33, s46")
    A("s_lshl_b32 s34, s34, 7")
    A("s_lshl_b32 s35, s40, 3")
    A("s_mul_i32 s35, s35, s32")
    A("s_add_u32 s34, s34, s35")
    A("s_lshl_b32 s38, s32, 5")
    unit_dma_voff(A, V_WD, "s43", None, "s32", 24, 25)
    A(f"v_lshrrev_b32 v24, 3, {v(VL)}")
    A("v_lshrrev_b32 v25, 1, v24")
    A(f"v_xor_b32 v25, v25, {v(VL)}")
    A("v_and_b32 v25, 7, v25")
    A(f"v_mul_u32_u24 {v(V_XD)}, 896, v24")
    A(f"v_lshl_add_u32 {v(V_XD)}, v25, 4, {v(V_XD)}")
    A(f"v_xor_b32 {v(V_XD2)}, 64, {v(V_XD)}")
    A(f"v_add_u32 {v(V_XD2)}, {8*896-1024}, {v(V_XD2)}")
    A("s_lshl_b32 s35, s17, 3")
    A("s_add_u32 s35, s35, s19")
    A(f"s_mul_i32 s35, s35, {RT_BYTES}")
    A(f"v_lshrrev_b32 v24, 1, {v(VI)}")
    A(f"v_xor_b32 v24, v24, {v(VG)}")
    A("v_lshlrev_b32 v24, 4, v24")
    A(f"v_lshl_add_u32 v24, {v(VI)}, 7, v24")
    A("s_lshl_b32 s42, s40, 12")
    A(f"v_add_u32 {v(V_XR[0])}, s42, v24")
    A(f"v_xor_b32 {v(V_XR[2])}, 64, {v(V_XR[0])}")
    A(f"v_add_u32 {v(V_XR[1])}, {2*SLOT}, {v(V_XR[0])}")
    A(f"v_add_u32 {v(V_XR[3])}, {2*SLOT}, {v(V_XR[2])}")
    A("s_cmp_lt_u32 s33, 21")
    A("s_cbranch_scc1 k1_natb")
    unit_bases(A, V_TB[0], "pair", 24, 25, 26)
    A("s_branch k1_basesdone")
    A.label("k1_natb")
    unit_bases(A, V_TB[0], "nat", 24, 25, 26)
    A.label("k1_basesdone")
    big_bases_finish(A)
    A("s_lshl_b32 s47, s2, 3")
    A("s_add_u32 s47, s47, s19")
    A("s_mul_i32 s56, s47, 896")
    A(f"s_add_u32 s57, s56, {1792*896}")
    A(f"v_lshlrev_b32 v24, 4, {v(VL)}")
    for r in range(188, 200):
        A(f"v_mov_b32 v{r}, 0")
    A("s_lshl_b32 s39, s17, 7")
    A("s_lshl_b32 s42, s40, 5")
    A("s_add_u32 s39, s39, s42")
    A("s_waitcnt lgkmcnt(0)")
    A.srd(20, 4, 5, ACT_BYTES)
    A(f"s_mov_b32 s26, {D*D*2}")
    A("s_cmp_lt_u32 s33, 21")
    A("s_cselect_b32 s24, s6, s8")
    A("s_cselect_b32 s25, s7, s9")
    A(f"s_cselect_b32 s26, {D*3*D*2}, s26")
    A("s_and_b32 s25, s25, 0xffff")
    A("s_mov_b32 s27, 0x00020000")
    A.srd(28, 12, 13, WS_SIZE)
    A.srd(48, 10, 11, D * 2)
    ex56(A)
    A.vmem("buffer_load_dwordx4 v[188:191], v24, s[20:23], s56 offen", "gate")
    A.vmem("buffer_load_dwordx4 v[192:195], v24, s[20:23], s57 offen", "gate")
    A.vmem("buffer_load_dwordx4 v[196:199], v24, s[48:51], 0 offen", "gate")
    exall(A)
    for ds in range(2):
        for p in big_dma_parts(A, ds, 128, V_XD2):
            p()
    stamp(A, 1)
    big_zero(A)
    A.vm_wait("gate")
    T, U = 140, 148
    for j in range(4):
        A(f"v_lshlrev_b32 {v(T+2*j)}, 16, {v(196+j)}")
        A(f"v_and_b32 {v(T+2*j+1)}, 0xffff0000, {v(196+j)}")
    for rr in range(2):
        for j in range(4):
            A(f"v_lshlrev_b32 {v(U+2*j)}, 16, {v(188+4*rr+j)}")
            A(f"v_and_b32 {v(U+2*j+1)}, 0xffff0000, {v(188+4*rr+j)}")
        for j in range(4):
            A(f"v_pk_mul_f32 {v(U+2*j,2)}, {v(U+2*j,2)}, {v(T+2*j,2)}")
        for j in range(8):
            rbf(A, U + j)
        z = 160
        A(f"v_add_f32 {v(z)}, {v(U)}, {v(U+1)}")
        for j in range(2, 8):
            A(f"v_add_f32 {v(z)}, {v(z)}, {v(U+j)}")
        for ror in (8, 4, 2, 1):
            A("s_nop 1")
            A(f"v_add_f32_dpp {v(z)}, {v(z)}, {v(z)} row_ror:{ror} row_mask:0xf bank_mask:0xf")
        xlane_g(A, "v_add_f32", z, U, U + 1)
        rbf(A, z)
        A(f"v_mul_f32 {v(z)}, {f32bits(-LOG2E):#x}, {v(z)}")
        A(f"v_exp_f32 {v(z)}, {v(z)}")
        A("s_nop 0")
        A(f"v_add_f32 {v(z)}, 1.0, {v(z)}")
        A(f"v_rcp_f32 {v(z)}, {v(z)}")
        A("s_nop 0")
        rbf(A, z)
        A("s_lshl_b32 s56, s47, 2")
        A(f"s_add_u32 s56, s56, {WS_G + 1792*4*rr}")
        A(f"v_mov_b32 {v(U)}, 0")
        A("s_mov_b64 exec, 1")
        A(f"buffer_store_dword {v(z)}, {v(U)}, s[28:31], s56 offen")
        if rr == 0:
            A.vm.append("gst")
        A("s_mov_b64 exec, -1")
        if rr == 0:
            A("s_cmp_ge_u32 s2, 32")
            A("s_cbranch_scc1 k1_gdone")
    A.label("k1_gdone")
    snap = A.vm_snapshot()
    PK = 32
    A("s_cmp_ge_u32 s33, 21")
    A("s_cbranch_scc1 k1_w1")
    A("s_cmp_ge_u32 s33, 14")
    A("s_cbranch_scc1 k1_v")

    def head_end(base_unit_s):
        A(f"s_lshl_b32 s58, {base_unit_s}, 4")
        A("s_mul_i32 s59, s58, 9363")
        A("s_lshr_b32 s59, s59, 16")

    A.vm_restore(snap)
    big_mainloop(A, False, 128, V_XD2, True)
    A("s_barrier")
    A("s_cmp_ge_u32 s33, 7")
    A("s_cselect_b32 s43, 7, 0")
    A(f"s_cselect_b32 s42, {WS_K}, 0")
    A("s_sub_u32 s46, s33, s43")
    A("s_lshl_b32 s43, s39, 6")
    A("s_add_u32 s42, s42, s43")
    A("s_lshl_b32 s43, s46, 4")
    for t in range(4):
        A(f"v_add_u32 v24, s43, {v(VG)}")
        A(f"v_add_u32 v24, {4*t}, v24")
        div7(A, 25, 24)
        A("v_mul_u32_u24 v26, 7, v25")
        A("v_sub_u32 v26, v24, v26")
        A(f"v_lshlrev_b32 {v(4+t)}, 17, v25")
        A("v_lshrrev_b32 v24, 1, v26")
        A(f"v_lshl_add_u32 {v(4+t)}, v24, 8, {v(4+t)}")
        A("v_and_b32 v26, 1, v26")
        A(f"v_lshl_add_u32 {v(4+t)}, v26, 3, {v(4+t)}")
        A(f"v_lshl_add_u32 {v(4+t)}, {v(VI)}, 4, {v(4+t)}")
    for j in range(2):
        for t in range(4):
            pk, src = PK + 8 * j + 2 * t, ACC + 16 * j + 4 * t
            A(f"v_cvt_pk_bf16_f32 {v(pk)}, {v(src)}, {v(src+1)}")
            A(f"v_cvt_pk_bf16_f32 {v(pk+1)}, {v(src+2)}, {v(src+3)}")
            A(f"buffer_store_dwordx2 {v(pk,2)}, {v(4+t)}, s[28:31], s42 offen offset:{1024*j}")
    head_end("s46")
    A(f"v_add_u32 v24, s59, {v(VG)}")
    A("v_mul_u32_u24 v25, 7, v24")
    A("v_add_u32 v25, 6, v25")
    A("s_add_u32 s58, s58, 16")
    A("v_cmp_gt_u32 vcc, s58, v25")
    A("v_lshlrev_b32 v24, 17, v24")
    A(f"v_lshl_add_u32 v24, {v(VI)}, 4, v24")
    A("v_mov_b32 v26, 0")
    A("v_mov_b32 v27, 0")
    A("s_and_saveexec_b64 s[44:45], vcc")
    for j in range(2):
        A(f"buffer_store_dwordx2 v[26:27], v24, s[28:31], s42 offen offset:{1024*j+776}")
    A("s_mov_b64 exec, -1")
    A("s_branch k1_gate")
    A.label("k1_v")
    A("s_cmp_eq_u32 s33, 20")
    A("s_cbranch_scc1 k1_vs")
    for st in (None, "sum"):
        if st:
            A.label("k1_vs")
        A.vm_restore(snap)
        big_mainloop(A, True, 128, V_XD2, True, stat=st)
        if st:
            A(f"v_lshlrev_b32 v24, 3, {v(VI)}")
            A("s_lshl_b32 s43, s40, 8")
            A(f"s_add_u32 s43, s43, {L_EX+512}")
            A("v_add_u32 v24, s43, v24")
            A("s_nop 7")
            A("s_mov_b64 exec, 0xffff")
            for j in range(2):
                A(f"ds_write_b32 v24, {v(ASTAT+4*j)} offset:{128*j}")
            A("s_mov_b64 exec, -1")
            A("s_waitcnt lgkmcnt(0)")
        A("s_barrier")
        if not st:
            A("s_branch k1_vepi")
    A.label("k1_vepi")
    A("s_sub_u32 s46, s33, 14")
    A("s_lshl_b32 s43, s39, 6")
    A(f"s_add_u32 s42, s43, {WS_V}")
    A("s_lshl_b32 s43, s46, 6")
    for t in range(4):
        o = 4 + t
        A(f"v_add_u32 v24, s43, {v(VI)}")
        A(f"v_add_u32 v24, {16*t}, v24")
        A("v_mul_u32_u24 v25, 2341, v24")
        A("v_lshrrev_b32 v25, 16, v25")
        A("v_mul_u32_u24 v26, 28, v25")
        A("v_sub_u32 v26, v24, v26")
        A(f"v_lshlrev_b32 {v(o)}, 17, v25")
        A("v_lshrrev_b32 v27, 4, v26")
        A(f"v_lshl_add_u32 {v(o)}, v27, 10, {v(o)}")
        A("v_and_b32 v27, 15, v26")
        A(f"v_lshl_add_u32 {v(o)}, v27, 4, {v(o)}")
        A(f"v_lshl_add_u32 {v(o)}, {v(VG)}, 8, {v(o)}")
    for t in range(4):
        pk = PK + 4 * t
        for j in range(2):
            src = ACC + 16 * j + 4 * t
            A(f"v_cvt_pk_bf16_f32 {v(pk+2*j)}, {v(src)}, {v(src+1)}")
            A(f"v_cvt_pk_bf16_f32 {v(pk+2*j+1)}, {v(src+2)}, {v(src+3)}")
        A(f"buffer_store_dwordx4 {v(pk,4)}, {v(4+t)}, s[28:31], s42 offen")
    head_end("s46")
    A(f"v_add_u32 v24, s59, {v(VG)}")
    A("v_mul_u32_u24 v25, 7, v24")
    A("v_add_u32 v25, 6, v25")
    A("s_add_u32 s58, s58, 16")
    A("v_lshlrev_b32 v24, 17, v24")
    A(f"v_lshrrev_b32 v26, 2, {v(VI)}")
    A("v_lshl_add_u32 v24, v26, 4, v24")
    A(f"v_and_b32 v27, 3, {v(VI)}")
    A("v_lshl_add_u32 v24, v27, 8, v24")
    A("v_cmp_eq_u32 vcc, 0, v26")
    A("v_mov_b32 v27, 0x3f803f80")
    A("s_nop 0")
    A("v_cndmask_b32 v48, 0, v27, vcc")
    for r in range(1, 4):
        A(f"v_mov_b32 v{48+r}, v48")
    A("v_cmp_gt_u32 vcc, s58, v25")
    A("s_and_saveexec_b64 s[44:45], vcc")
    A(f"buffer_store_dwordx4 v[48:51], v24, s[28:31], s42 offen offset:{1024+12*16}")
    A("s_mov_b64 exec, -1")
    A("s_branch k1_gate")
    A.label("k1_w1")
    A("s_cmp_eq_u32 s41, 1")
    A("s_cbranch_scc1 k1_w11")
    MR, RS, CS = [140, 142], [144, 146], 48
    for ch in range(2):
        if ch:
            A.label("k1_w11")
        A.vm_restore(snap)
        big_mainloop(A, False, 128, V_XD2, True, stat=("sum", "sq")[ch], cs=True)
        A(f"v_lshlrev_b32 v24, 3, {v(VI)}")
        A("s_lshl_b32 s43, s40, 8")
        A(f"s_add_u32 s43, s43, {L_EX+512}")
        A("v_add_u32 v24, s43, v24")
        A("s_nop 3")
        cs_write(A, 25)
        if ch == 0:
            A("s_mov_b64 exec, 0xffff")
            for j in range(2):
                A(f"ds_write_b32 v24, {v(ASTAT+4*j)} offset:{128*j}")
            A("s_mov_b64 exec, -1")
            A("s_branch k1_w1x")
        else:
            A(f"v_lshrrev_b32 v27, 2, {v(VI)}")
            A(f"v_and_b32 v28, 3, {v(VI)}")
            for r in range(4):
                A(f"v_cmp_eq_u32 s[44:45], v27, {v(VG)}")
                A(f"v_cmp_eq_u32 vcc, {r}, v28")
                A("s_and_b64 exec, vcc, s[44:45]")
                for j in range(2):
                    A(f"ds_write_b32 v24, {v(ASTAT+4*j+r)} offset:{128*j+4}")
                A("s_mov_b64 exec, -1")
    A.label("k1_w1x")
    A("s_waitcnt lgkmcnt(0)")
    A("s_barrier")
    for k in range(4):
        A(f"ds_read_b128 {v(CS+4*k,4)}, v25 offset:{64*k}")
    for j in range(2):
        A(f"ds_read_b64 {v(28+2*j,2)}, v24 offset:{128*j}")
    consts = gelu_consts(A, 148)
    A.srd_off(52, 12, 13, WS_HS, ACT_BYTES)
    A("s_lshl_b32 s43, s46, 3")
    for tp in range(2):
        A(f"v_add_u32 v24, s43, {v(VG)}")
        if tp:
            A("v_add_u32 v24, 4, v24")
        A("v_mul_u32_u24 v25, 4682, v24")
        A("v_lshrrev_b32 v25, 16, v25")
        A("v_lshrrev_b32 v26, 1, v25")
        A("v_add_u32 v26, 1, v26")
        A("v_and_b32 v25, 1, v25")
        A("v_sub_u32 v27, 0, v25")
        A("v_xor_b32 v26, v26, v27")
        A("v_add_u32 v26, v26, v25")
        A(f"v_add_u32 v26, v26, {v(VI)}")
        A("v_add_u32 v26, s39, v26")
        for j in range(2):
            o = 4 + 2 * j + tp
            if j:
                A("v_add_u32 v26, 16, v26")
            A("v_lshrrev_b32 v25, 4, v26")
            A("v_mul_u32_u24 v25, 14336, v25")
            A("v_and_b32 v27, 15, v26")
            A("v_lshl_add_u32 v25, v27, 4, v25")
            A("v_lshl_add_u32 v25, v24, 8, v25")
            A("v_cmp_gt_u32 vcc, 2048, v26")
            A("v_mov_b32 v27, 0x80000000")
            A("s_nop 0")
            A(f"v_cndmask_b32 {v(o)}, v27, v25, vcc")
    A("s_waitcnt lgkmcnt(0)")
    for j in range(2):
        m, q = MR[j], RS[j]
        A(f"v_mul_f32 {v(m)}, {f32bits(1.0/448):#x}, {v(28+2*j)}")
        A(f"v_mul_f32 {v(q)}, {f32bits(1.0/448):#x}, {v(29+2*j)}")
        A(f"v_fma_f32 {v(q)}, -{v(m)}, {v(m)}, {v(q)}")
        A(f"v_max_f32 {v(q)}, 0, {v(q)}")
        ln_finish(A, m, q)
        A(f"v_mov_b32 {v(m+1)}, {v(m)}")
        A(f"v_mov_b32 {v(q+1)}, {v(q)}")

    def st(j, pk):
        for tp in range(2):
            A(f"buffer_store_dwordx4 {v(pk+4*tp,4)}, {v(4+2*j+tp)}, s[52:55], 0 offen")

    gelu_epilogue(A, CS, MR, RS, consts, 156, 32, st)
    A("s_cmp_lg_u32 s40, 0")
    A("s_cbranch_scc1 k1_gate")
    A("s_cmp_eq_u32 s17, 0")
    A("s_cselect_b32 s44, 0, 1")
    A("s_cbranch_scc1 k1_z")
    A("s_cmp_lg_u32 s17, 15")
    A("s_cbranch_scc1 k1_gate")
    A.label("k1_z")
    A(f"v_and_b32 v24, 7, {v(VL)}")
    A("v_add_u32 v24, s43, v24")
    A("v_mul_u32_u24 v25, 4682, v24")
    A("v_lshrrev_b32 v25, 16, v25")
    A(f"v_lshrrev_b32 v26, 3, {v(VL)}")
    A("v_lshrrev_b32 v27, 1, v25")
    A("v_cmp_le_u32 s[58:59], v26, v27")
    A("v_and_b32 v25, 1, v25")
    A("v_cmp_eq_u32 vcc, s44, v25")
    A("s_and_b64 s[58:59], s[58:59], vcc")
    A("v_sub_u32 v27, 15, v26")
    A("s_cmp_eq_u32 s44, 0")
    A(f"s_cselect_b32 s45, 0, {127*14336}")
    A("s_cbranch_scc1 k1_z2")
    A("v_mov_b32 v26, v27")
    A.label("k1_z2")
    A("v_lshlrev_b32 v26, 4, v26")
    A("v_lshl_add_u32 v26, v24, 8, v26")
    for r in range(4):
        A(f"v_mov_b32 {v(28+r)}, 0")
    A("s_mov_b64 exec, s[58:59]")
    A("buffer_store_dwordx4 v[28:31], v26, s[52:55], s45 offen")
    A("s_mov_b64 exec, -1")
    A.label("k1_gate")
    stamp_end(A, 0)
    A.label(Lend)
    A("s_endpgm")
    A.label("k1_pf")
    A("s_cmp_ge_u32 s2, 256")
    A(f"s_cbranch_scc1 {Lend}")
    A("s_load_dwordx2 s[4:5], s[0:1], 16")
    A("s_load_dwordx2 s[6:7], s[0:1], 40")
    A("s_load_dwordx4 s[8:11], s[0:1], 48")
    A(f"s_sub_u32 s14, s2, {NWG}")
    A("s_lshl_b32 s14, s14, 13")
    A("v_lshlrev_b32 v1, 4, v0")
    A("v_add_u32 v1, s14, v1")
    A("s_waitcnt lgkmcnt(0)")
    n = 0
    for lo, hi, size in ((6, 7, D * D * 2), (8, 9, D * F * 2), (4, 5, D * D * 2), (10, 11, D * F * 2)):
        A.srd(20, lo, hi, size)
        for off in range(0, size, 262144):
            A(f"s_mov_b32 s15, {off}")
            A(f"buffer_load_dwordx4 {v(4+4*n,4)}, v1, s[20:23], s15 offen")
            n += 1
    A("s_endpgm")
    return "k1_kernel", A.text(), BIG_NV, BIG_NV, 512, BIG_LDS, 256


def gen_k3():
    A = Asm()
    Lend = "k3_end"
    A(f"s_cmp_ge_u32 s2, {NWG}")
    A(f"s_cbranch_scc1 {Lend}")
    stamp(A, 0)
    A("s_load_dwordx2 s[6:7], s[0:1], 48")
    A("s_load_dwordx2 s[12:13], s[0:1], 88")
    lane_setup(A)
    big_decode(A)
    PITCH = F * 2
    A(f"s_mul_i32 s34, s40, {8*PITCH}")
    A("s_lshl_b32 s35, s33, 7")
    A("s_add_u32 s34, s34, s35")
    A(f"s_mov_b32 s38, {32*PITCH}")
    A("s_and_b32 s42, s40, 2")
    A("s_lshl_b32 s42, s42, 1")
    unit_dma_voff(A, V_WD, "s43", "s42", PITCH, 24, 25)
    A(f"v_lshlrev_b32 {v(V_XD)}, 4, {v(VL)}")
    A("s_lshl_b32 s35, s17, 3")
    A("s_add_u32 s35, s35, s19")
    A(f"s_mul_i32 s35, s35, {RT_BYTES}")
    A(f"s_add_u32 s35, s35, {WS_X1}")
    A("s_lshl_b32 s42, s40, 12")
    A(f"v_add_u32 {v(V_XR[0])}, s42, {v(V_XD)}")
    A(f"v_add_u32 {v(V_XR[1])}, {2*SLOT}, {v(V_XR[0])}")
    unit_bases(A, V_TB[0], "pair", 24, 25, 26)
    big_bases_finish(A)
    A("s_lshl_b32 s39, s17, 3")
    A("s_lshl_b32 s42, s40, 1")
    A("s_add_u32 s39, s39, s42")
    A("s_lshl_b32 s42, s39, 4")
    A(f"v_add_u32 v24, s42, {v(VI)}")
    A("v_lshlrev_b32 v24, 6, v24")
    A(f"v_lshl_add_u32 v24, {v(VG)}, 4, v24")
    A(f"s_mov_b32 s46, {WS_ST}")
    A("s_waitcnt lgkmcnt(0)")
    A.srd(24, 6, 7, D * F * 2)
    A.srd(28, 12, 13, WS_SIZE)
    A.srd(20, 12, 13, WS_SIZE)
    for ds in range(2):
        for p in big_dma_parts(A, ds, 2048, V_XD):
            p()
    A.vmem("buffer_load_dwordx4 v[192:195], v24, s[28:31], s46 offen", "st")
    A.vmem("buffer_load_dwordx4 v[196:199], v24, s[28:31], s46 offen offset:1024", "st")
    stamp(A, 1)
    big_zero(A)
    big_mainloop(A, False, 2048, V_XD, False, cs=True)
    MR, RS, CS = [140, 142], [144, 146], 48
    A("s_mov_b32 exec_lo, 0")
    A("s_mov_b32 exec_hi, 0xffff0000")
    for r in (194, 195, 198, 199):
        A(f"v_mov_b32 v{r}, 0")
    A("s_mov_b64 exec, -1")
    for j in range(2):
        b = 192 + 4 * j
        m, q = MR[j], RS[j]
        A(f"v_add_f32 {v(m)}, {v(b)}, {v(b+2)}")
        xlane_g(A, "v_add_f32", m, 24, 25)
        A(f"v_mul_f32 {v(m)}, {f32bits(1.0/448):#x}, {v(m)}")
        A(f"v_add_f32 {v(q)}, {v(b+1)}, {v(b+3)}")
        A(f"v_mul_f32 {v(b)}, {f32bits(1.0/64):#x}, {v(b)}")
        A(f"v_mul_f32 {v(b+2)}, {f32bits(1.0/64):#x}, {v(b+2)}")
        A(f"v_sub_f32 {v(b)}, {v(b)}, {v(m)}")
        A(f"v_sub_f32 {v(b+2)}, {v(b+2)}, {v(m)}")
        A(f"v_mul_f32 {v(b)}, {v(b)}, {v(b)}")
        ex48(A)
        A(f"v_fmac_f32 {v(b)}, {v(b+2)}, {v(b+2)}")
        exall(A)
        A(f"v_fmamk_f32 {v(q)}, {v(b)}, {f32bits(64.0):#x}, {v(q)}")
        if j == 0:
            cs_write(A, 26)
            A("s_waitcnt lgkmcnt(0)")
            A("s_barrier")
            for k in range(4):
                A(f"ds_read_b128 {v(CS+4*k,4)}, v26 offset:{64*k}")
        xlane_g(A, "v_add_f32", q, 24, 25)
        A(f"v_mul_f32 {v(q)}, {f32bits(1.0/448):#x}, {v(q)}")
        ln_finish(A, m, q)
        A(f"v_mov_b32 {v(m+1)}, {v(m)}")
        A(f"v_mov_b32 {v(q+1)}, {v(q)}")
    consts = gelu_consts(A, 148)
    A(f"s_mul_i32 s42, s39, {H3_RT_BYTES}")
    A("s_lshl_b32 s43, s33, 11")
    A("s_add_u32 s42, s42, s43")
    A(f"s_add_u32 s42, s42, {WS_H3}")
    A(f"s_add_u32 s43, s42, {H3_RT_BYTES}")
    A("s_waitcnt lgkmcnt(0)")

    def st(j, pk):
        for tp in range(2):
            A(f"buffer_store_dwordx4 {v(pk+4*tp,4)}, {v(V_XD)}, s[28:31], s{42+j} offen offset:{1024*tp}")

    gelu_epilogue(A, CS, MR, RS, consts, 156, 32, st)
    stamp_end(A, 2)
    A.label(Lend)
    A("s_endpgm")
    return "k3_kernel", A.text(), BIG_NV, BIG_NV, 512, BIG_LDS, NWG


def small_decode(A):
    A("s_mul_i32 s16, s15, 9363")
    A("s_lshr_b32 s16, s16, 16")
    A("s_mul_i32 s18, s16, 7")
    A("s_sub_u32 s18, s15, s18")
    A("s_lshl_b32 s17, s14, 2")
    A("s_add_u32 s17, s17, s16")


L2_K, L2_V, L2_W = 0, 24576, 49152
L2_CNT = L2_W + 14 * 4096


def gen_k2():
    A = Asm()
    Lend = "k2_end"
    A("s_cmp_ge_u32 s2, 256")
    A(f"s_cbranch_scc1 {Lend}")
    stamp(A, 0)
    A("s_load_dwordx2 s[4:5], s[0:1], 0")
    A("s_load_dwordx2 s[6:7], s[0:1], 40")
    A("s_load_dwordx2 s[12:13], s[0:1], 88")
    lane_setup(A)
    A("s_and_b32 s14, s2, 7")
    A("s_lshr_b32 s15, s2, 3")
    A(f"v_lshlrev_b32 v7, 4, {v(VL)}")
    A("s_cmp_ge_u32 s19, 8")
    A("s_cbranch_scc1 k2_gemm")
    A("s_lshr_b32 s16, s15, 4")
    A("s_lshl_b32 s18, s14, 1")
    A("s_add_u32 s18, s18, s16")
    A("s_and_b32 s17, s15, 15")
    A("s_lshl_b32 s20, s18, 17")
    A("s_lshl_b32 s21, s17, 13")
    A("s_add_u32 s20, s20, s21")
    A("s_mul_i32 s21, s19, 3072")
    A("s_add_u32 s22, s20, s21")
    A(f"s_add_u32 s23, s22, {WS_V - 16384}")
    A(f"s_add_u32 s22, s22, {WS_K - 16384}")
    A("s_mov_b32 m0, s21")
    A("s_lshl_b32 s24, s19, 10")
    A("s_add_u32 s24, s24, s20")
    A("s_waitcnt lgkmcnt(0)")
    A.srd(28, 12, 13, WS_SIZE)
    QF, C0, C16, FB, SC, PB, TM, OA = 8, 12, 16, 20, 36, 104, 140, 160
    for j in range(3):
        A.vmem(f"buffer_load_dwordx4 v7, s[28:31], s22 offen offset:{1024*j} lds", "k")
    A.vmem(f"buffer_load_dwordx4 {v(QF,4)}, v7, s[28:31], s24 offen", "k")
    A(f"s_add_u32 m0, s21, {L2_V}")
    A("s_nop 0")
    for j in range(3):
        A.vmem(f"buffer_load_dwordx4 v7, s[28:31], s23 offen offset:{1024*j} lds", "v")
    for r in range(4):
        A(f"v_lshl_add_u32 {v(TM)}, {v(VG)}, 2, {r}")
        A(f"v_mov_b32 {v(TM+1)}, {NEGBIG:#x}")
        A(f"v_cmp_gt_u32 vcc, {v(TM)}, {v(VI)}")
        A("s_nop 1")
        A(f"v_cndmask_b32 {v(C0+r)}, {v(TM+1)}, 0, vcc")
        A(f"v_cndmask_b32 {v(C16+r)}, 0, {v(TM+1)}, vcc")
    A("s_lshl_b32 s25, s19, 10")
    A("v_add_u32 v4, s25, v7")
    A("s_lshr_b32 s25, s19, 1")
    A("s_lshl_b32 s25, s25, 11")
    A(f"s_add_u32 s25, s25, {L2_V}")
    A("v_add_u32 v5, s25, v7")
    A("s_lshl_b32 s25, s17, 3")
    A("s_add_u32 s25, s25, s19")
    A("s_sub_i32 s25, 16, s25")
    A("s_mul_i32 s26, s18, 7")
    A(f"v_add_u32 v6, s26, {v(VG)}")
    A(f"v_and_b32 {v(TM)}, 1, v6")
    A("v_lshrrev_b32 v6, 1, v6")
    A("v_lshlrev_b32 v6, 8, v6")
    A(f"v_lshl_add_u32 v6, {v(TM)}, 3, v6")
    A(f"v_lshl_add_u32 v6, {v(VI)}, 4, v6")
    A("s_lshl_b32 s26, s17, 3")
    A("s_add_u32 s26, s26, s19")
    A(f"s_mul_i32 s26, s26, {RT_BYTES}")
    A(f"s_add_u32 s26, s26, {WS_O}")
    KL, NB = TM + 17, TM + 18
    A(f"v_mov_b32 {v(KL)}, {f32bits(SCALE*LOG2E):#x}")
    for r in range(8):
        A(f"v_mov_b32 {v(OA+r)}, 0")
    stamp(A, 1)
    A.vm_wait("v")
    A("s_barrier")
    stamp(A, 2)
    for i in range(3):
        A(f"ds_read_b128 {v(FB+4*(i%4),4)}, v4 offset:{1024*i}")
    for i in range(17):
        if i + 3 < 17:
            A(f"ds_read_b128 {v(FB+4*((i+3)%4),4)}, v4 offset:{1024*(i+3)}")
        A(f"s_waitcnt lgkmcnt({min(3, 16-i)})")
        c = v(C0, 4) if i == 0 else (v(C16, 4) if i == 16 else "0")
        if i < 16:
            l1, l2 = A.newlabel("k2i"), A.newlabel("k2j")
            A(f"s_cmp_gt_i32 s25, {i}")
            A(f"s_cbranch_scc1 {l1}")
        A(f"v_mfma_f32_16x16x32_bf16 {v(SC+4*i,4)}, {v(FB+4*(i%4),4)}, {v(QF,4)}, {c}")
        if i < 16:
            A(f"s_branch {l2}")
            A.label(l1)
            for r in range(4):
                A(f"v_mov_b32 {v(SC+4*i+r)}, {NEGBIG:#x}")
            A.label(l2)
    stamp(A, 3)
    A("s_nop 4")
    M = TM
    A(f"v_max3_f32 {v(M)}, {v(SC)}, {v(SC+1)}, {v(SC+2)}")
    A(f"v_max3_f32 {v(M+1)}, {v(SC+3)}, {v(SC+4)}, {v(SC+5)}")
    idx, k = 6, 0
    while idx < 68:
        A(f"v_max3_f32 {v(M+k)}, {v(M+k)}, {v(SC+idx)}, {v(SC+idx+1)}")
        idx += 2
        k ^= 1
    A(f"v_max_f32 {v(M)}, {v(M)}, {v(M+1)}")
    xlane_g(A, "v_max_f32", M, M + 1, M + 2)
    A(f"v_mul_f32 {v(NB)}, {v(KL)}, {v(M)}")
    A(f"v_sub_f32 {v(NB)}, 0, {v(NB)}")
    for j in range(2):
        A(f"ds_read_b128 {v(FB+4*j,4)}, v5 offset:{1024*j}")
    A("s_bitcmp1_b32 s19, 0")
    A("s_cbranch_scc1 k2_odd")
    for par in range(2):
        if par:
            A.label("k2_odd")
        zs = 17 if par == 0 else 0
        A(f"v_mov_b32 {v(PB+2*zs)}, 0")
        A(f"v_mov_b32 {v(PB+2*zs+1)}, 0")
        nread = 2
        for c in range(9):
            els = []
            for half in range(2):
                slot = 2 * c + half
                if slot != zs:
                    els += [SC + 4 * (slot - par) + r for r in range(4)]
            for e in els:
                A(f"v_fma_f32 {v(e)}, {v(e)}, {v(KL)}, {v(NB)}")
            for e in els:
                A(f"v_exp_f32 {v(e)}, {v(e)}")
            while nread < min(18, 2 * c + 4):
                A(f"ds_read_b128 {v(FB+4*(nread%4),4)}, v5 offset:{1024*nread}")
                nread += 1
            A("s_nop 0")
            for half in range(2):
                slot = 2 * c + half
                if slot == zs:
                    continue
                i = slot - par
                A(f"v_cvt_pk_bf16_f32 {v(PB+2*slot)}, {v(SC+4*i)}, {v(SC+4*i+1)}")
                A(f"v_cvt_pk_bf16_f32 {v(PB+2*slot+1)}, {v(SC+4*i+2)}, {v(SC+4*i+3)}")
            A(f"s_waitcnt lgkmcnt({nread - (2*c+2)})")
            A("s_nop 0")
            for dt in range(2):
                A(f"v_mfma_f32_16x16x32_bf16 {v(OA+4*dt,4)}, {v(FB+4*((2*c+dt)%4),4)}, {v(PB+4*c,4)}, {v(OA+4*dt,4)}")
        if par == 0:
            A("s_branch k2_attn_out")
    A.label("k2_attn_out")
    A("s_nop 7")
    A(f"v_mov_b32 {v(TM)}, 0")
    A("s_mov_b32 exec_lo, 0")
    A("s_mov_b32 exec_hi, 0xffff0000")
    A(f"v_mov_b32 {v(TM)}, {v(OA+4)}")
    A("s_mov_b64 exec, -1")
    xlane_g(A, "v_add_f32", TM, TM + 1, TM + 2)
    A(f"v_rcp_f32 {v(TM)}, {v(TM)}")
    A("s_nop 0")
    for r in range(8):
        A(f"v_mul_f32 {v(OA+r)}, {v(TM)}, {v(OA+r)}")
    for r in range(4):
        A(f"v_cvt_pk_bf16_f32 {v(TM+4+r)}, {v(OA+2*r)}, {v(OA+2*r+1)}")
    A(f"buffer_store_dwordx2 {v(TM+4,2)}, v6, s[28:31], s26 offen")
    ex48(A)
    A(f"buffer_store_dwordx2 {v(TM+6,2)}, v6, s[28:31], s26 offen offset:512")
    stamp_end(A, 1)
    A("s_endpgm")
    A.label("k2_gemm")
    A.vm_restore([])
    A(f"s_cmp_ge_u32 s2, {NWG}")
    A(f"s_cbranch_scc1 {Lend}")
    A("s_setprio 2")
    A("s_sub_u32 s19, s19, 8")
    small_decode(A)
    A("s_lshl_b32 s32, s17, 2")
    A("s_add_u32 s32, s32, s19")
    A(f"s_mul_i32 s33, s32, {RT_BYTES}")
    A(f"s_add_u32 s34, s33, {WS_HS}")
    for j in range(1, 4):
        A(f"s_add_u32 s{34+j}, s34, {4096*j}")
    AF, WFB, AC, XR, TB = 32, 88, 120, 136, 16
    A("s_and_b32 s38, s19, 1")
    A("s_lshl_b32 s38, s38, 2")
    A("s_and_b32 s39, s19, 2")
    A("s_lshl_b32 s39, s39, 1")
    unit_dma_voff(A, 5, "s38", "s39", 896, 8, 9)
    A("s_lshl_b32 s38, s18, 7")
    A(f"s_mul_i32 s39, s19, {8*896}")
    A("s_add_u32 s38, s38, s39")
    A("s_lshl_b32 s39, s19, 10")
    A(f"s_add_u32 s39, s39, {L2_W}")
    A("s_lshl_b32 s40, s32, 4")
    A(f"v_add_u32 v8, s40, {v(VI)}")
    A("v_mul_u32_u24 v9, 896, v8")
    A(f"v_lshl_add_u32 v9, {v(VG)}, 4, v9")
    A(f"v_lshrrev_b32 v10, 1, {v(VG)}")
    A("v_lshlrev_b32 v10, 3, v10")
    A("v_xor_b32 v11, 8, v10")
    A("v_add_u32 v11, v11, v9")
    A("v_add_u32 v9, v10, v9")
    A("s_lshl_b32 s40, s18, 7")
    for r in range(16):
        A(f"v_mov_b32 {v(AC+r)}, 0")
    unit_bases(A, TB, "pair", 12, 13, 14)
    for t in range(4):
        A(f"v_add_u32 {v(TB+t)}, {L2_W}, {v(TB+t)}")
    A(f"v_mov_b32 v10, {L2_CNT}")
    A("v_mov_b32 v12, 0")
    A("ds_write_b32 v10, v12")
    A("s_waitcnt lgkmcnt(0)")
    A.srd(20, 4, 5, ACT_BYTES)
    A.srd(24, 6, 7, D * D * 2)
    A.srd(28, 12, 13, WS_SIZE)
    A("s_barrier")
    stamp(A, 1)
    for u in range(14):
        A("s_mov_b32 m0, s39")
        A("s_add_u32 s39, s39, 4096")
        A.vmem("buffer_load_dwordx4 v5, s[24:27], s38 offen lds", "w")
        A(f"s_add_u32 s38, s38, {32*896}")
    for sx in range(14):
        A.vmem(f"buffer_load_dwordx4 {v(AF+4*sx,4)}, v7, s[28:31], s{34+sx//4} offen offset:{1024*(sx%4)}", ("a", sx))
    for tp in range(2):
        A.vmem(f"buffer_load_dwordx2 {v(XR+4*tp,2)}, v9, s[20:23], s40 offen offset:{64*tp}", "x")
        A.vmem(f"buffer_load_dwordx2 {v(XR+4*tp+2,2)}, v11, s[20:23], s40 offen offset:{64*tp}", "x")
    A.vm_wait("w")
    A("v_mov_b32 v12, 1")
    A("s_mov_b64 exec, 1")
    A("ds_add_u32 v10, v12")
    A("s_mov_b64 exec, -1")
    A.label("k2_spin")
    A("ds_read_b32 v12, v10")
    A("s_waitcnt lgkmcnt(0)")
    A("v_readfirstlane_b32 s41, v12")
    A("s_cmp_lt_u32 s41, 4")
    A("s_cbranch_scc1 k2_spin")
    stamp(A, 2)
    for r in unit_reads(TB, 0, WFB):
        A(r)
    for sx in range(14):
        A.vm_wait(("a", sx), " lgkmcnt(0)")
        rd = unit_reads(TB, (sx + 1) * 4096, WFB + 16 * ((sx + 1) & 1)) if sx < 13 else []
        for t in range(4):
            A(f"v_mfma_f32_16x16x32_bf16 {v(AC+4*t,4)}, {v(WFB+16*(sx&1)+4*t,4)}, {v(AF+4*sx,4)}, {v(AC+4*t,4)}")
            for r in rd[4*t:4*t+4] if t < 2 else []:
                A(r)
    stamp(A, 3)
    A.vm_wait("x")
    XU = 32
    for j in range(8):
        A(f"v_lshlrev_b32 {v(XU+2*j)}, 16, {v(XR+j)}")
        A(f"v_and_b32 {v(XU+2*j+1)}, 0xffff0000, {v(XR+j)}")
    for r in range(16):
        rbf(A, AC + r)
    for r in range(16):
        A(f"v_add_f32 {v(AC+r)}, {v(AC+r)}, {v(XU+r)}")
    PK = 48
    for j in range(8):
        A(f"v_cvt_pk_bf16_f32 {v(PK+j)}, {v(AC+2*j)}, {v(AC+2*j+1)}")
    for r in range(16):
        rbf(A, AC + r)
    A("s_lshl_b32 s40, s18, 11")
    A("s_add_u32 s40, s40, s33")
    A(f"s_add_u32 s40, s40, {WS_X1}")
    A(f"buffer_store_dwordx4 {v(PK,4)}, v7, s[28:31], s40 offen")
    A(f"buffer_store_dwordx4 {v(PK+4,4)}, v7, s[28:31], s40 offen offset:1024")
    A(f"v_add_f32 v12, {v(AC)}, {v(AC+1)}")
    for r in range(2, 16):
        A(f"v_add_f32 v12, v12, {v(AC+r)}")
    xlane_g(A, "v_add_f32", 12, 14, 15)
    A(f"v_mul_f32 v14, {f32bits(1.0/64):#x}, v12")
    for r in range(16):
        A(f"v_sub_f32 {v(AC+r)}, {v(AC+r)}, v14")
    A(f"v_mul_f32 v13, {v(AC)}, {v(AC)}")
    for r in range(1, 16):
        A(f"v_fmac_f32 v13, {v(AC+r)}, {v(AC+r)}")
    xlane_g(A, "v_add_f32", 13, 14, 15)
    A("v_lshlrev_b32 v8, 6, v8")
    A("s_lshl_b32 s40, s18, 3")
    A(f"s_add_u32 s40, s40, {WS_ST}")
    A("s_mov_b64 exec, 0xffff")
    A("buffer_store_dwordx2 v[12:13], v8, s[28:31], s40 offen")
    stamp_end(A, 1)
    A.label(Lend)
    A("s_endpgm")
    return "k2_kernel", A.text(), 168, 168, 768, L2_CNT + 64, 256


RS4 = 6
RING = RS4 * 4096
L4_WO = 4 * RING
PF4 = 4


def gen_k4():
    A = Asm()
    Lend = "k4_end"
    A(f"s_cmp_ge_u32 s2, {NWG}")
    A(f"s_cbranch_scc1 {Lend}")
    stamp(A, 0)
    A("s_load_dwordx2 s[4:5], s[0:1], 16")
    A("s_load_dwordx2 s[6:7], s[0:1], 56")
    A("s_load_dwordx2 s[8:9], s[0:1], 72")
    A("s_load_dwordx2 s[12:13], s[0:1], 88")
    lane_setup(A)
    A("s_and_b32 s14, s2, 7")
    A("s_lshr_b32 s15, s2, 3")
    small_decode(A)
    A("s_and_b32 s46, s19, 3")
    A("s_lshr_b32 s47, s19, 2")
    NA = PF4 + 2
    AFB = 32
    WFB = AFB + NA * 8
    ACB = WFB + 32
    OFB = ACB + 32
    AWO = OFB + 28
    WOF = AWO + 16
    XR = WOF + 32
    GR = XR + 4
    NV = (GR + 8) // 8 * 8
    TB, TO = 20, 24
    af = lambda sx, j: AFB + ((sx % NA) * 2 + j) * 4
    ac = lambda j, t: v(ACB + (j * 4 + t) * 4, 4)
    A(f"v_lshlrev_b32 v8, 4, {v(VL)}")
    for m in range(1, 4):
        A(f"v_add_u32 v{8+m}, {4096*m}, v8")
    A("s_lshl_b32 s32, s47, 2")
    unit_dma_voff(A, 4, "0", "s32", 896, 12, 13)
    A("v_xor_b32 v5, 64, v4")
    unit_dma_voff(A, 6, "0", None, 896, 12, 13)
    A("v_xor_b32 v7, 64, v6")
    A("s_lshl_b32 s32, s17, 2")
    A("s_lshl_b32 s33, s47, 1")
    A("s_add_u32 s32, s32, s33")
    A(f"s_mul_i32 s32, s32, {H3_RT_BYTES}")
    A(f"s_mul_i32 s33, s46, {14*1024}")
    A("s_add_u32 s32, s32, s33")
    A(f"s_add_u32 s32, s32, {WS_H3}")
    A(f"s_add_u32 s33, s32, {H3_RT_BYTES}")
    A("s_lshl_b32 s38, s18, 7")
    A(f"s_mul_i32 s36, s46, {448*896}")
    A(f"s_mul_i32 s34, s47, {16*896}")
    A("s_add_u32 s36, s36, s34")
    A("s_add_u32 s36, s36, s38")
    A(f"s_mul_i32 s35, s46, {RING}")
    A("s_lshl_b32 s37, s47, 11")
    A("s_add_u32 s37, s37, s35")
    A(f"s_mul_i32 s39, s19, {7*8*896}")
    A("s_add_u32 s38, s38, s39")
    A("s_mul_i32 s39, s19, 7168")
    A(f"s_add_u32 s39, s39, {L4_WO}")
    l = A.newlabel("k4p")
    A("s_bitcmp1_b32 s19, 0")
    A(f"s_cbranch_scc0 {l}")
    A("v_swap_b32 v6, v7")
    A.label(l)
    A("s_lshl_b32 s40, s17, 2")
    A("s_add_u32 s40, s40, s46")
    A(f"s_mul_i32 s41, s40, {RT_BYTES}")
    A(f"s_mul_i32 s42, s47, {7*1024}")
    A("s_add_u32 s42, s42, s41")
    A(f"s_add_u32 s42, s42, {WS_O}")
    A("s_lshl_b32 s43, s18, 11")
    A("s_add_u32 s43, s43, s41")
    A("s_lshl_b32 s44, s47, 10")
    A("s_add_u32 s43, s43, s44")
    A(f"s_add_u32 s43, s43, {WS_X1}")
    A("s_lshl_b32 s44, s40, 4")
    A(f"v_add_u32 v14, s44, {v(VI)}")
    A("v_lshlrev_b32 v15, 2, v14")
    A(f"s_mov_b32 s45, {WS_G}")
    unit_bases(A, TB, "pair", 12, 13, 16)
    A(f"s_mul_i32 s44, s47, {7*4096}")
    A(f"s_add_u32 s44, s44, {L4_WO}")
    for t in range(4):
        A(f"v_add_u32 {v(TO+t)}, s44, {v(TB+t)}")
        A(f"v_add_u32 {v(TB+t)}, s35, {v(TB+t)}")
    A("s_waitcnt lgkmcnt(0)")
    A.srd(20, 4, 5, D * D * 2)
    A.srd(24, 6, 7, F * D * 2)
    A.srd(28, 12, 13, WS_SIZE)
    A.srd(48, 8, 9, ACT_BYTES)

    def issue_parts(sx):
        parts = []
        for j in range(2):
            def p(j=j):
                A(f"s_add_u32 m0, s37, {(sx%RS4)*4096 + j*1024}")
                A("s_nop 0")
                A.vmem(f"buffer_load_dwordx4 v{4+j}, s[24:27], s36 offen lds", ("ld", sx))
                A(f"s_add_u32 s36, s36, {8*896 if j == 0 else 24*896}")
            parts.append(p)
        for j in range(2):
            parts.append(lambda j=j: A.vmem(f"buffer_load_dwordx4 {v(af(sx,j),4)}, v{8+sx//4}, s[28:31], s{32+j} offen offset:{1024*(sx%4)}", ("ld", sx)))
        return parts

    extra = [("wo", u) for u in range(7)] + [("of", u) for u in range(7)] + [("x1", 0), ("g", 0)]

    def issue_extra():
        if not extra:
            return
        kind, u = extra.pop(0)
        if kind == "wo":
            A("s_mov_b32 m0, s39")
            A("s_add_u32 s39, s39, 1024")
            A.vmem(f"buffer_load_dwordx4 v{6+(u&1)}, s[20:23], s38 offen lds", "wo")
            A(f"s_add_u32 s38, s38, {8*896}")
        elif kind == "of":
            A.vmem(f"buffer_load_dwordx4 {v(OFB+4*u,4)}, v{8+u//4}, s[28:31], s42 offen offset:{1024*(u%4)}", "of")
        elif kind == "x1":
            A.vmem(f"buffer_load_dwordx4 {v(XR,4)}, v8, s[28:31], s43 offen", "ep")
        else:
            A.vmem(f"buffer_load_dword {v(GR)}, v15, s[28:31], s45 offen", "ep")

    nxt = [0]

    def take(n, limit):
        out = []
        while n > 0 and nxt[0] < 14 and nxt[0] <= limit:
            out += issue_parts(nxt[0])
            nxt[0] += 1
            n -= 1
        return out

    for p in take(2, 1):
        p()
    stamp(A, 1)
    for r in range(ACB, ACB + 32):
        A(f"v_mov_b32 {v(r)}, 0")
    for r in range(AWO, AWO + 16):
        A(f"v_mov_b32 {v(r)}, 0")
    A.vm_wait(("ld", 0))
    A("s_barrier")
    stamp(A, 2)
    for r in unit_reads(TB, 0, WFB):
        A(r)
    WO0 = 7
    WOK = 14 - WO0
    for sx in range(14):
        rd = []
        if sx < 13:
            tags = [("ld", sx + 1)] + (["of"] if sx + 1 == WO0 else [])
            A.vm_wait(tags, " lgkmcnt(0)")
            A("s_barrier")
            rd = unit_reads(TB, ((sx + 1) % RS4) * 4096, WFB + 16 * ((sx + 1) & 1))
            if sx + 1 >= WO0:
                rd += unit_reads(TO, (sx + 1 - WO0) * 4096, WOF + 16 * ((sx + 1) & 1))
        else:
            A("s_waitcnt lgkmcnt(0)")
        parts = take(2, sx + 1 + PF4)
        parts += [issue_extra] * (4 if len(parts) <= 4 else 1)
        mf = [f"v_mfma_f32_16x16x32_bf16 {ac(j,t)}, {v(WFB+16*(sx&1)+4*t,4)}, {v(af(sx,j),4)}, {ac(j,t)}" for t in range(4) for j in range(2)]
        if sx >= WO0:
            assert not [e for e in extra if e[0] in ("wo", "of")]
            mf += [f"v_mfma_f32_16x16x32_bf16 {v(AWO+4*t,4)}, {v(WOF+16*(sx&1)+4*t,4)}, {v(OFB+4*(sx-WO0),4)}, {v(AWO+4*t,4)}" for t in range(4)]
        for i, m in enumerate(mf):
            A(m)
            for _ in range(2):
                if rd:
                    A(rd.pop(0))
            for _ in range(-(-len(parts) // (len(mf) - i))):
                parts.pop(0)()
        assert not rd and not parts
    assert not extra
    stamp(A, 3)
    A("s_lshl_b32 s52, s46, 14")
    A("s_lshl_b32 s53, s47, 13")
    A("s_add_u32 s52, s52, s53")
    A("v_add_u32 v12, s52, v8")
    A("s_lshl_b32 s52, s47, 14")
    A("s_lshl_b32 s53, s46, 12")
    A("s_add_u32 s52, s52, s53")
    A("s_add_u32 s52, s52, 65536")
    A("v_add_u32 v13, s52, v8")
    A("s_barrier")
    for j in range(2):
        for t in range(4):
            A(f"ds_write_b128 v12, {ac(j,t)} offset:{(j*4+t)*1024}")
    for t in range(4):
        A(f"ds_write_b128 v13, {v(AWO+4*t,4)} offset:{t*1024}")
    A("s_lshl_b32 s52, s46, 12")
    A("s_lshl_b32 s53, s47, 11")
    A("s_add_u32 s52, s52, s53")
    A("v_add_u32 v12, s52, v8")
    A("v_add_u32 v13, 65536, v12")
    XU = OFB
    A.vm_wait("ep")
    for j in range(4):
        A(f"v_lshlrev_b32 {v(XU+2*j)}, 16, {v(XR+j)}")
        A(f"v_and_b32 {v(XU+2*j+1)}, 0xffff0000, {v(XR+j)}")
    A(f"v_sub_f32 v19, 1.0, {v(GR)}")
    rbf(A, 19)
    A("v_mul_u32_u24 v14, 896, v14")
    A(f"v_lshl_add_u32 v14, {v(VG)}, 4, v14")
    A(f"v_lshrrev_b32 v16, 1, {v(VG)}")
    A("v_lshlrev_b32 v16, 3, v16")
    A("v_xor_b32 v15, 8, v16")
    A("v_add_u32 v15, v15, v14")
    A("v_add_u32 v14, v16, v14")
    A("s_lshl_b32 s52, s18, 7")
    A("s_lshl_b32 s53, s47, 6")
    A("s_add_u32 s52, s52, s53")
    A("s_waitcnt lgkmcnt(0)")
    A("s_barrier")
    RB = 32
    for q in range(4):
        for t in range(2):
            A(f"ds_read_b128 {v(RB+8*q+4*t,4)}, v12 offset:{16384*q + 1024*t}")
    for q in range(2):
        for t in range(2):
            A(f"ds_read_b128 {v(RB+32+8*q+4*t,4)}, v13 offset:{16384*q + 1024*t}")
    A("s_waitcnt lgkmcnt(4)")
    for r in range(8):
        A(f"v_add_f32 {v(RB+r)}, {v(RB+r)}, {v(RB+8+r)}")
        A(f"v_add_f32 {v(RB+16+r)}, {v(RB+16+r)}, {v(RB+24+r)}")
    for r in range(8):
        A(f"v_add_f32 {v(RB+r)}, {v(RB+r)}, {v(RB+16+r)}")
    for r in range(8):
        rbf(A, RB + r)
    for r in range(8):
        A(f"v_add_f32 {v(RB+r)}, {v(RB+r)}, {v(XU+r)}")
    for r in range(8):
        rbf(A, RB + r)
    A("s_waitcnt lgkmcnt(0)")
    AU = RB + 32
    for r in range(8):
        A(f"v_add_f32 {v(AU+r)}, {v(AU+r)}, {v(AU+8+r)}")
        A(f"v_mul_f32 {v(RB+r)}, v19, {v(RB+r)}")
    for r in range(8):
        rbf(A, AU + r)
        rbf(A, RB + r)
    for r in range(8):
        A(f"v_mul_f32 {v(AU+r)}, {v(GR)}, {v(AU+r)}")
    for r in range(8):
        rbf(A, AU + r)
    for r in range(8):
        A(f"v_add_f32 {v(RB+r)}, {v(RB+r)}, {v(AU+r)}")
    for j in range(4):
        A(f"v_cvt_pk_bf16_f32 {v(XU+j)}, {v(RB+2*j)}, {v(RB+2*j+1)}")
    A(f"buffer_store_dwordx2 {v(XU,2)}, v14, s[48:51], s52 offen")
    A(f"buffer_store_dwordx2 {v(XU+2,2)}, v15, s[48:51], s52 offen")
    stamp_end(A, 3)
    A.label(Lend)
    A("s_endpgm")
    return "k4_kernel", A.text(), NV, NV, 512, L4_WO + 14 * 4096, NWG


KERNELS = [gen_k1, gen_k2, gen_k3, gen_k4]


def build(kernels):
    hdr = open("gated_mix__sliding_block__mixer_s_mlp__prompt.s.ref").read().split("; Override launch")[0]
    out = hdr
    gens = [g() for g in kernels]
    kl = os.environ.get("KLIST")
    order = [int(c) - 1 for c in kl.split(",")] if kl else range(len(gens))
    for i in order:
        name, txt, vg, acc_off, block, lds, grid = gens[i]
        out += f"; @launch kernel={name} grid=({grid},1,1) block=({block},1,1) lds={lds}\n"
    out += '.amdgcn_target "amdgcn-amd-amdhsa--gfx950"\n.text\n'
    for g in gens:
        out += kernel_head(g[0]) + g[1]
    out += '.section .rodata,"a"\n'
    for g in gens:
        out += kernel_desc(g[0], g[2], g[3])
    return out


if __name__ == "__main__":
    dst = sys.argv[1] if len(sys.argv) > 1 else "gated_mix__sliding_block__mixer_s_mlp__prompt.s"
    open(dst, "w").write(build(KERNELS))
    print("wrote", dst)
```

```python
import os
import sys
from asmlib import Asm, v, a, s, f32bits, kernel_desc, kernel_head
import gen2
import gen3
from gen2 import (lane_setup, xlane_g, rbf, ln_finish, gelu_consts, ex48, ex56, exall,
                  S, D, F, MB, WS_Q, WS_K, WS_V, WS_HS, WS_X1, WS_O, WS_H3, WS_G, WS_ST, WS_SIZE, WS_DBG, ACT_BYTES, RT_BYTES,
                  H3_RT_BYTES, LOG2E, SCALE, NEGBIG, STAMPS, VL, VI, VG)
from gen3 import (unit_bases, unit_dma_voff, unit_reads, big_mainloop, big_dma_parts, big_decode, big_bases_finish, big_zero,
                  cs_write, gelu_epilogue, small_decode, SLOT, L_EX, V_XD, V_XD2, V_WD, V_XR, V_TB, ACC, ASTAT, NWG)

KNAME = "gated_mix__sliding_block__mixer_s_mlp__prompt_kernel"
WS_FLAG = 26 * MB
TOK = 84
X1K = 248
SC = " sc1"
SL = os.environ.get("SL", " sc1")
gen3.stamp = lambda A, i: None
NST = [0]


def stamp(A):
    if not STAMPS:
        return
    i = NST[0]
    NST[0] += 1
    A("s_memrealtime s[86:87]")
    A("s_lshl_b32 s88, s2, 11")
    A("s_lshl_b32 s89, s19, 7")
    A("s_add_u32 s88, s88, s89")
    A(f"s_add_u32 s88, s88, {WS_DBG + 4*i}")
    A("s_mov_b64 s[90:91], exec")
    A("s_mov_b64 exec, 1")
    A("v_mov_b32 v252, 0")
    A("s_waitcnt lgkmcnt(0)")
    A("v_mov_b32 v253, s86")
    A.vmem("buffer_store_dword v253, v252, s[28:31], s88 offen", "stamp")
    A("s_mov_b64 exec, s[90:91]")


def publish(A, kind):
    l = A.newlabel("pub")
    A("s_waitcnt vmcnt(0)")
    A.vm_restore([])
    A("s_barrier")
    A("s_cmp_lg_u32 s19, 0")
    A(f"s_cbranch_scc1 {l}")
    A("s_lshl_b32 s85, s2, 7")
    A(f"s_add_u32 s85, s85, {WS_FLAG + kind*32768}")
    A("v_mov_b32 v252, 0")
    A(f"v_mov_b32 v253, s{TOK}")
    A("s_mov_b64 exec, 1")
    A(f"buffer_store_dword v253, v252, s[28:31], s85 offen{SC}")
    A("s_mov_b64 exec, -1")
    A.label(l)


def flag_store(A, kind):
    l = A.newlabel("pub")
    A("s_cmp_lg_u32 s19, 0")
    A(f"s_cbranch_scc1 {l}")
    A("s_lshl_b32 s85, s2, 7")
    A(f"s_add_u32 s85, s85, {WS_FLAG + kind*32768}")
    A("v_mov_b32 v252, 0")
    A(f"v_mov_b32 v253, s{TOK}")
    A("s_mov_b64 exec, 1")
    A(f"buffer_store_dword v253, v252, s[28:31], s85 offen{SC}")
    A("s_mov_b64 exec, -1")
    A.label(l)


def poll(A, addr_fn, extra_wait=""):
    l, lp = A.newlabel("pol"), A.newlabel("pol")
    A("s_cmp_lg_u32 s19, 0")
    A(f"s_cbranch_scc1 {l}")
    addr_fn()
    A(f"s_mov_b32 s85, {WS_FLAG}")
    A("s_mov_b32 s93, 0")
    A.label(lp)
    A(f"buffer_load_dword v253, v252, s[28:31], s85 offen{SC}")
    A("s_add_u32 s93, s93, 1")
    A("s_waitcnt vmcnt(0)")
    A(f"v_cmp_ne_u32 vcc, s{TOK}, v253")
    A("s_cmp_lt_u32 s93, 0x200000")
    A("s_cselect_b64 s[94:95], vcc, 0")
    A("s_cmp_lg_u64 s[94:95], 0")
    A(f"s_cbranch_scc1 {lp}")
    A("s_mov_b64 exec, -1")
    A.label(l)
    if extra_wait:
        A(extra_wait)
    A("s_barrier")


def big_id(A, dst, rt, ct, t0):
    A(f"v_lshrrev_b32 {v(dst)}, 2, {v(rt)}")
    A(f"v_lshlrev_b32 {v(dst)}, 1, {v(dst)}")
    A(f"v_cmp_lt_u32 vcc, 6, {v(ct)}")
    A("s_nop 1")
    A(f"v_addc_co_u32 {v(dst)}, vcc, 0, {v(dst)}, vcc")
    A(f"v_cmp_lt_u32 vcc, 6, {v(ct)}")
    A(f"v_and_b32 {v(t0)}, 3, {v(rt)}")
    A(f"v_mul_u32_u24 {v(t0)}, 7, {v(t0)}")
    A(f"v_add_u32 {v(t0)}, {v(t0)}, {v(ct)}")
    A(f"v_subrev_u32 {v(rt)}, 7, {v(t0)}")
    A(f"v_cndmask_b32 {v(t0)}, {v(t0)}, {v(rt)}, vcc")
    A(f"v_lshl_add_u32 {v(dst)}, {v(t0)}, 3, {v(dst)}")
    A(f"v_lshlrev_b32 {v(dst)}, 7, {v(dst)}")


def gen():
    A = Asm()
    Lend = "k_end"
    A("s_cmp_ge_u32 s2, 256")
    A(f"s_cbranch_scc1 {Lend}")
    A("s_load_dwordx4 s[4:7], s[0:1], 0")
    A("s_load_dwordx2 s[8:9], s[0:1], 32")
    A("s_load_dwordx2 s[10:11], s[0:1], 64")
    A("s_load_dwordx4 s[56:59], s[0:1], 80")
    A("s_memrealtime s[86:87]")
    lane_setup(A)
    A(f"s_cmp_ge_u32 s2, {NWG}")
    A("s_cbranch_scc1 p1_idle")
    big_decode(A)
    A("s_sub_u32 s46, s33, 21")
    A("s_movk_i32 s32, 896")
    A("s_cmp_lt_u32 s33, 21")
    A("s_cselect_b32 s32, 2688, s32")
    A("s_cselect_b32 s34, s33, s46")
    A("s_lshl_b32 s34, s34, 7")
    A("s_lshl_b32 s35, s40, 3")
    A("s_mul_i32 s35, s35, s32")
    A("s_add_u32 s34, s34, s35")
    A("s_lshl_b32 s38, s32, 5")
    unit_dma_voff(A, V_WD, "s43", None, "s32", 24, 25)
    A(f"v_lshrrev_b32 v24, 3, {v(VL)}")
    A("v_lshrrev_b32 v25, 1, v24")
    A(f"v_xor_b32 v25, v25, {v(VL)}")
    A("v_and_b32 v25, 7, v25")
    A(f"v_mul_u32_u24 {v(V_XD)}, 896, v24")
    A(f"v_lshl_add_u32 {v(V_XD)}, v25, 4, {v(V_XD)}")
    A(f"v_xor_b32 {v(V_XD2)}, 64, {v(V_XD)}")
    A(f"v_add_u32 {v(V_XD2)}, {8*896-1024}, {v(V_XD2)}")
    A("s_lshl_b32 s35, s17, 3")
    A("s_add_u32 s35, s35, s19")
    A(f"s_mul_i32 s35, s35, {RT_BYTES}")
    A("s_lshl_b32 s47, s2, 3")
    A("s_add_u32 s47, s47, s19")
    A("s_mul_i32 s44, s47, 896")
    A(f"s_add_u32 s45, s44, {1792*896}")
    A(f"v_lshlrev_b32 v28, 4, {v(VL)}")
    for r in range(188, 200):
        A(f"v_mov_b32 v{r}, 0")
    A("s_waitcnt lgkmcnt(0)")
    A.srd(20, 4, 5, ACT_BYTES)
    A(f"s_mov_b32 s26, {D*D*2}")
    A("s_cmp_lt_u32 s33, 21")
    A("s_cselect_b32 s24, s6, s8")
    A("s_cselect_b32 s25, s7, s9")
    A(f"s_cselect_b32 s26, {D*3*D*2}, s26")
    A("s_and_b32 s25, s25, 0xffff")
    A("s_mov_b32 s27, 0x00020000")
    A.srd(28, 58, 59, WS_SIZE)
    A.srd(48, 10, 11, D * 2)
    for ds in range(2):
        for p in big_dma_parts(A, ds, 128, V_XD2):
            p()
    ex56(A)
    A.vmem("buffer_load_dwordx4 v[188:191], v28, s[20:23], s44 offen", "gate")
    A.vmem("buffer_load_dwordx4 v[192:195], v28, s[20:23], s45 offen", "gate")
    A.vmem("buffer_load_dwordx4 v[196:199], v28, s[48:51], 0 offen", "gate")
    exall(A)
    lt = A.newlabel("tok")
    A("s_or_b32 s85, s2, s19")
    A("s_cmp_lg_u32 s85, 0")
    A(f"s_cbranch_scc1 {lt}")
    A("s_or_b32 s86, s86, 1")
    A("v_mov_b32 v252, 0")
    A("v_mov_b32 v253, s86")
    A("s_mov_b64 exec, 1")
    A(f"global_store_dword v252, v253, s[56:57]{SC}")
    A("s_mov_b64 exec, -1")
    A.label(lt)
    stamp(A)
    A(f"v_lshrrev_b32 v24, 1, {v(VI)}")
    A(f"v_xor_b32 v24, v24, {v(VG)}")
    A("v_lshlrev_b32 v24, 4, v24")
    A(f"v_lshl_add_u32 v24, {v(VI)}, 7, v24")
    A("s_lshl_b32 s42, s40, 12")
    A(f"v_add_u32 {v(V_XR[0])}, s42, v24")
    A(f"v_xor_b32 {v(V_XR[2])}, 64, {v(V_XR[0])}")
    A(f"v_add_u32 {v(V_XR[1])}, {2*SLOT}, {v(V_XR[0])}")
    A(f"v_add_u32 {v(V_XR[3])}, {2*SLOT}, {v(V_XR[2])}")
    A("s_sub_u32 s42, s33, 14")
    A("s_cmp_lt_u32 s42, 7")
    A("s_cbranch_scc1 p1_natb")
    unit_bases(A, V_TB[0], "pair", 24, 25, 26)
    A("s_branch p1_basesdone")
    A.label("p1_natb")
    unit_bases(A, V_TB[0], "nat", 24, 25, 26)
    A.label("p1_basesdone")
    big_bases_finish(A)
    A("s_lshl_b32 s39, s17, 7")
    A("s_lshl_b32 s42, s40, 5")
    A("s_add_u32 s39, s39, s42")
    big_zero(A)
    A.vm_wait("gate")
    T, U = 140, 148
    for j in range(4):
        A(f"v_lshlrev_b32 {v(T+2*j)}, 16, {v(196+j)}")
        A(f"v_and_b32 {v(T+2*j+1)}, 0xffff0000, {v(196+j)}")
    for rr in range(2):
        for j in range(4):
            A(f"v_lshlrev_b32 {v(U+2*j)}, 16, {v(188+4*rr+j)}")
            A(f"v_and_b32 {v(U+2*j+1)}, 0xffff0000, {v(188+4*rr+j)}")
        for j in range(4):
            A(f"v_pk_mul_f32 {v(U+2*j,2)}, {v(U+2*j,2)}, {v(T+2*j,2)}")
        for j in range(8):
            rbf(A, U + j)
        z = 160
        A(f"v_add_f32 {v(z)}, {v(U)}, {v(U+1)}")
        for j in range(2, 8):
            A(f"v_add_f32 {v(z)}, {v(z)}, {v(U+j)}")
        for ror in (8, 4, 2, 1):
            A("s_nop 1")
            A(f"v_add_f32_dpp {v(z)}, {v(z)}, {v(z)} row_ror:{ror} row_mask:0xf bank_mask:0xf")
        xlane_g(A, "v_add_f32", z, U, U + 1)
        rbf(A, z)
        A(f"v_mul_f32 {v(z)}, {f32bits(-LOG2E):#x}, {v(z)}")
        A(f"v_exp_f32 {v(z)}, {v(z)}")
        A("s_nop 0")
        A(f"v_add_f32 {v(z)}, 1.0, {v(z)}")
        A(f"v_rcp_f32 {v(z)}, {v(z)}")
        A("s_nop 0")
        rbf(A, z)
        A("s_lshl_b32 s44, s47, 2")
        A(f"s_add_u32 s44, s44, {WS_G + 1792*4*rr}")
        A(f"v_mov_b32 {v(U)}, 0")
        A("s_mov_b64 exec, 1")
        A(f"buffer_store_dword {v(z)}, {v(U)}, s[28:31], s44 offen{SC}")
        A("s_mov_b64 exec, -1")
        if rr == 0:
            A.vm.append("gst")
            A("s_cmp_ge_u32 s2, 32")
            A("s_cbranch_scc1 p1_gdone")
    A.label("p1_gdone")
    snap = A.vm_snapshot()
    PK = 32
    A("s_cmp_ge_u32 s33, 21")
    A("s_cbranch_scc1 p1_w1")
    A("s_cmp_ge_u32 s33, 14")
    A("s_cbranch_scc1 p1_v")
    big_mainloop(A, False, 128, V_XD2, True)
    A("s_barrier")
    A("s_cmp_ge_u32 s33, 7")
    A("s_cselect_b32 s43, 7, 0")
    A(f"s_cselect_b32 s42, {WS_K}, 0")
    A("s_sub_u32 s46, s33, s43")
    A("s_lshl_b32 s46, s46, 11")
    A("s_add_u32 s42, s42, s46")
    A("s_mul_i32 s43, s39, 896")
    A("s_add_u32 s42, s42, s43")
    A(f"s_add_u32 s43, s42, {RT_BYTES}")
    for j in range(2):
        for q in range(8):
            A(f"v_cvt_pk_bf16_f32 {v(PK+8*j+q)}, {v(ACC+16*j+2*q)}, {v(ACC+16*j+2*q+1)}")
        for tp in range(2):
            A(f"buffer_store_dwordx4 {v(PK+8*j+4*tp,4)}, v28, s[28:31], s{42+j} offen offset:{1024*tp}{SC}")
    A("s_branch p1_done")
    A.label("p1_v")
    A("s_cmp_eq_u32 s33, 20")
    A("s_cbranch_scc1 p1_vs")
    for st in (None, "sum"):
        if st:
            A.label("p1_vs")
        A.vm_restore(snap)
        big_mainloop(A, True, 128, V_XD2, True, stat=st)
        if st:
            A(f"v_lshlrev_b32 v24, 3, {v(VI)}")
            A("s_lshl_b32 s43, s40, 8")
            A(f"s_add_u32 s43, s43, {L_EX+512}")
            A("v_add_u32 v24, s43, v24")
            A("s_nop 7")
            A("s_mov_b64 exec, 0xffff")
            for j in range(2):
                A(f"ds_write_b32 v24, {v(ASTAT+4*j)} offset:{128*j}")
            A("s_mov_b64 exec, -1")
            A("s_waitcnt lgkmcnt(0)")
        A("s_barrier")
        if not st:
            A("s_branch p1_vepi")
    A.label("p1_vepi")
    A("s_sub_u32 s46, s33, 14")
    A("s_lshl_b32 s43, s39, 6")
    A(f"s_add_u32 s42, s43, {WS_V}")
    A("s_lshl_b32 s43, s46, 6")
    for t in range(4):
        o = 4 + t
        A(f"v_add_u32 v24, s43, {v(VI)}")
        A(f"v_add_u32 v24, {16*t}, v24")
        A("v_mul_u32_u24 v25, 2341, v24")
        A("v_lshrrev_b32 v25, 16, v25")
        A("v_mul_u32_u24 v26, 28, v25")
        A("v_sub_u32 v26, v24, v26")
        A(f"v_lshlrev_b32 {v(o)}, 17, v25")
        A("v_lshrrev_b32 v27, 4, v26")
        A(f"v_lshl_add_u32 {v(o)}, v27, 10, {v(o)}")
        A("v_and_b32 v27, 15, v26")
        A(f"v_lshl_add_u32 {v(o)}, v27, 4, {v(o)}")
        A(f"v_lshl_add_u32 {v(o)}, {v(VG)}, 8, {v(o)}")
    for t in range(4):
        pk = PK + 4 * t
        for j in range(2):
            src = ACC + 16 * j + 4 * t
            A(f"v_cvt_pk_bf16_f32 {v(pk+2*j)}, {v(src)}, {v(src+1)}")
            A(f"v_cvt_pk_bf16_f32 {v(pk+2*j+1)}, {v(src+2)}, {v(src+3)}")
        A(f"buffer_store_dwordx4 {v(pk,4)}, {v(4+t)}, s[28:31], s42 offen{SC}")
    A("s_lshl_b32 s44, s46, 4")
    A("s_mul_i32 s45, s44, 9363")
    A("s_lshr_b32 s45, s45, 16")
    A(f"v_add_u32 v24, s45, {v(VG)}")
    A("v_mul_u32_u24 v25, 7, v24")
    A("v_add_u32 v25, 6, v25")
    A("s_add_u32 s44, s44, 16")
    A("v_lshlrev_b32 v24, 17, v24")
    A(f"v_lshrrev_b32 v26, 2, {v(VI)}")
    A("v_lshl_add_u32 v24, v26, 4, v24")
    A(f"v_and_b32 v27, 3, {v(VI)}")
    A("v_lshl_add_u32 v24, v27, 8, v24")
    A("v_cmp_eq_u32 vcc, 0, v26")
    A("v_mov_b32 v27, 0x3f803f80")
    A("s_nop 0")
    A("v_cndmask_b32 v48, 0, v27, vcc")
    for r in range(1, 4):
        A(f"v_mov_b32 v{48+r}, v48")
    A("v_cmp_gt_u32 vcc, s44, v25")
    A("s_and_saveexec_b64 s[44:45], vcc")
    A(f"buffer_store_dwordx4 v[48:51], v24, s[28:31], s42 offen offset:{1024+12*16}{SC}")
    A("s_mov_b64 exec, -1")
    A("s_branch p1_done")
    A.label("p1_w1")
    A("s_cmp_eq_u32 s41, 1")
    A("s_cbranch_scc1 p1_w11")
    MR, RS, CS = [140, 142], [144, 146], 48
    for ch in range(2):
        if ch:
            A.label("p1_w11")
        A.vm_restore(snap)
        big_mainloop(A, False, 128, V_XD2, True, stat=("sum", "sq")[ch], cs=True)
        A(f"v_lshlrev_b32 v24, 3, {v(VI)}")
        A("s_lshl_b32 s43, s40, 8")
        A(f"s_add_u32 s43, s43, {L_EX+512}")
        A("v_add_u32 v24, s43, v24")
        A("s_nop 3")
        cs_write(A, 25)
        if ch == 0:
            A("s_mov_b64 exec, 0xffff")
            for j in range(2):
                A(f"ds_write_b32 v24, {v(ASTAT+4*j)} offset:{128*j}")
            A("s_mov_b64 exec, -1")
            A("s_branch p1_w1x")
        else:
            A(f"v_lshrrev_b32 v27, 2, {v(VI)}")
            A(f"v_and_b32 v28, 3, {v(VI)}")
            for r in range(4):
                A(f"v_cmp_eq_u32 s[44:45], v27, {v(VG)}")
                A(f"v_cmp_eq_u32 vcc, {r}, v28")
                A("s_and_b64 exec, vcc, s[44:45]")
                for j in range(2):
                    A(f"ds_write_b32 v24, {v(ASTAT+4*j+r)} offset:{128*j+4}")
                A("s_mov_b64 exec, -1")
    A.label("p1_w1x")
    A("s_waitcnt lgkmcnt(0)")
    A("s_barrier")
    for k in range(4):
        A(f"ds_read_b128 {v(CS+4*k,4)}, v25 offset:{64*k}")
    for j in range(2):
        A(f"ds_read_b64 {v(28+2*j,2)}, v24 offset:{128*j}")
    consts = gelu_consts(A, 148)
    A.srd_off(52, 58, 59, WS_HS, ACT_BYTES)
    A("s_lshl_b32 s43, s46, 3")
    for tp in range(2):
        A(f"v_add_u32 v24, s43, {v(VG)}")
        if tp:
            A("v_add_u32 v24, 4, v24")
        A("v_mul_u32_u24 v25, 4682, v24")
        A("v_lshrrev_b32 v25, 16, v25")
        A("v_lshrrev_b32 v26, 1, v25")
        A("v_add_u32 v26, 1, v26")
        A("v_and_b32 v25, 1, v25")
        A("v_sub_u32 v27, 0, v25")
        A("v_xor_b32 v26, v26, v27")
        A("v_add_u32 v26, v26, v25")
        A(f"v_add_u32 v26, v26, {v(VI)}")
        A("v_add_u32 v26, s39, v26")
        for j in range(2):
            o = 4 + 2 * j + tp
            if j:
                A("v_add_u32 v26, 16, v26")
            A("v_lshrrev_b32 v25, 4, v26")
            A("v_mul_u32_u24 v25, 14336, v25")
            A("v_and_b32 v27, 15, v26")
            A("v_lshl_add_u32 v25, v27, 4, v25")
            A("v_lshl_add_u32 v25, v24, 8, v25")
            A("v_cmp_gt_u32 vcc, 2048, v26")
            A("v_mov_b32 v27, 0x80000000")
            A("s_nop 0")
            A(f"v_cndmask_b32 {v(o)}, v27, v25, vcc")
    A("s_waitcnt lgkmcnt(0)")
    for j in range(2):
        m, q = MR[j], RS[j]
        A(f"v_mul_f32 {v(m)}, {f32bits(1.0/448):#x}, {v(28+2*j)}")
        A(f"v_mul_f32 {v(q)}, {f32bits(1.0/448):#x}, {v(29+2*j)}")
        A(f"v_fma_f32 {v(q)}, -{v(m)}, {v(m)}, {v(q)}")
        A(f"v_max_f32 {v(q)}, 0, {v(q)}")
        ln_finish(A, m, q)
        A(f"v_mov_b32 {v(m+1)}, {v(m)}")
        A(f"v_mov_b32 {v(q+1)}, {v(q)}")

    def st1(j, pk):
        for tp in range(2):
            A(f"buffer_store_dwordx4 {v(pk+4*tp,4)}, {v(4+2*j+tp)}, s[52:55], 0 offen{SC}")

    gelu_epilogue(A, CS, MR, RS, consts, 156, 32, st1)
    A("s_cmp_lg_u32 s40, 0")
    A("s_cbranch_scc1 p1_done")
    A("s_cmp_eq_u32 s17, 0")
    A("s_cselect_b32 s44, 0, 1")
    A("s_cbranch_scc1 p1_z")
    A("s_cmp_lg_u32 s17, 15")
    A("s_cbranch_scc1 p1_done")
    A.label("p1_z")
    A(f"v_and_b32 v24, 7, {v(VL)}")
    A("v_add_u32 v24, s43, v24")
    A("v_mul_u32_u24 v25, 4682, v24")
    A("v_lshrrev_b32 v25, 16, v25")
    A(f"v_lshrrev_b32 v26, 3, {v(VL)}")
    A("v_lshrrev_b32 v27, 1, v25")
    A("v_cmp_le_u32 s[46:47], v26, v27")
    A("v_and_b32 v25, 1, v25")
    A("v_cmp_eq_u32 vcc, s44, v25")
    A("s_and_b64 s[46:47], s[46:47], vcc")
    A("v_sub_u32 v27, 15, v26")
    A("s_cmp_eq_u32 s44, 0")
    A(f"s_cselect_b32 s45, 0, {127*14336}")
    A("s_cbranch_scc1 p1_z2")
    A("v_mov_b32 v26, v27")
    A.label("p1_z2")
    A("v_lshlrev_b32 v26, 4, v26")
    A("v_lshl_add_u32 v26, v24, 8, v26")
    for r in range(4):
        A(f"v_mov_b32 {v(28+r)}, 0")
    A("s_mov_b64 exec, s[46:47]")
    A(f"buffer_store_dwordx4 v[28:31], v26, s[52:55], s45 offen{SC}")
    A("s_mov_b64 exec, -1")
    A("s_branch p1_done")
    A.label("p1_idle")
    A("s_waitcnt lgkmcnt(0)")
    A.srd(28, 58, 59, WS_SIZE)
    if STAMPS:
        NST[0] -= 1
        stamp(A)
    A.label("p1_done")
    A.vm_restore(["x"])
    stamp(A)
    L_W2, L_X2, L_KV = 0, 57344, 163840 - 49152
    A("s_load_dwordx2 s[4:5], s[0:1], 0")
    A("s_load_dwordx2 s[6:7], s[0:1], 40")
    A("s_and_b32 s14, s2, 7")
    A("s_lshr_b32 s15, s2, 3")
    A(f"v_lshlrev_b32 v7, 4, {v(VL)}")
    small_decode(A)
    A("s_and_b32 s46, s19, 3")
    A("s_lshr_b32 s47, s19, 2")
    A("s_and_b32 s38, s19, 1")
    A("s_lshl_b32 s38, s38, 2")
    A("s_and_b32 s39, s19, 2")
    A("s_lshl_b32 s39, s39, 1")
    unit_dma_voff(A, 5, "s38", "s39", 896, 8, 9)
    A("s_lshl_b32 s38, s18, 7")
    A(f"s_mul_i32 s39, s19, {8*896}")
    A("s_add_u32 s38, s38, s39")
    A("s_lshl_b32 s39, s19, 10")
    lt, lt2 = A.newlabel("tok"), A.newlabel("tok")
    A("s_cmp_lg_u32 s19, 0")
    A(f"s_cbranch_scc1 {lt}")
    A("v_mov_b32 v252, 0")
    A("s_mov_b32 s93, 0")
    A.label(lt2)
    A(f"global_load_dword v253, v252, s[56:57]{SC}")
    A("s_add_u32 s93, s93, 1")
    A("s_waitcnt vmcnt(0)")
    A(f"v_readfirstlane_b32 s{TOK}, v253")
    A("s_cmp_lt_u32 s93, 0x200000")
    A(f"s_cselect_b32 s85, s{TOK}, 1")
    A("s_cmp_eq_u32 s85, 0")
    A(f"s_cbranch_scc1 {lt2}")
    A.label(lt)
    A("s_waitcnt lgkmcnt(0)")
    A.srd(20, 4, 5, ACT_BYTES)
    A.srd(24, 6, 7, D * D * 2)
    A("s_barrier")
    A(f"s_cmp_ge_u32 s2, {NWG}")
    A("s_cbranch_scc1 p2_now2")
    for u in range(7):
        A("s_mov_b32 m0, s39")
        A("s_add_u32 s39, s39, 8192")
        A.vmem("buffer_load_dwordx4 v5, s[24:27], s38 offen lds", "w2")
        A(f"s_add_u32 s38, s38, {64*896}")
    A("s_waitcnt vmcnt(7)")
    A("s_barrier")
    flag_store(A, 0)
    A.label("p2_now2")
    A("s_lshr_b32 s16, s15, 4")
    A("s_lshl_b32 s48, s14, 1")
    A("s_add_u32 s48, s48, s16")
    A("s_and_b32 s49, s15, 15")

    def deps2():
        A(f"v_mul_u32_u24 v240, 5958, {v(VL)}")
        A("v_lshrrev_b32 v240, 16, v240")
        A("v_mul_u32_u24 v241, 11, v240")
        A(f"v_sub_u32 v241, {v(VL)}, v241")
        A("v_add_u32 v240, s49, v240")
        A("v_subrev_u32 v240, 2, v240")
        A("v_max_i32 v240, 0, v240")
        A("s_lshl_b32 s85, s17, 6")
        A(f"v_subrev_u32 v242, 33, {v(VL)}")
        A("v_lshrrev_b32 v243, 2, v242")
        A("v_mul_u32_u24 v243, 67, v243")
        A("v_add_u32 v243, s85, v243")
        A("v_subrev_u32 v243, 2, v243")
        A("v_max_i32 v243, 0, v243")
        A("v_min_i32 v243, 2047, v243")
        A("v_lshrrev_b32 v243, 7, v243")
        A("v_and_b32 v242, 3, v242")
        A("v_add_u32 v242, 10, v242")
        A(f"v_cmp_lt_u32 vcc, 32, {v(VL)}")
        A("s_nop 1")
        A("v_cndmask_b32 v240, v240, v243, vcc")
        A("v_cndmask_b32 v241, v241, v242, vcc")
        big_id(A, 252, 240, 241, 242)
        A(f"s_cmp_lt_u32 s2, {NWG}")
        A("s_cselect_b32 exec_hi, 0x1ff, 1")

    poll(A, deps2, "s_waitcnt vmcnt(0)")
    A.vm_restore([])
    stamp(A)
    QF, C0, C16, FB, SCB, PB, TM, OA = 8, 12, 16, 20, 36, 104, 140, 160
    QK = 200
    A("s_mul_i32 s50, s48, 7")
    A("s_lshr_b32 s50, s50, 1")
    A("s_lshl_b32 s51, s49, 3")
    A("s_mul_i32 s52, s19, 3")
    A("s_add_u32 s52, s52, s51")
    A("s_sub_u32 s52, s52, 16")
    A("s_lshl_b32 s54, s50, 8")
    A("s_mul_i32 s55, s19, 3072")
    A(f"s_add_u32 s55, s55, {L_KV}")
    A("s_lshl_b32 s40, s48, 17")
    A(f"s_add_u32 s40, s40, {WS_V}")
    for j in range(3):
        A(f"s_add_i32 s41, s52, {j}")
        A("s_max_i32 s41, s41, 0")
        A(f"s_mul_i32 s53, s41, {RT_BYTES}")
        A("s_add_u32 s53, s53, s54")
        A(f"s_add_u32 s53, s53, {WS_K}")
        A(f"s_add_u32 m0, s55, {1024*j}")
        A("s_lshl_b32 s41, s41, 10")
        A.vmem(f"buffer_load_dwordx4 v7, s[28:31], s53 offen{SL} lds", "kv")
        A(f"s_add_u32 m0, s55, {24576+1024*j}")
        A("s_add_u32 s41, s41, s40")
        A.vmem(f"buffer_load_dwordx4 v7, s[28:31], s41 offen{SL} lds", "kv")
    A("s_add_u32 s52, s51, s19")
    A(f"s_mul_i32 s52, s52, {RT_BYTES}")
    A("s_add_u32 s53, s52, s54")
    A.vmem(f"buffer_load_dwordx4 {v(QK,4)}, v7, s[28:31], s53 offen{SL}", "kv")
    A(f"s_cmp_ge_u32 s2, {NWG}")
    A("s_cbranch_scc1 p2_attn")
    snap2 = A.vm_snapshot()
    AF, WFB, AC, XR, TB = 32, 64, 96, 112, 16
    A("s_lshl_b32 s32, s17, 2")
    A("s_add_u32 s32, s32, s46")
    A(f"s_mul_i32 s33, s32, {RT_BYTES}")
    A(f"s_mul_i32 s34, s47, {7*1024}")
    A("s_add_u32 s34, s34, s33")
    A(f"s_add_u32 s34, s34, {WS_HS}")
    A("s_add_u32 s35, s34, 4096")
    for u in range(7):
        A.vmem(f"buffer_load_dwordx4 {v(AF+4*u,4)}, v7, s[28:31], s{34+u//4} offen offset:{1024*(u%4)}{SL}", ("a", u))
    A("s_lshl_b32 s40, s32, 4")
    A(f"v_add_u32 v8, s40, {v(VI)}")
    A("v_mul_u32_u24 v9, 896, v8")
    A(f"v_lshl_add_u32 v9, {v(VG)}, 4, v9")
    A(f"v_lshrrev_b32 v10, 1, {v(VG)}")
    A("v_lshlrev_b32 v10, 3, v10")
    A("v_xor_b32 v11, 8, v10")
    A("v_add_u32 v11, v11, v9")
    A("v_add_u32 v9, v10, v9")
    A("s_lshl_b32 s40, s18, 7")
    A("s_lshl_b32 s41, s47, 6")
    A("s_add_u32 s40, s40, s41")
    A.vmem(f"buffer_load_dwordx2 {v(XR,2)}, v9, s[20:23], s40 offen", "x")
    A.vmem(f"buffer_load_dwordx2 {v(XR+2,2)}, v11, s[20:23], s40 offen", "x")
    for r in range(16):
        A(f"v_mov_b32 {v(AC+r)}, 0")
    unit_bases(A, TB, "pair", 12, 13, 14)
    A(f"s_mul_i32 s41, s47, {7*4096}")
    for t in range(4):
        A(f"v_add_u32 {v(TB+t)}, s41, {v(TB+t)}")
    for r in unit_reads(TB, 0, WFB):
        A(r)
    for u in range(7):
        A.vm_wait(("a", u), " lgkmcnt(0)")
        rd = unit_reads(TB, (u + 1) * 4096, WFB + 16 * ((u + 1) & 1)) if u < 6 else []
        for t in range(4):
            A(f"v_mfma_f32_16x16x32_bf16 {v(AC+4*t,4)}, {v(WFB+16*(u&1)+4*t,4)}, {v(AF+4*u,4)}, {v(AC+4*t,4)}")
            for r in rd[4*t:4*t+4] if t < 2 else []:
                A(r)
    A("s_xor_b32 s41, s19, 4")
    A("s_lshl_b32 s41, s41, 11")
    A(f"s_add_u32 s41, s41, {L_X2}")
    A("v_add_u32 v12, s41, v7")
    A("s_lshl_b32 s41, s19, 11")
    A(f"s_add_u32 s41, s41, {L_X2}")
    A("v_add_u32 v13, s41, v7")
    A("s_cmp_eq_u32 s47, 0")
    A("s_cbranch_scc1 p2_x0")
    A("s_nop 2")
    for r in range(8):
        A(f"v_swap_b32 {v(AC+r)}, {v(AC+8+r)}")
    A.label("p2_x0")
    A("s_nop 4")
    for t in range(2):
        A(f"ds_write_b128 v12, {v(AC+8+4*t,4)} offset:{1024*t}")
    A.vm_wait("x")
    XU = 32
    for j in range(4):
        A(f"v_lshlrev_b32 {v(XU+2*j)}, 16, {v(XR+j)}")
        A(f"v_and_b32 {v(XU+2*j+1)}, 0xffff0000, {v(XR+j)}")
    A("s_waitcnt lgkmcnt(0)")
    A("s_barrier")
    for t in range(2):
        A(f"ds_read_b128 {v(AC+8+4*t,4)}, v13 offset:{1024*t}")
    A("s_lshl_b32 s40, s18, 11")
    A("s_add_u32 s40, s40, s33")
    A("s_lshl_b32 s41, s47, 10")
    A("s_add_u32 s40, s40, s41")
    A(f"s_add_u32 s40, s40, {WS_X1}")
    A("s_waitcnt lgkmcnt(0)")
    for r in range(8):
        A(f"v_add_f32 {v(AC+r)}, {v(AC+r)}, {v(AC+8+r)}")
    for r in range(8):
        rbf(A, AC + r)
    for r in range(8):
        A(f"v_add_f32 {v(AC+r)}, {v(AC+r)}, {v(XU+r)}")
    for j in range(4):
        A(f"v_cvt_pk_bf16_f32 {v(X1K+j)}, {v(AC+2*j)}, {v(AC+2*j+1)}")
    for r in range(8):
        rbf(A, AC + r)
    A.vmem(f"buffer_store_dwordx4 {v(X1K,4)}, v7, s[28:31], s40 offen{SC}", "st")
    A(f"v_add_f32 v12, {v(AC)}, {v(AC+1)}")
    for r in range(2, 8):
        A(f"v_add_f32 v12, v12, {v(AC+r)}")
    xlane_g(A, "v_add_f32", 12, 14, 15)
    A(f"v_mul_f32 v14, {f32bits(1.0/32):#x}, v12")
    for r in range(8):
        A(f"v_sub_f32 {v(AC+r)}, {v(AC+r)}, v14")
    A(f"v_mul_f32 v13, {v(AC)}, {v(AC)}")
    for r in range(1, 8):
        A(f"v_fmac_f32 v13, {v(AC+r)}, {v(AC+r)}")
    xlane_g(A, "v_add_f32", 13, 14, 15)
    A("v_lshlrev_b32 v8, 7, v8")
    A("s_lshl_b32 s40, s18, 4")
    A("s_lshl_b32 s41, s47, 3")
    A("s_add_u32 s40, s40, s41")
    A(f"s_add_u32 s40, s40, {WS_ST}")
    A("s_mov_b64 exec, 0xffff")
    A.vmem(f"buffer_store_dwordx2 v[12:13], v8, s[28:31], s40 offen{SC}", "st")
    A("s_mov_b64 exec, -1")
    A("s_branch p2_attn2")
    A.label("p2_attn")
    A("s_waitcnt vmcnt(0)")
    A("s_barrier")
    A.label("p2_attn2")
    A.vm_restore(["st"])
    stamp(A)
    for r in range(4):
        A(f"v_mov_b32 {v(QF+r)}, {v(QK+r)}")
        A(f"v_lshl_add_u32 {v(TM)}, {v(VG)}, 2, {r}")
        A(f"v_mov_b32 {v(TM+1)}, {NEGBIG:#x}")
        A(f"v_cmp_gt_u32 vcc, {v(TM)}, {v(VI)}")
        A("s_nop 1")
        A(f"v_cndmask_b32 {v(C0+r)}, {v(TM+1)}, 0, vcc")
        A(f"v_cndmask_b32 {v(C16+r)}, 0, {v(TM+1)}, vcc")
    A("s_lshr_b32 s53, s48, 1")
    A("s_mul_i32 s53, s53, 7")
    A("s_add_u32 s53, s53, 3")
    A("s_lshr_b32 s53, s53, 1")
    A("s_xor_b32 s53, s53, s48")
    A("s_bitcmp1_b32 s48, 0")
    A("s_cselect_b32 exec_lo, 0xffff, 0")
    A("s_cselect_b32 exec_hi, 0, 0xffff0000")
    A("s_bitcmp1_b32 s53, 0")
    A("s_cbranch_scc1 p2_q01")
    A(f"v_mov_b32 {v(QF+2)}, 0")
    A(f"v_mov_b32 {v(QF+3)}, 0")
    A("s_branch p2_qz")
    A.label("p2_q01")
    A(f"v_mov_b32 {v(QF)}, 0")
    A(f"v_mov_b32 {v(QF+1)}, 0")
    A.label("p2_qz")
    A("s_mov_b64 exec, -1")
    A("s_lshl_b32 s61, s19, 10")
    A(f"s_add_u32 s61, s61, {L_KV}")
    A("v_add_u32 v4, s61, v7")
    A("s_lshr_b32 s61, s19, 1")
    A("s_lshl_b32 s61, s61, 11")
    A(f"s_add_u32 s61, s61, {L_KV+24576}")
    A("v_add_u32 v5, s61, v7")
    A("s_add_u32 s61, s51, s19")
    A("s_sub_i32 s61, 16, s61")
    A("s_mul_i32 s60, s48, 7")
    A(f"v_add_u32 v6, s60, {v(VG)}")
    A(f"v_and_b32 {v(TM)}, 1, v6")
    A("v_lshrrev_b32 v6, 1, v6")
    A("v_lshlrev_b32 v6, 8, v6")
    A(f"v_lshl_add_u32 v6, {v(TM)}, 3, v6")
    A(f"v_lshl_add_u32 v6, {v(VI)}, 4, v6")
    A(f"s_add_u32 s60, s52, {WS_O}")
    KL, NB = TM + 17, TM + 18
    A(f"v_mov_b32 {v(KL)}, {f32bits(SCALE*LOG2E):#x}")
    for r in range(8):
        A(f"v_mov_b32 {v(OA+r)}, 0")
    A("s_load_dwordx2 s[6:7], s[0:1], 48")
    big_decode(A)
    PITCH = F * 2
    A(f"s_mul_i32 s34, s40, {8*PITCH}")
    A("s_lshl_b32 s35, s33, 7")
    A("s_add_u32 s34, s34, s35")
    A(f"s_mov_b32 s38, {32*PITCH}")
    A("s_and_b32 s42, s40, 2")
    A("s_lshl_b32 s42, s42, 1")
    gen3.V_WD = 204
    unit_dma_voff(A, 204, "s43", "s42", PITCH, 205, 206)
    A("s_waitcnt lgkmcnt(0)")
    A.srd(24, 6, 7, D * F * 2)
    for i in range(3):
        A(f"ds_read_b128 {v(FB+4*(i%4),4)}, v4 offset:{1024*i}")
    for i in range(17):
        if i + 3 < 17:
            A(f"ds_read_b128 {v(FB+4*((i+3)%4),4)}, v4 offset:{1024*(i+3)}")
        A(f"s_waitcnt lgkmcnt({min(3, 16-i)})")
        c = v(C0, 4) if i == 0 else (v(C16, 4) if i == 16 else "0")
        if i < 16:
            l1, l2 = A.newlabel("k2i"), A.newlabel("k2j")
            A(f"s_cmp_gt_i32 s61, {i}")
            A(f"s_cbranch_scc1 {l1}")
        A(f"v_mfma_f32_16x16x32_bf16 {v(SCB+4*i,4)}, {v(FB+4*(i%4),4)}, {v(QF,4)}, {c}")
        if i < 16:
            A(f"s_branch {l2}")
            A.label(l1)
            for r in range(4):
                A(f"v_mov_b32 {v(SCB+4*i+r)}, {NEGBIG:#x}")
            A.label(l2)
    A("s_nop 4")
    M = TM
    A(f"v_max3_f32 {v(M)}, {v(SCB)}, {v(SCB+1)}, {v(SCB+2)}")
    PUB1 = True
    A(f"v_max3_f32 {v(M+1)}, {v(SCB+3)}, {v(SCB+4)}, {v(SCB+5)}")
    idx, k = 6, 0
    while idx < 68:
        A(f"v_max3_f32 {v(M+k)}, {v(M+k)}, {v(SCB+idx)}, {v(SCB+idx+1)}")
        idx += 2
        k ^= 1
    A(f"v_max_f32 {v(M)}, {v(M)}, {v(M+1)}")
    xlane_g(A, "v_max_f32", M, M + 1, M + 2)
    A(f"v_mul_f32 {v(NB)}, {v(KL)}, {v(M)}")
    A(f"v_sub_f32 {v(NB)}, 0, {v(NB)}")
    for j in range(2):
        A(f"ds_read_b128 {v(FB+4*j,4)}, v5 offset:{1024*j}")
    A("s_waitcnt vmcnt(0)")
    A("s_barrier")
    flag_store(A, 1)
    A.vm_restore([])
    A(f"s_cmp_ge_u32 s2, {NWG}")
    A("s_cbranch_scc1 p2_now3")
    for ds in range(3):
        for p in big_dma_parts(A, ds, 2048, V_XD)[1:]:
            p()
    A.label("p2_now3")
    A("s_bitcmp1_b32 s19, 0")
    A("s_cbranch_scc1 p2_odd")
    for par in range(2):
        if par:
            A.label("p2_odd")
        zs = 17 if par == 0 else 0
        A(f"v_mov_b32 {v(PB+2*zs)}, 0")
        A(f"v_mov_b32 {v(PB+2*zs+1)}, 0")
        nread = 2
        for c in range(9):
            els = []
            for half in range(2):
                slot = 2 * c + half
                if slot != zs:
                    els += [SCB + 4 * (slot - par) + r for r in range(4)]
            for e in els:
                A(f"v_fma_f32 {v(e)}, {v(e)}, {v(KL)}, {v(NB)}")
            for e in els:
                A(f"v_exp_f32 {v(e)}, {v(e)}")
            while nread < min(18, 2 * c + 4):
                A(f"ds_read_b128 {v(FB+4*(nread%4),4)}, v5 offset:{1024*nread}")
                nread += 1
            A("s_nop 0")
            for half in range(2):
                slot = 2 * c + half
                if slot == zs:
                    continue
                i = slot - par
                A(f"v_cvt_pk_bf16_f32 {v(PB+2*slot)}, {v(SCB+4*i)}, {v(SCB+4*i+1)}")
                A(f"v_cvt_pk_bf16_f32 {v(PB+2*slot+1)}, {v(SCB+4*i+2)}, {v(SCB+4*i+3)}")
            A(f"s_waitcnt lgkmcnt({nread - (2*c+2)})")
            A("s_nop 0")
            for dt in range(2):
                A(f"v_mfma_f32_16x16x32_bf16 {v(OA+4*dt,4)}, {v(FB+4*((2*c+dt)%4),4)}, {v(PB+4*c,4)}, {v(OA+4*dt,4)}")
        if par == 0:
            A("s_branch p2_out")
    A.label("p2_out")
    A("s_nop 7")
    A(f"v_mov_b32 {v(TM)}, 0")
    A("s_mov_b32 exec_lo, 0")
    A("s_mov_b32 exec_hi, 0xffff0000")
    A(f"v_mov_b32 {v(TM)}, {v(OA+4)}")
    A("s_mov_b64 exec, -1")
    xlane_g(A, "v_add_f32", TM, TM + 1, TM + 2)
    A(f"v_rcp_f32 {v(TM)}, {v(TM)}")
    A("s_nop 0")
    for r in range(8):
        A(f"v_mul_f32 {v(OA+r)}, {v(TM)}, {v(OA+r)}")
    for r in range(4):
        A(f"v_cvt_pk_bf16_f32 {v(TM+4+r)}, {v(OA+2*r)}, {v(OA+2*r+1)}")
    A.vmem(f"buffer_store_dwordx2 {v(TM+4,2)}, v6, s[28:31], s60 offen{SC}", "ost")
    ex48(A)
    A.vmem(f"buffer_store_dwordx2 {v(TM+6,2)}, v6, s[28:31], s60 offen offset:512{SC}", "ost")
    exall(A)
    l3 = A.newlabel("p3go")
    A(f"s_cmp_lt_u32 s2, {NWG}")
    A(f"s_cbranch_scc1 {l3}")
    A("s_waitcnt vmcnt(0)")
    A("s_barrier")
    flag_store(A, 2)
    A("s_endpgm")
    A.label(l3)
    A(f"v_lshlrev_b32 {v(V_XD)}, 4, {v(VL)}")
    A("s_lshl_b32 s35, s17, 3")
    A("s_add_u32 s35, s35, s19")
    A(f"s_mul_i32 s35, s35, {RT_BYTES}")
    A(f"s_add_u32 s35, s35, {WS_X1}")
    A("s_lshl_b32 s42, s40, 12")
    A(f"v_add_u32 {v(V_XR[0])}, s42, {v(V_XD)}")
    A(f"v_add_u32 {v(V_XR[1])}, {2*SLOT}, {v(V_XR[0])}")
    unit_bases(A, V_TB[0], "pair", 24, 25, 26)
    big_bases_finish(A)
    A("s_lshl_b32 s39, s17, 3")
    A("s_lshl_b32 s42, s40, 1")
    A("s_add_u32 s39, s39, s42")
    A("s_lshl_b32 s42, s39, 4")
    A(f"v_add_u32 v24, s42, {v(VI)}")
    A("v_lshlrev_b32 v24, 7, v24")
    A(f"v_lshl_add_u32 v24, {v(VG)}, 5, v24")
    A(f"s_mov_b32 s46, {WS_ST}")
    big_zero(A)
    A.srd(20, 58, 59, WS_SIZE)
    stamp(A)

    def deps3():
        A(f"v_cmp_lt_u32 vcc, 6, {v(VL)}")
        A("s_lshl_b32 s85, s17, 1")
        A("v_mov_b32 v240, s85")
        A("v_addc_co_u32 v240, vcc, 0, v240, vcc")
        A(f"v_cmp_lt_u32 vcc, 6, {v(VL)}")
        A(f"v_subrev_u32 v241, 7, {v(VL)}")
        A("s_nop 0")
        A(f"v_cndmask_b32 v241, {v(VL)}, v241, vcc")
        A("v_and_b32 v242, 3, v240")
        A("v_mul_u32_u24 v242, 7, v242")
        A("v_add_u32 v242, v242, v241")
        A("v_lshrrev_b32 v240, 2, v240")
        A("v_lshl_add_u32 v252, v242, 3, v240")
        A("v_lshlrev_b32 v252, 7, v252")
        A("v_add_u32 v252, 32768, v252")
        A("s_mov_b64 exec, 0x3fff")

    poll(A, deps3)
    stamp(A)
    gen3.XSC[0] = SL
    for ds in range(2):
        big_dma_parts(A, ds, 2048, V_XD)[0]()
    STR = 176
    for j in range(2):
        for q in range(2):
            A.vmem(f"buffer_load_dwordx4 {v(STR+8*j+4*q,4)}, v24, s[28:31], s46 offen offset:{2048*j+16*q}{SL}", "st")
    big_mainloop(A, False, 2048, V_XD, False, cs=True, wdone=(0, 1, 2), hook=lambda: flag_store(A, 2))
    gen3.XSC[0] = ""
    stamp(A)
    A("s_load_dwordx2 s[4:5], s[0:1], 16")
    A("s_load_dwordx2 s[6:7], s[0:1], 56")
    A("s_load_dwordx2 s[8:9], s[0:1], 72")
    A("s_mov_b32 exec_lo, 0")
    A("s_mov_b32 exec_hi, 0xffff0000")
    for j in range(2):
        for r in range(4, 8):
            A(f"v_mov_b32 {v(STR+8*j+r)}, 0")
    A("s_mov_b64 exec, -1")
    for j in range(2):
        b = STR + 8 * j
        m, q = MR[j], RS[j]
        A(f"v_add_f32 {v(m)}, {v(b)}, {v(b+2)}")
        A(f"v_add_f32 {v(q)}, {v(b+4)}, {v(b+6)}")
        A(f"v_add_f32 {v(m)}, {v(m)}, {v(q)}")
        xlane_g(A, "v_add_f32", m, 24, 25)
        A(f"v_mul_f32 {v(m)}, {f32bits(1.0/448):#x}, {v(m)}")
        A(f"v_add_f32 {v(q)}, {v(b+1)}, {v(b+3)}")
        A(f"v_add_f32 {v(q)}, {v(q)}, {v(b+5)}")
        A(f"v_add_f32 {v(q)}, {v(q)}, {v(b+7)}")
        for r in (0, 2, 4, 6):
            A(f"v_fma_f32 {v(b+r)}, {v(b+r)}, {f32bits(1.0/32):#x}, -{v(m)}") if False else None
            A(f"v_mul_f32 {v(b+r)}, {f32bits(1.0/32):#x}, {v(b+r)}")
            A(f"v_sub_f32 {v(b+r)}, {v(b+r)}, {v(m)}")
        A(f"v_mul_f32 {v(b)}, {v(b)}, {v(b)}")
        A(f"v_fmac_f32 {v(b)}, {v(b+2)}, {v(b+2)}")
        ex48(A)
        A(f"v_fmac_f32 {v(b)}, {v(b+4)}, {v(b+4)}")
        A(f"v_fmac_f32 {v(b)}, {v(b+6)}, {v(b+6)}")
        exall(A)
        A(f"v_fmamk_f32 {v(q)}, {v(b)}, {f32bits(32.0):#x}, {v(q)}")
        if j == 0:
            cs_write(A, 26)
            A("s_waitcnt lgkmcnt(0)")
            A("s_barrier")
            for k in range(4):
                A(f"ds_read_b128 {v(CS+4*k,4)}, v26 offset:{64*k}")
        xlane_g(A, "v_add_f32", q, 24, 25)
        A(f"v_mul_f32 {v(q)}, {f32bits(1.0/448):#x}, {v(q)}")
        ln_finish(A, m, q)
        A(f"v_mov_b32 {v(m+1)}, {v(m)}")
        A(f"v_mov_b32 {v(q+1)}, {v(q)}")
    consts = gelu_consts(A, 148)
    A(f"s_mul_i32 s42, s39, {H3_RT_BYTES}")
    A("s_lshl_b32 s43, s33, 11")
    A("s_add_u32 s42, s42, s43")
    A(f"s_add_u32 s42, s42, {WS_H3}")
    A(f"s_add_u32 s43, s42, {H3_RT_BYTES}")
    A("s_waitcnt lgkmcnt(0)")

    def st3(j, pk):
        for tp in range(2):
            A.vmem(f"buffer_store_dwordx4 {v(pk+4*tp,4)}, {v(V_XD)}, s[28:31], s{42+j} offen offset:{1024*tp}{SC}", "hst")

    gelu_epilogue(A, CS, MR, RS, consts, 156, 32, st3)
    stamp(A)
    RS4, PF4 = 6, 4
    RING = RS4 * 4096
    L4_WO = 4 * RING
    small_decode(A)
    A("s_and_b32 s46, s19, 3")
    A("s_lshr_b32 s47, s19, 2")
    NA = PF4 + 2
    AFB = 32
    WFB = AFB + NA * 8
    ACB = WFB + 32
    OFB = ACB + 32
    AWO = OFB + 28
    WOF = AWO + 16
    GR = WOF + 32
    assert GR < 240
    TB, TO = 20, 24
    af = lambda sx, j: AFB + ((sx % NA) * 2 + j) * 4
    ac = lambda j, t: v(ACB + (j * 4 + t) * 4, 4)
    A(f"v_lshlrev_b32 v8, 4, {v(VL)}")
    for m in range(1, 4):
        A(f"v_add_u32 v{8+m}, {4096*m}, v8")
    A("s_lshl_b32 s32, s47, 2")
    unit_dma_voff(A, 4, "0", "s32", 896, 12, 13)
    A("v_xor_b32 v5, 64, v4")
    unit_dma_voff(A, 6, "0", None, 896, 12, 13)
    A("v_xor_b32 v7, 64, v6")
    A("s_lshl_b32 s32, s17, 2")
    A("s_lshl_b32 s33, s47, 1")
    A("s_add_u32 s32, s32, s33")
    A(f"s_mul_i32 s32, s32, {H3_RT_BYTES}")
    A(f"s_mul_i32 s33, s46, {14*1024}")
    A("s_add_u32 s32, s32, s33")
    A(f"s_add_u32 s32, s32, {WS_H3}")
    A(f"s_add_u32 s33, s32, {H3_RT_BYTES}")
    A("s_lshl_b32 s38, s18, 7")
    A(f"s_mul_i32 s36, s46, {448*896}")
    A(f"s_mul_i32 s34, s47, {16*896}")
    A("s_add_u32 s36, s36, s34")
    A("s_add_u32 s36, s36, s38")
    A(f"s_mul_i32 s35, s46, {RING}")
    A("s_lshl_b32 s37, s47, 11")
    A("s_add_u32 s37, s37, s35")
    A(f"s_mul_i32 s39, s19, {7*8*896}")
    A("s_add_u32 s38, s38, s39")
    A("s_mul_i32 s39, s19, 7168")
    A(f"s_add_u32 s39, s39, {L4_WO}")
    l = A.newlabel("k4p")
    A("s_bitcmp1_b32 s19, 0")
    A(f"s_cbranch_scc0 {l}")
    A("v_swap_b32 v6, v7")
    A.label(l)
    A("s_lshl_b32 s40, s17, 2")
    A("s_add_u32 s40, s40, s46")
    A(f"s_mul_i32 s41, s40, {RT_BYTES}")
    A(f"s_mul_i32 s42, s47, {7*1024}")
    A("s_add_u32 s42, s42, s41")
    A(f"s_add_u32 s42, s42, {WS_O}")
    A("s_lshl_b32 s44, s40, 4")
    A(f"v_add_u32 v14, s44, {v(VI)}")
    A("v_lshlrev_b32 v15, 2, v14")
    A(f"s_mov_b32 s45, {WS_G}")
    unit_bases(A, TB, "pair", 12, 13, 16)
    A(f"s_mul_i32 s44, s47, {7*4096}")
    A(f"s_add_u32 s44, s44, {L4_WO}")
    for t in range(4):
        A(f"v_add_u32 {v(TO+t)}, s44, {v(TB+t)}")
        A(f"v_add_u32 {v(TB+t)}, s35, {v(TB+t)}")
    for r in range(ACB, ACB + 32):
        A(f"v_mov_b32 {v(r)}, 0")
    for r in range(AWO, AWO + 16):
        A(f"v_mov_b32 {v(r)}, 0")
    A.srd(20, 4, 5, D * D * 2)
    A.srd(24, 6, 7, F * D * 2)
    A.srd(48, 8, 9, ACT_BYTES)
    A("s_barrier")

    def w_parts(sx):
        parts = []
        for j in range(2):
            def p(j=j):
                A(f"s_add_u32 m0, s37, {(sx%RS4)*4096 + j*1024}")
                A("s_nop 0")
                A.vmem(f"buffer_load_dwordx4 v{4+j}, s[24:27], s36 offen lds", ("ld", sx))
                A(f"s_add_u32 s36, s36, {8*896 if j == 0 else 24*896}")
            parts.append(p)
        return parts

    def a_parts(sx):
        return [lambda j=j: A.vmem(f"buffer_load_dwordx4 {v(af(sx,j),4)}, v{8+sx//4}, s[28:31], s{32+j} offen offset:{1024*(sx%4)}{SL}", ("ld", sx)) for j in range(2)]

    for u in range(7):
        A("s_mov_b32 m0, s39")
        A("s_add_u32 s39, s39, 1024")
        A.vmem(f"buffer_load_dwordx4 v{6+(u&1)}, s[20:23], s38 offen lds", "wo")
        A(f"s_add_u32 s38, s38, {8*896}")
    A.vm_wait("hst")
    A("s_barrier")
    flag_store(A, 3)
    stamp(A)
    for sx in range(2):
        for p in w_parts(sx):
            p()

    def deps4a():
        A(f"v_and_b32 v240, 1, {v(VL)}")
        A("v_lshlrev_b32 v240, 4, v240")
        A("s_lshr_b32 s85, s17, 1")
        A("v_add_u32 v240, s85, v240")
        A(f"v_lshrrev_b32 v241, 1, {v(VL)}")
        A("v_lshl_add_u32 v240, v240, 3, v241")
        A("v_lshlrev_b32 v240, 7, v240")
        A("v_add_u32 v240, 65536, v240")
        A("s_lshl_b32 s85, s17, 3")
        A("s_sub_u32 s93, s85, 224")
        A("s_cmp_ge_u32 s85, 224")
        A("s_cselect_b32 s85, s93, s85")
        A(f"v_subrev_u32 v241, 16, {v(VL)}")
        A("v_add_u32 v241, s85, v241")
        A("v_lshlrev_b32 v241, 7, v241")
        A(f"v_cmp_lt_u32 vcc, 15, {v(VL)}")
        A("s_nop 1")
        A("v_cndmask_b32 v252, v240, v241, vcc")
        A("s_mov_b64 exec, 0xffffff")

    poll(A, deps4a, f"s_waitcnt vmcnt({A.vm_count_after('wo')})")
    for u in range(7):
        A.vmem(f"buffer_load_dwordx4 {v(OFB+4*u,4)}, v{8+u//4}, s[28:31], s42 offen offset:{1024*(u%4)}{SL}", ("of", u))
    A.vmem(f"buffer_load_dword {v(GR)}, v15, s[28:31], s45 offen{SL}", "ep")
    for r in unit_reads(TO, 0, WOF):
        A(r)
    for u in range(7):
        A.vm_wait(("of", u), " lgkmcnt(0)")
        rd = unit_reads(TO, (u + 1) * 4096, WOF + 16 * ((u + 1) & 1)) if u < 6 else []
        for t in range(4):
            A(f"v_mfma_f32_16x16x32_bf16 {v(AWO+4*t,4)}, {v(WOF+16*(u&1)+4*t,4)}, {v(OFB+4*u,4)}, {v(AWO+4*t,4)}")
            for r in rd[4*t:4*t+4] if t < 2 else []:
                A(r)
            if t >= 2 and 2 + u <= PF4:
                w_parts(2 + u)[t - 2]()
    stamp(A)

    def deps4b():
        A("s_lshr_b32 s85, s17, 1")
        A("v_mov_b32 v240, s85")
        A(f"v_mov_b32 v241, {v(VL)}")
        big_id(A, 252, 240, 241, 242)
        A(f"v_add_u32 v252, {3*32768}, v252")
        A("s_mov_b64 exec, 0x3fff")

    poll(A, deps4b, "s_waitcnt vmcnt(0)")
    A.vm_restore([])
    stamp(A)
    na = [0]

    def take_a(n, limit):
        out = []
        while n > 0 and na[0] < 14 and na[0] <= limit:
            out += a_parts(na[0])
            na[0] += 1
            n -= 1
        return out

    for p in take_a(3, 2):
        p()
    for r in unit_reads(TB, 0, WFB):
        A(r)
    for sx in range(14):
        rd = []
        if sx < 13:
            A.vm_wait(("ld", sx + 1) if sx + 1 > PF4 else ("ld", sx), " lgkmcnt(0)")
            if sx + 1 > PF4:
                A("s_barrier")
            rd = unit_reads(TB, ((sx + 1) % RS4) * 4096, WFB + 16 * ((sx + 1) & 1))
        else:
            A.vm_wait(("ld", 13), " lgkmcnt(0)")
        parts = []
        if sx + 1 > PF4 - 1 and sx + 2 + PF4 - 1 < 14 and sx >= 1:
            pass
        if sx + 1 + PF4 < 14:
            if sx + 1 <= PF4:
                A("s_barrier")
            parts += w_parts(sx + 1 + PF4)
        parts = take_a(2, sx + 1 + PF4) + parts
        mf = [f"v_mfma_f32_16x16x32_bf16 {ac(j,t)}, {v(WFB+16*(sx&1)+4*t,4)}, {v(af(sx,j),4)}, {ac(j,t)}" for t in range(4) for j in range(2)]
        for i, m in enumerate(mf):
            A(m)
            for _ in range(2):
                if rd:
                    A(rd.pop(0))
            for _ in range(-(-len(parts) // (len(mf) - i))):
                parts.pop(0)()
        assert not rd and not parts
    stamp(A)
    A("s_lshl_b32 s52, s46, 14")
    A("s_lshl_b32 s53, s47, 13")
    A("s_add_u32 s52, s52, s53")
    A("v_add_u32 v12, s52, v8")
    A("s_lshl_b32 s52, s47, 14")
    A("s_lshl_b32 s53, s46, 12")
    A("s_add_u32 s52, s52, s53")
    A("s_add_u32 s52, s52, 65536")
    A("v_add_u32 v13, s52, v8")
    A("s_barrier")
    for j in range(2):
        for t in range(4):
            A(f"ds_write_b128 v12, {ac(j,t)} offset:{(j*4+t)*1024}")
    for t in range(4):
        A(f"ds_write_b128 v13, {v(AWO+4*t,4)} offset:{t*1024}")
    A("s_lshl_b32 s52, s46, 12")
    A("s_lshl_b32 s53, s47, 11")
    A("s_add_u32 s52, s52, s53")
    A("v_add_u32 v12, s52, v8")
    A("v_add_u32 v13, 65536, v12")
    XU = OFB
    for j in range(4):
        A(f"v_lshlrev_b32 {v(XU+2*j)}, 16, {v(X1K+j)}")
        A(f"v_and_b32 {v(XU+2*j+1)}, 0xffff0000, {v(X1K+j)}")
    A(f"v_sub_f32 v19, 1.0, {v(GR)}")
    rbf(A, 19)
    A("v_mul_u32_u24 v14, 896, v14")
    A(f"v_lshl_add_u32 v14, {v(VG)}, 4, v14")
    A(f"v_lshrrev_b32 v16, 1, {v(VG)}")
    A("v_lshlrev_b32 v16, 3, v16")
    A("v_xor_b32 v15, 8, v16")
    A("v_add_u32 v15, v15, v14")
    A("v_add_u32 v14, v16, v14")
    A("s_lshl_b32 s52, s18, 7")
    A("s_lshl_b32 s53, s47, 6")
    A("s_add_u32 s52, s52, s53")
    A("s_waitcnt lgkmcnt(0)")
    A("s_barrier")
    RB = 32
    for q in range(4):
        for t in range(2):
            A(f"ds_read_b128 {v(RB+8*q+4*t,4)}, v12 offset:{16384*q + 1024*t}")
    for q in range(2):
        for t in range(2):
            A(f"ds_read_b128 {v(RB+32+8*q+4*t,4)}, v13 offset:{16384*q + 1024*t}")
    A("s_waitcnt lgkmcnt(4)")
    for r in range(8):
        A(f"v_add_f32 {v(RB+r)}, {v(RB+r)}, {v(RB+8+r)}")
        A(f"v_add_f32 {v(RB+16+r)}, {v(RB+16+r)}, {v(RB+24+r)}")
    for r in range(8):
        A(f"v_add_f32 {v(RB+r)}, {v(RB+r)}, {v(RB+16+r)}")
    for r in range(8):
        rbf(A, RB + r)
    for r in range(8):
        A(f"v_add_f32 {v(RB+r)}, {v(RB+r)}, {v(XU+r)}")
    for r in range(8):
        rbf(A, RB + r)
    A("s_waitcnt lgkmcnt(0)")
    AU = RB + 32
    for r in range(8):
        A(f"v_add_f32 {v(AU+r)}, {v(AU+r)}, {v(AU+8+r)}")
        A(f"v_mul_f32 {v(RB+r)}, v19, {v(RB+r)}")
    for r in range(8):
        rbf(A, AU + r)
        rbf(A, RB + r)
    for r in range(8):
        A(f"v_mul_f32 {v(AU+r)}, {v(GR)}, {v(AU+r)}")
    for r in range(8):
        rbf(A, AU + r)
    for r in range(8):
        A(f"v_add_f32 {v(RB+r)}, {v(RB+r)}, {v(AU+r)}")
    for j in range(4):
        A(f"v_cvt_pk_bf16_f32 {v(XU+j)}, {v(RB+2*j)}, {v(RB+2*j+1)}")
    A(f"buffer_store_dwordx2 {v(XU,2)}, v14, s[48:51], s52 offen")
    A(f"buffer_store_dwordx2 {v(XU+2,2)}, v15, s[48:51], s52 offen")
    stamp(A)
    A.label(Lend)
    A("s_endpgm")
    return A.text()


def build():
    hdr = open("gated_mix__sliding_block__mixer_s_mlp__prompt.s.ref").read().split("; Override launch")[0]
    out = hdr + "; @launch grid=(256,1,1) block=(512,1,1) lds=163840\n"
    out += '.amdgcn_target "amdgcn-amd-amdhsa--gfx950"\n.text\n'
    out += kernel_head(KNAME) + gen()
    out += '.section .rodata,"a"\n' + kernel_desc(KNAME, 256, 256)
    return out


if __name__ == "__main__":
    dst = sys.argv[1] if len(sys.argv) > 1 else "gated_mix__sliding_block__mixer_s_mlp__prompt.s"
    open(dst, "w").write(build())
    print("wrote", dst)
```

```python
import math
import os
import sys
from asmlib import Asm, v, a, s, f32bits, kernel_desc, kernel_head
from gen2 import (stamp, stamp_end, lane_setup, xlane_g, rbf, gelu_pairs, ln_finish, gelu_consts, ex48, ex56, exall,
                  S, D, F, MB, WS_Q, WS_K, WS_V, WS_HS, WS_X1, WS_O, WS_H3, WS_G, WS_ST, WS_SIZE, ACT_BYTES, RT_BYTES,
                  H3_RT_BYTES, LOG2E, SCALE, NEGBIG, STAMPS, VL, VI, VG)

NWG = 224
XSC = [""]


def div7(A, dst, src):
    A(f"v_mul_u32_u24 {v(dst)}, 9363, {v(src)}")
    A(f"v_lshrrev_b32 {v(dst)}, 16, {v(dst)}")


def unit_bases(A, dst, mode, t0, t1, t2):
    A(f"v_lshrrev_b32 {v(t0)}, 2, {v(VI)}")
    A(f"v_lshl_add_u32 {v(t1)}, {v(VG)}, 3, {v(t0)}")
    A(f"v_lshlrev_b32 {v(t1)}, 7, {v(t1)}")
    A(f"v_and_b32 {v(t0)}, 2, {v(t0)}")
    A(f"v_and_b32 {v(t2)}, 1, {v(VG)}")
    A(f"v_lshl_add_u32 {v(t0)}, {v(t2)}, 2, {v(t0)}")
    A(f"v_and_b32 {v(t2)}, 3, {v(VI)}")
    if mode == "pair":
        A(f"v_xor_b32 {v(t0)}, {v(t0)}, {v(t2)}")
        A(f"v_lshl_add_u32 {v(dst)}, {v(t0)}, 4, {v(t1)}")
        A(f"v_xor_b32 {v(dst+2)}, 64, {v(dst)}")
        A(f"v_lshrrev_b32 {v(t2)}, 1, {v(t2)}")
        A(f"v_lshlrev_b32 {v(t2)}, 3, {v(t2)}")
        A(f"v_xor_b32 {v(t0)}, 8, {v(t2)}")
        A(f"v_add_u32 {v(dst+1)}, {v(dst)}, {v(t0)}")
        A(f"v_add_u32 {v(dst+3)}, {v(dst+2)}, {v(t0)}")
        A(f"v_add_u32 {v(dst)}, {v(dst)}, {v(t2)}")
        A(f"v_add_u32 {v(dst+2)}, {v(dst+2)}, {v(t2)}")
    else:
        A(f"v_lshlrev_b32 {v(t0)}, 4, {v(t0)}")
        A(f"v_lshl_add_u32 {v(t1)}, {v(t2)}, 3, {v(t1)}")
        for t in range(4):
            A(f"v_xor_b32 {v(dst+t)}, {32*t}, {v(t0)}")
            A(f"v_add_u32 {v(dst+t)}, {v(dst+t)}, {v(t1)}")


def unit_dma_voff(A, dst, qodd_s, swap_s, pitch, t0, t1):
    A(f"v_lshrrev_b32 {v(t0)}, 3, {v(VL)}")
    A(f"v_and_b32 {v(t1)}, 2, {v(t0)}")
    A(f"v_add_u32 {v(t1)}, {qodd_s}, {v(t1)}")
    A(f"v_xor_b32 {v(t1)}, {v(t1)}, {v(VL)}")
    A(f"v_and_b32 {v(t1)}, 7, {v(t1)}")
    if swap_s is not None:
        A(f"v_xor_b32 {v(t0)}, {swap_s}, {v(t0)}")
    if isinstance(pitch, int):
        A(f"v_mul_u32_u24 {v(dst)}, {pitch}, {v(t0)}")
    else:
        A(f"v_mul_lo_u32 {v(dst)}, {v(t0)}, {pitch}")
    A(f"v_lshl_add_u32 {v(dst)}, {v(t1)}, 4, {v(dst)}")


def unit_reads(bases, off, dst, reg=v):
    return [f"ds_read_b64_tr_b16 {reg(dst+4*t+2*hh,2)}, {v(bases+t)} offset:{off + 512*hh}" for t in range(4) for hh in range(2)]


def interleave(A, mf, fill):
    fill = list(fill)
    n = len(mf)
    for i, m in enumerate(mf):
        A(m)
        k = -(-len(fill) // max(1, n - 2 - i)) if i < n - 2 else len(fill)
        for _ in range(min(k, len(fill))):
            f = fill.pop(0)
            if callable(f):
                f()
            else:
                A(f)


SLOT = 32768
L_EX = 4 * SLOT
BIG_LDS = L_EX + 2048
V_XD, V_XD2, V_WD = 4, 5, 6
V_XR = (7, 8, 9, 10)
V_TB = (12, 16)
V_TC = (20, 21)
XB, WB, CB, ONES, ACC, ASTAT, ACS = 32, 48, 80, 88, 92, 124, 132
BIG_NV = 200


def big_reads_list(sx, cs, xpar):
    buf, par, slot = sx & 1, sx & 1, (sx // 2) % 4
    hi, so = slot // 2, (slot % 2) * SLOT
    out = []
    for j in range(2):
        if xpar:
            out.append(f"ds_read_b128 {v(XB+buf*8+4*j,4)}, {v(V_XR[2*par+hi])} offset:{so + 2048*j}")
        else:
            out.append(f"ds_read_b128 {v(XB+buf*8+4*j,4)}, {v(V_XR[hi])} offset:{so + 2048*j + 1024*par}")
    out += unit_reads(V_TB[hi], so + 4096 * par, WB + buf * 16)
    if cs:
        for hh in range(2):
            out.append(f"ds_read_b64_tr_b16 {v(CB+buf*4+2*hh,2)}, {v(V_TC[hi])} offset:{so + 4096*par + 512*hh}")
    return out


CZERO = [False]


def big_mfmas(sx, normal, stat, cs):
    buf = sx & 1
    out = []
    for k in range(4):
        for j in range(2):
            c = v(ACC + (j * 4 + k) * 4, 4)
            ci = "0" if (CZERO[0] and sx == 0) else c
            x, w = v(XB + buf * 8 + 4 * j, 4), v(WB + buf * 16 + 4 * k, 4)
            out.append(f"v_mfma_f32_16x16x32_bf16 {c}, {x}, {w}, {ci}" if normal else f"v_mfma_f32_16x16x32_bf16 {c}, {w}, {x}, {ci}")
    if stat:
        for j in range(2):
            c, x = v(ASTAT + 4 * j, 4), v(XB + buf * 8 + 4 * j, 4)
            out.append(f"v_mfma_f32_16x16x32_bf16 {c}, {v(ONES,4) if stat == 'sum' else x}, {x}, {c}")
    if cs:
        c = v(ACS, 4)
        out.append(f"v_mfma_f32_16x16x32_bf16 {c}, {v(CB+buf*4,4)}, {v(ONES,4)}, {c}")
    return out


def big_dma_parts(A, ds, xstep, x2):
    slot = ds % 4

    def px():
        A(f"s_add_u32 m0, s36, {slot*SLOT}")
        A("s_nop 0")
        A.vmem(f"buffer_load_dwordx4 {v(V_XD)}, s[20:23], s35 offen{XSC[0]} lds", ("ld", ds))
        A.vmem(f"buffer_load_dwordx4 {v(x2)}, s[20:23], s35 offen offset:1024{XSC[0]} lds", ("ld", ds))
        A(f"s_add_u32 s35, s35, {xstep}")

    def pw(h):
        A(f"s_add_u32 m0, s37, {slot*SLOT + 4096*h}")
        A("s_nop 0")
        A.vmem(f"buffer_load_dwordx4 {v(V_WD)}, s[24:27], s34 offen lds", ("ld", ds))
        A("s_add_u32 s34, s34, s38")
    return [px, lambda: pw(0), lambda: pw(1)]


DMA_AT = {0: 2, 1: 3, 2: 4, 4: 5, 6: 6}


def big_mainloop(A, normal, xstep, x2, xpar, stat=None, cs=False, wdone=(), hook=None, hooks={}):
    A.vm_wait(("ld", 0))
    A("s_barrier")
    if hook:
        hook()
    stamp(A, 2)
    for r in big_reads_list(0, cs, xpar):
        A(r)
    for sx in range(14):
        mf = big_mfmas(sx, normal, stat, cs)
        parts = []
        if sx % 2 == 1 and sx < 13:
            A.vm_wait(("ld", (sx + 1) // 2), " lgkmcnt(0)")
            A("s_barrier")
        else:
            A("s_waitcnt lgkmcnt(0)")
        if sx in DMA_AT:
            parts = big_dma_parts(A, DMA_AT[sx], xstep, x2)
            if DMA_AT[sx] in wdone:
                parts = parts[:1]
        rd = big_reads_list(sx + 1, cs, xpar) if sx < 13 else []
        if sx in hooks:
            parts = parts + [hooks[sx]]
        interleave(A, mf, rd + parts)
    stamp(A, 3)


def big_decode(A):
    A("s_and_b32 s14, s2, 7")
    A("s_lshr_b32 s15, s2, 3")
    A("s_mul_i32 s16, s15, 9363")
    A("s_lshr_b32 s16, s16, 16")
    A("s_mul_i32 s18, s16, 7")
    A("s_sub_u32 s18, s15, s18")
    A("s_lshr_b32 s17, s14, 1")
    A("s_lshl_b32 s17, s17, 2")
    A("s_add_u32 s17, s17, s16")
    A("s_and_b32 s16, s14, 1")
    A("s_mul_i32 s16, s16, 7")
    A("s_add_u32 s18, s18, s16")
    A("s_and_b32 s40, s19, 3")
    A("s_lshr_b32 s41, s19, 2")
    A("s_lshl_b32 s36, s19, 11")
    A("s_lshl_b32 s37, s41, 13")
    A("s_lshl_b32 s42, s40, 10")
    A("s_add_u32 s37, s37, s42")
    A("s_add_u32 s37, s37, 16384")
    A("s_lshl_b32 s33, s18, 1")
    A("s_add_u32 s33, s33, s41")
    A("s_and_b32 s43, s40, 1")
    A("s_lshl_b32 s43, s43, 2")


def big_bases_finish(A):
    A("s_lshl_b32 s42, s41, 13")
    A("s_add_u32 s42, s42, 16384")
    for t in range(4):
        A(f"v_add_u32 {v(V_TB[0]+t)}, s42, {v(V_TB[0]+t)}")
        A(f"v_add_u32 {v(V_TB[1]+t)}, {2*SLOT}, {v(V_TB[0]+t)}")
    A(f"v_mov_b32 {v(V_TC[0])}, {v(V_TB[0])}")
    for t in range(1, 4):
        l = A.newlabel("cs")
        A(f"s_cmp_lg_u32 s40, {t}")
        A(f"s_cbranch_scc1 {l}")
        A(f"v_mov_b32 {v(V_TC[0])}, {v(V_TB[0]+t)}")
        A.label(l)
    A(f"v_add_u32 {v(V_TC[1])}, {2*SLOT}, {v(V_TC[0])}")


def big_zero(A):
    for r in range(ACC, ACS + 4):
        A(f"v_mov_b32 {v(r)}, 0")
    for r in range(4):
        A(f"v_mov_b32 {v(ONES+r)}, 0x3f803f80")


def cs_write(A, t0):
    A(f"v_lshlrev_b32 {v(t0)}, 4, {v(VG)}")
    A("s_lshl_b32 s43, s41, 8")
    A(f"s_add_u32 s43, s43, {L_EX}")
    A(f"v_add_u32 {v(t0)}, s43, {v(t0)}")
    A("s_lshl_b32 s43, s40, 6")
    A(f"v_add_u32 {v(t0+1)}, s43, {v(t0)}")
    A(f"v_cmp_eq_u32 vcc, 0, {v(VI)}")
    A("s_and_saveexec_b64 s[44:45], vcc")
    A(f"ds_write_b128 {v(t0+1)}, {v(ACS,4)}")
    A("s_mov_b64 exec, s[44:45]")


def gelu_epilogue(A, cs, mreg, rsreg, consts, tmp, pk, store_fn):
    c0, c1, one = consts
    for j in range(2):
        base = ACC + j * 16
        pairs = [base + 2 * i for i in range(8)]
        for i, p in enumerate(pairs):
            A(f"v_pk_fma_f32 {v(p,2)}, {v(cs+2*i,2)}, {v(mreg[j],2)}, {v(p,2)}")
        for i, p in enumerate(pairs):
            A(f"v_pk_mul_f32 {v(p,2)}, {v(p,2)}, {v(rsreg[j],2)}")
        gelu_pairs(A, pairs, [pk + 8 * j + i for i in range(8)], tmp, c0, c1, one)
        store_fn(j, pk + 8 * j)


def gen_k1():
    A = Asm()
    Lend = "k1_end"
    A(f"s_cmp_ge_u32 s2, {NWG}")
    A("s_cbranch_scc1 k1_pf")
    stamp(A, 0)
    A("s_load_dwordx4 s[4:7], s[0:1], 0")
    A("s_load_dwordx2 s[8:9], s[0:1], 32")
    A("s_load_dwordx2 s[10:11], s[0:1], 64")
    A("s_load_dwordx2 s[12:13], s[0:1], 88")
    lane_setup(A)
    big_decode(A)
    A("s_sub_u32 s46, s33, 21")
    A("s_movk_i32 s32, 896")
    A("s_cmp_lt_u32 s33, 21")
    A("s_cselect_b32 s32, 2688, s32")
    A("s_cselect_b32 s34, s33, s46")
    A("s_lshl_b32 s34, s34, 7")
    A("s_lshl_b32 s35, s40, 3")
    A("s_mul_i32 s35, s35, s32")
    A("s_add_u32 s34, s34, s35")
    A("s_lshl_b32 s38, s32, 5")
    unit_dma_voff(A, V_WD, "s43", None, "s32", 24, 25)
    A(f"v_lshrrev_b32 v24, 3, {v(VL)}")
    A("v_lshrrev_b32 v25, 1, v24")
    A(f"v_xor_b32 v25, v25, {v(VL)}")
    A("v_and_b32 v25, 7, v25")
    A(f"v_mul_u32_u24 {v(V_XD)}, 896, v24")
    A(f"v_lshl_add_u32 {v(V_XD)}, v25, 4, {v(V_XD)}")
    A(f"v_xor_b32 {v(V_XD2)}, 64, {v(V_XD)}")
    A(f"v_add_u32 {v(V_XD2)}, {8*896-1024}, {v(V_XD2)}")
    A("s_lshl_b32 s35, s17, 3")
    A("s_add_u32 s35, s35, s19")
    A(f"s_mul_i32 s35, s35, {RT_BYTES}")
    A(f"v_lshrrev_b32 v24, 1, {v(VI)}")
    A(f"v_xor_b32 v24, v24, {v(VG)}")
    A("v_lshlrev_b32 v24, 4, v24")
    A(f"v_lshl_add_u32 v24, {v(VI)}, 7, v24")
    A("s_lshl_b32 s42, s40, 12")
    A(f"v_add_u32 {v(V_XR[0])}, s42, v24")
    A(f"v_xor_b32 {v(V_XR[2])}, 64, {v(V_XR[0])}")
    A(f"v_add_u32 {v(V_XR[1])}, {2*SLOT}, {v(V_XR[0])}")
    A(f"v_add_u32 {v(V_XR[3])}, {2*SLOT}, {v(V_XR[2])}")
    A("s_cmp_lt_u32 s33, 21")
    A("s_cbranch_scc1 k1_natb")
    unit_bases(A, V_TB[0], "pair", 24, 25, 26)
    A("s_branch k1_basesdone")
    A.label("k1_natb")
    unit_bases(A, V_TB[0], "nat", 24, 25, 26)
    A.label("k1_basesdone")
    big_bases_finish(A)
    A("s_lshl_b32 s47, s2, 3")
    A("s_add_u32 s47, s47, s19")
    A("s_mul_i32 s56, s47, 896")
    A(f"s_add_u32 s57, s56, {1792*896}")
    A(f"v_lshlrev_b32 v24, 4, {v(VL)}")
    for r in range(188, 200):
        A(f"v_mov_b32 v{r}, 0")
    A("s_lshl_b32 s39, s17, 7")
    A("s_lshl_b32 s42, s40, 5")
    A("s_add_u32 s39, s39, s42")
    A("s_waitcnt lgkmcnt(0)")
    A.srd(20, 4, 5, ACT_BYTES)
    A(f"s_mov_b32 s26, {D*D*2}")
    A("s_cmp_lt_u32 s33, 21")
    A("s_cselect_b32 s24, s6, s8")
    A("s_cselect_b32 s25, s7, s9")
    A(f"s_cselect_b32 s26, {D*3*D*2}, s26")
    A("s_and_b32 s25, s25, 0xffff")
    A("s_mov_b32 s27, 0x00020000")
    A.srd(28, 12, 13, WS_SIZE)
    A.srd(48, 10, 11, D * 2)
    ex56(A)
    A.vmem("buffer_load_dwordx4 v[188:191], v24, s[20:23], s56 offen", "gate")
    A.vmem("buffer_load_dwordx4 v[192:195], v24, s[20:23], s57 offen", "gate")
    A.vmem("buffer_load_dwordx4 v[196:199], v24, s[48:51], 0 offen", "gate")
    exall(A)
    for ds in range(2):
        for p in big_dma_parts(A, ds, 128, V_XD2):
            p()
    stamp(A, 1)
    big_zero(A)
    A.vm_wait("gate")
    T, U = 140, 148
    for j in range(4):
        A(f"v_lshlrev_b32 {v(T+2*j)}, 16, {v(196+j)}")
        A(f"v_and_b32 {v(T+2*j+1)}, 0xffff0000, {v(196+j)}")
    for rr in range(2):
        for j in range(4):
            A(f"v_lshlrev_b32 {v(U+2*j)}, 16, {v(188+4*rr+j)}")
            A(f"v_and_b32 {v(U+2*j+1)}, 0xffff0000, {v(188+4*rr+j)}")
        for j in range(4):
            A(f"v_pk_mul_f32 {v(U+2*j,2)}, {v(U+2*j,2)}, {v(T+2*j,2)}")
        for j in range(8):
            rbf(A, U + j)
        z = 160
        A(f"v_add_f32 {v(z)}, {v(U)}, {v(U+1)}")
        for j in range(2, 8):
            A(f"v_add_f32 {v(z)}, {v(z)}, {v(U+j)}")
        for ror in (8, 4, 2, 1):
            A("s_nop 1")
            A(f"v_add_f32_dpp {v(z)}, {v(z)}, {v(z)} row_ror:{ror} row_mask:0xf bank_mask:0xf")
        xlane_g(A, "v_add_f32", z, U, U + 1)
        rbf(A, z)
        A(f"v_mul_f32 {v(z)}, {f32bits(-LOG2E):#x}, {v(z)}")
        A(f"v_exp_f32 {v(z)}, {v(z)}")
        A("s_nop 0")
        A(f"v_add_f32 {v(z)}, 1.0, {v(z)}")
        A(f"v_rcp_f32 {v(z)}, {v(z)}")
        A("s_nop 0")
        rbf(A, z)
        A("s_lshl_b32 s56, s47, 2")
        A(f"s_add_u32 s56, s56, {WS_G + 1792*4*rr}")
        A(f"v_mov_b32 {v(U)}, 0")
        A("s_mov_b64 exec, 1")
        A(f"buffer_store_dword {v(z)}, {v(U)}, s[28:31], s56 offen")
        if rr == 0:
            A.vm.append("gst")
        A("s_mov_b64 exec, -1")
        if rr == 0:
            A("s_cmp_ge_u32 s2, 32")
            A("s_cbranch_scc1 k1_gdone")
    A.label("k1_gdone")
    snap = A.vm_snapshot()
    PK = 32
    A("s_cmp_ge_u32 s33, 21")
    A("s_cbranch_scc1 k1_w1")
    A("s_cmp_ge_u32 s33, 14")
    A("s_cbranch_scc1 k1_v")

    def head_end(base_unit_s):
        A(f"s_lshl_b32 s58, {base_unit_s}, 4")
        A("s_mul_i32 s59, s58, 9363")
        A("s_lshr_b32 s59, s59, 16")

    A.vm_restore(snap)
    big_mainloop(A, False, 128, V_XD2, True)
    A("s_barrier")
    A("s_cmp_ge_u32 s33, 7")
    A("s_cselect_b32 s43, 7, 0")
    A(f"s_cselect_b32 s42, {WS_K}, 0")
    A("s_sub_u32 s46, s33, s43")
    A("s_lshl_b32 s43, s39, 6")
    A("s_add_u32 s42, s42, s43")
    A("s_lshl_b32 s43, s46, 4")
    for t in range(4):
        A(f"v_add_u32 v24, s43, {v(VG)}")
        A(f"v_add_u32 v24, {4*t}, v24")
        div7(A, 25, 24)
        A("v_mul_u32_u24 v26, 7, v25")
        A("v_sub_u32 v26, v24, v26")
        A(f"v_lshlrev_b32 {v(4+t)}, 17, v25")
        A("v_lshrrev_b32 v24, 1, v26")
        A(f"v_lshl_add_u32 {v(4+t)}, v24, 8, {v(4+t)}")
        A("v_and_b32 v26, 1, v26")
        A(f"v_lshl_add_u32 {v(4+t)}, v26, 3, {v(4+t)}")
        A(f"v_lshl_add_u32 {v(4+t)}, {v(VI)}, 4, {v(4+t)}")
    for j in range(2):
        for t in range(4):
            pk, src = PK + 8 * j + 2 * t, ACC + 16 * j + 4 * t
            A(f"v_cvt_pk_bf16_f32 {v(pk)}, {v(src)}, {v(src+1)}")
            A(f"v_cvt_pk_bf16_f32 {v(pk+1)}, {v(src+2)}, {v(src+3)}")
            A(f"buffer_store_dwordx2 {v(pk,2)}, {v(4+t)}, s[28:31], s42 offen offset:{1024*j}")
    head_end("s46")
    A(f"v_add_u32 v24, s59, {v(VG)}")
    A("v_mul_u32_u24 v25, 7, v24")
    A("v_add_u32 v25, 6, v25")
    A("s_add_u32 s58, s58, 16")
    A("v_cmp_gt_u32 vcc, s58, v25")
    A("v_lshlrev_b32 v24, 17, v24")
    A(f"v_lshl_add_u32 v24, {v(VI)}, 4, v24")
    A("v_mov_b32 v26, 0")
    A("v_mov_b32 v27, 0")
    A("s_and_saveexec_b64 s[44:45], vcc")
    for j in range(2):
        A(f"buffer_store_dwordx2 v[26:27], v24, s[28:31], s42 offen offset:{1024*j+776}")
    A("s_mov_b64 exec, -1")
    A("s_branch k1_gate")
    A.label("k1_v")
    A("s_cmp_eq_u32 s33, 20")
    A("s_cbranch_scc1 k1_vs")
    for st in (None, "sum"):
        if st:
            A.label("k1_vs")
        A.vm_restore(snap)
        big_mainloop(A, True, 128, V_XD2, True, stat=st)
        if st:
            A(f"v_lshlrev_b32 v24, 3, {v(VI)}")
            A("s_lshl_b32 s43, s40, 8")
            A(f"s_add_u32 s43, s43, {L_EX+512}")
            A("v_add_u32 v24, s43, v24")
            A("s_nop 7")
            A("s_mov_b64 exec, 0xffff")
            for j in range(2):
                A(f"ds_write_b32 v24, {v(ASTAT+4*j)} offset:{128*j}")
            A("s_mov_b64 exec, -1")
            A("s_waitcnt lgkmcnt(0)")
        A("s_barrier")
        if not st:
            A("s_branch k1_vepi")
    A.label("k1_vepi")
    A("s_sub_u32 s46, s33, 14")
    A("s_lshl_b32 s43, s39, 6")
    A(f"s_add_u32 s42, s43, {WS_V}")
    A("s_lshl_b32 s43, s46, 6")
    for t in range(4):
        o = 4 + t
        A(f"v_add_u32 v24, s43, {v(VI)}")
        A(f"v_add_u32 v24, {16*t}, v24")
        A("v_mul_u32_u24 v25, 2341, v24")
        A("v_lshrrev_b32 v25, 16, v25")
        A("v_mul_u32_u24 v26, 28, v25")
        A("v_sub_u32 v26, v24, v26")
        A(f"v_lshlrev_b32 {v(o)}, 17, v25")
        A("v_lshrrev_b32 v27, 4, v26")
        A(f"v_lshl_add_u32 {v(o)}, v27, 10, {v(o)}")
        A("v_and_b32 v27, 15, v26")
        A(f"v_lshl_add_u32 {v(o)}, v27, 4, {v(o)}")
        A(f"v_lshl_add_u32 {v(o)}, {v(VG)}, 8, {v(o)}")
    for t in range(4):
        pk = PK + 4 * t
        for j in range(2):
            src = ACC + 16 * j + 4 * t
            A(f"v_cvt_pk_bf16_f32 {v(pk+2*j)}, {v(src)}, {v(src+1)}")
            A(f"v_cvt_pk_bf16_f32 {v(pk+2*j+1)}, {v(src+2)}, {v(src+3)}")
        A(f"buffer_store_dwordx4 {v(pk,4)}, {v(4+t)}, s[28:31], s42 offen")
    head_end("s46")
    A(f"v_add_u32 v24, s59, {v(VG)}")
    A("v_mul_u32_u24 v25, 7, v24")
    A("v_add_u32 v25, 6, v25")
    A("s_add_u32 s58, s58, 16")
    A("v_lshlrev_b32 v24, 17, v24")
    A(f"v_lshrrev_b32 v26, 2, {v(VI)}")
    A("v_lshl_add_u32 v24, v26, 4, v24")
    A(f"v_and_b32 v27, 3, {v(VI)}")
    A("v_lshl_add_u32 v24, v27, 8, v24")
    A("v_cmp_eq_u32 vcc, 0, v26")
    A("v_mov_b32 v27, 0x3f803f80")
    A("s_nop 0")
    A("v_cndmask_b32 v48, 0, v27, vcc")
    for r in range(1, 4):
        A(f"v_mov_b32 v{48+r}, v48")
    A("v_cmp_gt_u32 vcc, s58, v25")
    A("s_and_saveexec_b64 s[44:45], vcc")
    A(f"buffer_store_dwordx4 v[48:51], v24, s[28:31], s42 offen offset:{1024+12*16}")
    A("s_mov_b64 exec, -1")
    A("s_branch k1_gate")
    A.label("k1_w1")
    A("s_cmp_eq_u32 s41, 1")
    A("s_cbranch_scc1 k1_w11")
    MR, RS, CS = [140, 142], [144, 146], 48
    for ch in range(2):
        if ch:
            A.label("k1_w11")
        A.vm_restore(snap)
        big_mainloop(A, False, 128, V_XD2, True, stat=("sum", "sq")[ch], cs=True)
        A(f"v_lshlrev_b32 v24, 3, {v(VI)}")
        A("s_lshl_b32 s43, s40, 8")
        A(f"s_add_u32 s43, s43, {L_EX+512}")
        A("v_add_u32 v24, s43, v24")
        A("s_nop 3")
        cs_write(A, 25)
        if ch == 0:
            A("s_mov_b64 exec, 0xffff")
            for j in range(2):
                A(f"ds_write_b32 v24, {v(ASTAT+4*j)} offset:{128*j}")
            A("s_mov_b64 exec, -1")
            A("s_branch k1_w1x")
        else:
            A(f"v_lshrrev_b32 v27, 2, {v(VI)}")
            A(f"v_and_b32 v28, 3, {v(VI)}")
            for r in range(4):
                A(f"v_cmp_eq_u32 s[44:45], v27, {v(VG)}")
                A(f"v_cmp_eq_u32 vcc, {r}, v28")
                A("s_and_b64 exec, vcc, s[44:45]")
                for j in range(2):
                    A(f"ds_write_b32 v24, {v(ASTAT+4*j+r)} offset:{128*j+4}")
                A("s_mov_b64 exec, -1")
    A.label("k1_w1x")
    A("s_waitcnt lgkmcnt(0)")
    A("s_barrier")
    for k in range(4):
        A(f"ds_read_b128 {v(CS+4*k,4)}, v25 offset:{64*k}")
    for j in range(2):
        A(f"ds_read_b64 {v(28+2*j,2)}, v24 offset:{128*j}")
    consts = gelu_consts(A, 148)
    A.srd_off(52, 12, 13, WS_HS, ACT_BYTES)
    A("s_lshl_b32 s43, s46, 3")
    for tp in range(2):
        A(f"v_add_u32 v24, s43, {v(VG)}")
        if tp:
            A("v_add_u32 v24, 4, v24")
        A("v_mul_u32_u24 v25, 4682, v24")
        A("v_lshrrev_b32 v25, 16, v25")
        A("v_lshrrev_b32 v26, 1, v25")
        A("v_add_u32 v26, 1, v26")
        A("v_and_b32 v25, 1, v25")
        A("v_sub_u32 v27, 0, v25")
        A("v_xor_b32 v26, v26, v27")
        A("v_add_u32 v26, v26, v25")
        A(f"v_add_u32 v26, v26, {v(VI)}")
        A("v_add_u32 v26, s39, v26")
        for j in range(2):
            o = 4 + 2 * j + tp
            if j:
                A("v_add_u32 v26, 16, v26")
            A("v_lshrrev_b32 v25, 4, v26")
            A("v_mul_u32_u24 v25, 14336, v25")
            A("v_and_b32 v27, 15, v26")
            A("v_lshl_add_u32 v25, v27, 4, v25")
            A("v_lshl_add_u32 v25, v24, 8, v25")
            A("v_cmp_gt_u32 vcc, 2048, v26")
            A("v_mov_b32 v27, 0x80000000")
            A("s_nop 0")
            A(f"v_cndmask_b32 {v(o)}, v27, v25, vcc")
    A("s_waitcnt lgkmcnt(0)")
    for j in range(2):
        m, q = MR[j], RS[j]
        A(f"v_mul_f32 {v(m)}, {f32bits(1.0/448):#x}, {v(28+2*j)}")
        A(f"v_mul_f32 {v(q)}, {f32bits(1.0/448):#x}, {v(29+2*j)}")
        A(f"v_fma_f32 {v(q)}, -{v(m)}, {v(m)}, {v(q)}")
        A(f"v_max_f32 {v(q)}, 0, {v(q)}")
        ln_finish(A, m, q)
        A(f"v_mov_b32 {v(m+1)}, {v(m)}")
        A(f"v_mov_b32 {v(q+1)}, {v(q)}")

    def st(j, pk):
        for tp in range(2):
            A(f"buffer_store_dwordx4 {v(pk+4*tp,4)}, {v(4+2*j+tp)}, s[52:55], 0 offen")

    gelu_epilogue(A, CS, MR, RS, consts, 156, 32, st)
    A("s_cmp_lg_u32 s40, 0")
    A("s_cbranch_scc1 k1_gate")
    A("s_cmp_eq_u32 s17, 0")
    A("s_cselect_b32 s44, 0, 1")
    A("s_cbranch_scc1 k1_z")
    A("s_cmp_lg_u32 s17, 15")
    A("s_cbranch_scc1 k1_gate")
    A.label("k1_z")
    A(f"v_and_b32 v24, 7, {v(VL)}")
    A("v_add_u32 v24, s43, v24")
    A("v_mul_u32_u24 v25, 4682, v24")
    A("v_lshrrev_b32 v25, 16, v25")
    A(f"v_lshrrev_b32 v26, 3, {v(VL)}")
    A("v_lshrrev_b32 v27, 1, v25")
    A("v_cmp_le_u32 s[58:59], v26, v27")
    A("v_and_b32 v25, 1, v25")
    A("v_cmp_eq_u32 vcc, s44, v25")
    A("s_and_b64 s[58:59], s[58:59], vcc")
    A("v_sub_u32 v27, 15, v26")
    A("s_cmp_eq_u32 s44, 0")
    A(f"s_cselect_b32 s45, 0, {127*14336}")
    A("s_cbranch_scc1 k1_z2")
    A("v_mov_b32 v26, v27")
    A.label("k1_z2")
    A("v_lshlrev_b32 v26, 4, v26")
    A("v_lshl_add_u32 v26, v24, 8, v26")
    for r in range(4):
        A(f"v_mov_b32 {v(28+r)}, 0")
    A("s_mov_b64 exec, s[58:59]")
    A("buffer_store_dwordx4 v[28:31], v26, s[52:55], s45 offen")
    A("s_mov_b64 exec, -1")
    A.label("k1_gate")
    stamp_end(A, 0)
    A.label(Lend)
    A("s_endpgm")
    A.label("k1_pf")
    A("s_cmp_ge_u32 s2, 256")
    A(f"s_cbranch_scc1 {Lend}")
    A("s_load_dwordx2 s[4:5], s[0:1], 16")
    A("s_load_dwordx2 s[6:7], s[0:1], 40")
    A("s_load_dwordx4 s[8:11], s[0:1], 48")
    A(f"s_sub_u32 s14, s2, {NWG}")
    A("s_lshl_b32 s14, s14, 13")
    A("v_lshlrev_b32 v1, 4, v0")
    A("v_add_u32 v1, s14, v1")
    A("s_waitcnt lgkmcnt(0)")
    n = 0
    for lo, hi, size in ((6, 7, D * D * 2), (8, 9, D * F * 2), (4, 5, D * D * 2), (10, 11, D * F * 2)):
        A.srd(20, lo, hi, size)
        for off in range(0, size, 262144):
            A(f"s_mov_b32 s15, {off}")
            A(f"buffer_load_dwordx4 {v(4+4*n,4)}, v1, s[20:23], s15 offen")
            n += 1
    A("s_endpgm")
    return "k1_kernel", A.text(), BIG_NV, BIG_NV, 512, BIG_LDS, 256


def gen_k3():
    A = Asm()
    Lend = "k3_end"
    A(f"s_cmp_ge_u32 s2, {NWG}")
    A(f"s_cbranch_scc1 {Lend}")
    stamp(A, 0)
    A("s_load_dwordx2 s[6:7], s[0:1], 48")
    A("s_load_dwordx2 s[12:13], s[0:1], 88")
    lane_setup(A)
    big_decode(A)
    PITCH = F * 2
    A(f"s_mul_i32 s34, s40, {8*PITCH}")
    A("s_lshl_b32 s35, s33, 7")
    A("s_add_u32 s34, s34, s35")
    A(f"s_mov_b32 s38, {32*PITCH}")
    A("s_and_b32 s42, s40, 2")
    A("s_lshl_b32 s42, s42, 1")
    unit_dma_voff(A, V_WD, "s43", "s42", PITCH, 24, 25)
    A(f"v_lshlrev_b32 {v(V_XD)}, 4, {v(VL)}")
    A("s_lshl_b32 s35, s17, 3")
    A("s_add_u32 s35, s35, s19")
    A(f"s_mul_i32 s35, s35, {RT_BYTES}")
    A(f"s_add_u32 s35, s35, {WS_X1}")
    A("s_lshl_b32 s42, s40, 12")
    A(f"v_add_u32 {v(V_XR[0])}, s42, {v(V_XD)}")
    A(f"v_add_u32 {v(V_XR[1])}, {2*SLOT}, {v(V_XR[0])}")
    unit_bases(A, V_TB[0], "pair", 24, 25, 26)
    big_bases_finish(A)
    A("s_lshl_b32 s39, s17, 3")
    A("s_lshl_b32 s42, s40, 1")
    A("s_add_u32 s39, s39, s42")
    A("s_lshl_b32 s42, s39, 4")
    A(f"v_add_u32 v24, s42, {v(VI)}")
    A("v_lshlrev_b32 v24, 6, v24")
    A(f"v_lshl_add_u32 v24, {v(VG)}, 4, v24")
    A(f"s_mov_b32 s46, {WS_ST}")
    A("s_waitcnt lgkmcnt(0)")
    A.srd(24, 6, 7, D * F * 2)
    A.srd(28, 12, 13, WS_SIZE)
    A.srd(20, 12, 13, WS_SIZE)
    for ds in range(2):
        for p in big_dma_parts(A, ds, 2048, V_XD):
            p()
    A.vmem("buffer_load_dwordx4 v[192:195], v24, s[28:31], s46 offen", "st")
    A.vmem("buffer_load_dwordx4 v[196:199], v24, s[28:31], s46 offen offset:1024", "st")
    stamp(A, 1)
    big_zero(A)
    big_mainloop(A, False, 2048, V_XD, False, cs=True)
    MR, RS, CS = [140, 142], [144, 146], 48
    A("s_mov_b32 exec_lo, 0")
    A("s_mov_b32 exec_hi, 0xffff0000")
    for r in (194, 195, 198, 199):
        A(f"v_mov_b32 v{r}, 0")
    A("s_mov_b64 exec, -1")
    for j in range(2):
        b = 192 + 4 * j
        m, q = MR[j], RS[j]
        A(f"v_add_f32 {v(m)}, {v(b)}, {v(b+2)}")
        xlane_g(A, "v_add_f32", m, 24, 25)
        A(f"v_mul_f32 {v(m)}, {f32bits(1.0/448):#x}, {v(m)}")
        A(f"v_add_f32 {v(q)}, {v(b+1)}, {v(b+3)}")
        A(f"v_mul_f32 {v(b)}, {f32bits(1.0/64):#x}, {v(b)}")
        A(f"v_mul_f32 {v(b+2)}, {f32bits(1.0/64):#x}, {v(b+2)}")
        A(f"v_sub_f32 {v(b)}, {v(b)}, {v(m)}")
        A(f"v_sub_f32 {v(b+2)}, {v(b+2)}, {v(m)}")
        A(f"v_mul_f32 {v(b)}, {v(b)}, {v(b)}")
        ex48(A)
        A(f"v_fmac_f32 {v(b)}, {v(b+2)}, {v(b+2)}")
        exall(A)
        A(f"v_fmamk_f32 {v(q)}, {v(b)}, {f32bits(64.0):#x}, {v(q)}")
        if j == 0:
            cs_write(A, 26)
            A("s_waitcnt lgkmcnt(0)")
            A("s_barrier")
            for k in range(4):
                A(f"ds_read_b128 {v(CS+4*k,4)}, v26 offset:{64*k}")
        xlane_g(A, "v_add_f32", q, 24, 25)
        A(f"v_mul_f32 {v(q)}, {f32bits(1.0/448):#x}, {v(q)}")
        ln_finish(A, m, q)
        A(f"v_mov_b32 {v(m+1)}, {v(m)}")
        A(f"v_mov_b32 {v(q+1)}, {v(q)}")
    consts = gelu_consts(A, 148)
    A(f"s_mul_i32 s42, s39, {H3_RT_BYTES}")
    A("s_lshl_b32 s43, s33, 11")
    A("s_add_u32 s42, s42, s43")
    A(f"s_add_u32 s42, s42, {WS_H3}")
    A(f"s_add_u32 s43, s42, {H3_RT_BYTES}")
    A("s_waitcnt lgkmcnt(0)")

    def st(j, pk):
        for tp in range(2):
            A(f"buffer_store_dwordx4 {v(pk+4*tp,4)}, {v(V_XD)}, s[28:31], s{42+j} offen offset:{1024*tp}")

    gelu_epilogue(A, CS, MR, RS, consts, 156, 32, st)
    stamp_end(A, 2)
    A.label(Lend)
    A("s_endpgm")
    return "k3_kernel", A.text(), BIG_NV, BIG_NV, 512, BIG_LDS, NWG


def small_decode(A):
    A("s_mul_i32 s16, s15, 9363")
    A("s_lshr_b32 s16, s16, 16")
    A("s_mul_i32 s18, s16, 7")
    A("s_sub_u32 s18, s15, s18")
    A("s_lshl_b32 s17, s14, 2")
    A("s_add_u32 s17, s17, s16")


L2_K, L2_V, L2_W = 0, 24576, 49152
L2_CNT = L2_W + 14 * 4096


def gen_k2():
    A = Asm()
    Lend = "k2_end"
    A("s_cmp_ge_u32 s2, 256")
    A(f"s_cbranch_scc1 {Lend}")
    stamp(A, 0)
    A("s_load_dwordx2 s[4:5], s[0:1], 0")
    A("s_load_dwordx2 s[6:7], s[0:1], 40")
    A("s_load_dwordx2 s[12:13], s[0:1], 88")
    lane_setup(A)
    A("s_and_b32 s14, s2, 7")
    A("s_lshr_b32 s15, s2, 3")
    A(f"v_lshlrev_b32 v7, 4, {v(VL)}")
    A("s_cmp_ge_u32 s19, 8")
    A("s_cbranch_scc1 k2_gemm")
    A("s_lshr_b32 s16, s15, 4")
    A("s_lshl_b32 s18, s14, 1")
    A("s_add_u32 s18, s18, s16")
    A("s_and_b32 s17, s15, 15")
    A("s_lshl_b32 s20, s18, 17")
    A("s_lshl_b32 s21, s17, 13")
    A("s_add_u32 s20, s20, s21")
    A("s_mul_i32 s21, s19, 3072")
    A("s_add_u32 s22, s20, s21")
    A(f"s_add_u32 s23, s22, {WS_V - 16384}")
    A(f"s_add_u32 s22, s22, {WS_K - 16384}")
    A("s_mov_b32 m0, s21")
    A("s_lshl_b32 s24, s19, 10")
    A("s_add_u32 s24, s24, s20")
    A("s_waitcnt lgkmcnt(0)")
    A.srd(28, 12, 13, WS_SIZE)
    QF, C0, C16, FB, SC, PB, TM, OA = 8, 12, 16, 20, 36, 104, 140, 160
    for j in range(3):
        A.vmem(f"buffer_load_dwordx4 v7, s[28:31], s22 offen offset:{1024*j} lds", "k")
    A.vmem(f"buffer_load_dwordx4 {v(QF,4)}, v7, s[28:31], s24 offen", "k")
    A(f"s_add_u32 m0, s21, {L2_V}")
    A("s_nop 0")
    for j in range(3):
        A.vmem(f"buffer_load_dwordx4 v7, s[28:31], s23 offen offset:{1024*j} lds", "v")
    for r in range(4):
        A(f"v_lshl_add_u32 {v(TM)}, {v(VG)}, 2, {r}")
        A(f"v_mov_b32 {v(TM+1)}, {NEGBIG:#x}")
        A(f"v_cmp_gt_u32 vcc, {v(TM)}, {v(VI)}")
        A("s_nop 1")
        A(f"v_cndmask_b32 {v(C0+r)}, {v(TM+1)}, 0, vcc")
        A(f"v_cndmask_b32 {v(C16+r)}, 0, {v(TM+1)}, vcc")
    A("s_lshl_b32 s25, s19, 10")
    A("v_add_u32 v4, s25, v7")
    A("s_lshr_b32 s25, s19, 1")
    A("s_lshl_b32 s25, s25, 11")
    A(f"s_add_u32 s25, s25, {L2_V}")
    A("v_add_u32 v5, s25, v7")
    A("s_lshl_b32 s25, s17, 3")
    A("s_add_u32 s25, s25, s19")
    A("s_sub_i32 s25, 16, s25")
    A("s_mul_i32 s26, s18, 7")
    A(f"v_add_u32 v6, s26, {v(VG)}")
    A(f"v_and_b32 {v(TM)}, 1, v6")
    A("v_lshrrev_b32 v6, 1, v6")
    A("v_lshlrev_b32 v6, 8, v6")
    A(f"v_lshl_add_u32 v6, {v(TM)}, 3, v6")
    A(f"v_lshl_add_u32 v6, {v(VI)}, 4, v6")
    A("s_lshl_b32 s26, s17, 3")
    A("s_add_u32 s26, s26, s19")
    A(f"s_mul_i32 s26, s26, {RT_BYTES}")
    A(f"s_add_u32 s26, s26, {WS_O}")
    KL, NB = TM + 17, TM + 18
    A(f"v_mov_b32 {v(KL)}, {f32bits(SCALE*LOG2E):#x}")
    for r in range(8):
        A(f"v_mov_b32 {v(OA+r)}, 0")
    stamp(A, 1)
    A.vm_wait("v")
    A("s_barrier")
    stamp(A, 2)
    for i in range(3):
        A(f"ds_read_b128 {v(FB+4*(i%4),4)}, v4 offset:{1024*i}")
    for i in range(17):
        if i + 3 < 17:
            A(f"ds_read_b128 {v(FB+4*((i+3)%4),4)}, v4 offset:{1024*(i+3)}")
        A(f"s_waitcnt lgkmcnt({min(3, 16-i)})")
        c = v(C0, 4) if i == 0 else (v(C16, 4) if i == 16 else "0")
        if i < 16:
            l1, l2 = A.newlabel("k2i"), A.newlabel("k2j")
            A(f"s_cmp_gt_i32 s25, {i}")
            A(f"s_cbranch_scc1 {l1}")
        A(f"v_mfma_f32_16x16x32_bf16 {v(SC+4*i,4)}, {v(FB+4*(i%4),4)}, {v(QF,4)}, {c}")
        if i < 16:
            A(f"s_branch {l2}")
            A.label(l1)
            for r in range(4):
                A(f"v_mov_b32 {v(SC+4*i+r)}, {NEGBIG:#x}")
            A.label(l2)
    stamp(A, 3)
    A("s_nop 4")
    M = TM
    A(f"v_max3_f32 {v(M)}, {v(SC)}, {v(SC+1)}, {v(SC+2)}")
    A(f"v_max3_f32 {v(M+1)}, {v(SC+3)}, {v(SC+4)}, {v(SC+5)}")
    idx, k = 6, 0
    while idx < 68:
        A(f"v_max3_f32 {v(M+k)}, {v(M+k)}, {v(SC+idx)}, {v(SC+idx+1)}")
        idx += 2
        k ^= 1
    A(f"v_max_f32 {v(M)}, {v(M)}, {v(M+1)}")
    xlane_g(A, "v_max_f32", M, M + 1, M + 2)
    A(f"v_mul_f32 {v(NB)}, {v(KL)}, {v(M)}")
    A(f"v_sub_f32 {v(NB)}, 0, {v(NB)}")
    for j in range(2):
        A(f"ds_read_b128 {v(FB+4*j,4)}, v5 offset:{1024*j}")
    A("s_bitcmp1_b32 s19, 0")
    A("s_cbranch_scc1 k2_odd")
    for par in range(2):
        if par:
            A.label("k2_odd")
        zs = 17 if par == 0 else 0
        A(f"v_mov_b32 {v(PB+2*zs)}, 0")
        A(f"v_mov_b32 {v(PB+2*zs+1)}, 0")
        nread = 2
        for c in range(9):
            els = []
            for half in range(2):
                slot = 2 * c + half
                if slot != zs:
                    els += [SC + 4 * (slot - par) + r for r in range(4)]
            for e in els:
                A(f"v_fma_f32 {v(e)}, {v(e)}, {v(KL)}, {v(NB)}")
            for e in els:
                A(f"v_exp_f32 {v(e)}, {v(e)}")
            while nread < min(18, 2 * c + 4):
                A(f"ds_read_b128 {v(FB+4*(nread%4),4)}, v5 offset:{1024*nread}")
                nread += 1
            A("s_nop 0")
            for half in range(2):
                slot = 2 * c + half
                if slot == zs:
                    continue
                i = slot - par
                A(f"v_cvt_pk_bf16_f32 {v(PB+2*slot)}, {v(SC+4*i)}, {v(SC+4*i+1)}")
                A(f"v_cvt_pk_bf16_f32 {v(PB+2*slot+1)}, {v(SC+4*i+2)}, {v(SC+4*i+3)}")
            A(f"s_waitcnt lgkmcnt({nread - (2*c+2)})")
            A("s_nop 0")
            for dt in range(2):
                A(f"v_mfma_f32_16x16x32_bf16 {v(OA+4*dt,4)}, {v(FB+4*((2*c+dt)%4),4)}, {v(PB+4*c,4)}, {v(OA+4*dt,4)}")
        if par == 0:
            A("s_branch k2_attn_out")
    A.label("k2_attn_out")
    A("s_nop 7")
    A(f"v_mov_b32 {v(TM)}, 0")
    A("s_mov_b32 exec_lo, 0")
    A("s_mov_b32 exec_hi, 0xffff0000")
    A(f"v_mov_b32 {v(TM)}, {v(OA+4)}")
    A("s_mov_b64 exec, -1")
    xlane_g(A, "v_add_f32", TM, TM + 1, TM + 2)
    A(f"v_rcp_f32 {v(TM)}, {v(TM)}")
    A("s_nop 0")
    for r in range(8):
        A(f"v_mul_f32 {v(OA+r)}, {v(TM)}, {v(OA+r)}")
    for r in range(4):
        A(f"v_cvt_pk_bf16_f32 {v(TM+4+r)}, {v(OA+2*r)}, {v(OA+2*r+1)}")
    A(f"buffer_store_dwordx2 {v(TM+4,2)}, v6, s[28:31], s26 offen")
    ex48(A)
    A(f"buffer_store_dwordx2 {v(TM+6,2)}, v6, s[28:31], s26 offen offset:512")
    stamp_end(A, 1)
    A("s_endpgm")
    A.label("k2_gemm")
    A.vm_restore([])
    A(f"s_cmp_ge_u32 s2, {NWG}")
    A(f"s_cbranch_scc1 {Lend}")
    A("s_setprio 2")
    A("s_sub_u32 s19, s19, 8")
    small_decode(A)
    A("s_lshl_b32 s32, s17, 2")
    A("s_add_u32 s32, s32, s19")
    A(f"s_mul_i32 s33, s32, {RT_BYTES}")
    A(f"s_add_u32 s34, s33, {WS_HS}")
    for j in range(1, 4):
        A(f"s_add_u32 s{34+j}, s34, {4096*j}")
    AF, WFB, AC, XR, TB = 32, 88, 120, 136, 16
    A("s_and_b32 s38, s19, 1")
    A("s_lshl_b32 s38, s38, 2")
    A("s_and_b32 s39, s19, 2")
    A("s_lshl_b32 s39, s39, 1")
    unit_dma_voff(A, 5, "s38", "s39", 896, 8, 9)
    A("s_lshl_b32 s38, s18, 7")
    A(f"s_mul_i32 s39, s19, {8*896}")
    A("s_add_u32 s38, s38, s39")
    A("s_lshl_b32 s39, s19, 10")
    A(f"s_add_u32 s39, s39, {L2_W}")
    A("s_lshl_b32 s40, s32, 4")
    A(f"v_add_u32 v8, s40, {v(VI)}")
    A("v_mul_u32_u24 v9, 896, v8")
    A(f"v_lshl_add_u32 v9, {v(VG)}, 4, v9")
    A(f"v_lshrrev_b32 v10, 1, {v(VG)}")
    A("v_lshlrev_b32 v10, 3, v10")
    A("v_xor_b32 v11, 8, v10")
    A("v_add_u32 v11, v11, v9")
    A("v_add_u32 v9, v10, v9")
    A("s_lshl_b32 s40, s18, 7")
    for r in range(16):
        A(f"v_mov_b32 {v(AC+r)}, 0")
    unit_bases(A, TB, "pair", 12, 13, 14)
    for t in range(4):
        A(f"v_add_u32 {v(TB+t)}, {L2_W}, {v(TB+t)}")
    A(f"v_mov_b32 v10, {L2_CNT}")
    A("v_mov_b32 v12, 0")
    A("ds_write_b32 v10, v12")
    A("s_waitcnt lgkmcnt(0)")
    A.srd(20, 4, 5, ACT_BYTES)
    A.srd(24, 6, 7, D * D * 2)
    A.srd(28, 12, 13, WS_SIZE)
    A("s_barrier")
    stamp(A, 1)
    for u in range(14):
        A("s_mov_b32 m0, s39")
        A("s_add_u32 s39, s39, 4096")
        A.vmem("buffer_load_dwordx4 v5, s[24:27], s38 offen lds", "w")
        A(f"s_add_u32 s38, s38, {32*896}")
    for sx in range(14):
        A.vmem(f"buffer_load_dwordx4 {v(AF+4*sx,4)}, v7, s[28:31], s{34+sx//4} offen offset:{1024*(sx%4)}", ("a", sx))
    for tp in range(2):
        A.vmem(f"buffer_load_dwordx2 {v(XR+4*tp,2)}, v9, s[20:23], s40 offen offset:{64*tp}", "x")
        A.vmem(f"buffer_load_dwordx2 {v(XR+4*tp+2,2)}, v11, s[20:23], s40 offen offset:{64*tp}", "x")
    A.vm_wait("w")
    A("v_mov_b32 v12, 1")
    A("s_mov_b64 exec, 1")
    A("ds_add_u32 v10, v12")
    A("s_mov_b64 exec, -1")
    A.label("k2_spin")
    A("ds_read_b32 v12, v10")
    A("s_waitcnt lgkmcnt(0)")
    A("v_readfirstlane_b32 s41, v12")
    A("s_cmp_lt_u32 s41, 4")
    A("s_cbranch_scc1 k2_spin")
    stamp(A, 2)
    for r in unit_reads(TB, 0, WFB):
        A(r)
    for sx in range(14):
        A.vm_wait(("a", sx), " lgkmcnt(0)")
        rd = unit_reads(TB, (sx + 1) * 4096, WFB + 16 * ((sx + 1) & 1)) if sx < 13 else []
        for t in range(4):
            A(f"v_mfma_f32_16x16x32_bf16 {v(AC+4*t,4)}, {v(WFB+16*(sx&1)+4*t,4)}, {v(AF+4*sx,4)}, {v(AC+4*t,4)}")
            for r in rd[4*t:4*t+4] if t < 2 else []:
                A(r)
    stamp(A, 3)
    A.vm_wait("x")
    XU = 32
    for j in range(8):
        A(f"v_lshlrev_b32 {v(XU+2*j)}, 16, {v(XR+j)}")
        A(f"v_and_b32 {v(XU+2*j+1)}, 0xffff0000, {v(XR+j)}")
    for r in range(16):
        rbf(A, AC + r)
    for r in range(16):
        A(f"v_add_f32 {v(AC+r)}, {v(AC+r)}, {v(XU+r)}")
    PK = 48
    for j in range(8):
        A(f"v_cvt_pk_bf16_f32 {v(PK+j)}, {v(AC+2*j)}, {v(AC+2*j+1)}")
    for r in range(16):
        rbf(A, AC + r)
    A("s_lshl_b32 s40, s18, 11")
    A("s_add_u32 s40, s40, s33")
    A(f"s_add_u32 s40, s40, {WS_X1}")
    A(f"buffer_store_dwordx4 {v(PK,4)}, v7, s[28:31], s40 offen")
    A(f"buffer_store_dwordx4 {v(PK+4,4)}, v7, s[28:31], s40 offen offset:1024")
    A(f"v_add_f32 v12, {v(AC)}, {v(AC+1)}")
    for r in range(2, 16):
        A(f"v_add_f32 v12, v12, {v(AC+r)}")
    xlane_g(A, "v_add_f32", 12, 14, 15)
    A(f"v_mul_f32 v14, {f32bits(1.0/64):#x}, v12")
    for r in range(16):
        A(f"v_sub_f32 {v(AC+r)}, {v(AC+r)}, v14")
    A(f"v_mul_f32 v13, {v(AC)}, {v(AC)}")
    for r in range(1, 16):
        A(f"v_fmac_f32 v13, {v(AC+r)}, {v(AC+r)}")
    xlane_g(A, "v_add_f32", 13, 14, 15)
    A("v_lshlrev_b32 v8, 6, v8")
    A("s_lshl_b32 s40, s18, 3")
    A(f"s_add_u32 s40, s40, {WS_ST}")
    A("s_mov_b64 exec, 0xffff")
    A("buffer_store_dwordx2 v[12:13], v8, s[28:31], s40 offen")
    stamp_end(A, 1)
    A.label(Lend)
    A("s_endpgm")
    return "k2_kernel", A.text(), 168, 168, 768, L2_CNT + 64, 256


RS4 = 6
RING = RS4 * 4096
L4_WO = 4 * RING
PF4 = 4


def gen_k4():
    A = Asm()
    Lend = "k4_end"
    A(f"s_cmp_ge_u32 s2, {NWG}")
    A(f"s_cbranch_scc1 {Lend}")
    stamp(A, 0)
    A("s_load_dwordx2 s[4:5], s[0:1], 16")
    A("s_load_dwordx2 s[6:7], s[0:1], 56")
    A("s_load_dwordx2 s[8:9], s[0:1], 72")
    A("s_load_dwordx2 s[12:13], s[0:1], 88")
    lane_setup(A)
    A("s_and_b32 s14, s2, 7")
    A("s_lshr_b32 s15, s2, 3")
    small_decode(A)
    A("s_and_b32 s46, s19, 3")
    A("s_lshr_b32 s47, s19, 2")
    NA = PF4 + 2
    AFB = 32
    WFB = AFB + NA * 8
    ACB = WFB + 32
    OFB = ACB + 32
    AWO = OFB + 28
    WOF = AWO + 16
    XR = WOF + 32
    GR = XR + 4
    NV = (GR + 8) // 8 * 8
    TB, TO = 20, 24
    af = lambda sx, j: AFB + ((sx % NA) * 2 + j) * 4
    ac = lambda j, t: v(ACB + (j * 4 + t) * 4, 4)
    A(f"v_lshlrev_b32 v8, 4, {v(VL)}")
    for m in range(1, 4):
        A(f"v_add_u32 v{8+m}, {4096*m}, v8")
    A("s_lshl_b32 s32, s47, 2")
    unit_dma_voff(A, 4, "0", "s32", 896, 12, 13)
    A("v_xor_b32 v5, 64, v4")
    unit_dma_voff(A, 6, "0", None, 896, 12, 13)
    A("v_xor_b32 v7, 64, v6")
    A("s_lshl_b32 s32, s17, 2")
    A("s_lshl_b32 s33, s47, 1")
    A("s_add_u32 s32, s32, s33")
    A(f"s_mul_i32 s32, s32, {H3_RT_BYTES}")
    A(f"s_mul_i32 s33, s46, {14*1024}")
    A("s_add_u32 s32, s32, s33")
    A(f"s_add_u32 s32, s32, {WS_H3}")
    A(f"s_add_u32 s33, s32, {H3_RT_BYTES}")
    A("s_lshl_b32 s38, s18, 7")
    A(f"s_mul_i32 s36, s46, {448*896}")
    A(f"s_mul_i32 s34, s47, {16*896}")
    A("s_add_u32 s36, s36, s34")
    A("s_add_u32 s36, s36, s38")
    A(f"s_mul_i32 s35, s46, {RING}")
    A("s_lshl_b32 s37, s47, 11")
    A("s_add_u32 s37, s37, s35")
    A(f"s_mul_i32 s39, s19, {7*8*896}")
    A("s_add_u32 s38, s38, s39")
    A("s_mul_i32 s39, s19, 7168")
    A(f"s_add_u32 s39, s39, {L4_WO}")
    l = A.newlabel("k4p")
    A("s_bitcmp1_b32 s19, 0")
    A(f"s_cbranch_scc0 {l}")
    A("v_swap_b32 v6, v7")
    A.label(l)
    A("s_lshl_b32 s40, s17, 2")
    A("s_add_u32 s40, s40, s46")
    A(f"s_mul_i32 s41, s40, {RT_BYTES}")
    A(f"s_mul_i32 s42, s47, {7*1024}")
    A("s_add_u32 s42, s42, s41")
    A(f"s_add_u32 s42, s42, {WS_O}")
    A("s_lshl_b32 s43, s18, 11")
    A("s_add_u32 s43, s43, s41")
    A("s_lshl_b32 s44, s47, 10")
    A("s_add_u32 s43, s43, s44")
    A(f"s_add_u32 s43, s43, {WS_X1}")
    A("s_lshl_b32 s44, s40, 4")
    A(f"v_add_u32 v14, s44, {v(VI)}")
    A("v_lshlrev_b32 v15, 2, v14")
    A(f"s_mov_b32 s45, {WS_G}")
    unit_bases(A, TB, "pair", 12, 13, 16)
    A(f"s_mul_i32 s44, s47, {7*4096}")
    A(f"s_add_u32 s44, s44, {L4_WO}")
    for t in range(4):
        A(f"v_add_u32 {v(TO+t)}, s44, {v(TB+t)}")
        A(f"v_add_u32 {v(TB+t)}, s35, {v(TB+t)}")
    A("s_waitcnt lgkmcnt(0)")
    A.srd(20, 4, 5, D * D * 2)
    A.srd(24, 6, 7, F * D * 2)
    A.srd(28, 12, 13, WS_SIZE)
    A.srd(48, 8, 9, ACT_BYTES)

    def issue_parts(sx):
        parts = []
        for j in range(2):
            def p(j=j):
                A(f"s_add_u32 m0, s37, {(sx%RS4)*4096 + j*1024}")
                A("s_nop 0")
                A.vmem(f"buffer_load_dwordx4 v{4+j}, s[24:27], s36 offen lds", ("ld", sx))
                A(f"s_add_u32 s36, s36, {8*896 if j == 0 else 24*896}")
            parts.append(p)
        for j in range(2):
            parts.append(lambda j=j: A.vmem(f"buffer_load_dwordx4 {v(af(sx,j),4)}, v{8+sx//4}, s[28:31], s{32+j} offen offset:{1024*(sx%4)}", ("ld", sx)))
        return parts

    extra = [("wo", u) for u in range(7)] + [("of", u) for u in range(7)] + [("x1", 0), ("g", 0)]

    def issue_extra():
        if not extra:
            return
        kind, u = extra.pop(0)
        if kind == "wo":
            A("s_mov_b32 m0, s39")
            A("s_add_u32 s39, s39, 1024")
            A.vmem(f"buffer_load_dwordx4 v{6+(u&1)}, s[20:23], s38 offen lds", "wo")
            A(f"s_add_u32 s38, s38, {8*896}")
        elif kind == "of":
            A.vmem(f"buffer_load_dwordx4 {v(OFB+4*u,4)}, v{8+u//4}, s[28:31], s42 offen offset:{1024*(u%4)}", "of")
        elif kind == "x1":
            A.vmem(f"buffer_load_dwordx4 {v(XR,4)}, v8, s[28:31], s43 offen", "ep")
        else:
            A.vmem(f"buffer_load_dword {v(GR)}, v15, s[28:31], s45 offen", "ep")

    nxt = [0]

    def take(n, limit):
        out = []
        while n > 0 and nxt[0] < 14 and nxt[0] <= limit:
            out += issue_parts(nxt[0])
            nxt[0] += 1
            n -= 1
        return out

    for p in take(2, 1):
        p()
    stamp(A, 1)
    for r in range(ACB, ACB + 32):
        A(f"v_mov_b32 {v(r)}, 0")
    for r in range(AWO, AWO + 16):
        A(f"v_mov_b32 {v(r)}, 0")
    A.vm_wait(("ld", 0))
    A("s_barrier")
    stamp(A, 2)
    for r in unit_reads(TB, 0, WFB):
        A(r)
    WO0 = 7
    WOK = 14 - WO0
    for sx in range(14):
        rd = []
        if sx < 13:
            tags = [("ld", sx + 1)] + (["of"] if sx + 1 == WO0 else [])
            A.vm_wait(tags, " lgkmcnt(0)")
            A("s_barrier")
            rd = unit_reads(TB, ((sx + 1) % RS4) * 4096, WFB + 16 * ((sx + 1) & 1))
            if sx + 1 >= WO0:
                rd += unit_reads(TO, (sx + 1 - WO0) * 4096, WOF + 16 * ((sx + 1) & 1))
        else:
            A("s_waitcnt lgkmcnt(0)")
        parts = take(2, sx + 1 + PF4)
        parts += [issue_extra] * (4 if len(parts) <= 4 else 1)
        mf = [f"v_mfma_f32_16x16x32_bf16 {ac(j,t)}, {v(WFB+16*(sx&1)+4*t,4)}, {v(af(sx,j),4)}, {ac(j,t)}" for t in range(4) for j in range(2)]
        if sx >= WO0:
            assert not [e for e in extra if e[0] in ("wo", "of")]
            mf += [f"v_mfma_f32_16x16x32_bf16 {v(AWO+4*t,4)}, {v(WOF+16*(sx&1)+4*t,4)}, {v(OFB+4*(sx-WO0),4)}, {v(AWO+4*t,4)}" for t in range(4)]
        for i, m in enumerate(mf):
            A(m)
            for _ in range(2):
                if rd:
                    A(rd.pop(0))
            for _ in range(-(-len(parts) // (len(mf) - i))):
                parts.pop(0)()
        assert not rd and not parts
    assert not extra
    stamp(A, 3)
    A("s_lshl_b32 s52, s46, 14")
    A("s_lshl_b32 s53, s47, 13")
    A("s_add_u32 s52, s52, s53")
    A("v_add_u32 v12, s52, v8")
    A("s_lshl_b32 s52, s47, 14")
    A("s_lshl_b32 s53, s46, 12")
    A("s_add_u32 s52, s52, s53")
    A("s_add_u32 s52, s52, 65536")
    A("v_add_u32 v13, s52, v8")
    A("s_barrier")
    for j in range(2):
        for t in range(4):
            A(f"ds_write_b128 v12, {ac(j,t)} offset:{(j*4+t)*1024}")
    for t in range(4):
        A(f"ds_write_b128 v13, {v(AWO+4*t,4)} offset:{t*1024}")
    A("s_lshl_b32 s52, s46, 12")
    A("s_lshl_b32 s53, s47, 11")
    A("s_add_u32 s52, s52, s53")
    A("v_add_u32 v12, s52, v8")
    A("v_add_u32 v13, 65536, v12")
    XU = OFB
    A.vm_wait("ep")
    for j in range(4):
        A(f"v_lshlrev_b32 {v(XU+2*j)}, 16, {v(XR+j)}")
        A(f"v_and_b32 {v(XU+2*j+1)}, 0xffff0000, {v(XR+j)}")
    A(f"v_sub_f32 v19, 1.0, {v(GR)}")
    rbf(A, 19)
    A("v_mul_u32_u24 v14, 896, v14")
    A(f"v_lshl_add_u32 v14, {v(VG)}, 4, v14")
    A(f"v_lshrrev_b32 v16, 1, {v(VG)}")
    A("v_lshlrev_b32 v16, 3, v16")
    A("v_xor_b32 v15, 8, v16")
    A("v_add_u32 v15, v15, v14")
    A("v_add_u32 v14, v16, v14")
    A("s_lshl_b32 s52, s18, 7")
    A("s_lshl_b32 s53, s47, 6")
    A("s_add_u32 s52, s52, s53")
    A("s_waitcnt lgkmcnt(0)")
    A("s_barrier")
    RB = 32
    for q in range(4):
        for t in range(2):
            A(f"ds_read_b128 {v(RB+8*q+4*t,4)}, v12 offset:{16384*q + 1024*t}")
    for q in range(2):
        for t in range(2):
            A(f"ds_read_b128 {v(RB+32+8*q+4*t,4)}, v13 offset:{16384*q + 1024*t}")
    A("s_waitcnt lgkmcnt(4)")
    for r in range(8):
        A(f"v_add_f32 {v(RB+r)}, {v(RB+r)}, {v(RB+8+r)}")
        A(f"v_add_f32 {v(RB+16+r)}, {v(RB+16+r)}, {v(RB+24+r)}")
    for r in range(8):
        A(f"v_add_f32 {v(RB+r)}, {v(RB+r)}, {v(RB+16+r)}")
    for r in range(8):
        rbf(A, RB + r)
    for r in range(8):
        A(f"v_add_f32 {v(RB+r)}, {v(RB+r)}, {v(XU+r)}")
    for r in range(8):
        rbf(A, RB + r)
    A("s_waitcnt lgkmcnt(0)")
    AU = RB + 32
    for r in range(8):
        A(f"v_add_f32 {v(AU+r)}, {v(AU+r)}, {v(AU+8+r)}")
        A(f"v_mul_f32 {v(RB+r)}, v19, {v(RB+r)}")
    for r in range(8):
        rbf(A, AU + r)
        rbf(A, RB + r)
    for r in range(8):
        A(f"v_mul_f32 {v(AU+r)}, {v(GR)}, {v(AU+r)}")
    for r in range(8):
        rbf(A, AU + r)
    for r in range(8):
        A(f"v_add_f32 {v(RB+r)}, {v(RB+r)}, {v(AU+r)}")
    for j in range(4):
        A(f"v_cvt_pk_bf16_f32 {v(XU+j)}, {v(RB+2*j)}, {v(RB+2*j+1)}")
    A(f"buffer_store_dwordx2 {v(XU,2)}, v14, s[48:51], s52 offen")
    A(f"buffer_store_dwordx2 {v(XU+2,2)}, v15, s[48:51], s52 offen")
    stamp_end(A, 3)
    A.label(Lend)
    A("s_endpgm")
    return "k4_kernel", A.text(), NV, NV, 512, L4_WO + 14 * 4096, NWG


KERNELS = [gen_k1, gen_k2, gen_k3, gen_k4]


def build(kernels):
    hdr = open("gated_mix__sliding_block__mixer_s_mlp__prompt.s.ref").read().split("; Override launch")[0]
    out = hdr
    gens = [g() for g in kernels]
    kl = os.environ.get("KLIST")
    order = [int(c) - 1 for c in kl.split(",")] if kl else range(len(gens))
    for i in order:
        name, txt, vg, acc_off, block, lds, grid = gens[i]
        out += f"; @launch kernel={name} grid=({grid},1,1) block=({block},1,1) lds={lds}\n"
    out += '.amdgcn_target "amdgcn-amd-amdhsa--gfx950"\n.text\n'
    for g in gens:
        out += kernel_head(g[0]) + g[1]
    out += '.section .rodata,"a"\n'
    for g in gens:
        out += kernel_desc(g[0], g[2], g[3])
    return out


if __name__ == "__main__":
    dst = sys.argv[1] if len(sys.argv) > 1 else "gated_mix__sliding_block__mixer_s_mlp__prompt.s"
    open(dst, "w").write(build(KERNELS))
    print("wrote", dst)
```

```python
import os
import sys
from asmlib import Asm, v, a, s, f32bits, kernel_desc, kernel_head
import gen3
from gen2 import (lane_setup, xlane_g, rbf, ln_finish, gelu_consts, ex48, exall,
                  S, D, F, MB, WS_K, WS_V, WS_HS, WS_X1, WS_O, WS_H3, WS_G, WS_ST, WS_SIZE, WS_DBG, ACT_BYTES, RT_BYTES,
                  H3_RT_BYTES, LOG2E, SCALE, NEGBIG, STAMPS, VL, VI, VG)
from gen3 import (unit_bases, unit_dma_voff, unit_reads, big_mainloop, big_dma_parts, big_decode,
                  gelu_epilogue, small_decode, SLOT, V_XD, V_XD2, V_WD, V_XR, V_TB, ACC, NWG)

KNAME = "gated_mix__sliding_block__mixer_s_mlp__prompt_kernel"
WS_FLAG = 26 * MB
WS_LN1 = 27 * MB
WS_CS = 27 * MB + 65536
TOK = 84
PB4 = 236
L16 = 240
U896, U896S = 241, 242
CSO = 243
X1K = 248
SC = " sc1"
SL = " sc1"
SP3C = int(os.environ.get("SP3C", "7"))
L2WARM = os.environ.get("L2WARM", "0") == "1"
gen3.stamp = lambda A, i: None
gen3.CZERO[0] = True
NST = [0]


def stamp(A):
    if not STAMPS:
        return
    i = NST[0]
    NST[0] += 1
    A("s_memrealtime s[86:87]")
    A("s_lshl_b32 s88, s2, 11")
    A("s_lshl_b32 s89, s19, 7")
    A("s_add_u32 s88, s88, s89")
    A(f"s_add_u32 s88, s88, {WS_DBG + 4*i}")
    A("s_mov_b64 s[90:91], exec")
    A("s_mov_b64 exec, 1")
    A("v_mov_b32 v254, 0")
    A("s_waitcnt lgkmcnt(0)")
    A("v_mov_b32 v255, s86")
    A.vmem("buffer_store_dword v255, v254, s[28:31], s88 offen", "stamp")
    A("s_mov_b64 exec, s[90:91]")


def flag_store(A, kind):
    l = A.newlabel("pub")
    A("s_cmp_lg_u32 s19, 0")
    A(f"s_cbranch_scc1 {l}")
    A("s_lshl_b32 s85, s2, 7")
    A(f"s_add_u32 s85, s85, {WS_FLAG + kind*32768}")
    A("v_mov_b32 v252, 0")
    A(f"v_mov_b32 v253, s{TOK}")
    A("s_mov_b64 exec, 1")
    A(f"buffer_store_dword v253, v252, s[28:31], s85 offen{SC}")
    A("s_mov_b64 exec, -1")
    A.label(l)


def get_token(A):
    l = A.newlabel("tok")
    A("v_mov_b32 v252, 0")
    A("s_mov_b32 s93, 0")
    A.label(l)
    A(f"global_load_dword v253, v252, s[56:57]{SC}")
    A("s_add_u32 s93, s93, 1")
    A("s_waitcnt vmcnt(0)")
    A(f"v_readfirstlane_b32 s{TOK}, v253")
    A("s_cmp_lt_u32 s93, 0x200000")
    A(f"s_cselect_b32 s85, s{TOK}, 1")
    A("s_cmp_eq_u32 s85, 0")
    A(f"s_cbranch_scc1 {l}")


def spin(A, vaddr):
    lp = A.newlabel("pol")
    A(f"s_mov_b32 s85, {WS_FLAG}")
    A("s_mov_b32 s93, 0")
    A.label(lp)
    A(f"buffer_load_dword v253, {v(vaddr)}, s[28:31], s85 offen{SC}")
    A("s_add_u32 s93, s93, 1")
    A("s_waitcnt vmcnt(0)")
    A(f"v_cmp_ne_u32 vcc, s{TOK}, v253")
    A("s_cmp_lt_u32 s93, 0x200000")
    A("s_cselect_b64 s[94:95], vcc, 0")
    A("s_cmp_lg_u64 s[94:95], 0")
    A(f"s_cbranch_scc1 {lp}")
    A("s_mov_b64 exec, -1")


def poll(A, addr_fn, extra_wait=""):
    l = A.newlabel("pol")
    A("s_cmp_lg_u32 s19, 0")
    A(f"s_cbranch_scc1 {l}")
    addr_fn()
    spin(A, 252)
    A.label(l)
    if extra_wait:
        A(extra_wait)
    A("s_barrier")


def big_id(A, dst, rt, ct, t0):
    A(f"v_lshrrev_b32 {v(dst)}, 2, {v(rt)}")
    A(f"v_lshlrev_b32 {v(dst)}, 1, {v(dst)}")
    A(f"v_cmp_lt_u32 vcc, 6, {v(ct)}")
    A("s_nop 1")
    A(f"v_addc_co_u32 {v(dst)}, vcc, 0, {v(dst)}, vcc")
    A(f"v_cmp_lt_u32 vcc, 6, {v(ct)}")
    A(f"v_and_b32 {v(t0)}, 3, {v(rt)}")
    A(f"v_mul_u32_u24 {v(t0)}, 7, {v(t0)}")
    A(f"v_add_u32 {v(t0)}, {v(t0)}, {v(ct)}")
    A(f"v_subrev_u32 {v(rt)}, 7, {v(t0)}")
    A(f"v_cndmask_b32 {v(t0)}, {v(t0)}, {v(rt)}, vcc")
    A(f"v_lshl_add_u32 {v(dst)}, {v(t0)}, 3, {v(dst)}")
    A(f"v_lshlrev_b32 {v(dst)}, 7, {v(dst)}")


def big_bases(A, src):
    A("s_lshl_b32 s42, s41, 13")
    A("s_add_u32 s42, s42, 16384")
    A(f"s_add_u32 s43, s42, {2*SLOT}")
    for t in range(4):
        A(f"v_add_u32 {v(V_TB[1]+t)}, s43, {v(src+t)}")
        A(f"v_add_u32 {v(V_TB[0]+t)}, s42, {v(src+t)}")


class Spec:
    def __init__(self, A, vflag, mask, loads):
        self.A, self.vflag, self.mask, self.loads = A, vflag, mask, loads

    def stage1(self):
        A = self.A
        A(f"s_mov_b32 s85, {WS_FLAG}")
        A(f"s_mov_b64 exec, {self.mask:#x}")
        A.vmem(f"buffer_load_dword v253, {v(self.vflag)}, s[28:31], s85 offen{SC}", "sflag")
        A("s_mov_b64 exec, -1")

    def stage2(self):
        A = self.A
        A.vm_wait("sflag")
        A(f"v_cmp_ne_u32 s[96:97], s{TOK}, v253")
        self.loads("sdata")

    def finish(self):
        A = self.A
        l = A.newlabel("spec")
        A(f"s_and_b64 s[96:97], s[96:97], {self.mask:#x}")
        A(f"s_cbranch_scc0 {l}")
        A(f"s_mov_b64 exec, {self.mask:#x}")
        spin(A, self.vflag)
        snap = A.vm_snapshot()
        self.loads("sdata")
        A.vm_restore(snap)
        A("s_waitcnt vmcnt(0)")
        A.label(l)
        A.vm_wait("sdata")


def red8(A, x, t):
    for dpp in ("quad_perm:[1,0,3,2]", "quad_perm:[2,3,0,1]", "row_half_mirror"):
        A("s_nop 1")
        A(f"v_add_f32_dpp {v(x)}, {v(x)}, {v(x)} {dpp} row_mask:0xf bank_mask:0xf")


def gen():
    A = Asm()
    Lend = "k_end"
    A("s_cmp_ge_u32 s2, 256")
    A(f"s_cbranch_scc1 {Lend}")
    A("s_load_dwordx4 s[4:7], s[0:1], 0")
    A("s_load_dwordx2 s[8:9], s[0:1], 32")
    A("s_load_dwordx4 s[56:59], s[0:1], 80")
    A("s_memrealtime s[86:87]")
    lane_setup(A)
    A(f"v_lshlrev_b32 {v(L16)}, 4, {v(VL)}")
    A(f"s_cmp_ge_u32 s2, {NWG}")
    A("s_cbranch_scc1 helper")
    big_decode(A)
    A("s_sub_u32 s46, s33, 21")
    A("s_movk_i32 s32, 896")
    A("s_cmp_lt_u32 s33, 21")
    A("s_cselect_b32 s32, 2688, s32")
    A("s_cselect_b32 s34, s33, s46")
    A("s_lshl_b32 s34, s34, 7")
    A("s_lshl_b32 s35, s40, 3")
    A("s_mul_i32 s35, s35, s32")
    A("s_add_u32 s34, s34, s35")
    A("s_lshl_b32 s38, s32, 5")
    unit_dma_voff(A, V_WD, "s43", None, "s32", 24, 25)
    A(f"v_lshrrev_b32 v24, 3, {v(VL)}")
    A("v_lshrrev_b32 v25, 1, v24")
    A(f"v_xor_b32 v25, v25, {v(VL)}")
    A("v_and_b32 v25, 7, v25")
    A(f"v_mul_u32_u24 {v(V_XD)}, 896, v24")
    A(f"v_lshl_add_u32 {v(V_XD)}, v25, 4, {v(V_XD)}")
    A(f"v_xor_b32 {v(V_XD2)}, 64, {v(V_XD)}")
    A(f"v_add_u32 {v(V_XD2)}, {8*896-1024}, {v(V_XD2)}")
    A("s_lshl_b32 s35, s17, 3")
    A("s_add_u32 s35, s35, s19")
    A(f"s_mul_i32 s35, s35, {RT_BYTES}")
    A("s_waitcnt lgkmcnt(0)")
    A.srd(20, 4, 5, ACT_BYTES)
    A(f"s_mov_b32 s26, {D*D*2}")
    A("s_cmp_lt_u32 s33, 21")
    A("s_cselect_b32 s24, s6, s8")
    A("s_cselect_b32 s25, s7, s9")
    A(f"s_cselect_b32 s26, {D*3*D*2}, s26")
    A("s_and_b32 s25, s25, 0xffff")
    A("s_mov_b32 s27, 0x00020000")
    for ds in range(2):
        for p in big_dma_parts(A, ds, 128, V_XD2):
            p()
    A.srd(28, 58, 59, WS_SIZE)
    stamp(A)
    A(f"v_lshrrev_b32 v24, 1, {v(VI)}")
    A(f"v_xor_b32 v24, v24, {v(VG)}")
    A("v_lshlrev_b32 v24, 4, v24")
    A(f"v_lshl_add_u32 v24, {v(VI)}, 7, v24")
    A("s_lshl_b32 s42, s40, 12")
    A(f"v_add_u32 {v(V_XR[0])}, s42, v24")
    A(f"v_xor_b32 {v(V_XR[2])}, 64, {v(V_XR[0])}")
    A(f"v_add_u32 {v(V_XR[1])}, {2*SLOT}, {v(V_XR[0])}")
    A(f"v_add_u32 {v(V_XR[3])}, {2*SLOT}, {v(V_XR[2])}")
    unit_bases(A, PB4, "pair", 24, 25, 26)
    unit_dma_voff(A, U896, "0", None, 896, 24, 25)
    unit_dma_voff(A, U896S, "0", "4", 896, 24, 25)
    A(f"v_lshrrev_b32 v24, 1, {v(VG)}")
    A(f"v_lshlrev_b32 {v(CSO)}, 5, {v(VG)}")
    A(f"v_lshl_add_u32 {v(CSO)}, v24, 4, {v(CSO)}")
    A("s_lshl_b32 s39, s17, 7")
    A("s_lshl_b32 s42, s40, 5")
    A("s_add_u32 s39, s39, s42")
    A("v_mov_b32 v252, 0")
    A.vmem(f"global_load_dword v200, v252, s[56:57]{SC}", "tok")
    snap = A.vm_snapshot()
    PK = 32

    def tok_hook():
        l = A.newlabel("tk")
        A.vm_wait("tok")
        A(f"v_readfirstlane_b32 s{TOK}, v200")
        A(f"s_cmp_lg_u32 s{TOK}, 0")
        A(f"s_cbranch_scc1 {l}")
        get_token(A)
        A.label(l)

    A("s_sub_u32 s42, s33, 14")
    A("s_cmp_lt_u32 s42, 7")
    A("s_cbranch_scc1 p1_v")
    big_bases(A, PB4)
    A("s_cmp_ge_u32 s33, 21")
    A("s_cbranch_scc1 p1_w1")
    big_mainloop(A, False, 128, V_XD2, True, hooks={7: tok_hook})
    A("s_cmp_ge_u32 s33, 7")
    A("s_cselect_b32 s43, 7, 0")
    A(f"s_cselect_b32 s42, {WS_K}, 0")
    A("s_sub_u32 s46, s33, s43")
    A("s_lshl_b32 s46, s46, 11")
    A("s_add_u32 s42, s42, s46")
    A("s_mul_i32 s43, s39, 896")
    A("s_add_u32 s42, s42, s43")
    A(f"s_add_u32 s43, s42, {RT_BYTES}")
    for j in range(2):
        for q in range(8):
            A(f"v_cvt_pk_bf16_f32 {v(PK+8*j+q)}, {v(ACC+16*j+2*q)}, {v(ACC+16*j+2*q+1)}")
        for tp in range(2):
            A(f"buffer_store_dwordx4 {v(PK+8*j+4*tp,4)}, {v(L16)}, s[28:31], s{42+j} offen offset:{1024*tp}{SC}")
    A("s_branch p1_done")
    A.label("p1_v")
    A.vm_restore(snap)
    unit_bases(A, 28, "nat", 24, 25, 26)
    big_bases(A, 28)
    A("s_sub_u32 s46, s33, 14")
    A("s_lshl_b32 s47, s39, 6")
    A(f"s_add_u32 s47, s47, {WS_V}")
    A("s_lshl_b32 s44, s46, 6")
    for t in range(4):
        o = 184 + t
        A(f"v_add_u32 v24, s44, {v(VI)}")
        A(f"v_add_u32 v24, {16*t}, v24")
        A("v_mul_u32_u24 v25, 2341, v24")
        A("v_lshrrev_b32 v25, 16, v25")
        A("v_mul_u32_u24 v26, 28, v25")
        A("v_sub_u32 v26, v24, v26")
        A(f"v_lshlrev_b32 {v(o)}, 17, v25")
        A("v_lshrrev_b32 v27, 4, v26")
        A(f"v_lshl_add_u32 {v(o)}, v27, 10, {v(o)}")
        A("v_and_b32 v27, 15, v26")
        A(f"v_lshl_add_u32 {v(o)}, v27, 4, {v(o)}")
        A(f"v_lshl_add_u32 {v(o)}, {v(VG)}, 8, {v(o)}")
    A("s_lshl_b32 s44, s46, 4")
    A("s_mul_i32 s45, s44, 9363")
    A("s_lshr_b32 s45, s45, 16")
    A(f"v_add_u32 v24, s45, {v(VG)}")
    A("v_mul_u32_u24 v25, 7, v24")
    A("v_add_u32 v25, 6, v25")
    A("s_add_u32 s44, s44, 16")
    A("v_lshlrev_b32 v24, 17, v24")
    A(f"v_lshrrev_b32 v26, 2, {v(VI)}")
    A("v_lshl_add_u32 v24, v26, 4, v24")
    A(f"v_and_b32 v27, 3, {v(VI)}")
    A("v_lshl_add_u32 v24, v27, 8, v24")
    A("v_cmp_eq_u32 vcc, 0, v26")
    A("v_mov_b32 v27, 0x3f803f80")
    A("s_nop 0")
    A("v_cndmask_b32 v188, 0, v27, vcc")
    for r in range(1, 4):
        A(f"v_mov_b32 v{188+r}, v188")
    A("v_cmp_gt_u32 vcc, s44, v25")
    A("s_and_saveexec_b64 s[44:45], vcc")
    A.vmem(f"buffer_store_dwordx4 v[188:191], v24, s[28:31], s47 offen offset:{1024+12*16}{SC}", "ones")
    A("s_mov_b64 exec, -1")
    big_mainloop(A, True, 128, V_XD2, True, hooks={7: tok_hook})
    A("s_nop 4")
    for t in range(4):
        pk = PK + 4 * t
        for j in range(2):
            src = ACC + 16 * j + 4 * t
            A(f"v_cvt_pk_bf16_f32 {v(pk+2*j)}, {v(src)}, {v(src+1)}")
            A(f"v_cvt_pk_bf16_f32 {v(pk+2*j+1)}, {v(src+2)}, {v(src+3)}")
        A(f"buffer_store_dwordx4 {v(pk,4)}, {v(184+t)}, s[28:31], s47 offen{SC}")
    A("s_branch p1_done")
    A.label("p1_w1")
    A.vm_restore(snap)
    MR, RS, CS = [140, 142], [144, 146], 164
    A("s_lshl_b32 s42, s17, 1")
    A(f"v_add_u32 v201, s42, {v(VL)}")
    A("v_writelane_b32 v201, s46, 2")
    A(f"v_lshlrev_b32 v201, 7, v201")
    A(f"v_add_u32 v201, {NWG*128}, v201")
    A(f"v_add_u32 v202, s39, {v(VI)}")
    A("v_lshlrev_b32 v202, 3, v202")
    A(f"s_mov_b32 s44, {WS_LN1}")
    A("s_lshl_b32 s45, s46, 8")
    A(f"s_add_u32 s45, s45, {WS_CS}")
    A(f"v_xor_b32 v203, 16, {v(CSO)}")

    def w1_loads(tag):
        for j in range(2):
            A.vmem(f"buffer_load_dwordx2 {v(180+2*j,2)}, v202, s[28:31], s44 offen offset:{128*j}{SL}", tag)
        for t in range(4):
            A.vmem(f"buffer_load_dwordx4 {v(CS+4*t,4)}, {v(203 if t & 1 else CSO)}, s[28:31], s45 offen offset:{128*(t>>1)}{SL}", tag)

    sp = Spec(A, 201, 7, w1_loads)

    def h7():
        tok_hook()
        sp.stage1()

    consts = gelu_consts(A, 148)
    A.srd_off(52, 58, 59, WS_HS, ACT_BYTES)
    A("s_lshl_b32 s47, s46, 3")
    for tp in range(2):
        A(f"v_add_u32 v24, s47, {v(VG)}")
        if tp:
            A("v_add_u32 v24, 4, v24")
        A("v_mul_u32_u24 v25, 4682, v24")
        A("v_lshrrev_b32 v25, 16, v25")
        A("v_lshrrev_b32 v26, 1, v25")
        A("v_add_u32 v26, 1, v26")
        A("v_and_b32 v25, 1, v25")
        A("v_sub_u32 v27, 0, v25")
        A("v_xor_b32 v26, v26, v27")
        A("v_add_u32 v26, v26, v25")
        A(f"v_add_u32 v26, v26, {v(VI)}")
        A("v_add_u32 v26, s39, v26")
        for j in range(2):
            o = 184 + 2 * j + tp
            if j:
                A("v_add_u32 v26, 16, v26")
            A("v_lshrrev_b32 v25, 4, v26")
            A("v_mul_u32_u24 v25, 14336, v25")
            A("v_and_b32 v27, 15, v26")
            A("v_lshl_add_u32 v25, v27, 4, v25")
            A("v_lshl_add_u32 v25, v24, 8, v25")
            A("v_cmp_gt_u32 vcc, 2048, v26")
            A("v_mov_b32 v27, 0x80000000")
            A("s_nop 0")
            A(f"v_cndmask_b32 {v(o)}, v27, v25, vcc")
    A("s_cmp_lg_u32 s40, 0")
    A("s_cbranch_scc1 p1_zd")
    A("s_cmp_eq_u32 s17, 0")
    A("s_cselect_b32 s48, 0, 1")
    A("s_cbranch_scc1 p1_z")
    A("s_cmp_lg_u32 s17, 15")
    A("s_cbranch_scc1 p1_zd")
    A.label("p1_z")
    A(f"v_and_b32 v24, 7, {v(VL)}")
    A("v_add_u32 v24, s47, v24")
    A("v_mul_u32_u24 v25, 4682, v24")
    A("v_lshrrev_b32 v25, 16, v25")
    A(f"v_lshrrev_b32 v26, 3, {v(VL)}")
    A("v_lshrrev_b32 v27, 1, v25")
    A("v_cmp_le_u32 s[50:51], v26, v27")
    A("v_and_b32 v25, 1, v25")
    A("v_cmp_eq_u32 vcc, s48, v25")
    A("s_and_b64 s[50:51], s[50:51], vcc")
    A("v_sub_u32 v27, 15, v26")
    A("s_cmp_eq_u32 s48, 0")
    A(f"s_cselect_b32 s49, 0, {127*14336}")
    A("s_cbranch_scc1 p1_z2")
    A("v_mov_b32 v26, v27")
    A.label("p1_z2")
    A("v_lshlrev_b32 v26, 4, v26")
    A("v_lshl_add_u32 v26, v24, 8, v26")
    for r in range(4):
        A(f"v_mov_b32 {v(188+r)}, 0")
    A("s_mov_b64 exec, s[50:51]")
    A(f"buffer_store_dwordx4 v[188:191], v26, s[52:55], s49 offen{SC}")
    A("s_mov_b64 exec, -1")
    A.label("p1_zd")
    big_mainloop(A, False, 128, V_XD2, True, hooks={7: tok_hook, 10: sp.stage1, 12: sp.stage2})
    sp.finish()
    for j in range(2):
        for r in range(2):
            A(f"v_mov_b32 {v(MR[j]+r)}, {v(180+2*j)}")
            A(f"v_mov_b32 {v(RS[j]+r)}, {v(181+2*j)}")

    def st1(j, pk):
        for tp in range(2):
            A(f"buffer_store_dwordx4 {v(pk+4*tp,4)}, {v(184+2*j+tp)}, s[52:55], 0 offen{SC}")

    gelu_epilogue(A, CS, MR, RS, consts, 48, 32, st1)
    A("s_branch p1_done")
    A.label("helper")
    A.vm_restore([])
    A("s_load_dwordx2 s[10:11], s[0:1], 64")
    A("s_load_dwordx2 s[12:13], s[0:1], 48")
    A(f"s_sub_u32 s14, s2, {NWG}")
    for r in (236, 237, 238, 239, 241, 242, 243):
        A(f"v_mov_b32 v{r}, 0")
    A(f"v_lshrrev_b32 v4, 3, {v(VL)}")
    A(f"v_and_b32 v5, 7, {v(VL)}")
    A("v_lshlrev_b32 v5, 4, v5")
    A("s_lshl_b32 s15, s14, 6")
    A("s_lshl_b32 s16, s19, 3")
    A("s_add_u32 s15, s15, s16")
    A("v_add_u32 v4, s15, v4")
    A("v_mul_u32_u24 v6, 896, v4")
    A("v_add_u32 v6, v6, v5")
    A("s_waitcnt lgkmcnt(0)")
    A.srd(20, 4, 5, ACT_BYTES)
    A.srd(28, 58, 59, WS_SIZE)
    A.srd(48, 10, 11, D * 2)
    XB_, GB_, FB_ = 8, 40, 72
    for j in range(7):
        A.vmem(f"buffer_load_dwordx4 {v(XB_+4*j,4)}, v6, s[20:23], 0 offen offset:{128*j}", "hx")
    A(f"v_lshrrev_b32 v7, 3, {v(VL)}")

    def cs_setup(item_s):
        A(f"s_cmp_lt_u32 {item_s}, 7")
        A("s_cselect_b32 s24, s8, s12")
        A("s_cselect_b32 s25, s9, s13")
        A("s_movk_i32 s32, 896")
        A(f"s_cselect_b32 s32, s32, {F*2}")
        A(f"s_cselect_b32 s33, 0, 7")
        A(f"s_mov_b32 s26, {D*F*2}")
        A(f"s_cselect_b32 s26, {D*D*2}, s26")
        A("s_and_b32 s25, s25, 0xffff")
        A("s_mov_b32 s27, 0x00020000")
        A(f"s_sub_u32 s33, {item_s}, s33")
        A("s_lshl_b32 s33, s33, 7")
        A("s_mul_i32 s34, s19, 56")
        A("s_mul_i32 s34, s34, s32")
        A("s_add_u32 s33, s33, s34")
        A("v_mul_lo_u32 v130, v7, s32")
        A("v_add_u32 v130, v130, v5")
        A("s_lshl_b32 s32, s32, 3")
        for j in range(7):
            A.vmem(f"buffer_load_dwordx4 {v(132+4*j,4)}, v130, s[24:27], s33 offen", "hw")
            A("s_add_u32 s33, s33, s32")

    def cs_finish(item_s):
        A.vm_wait("hw")
        for j in range(7):
            for q in range(4):
                src = 132 + 4 * j + q
                if j == 0:
                    A(f"v_lshlrev_b32 {v(160+2*q)}, 16, {v(src)}")
                    A(f"v_and_b32 {v(161+2*q)}, 0xffff0000, {v(src)}")
                else:
                    A(f"v_lshlrev_b32 v168, 16, {v(src)}")
                    A(f"v_and_b32 v169, 0xffff0000, {v(src)}")
                    A(f"v_pk_add_f32 {v(160+2*q,2)}, {v(160+2*q,2)}, v[168:169]")
        A("s_nop 1")
        for q in range(4):
            A(f"v_permlane32_swap_b32 {v(160+2*q)}, {v(161+2*q)}")
        A("s_nop 0")
        for q in range(4):
            A(f"v_add_f32 {v(160+2*q)}, {v(160+2*q)}, {v(161+2*q)}")
        A("s_nop 1")
        for q in range(2):
            A(f"v_permlane16_swap_b32 {v(160+4*q)}, {v(162+4*q)}")
        A("s_nop 0")
        for q in range(2):
            A(f"v_add_f32 {v(160+4*q)}, {v(160+4*q)}, {v(162+4*q)}")
        A("s_nop 1")
        for q in range(2):
            A(f"v_add_f32_dpp {v(160+4*q)}, {v(160+4*q)}, {v(160+4*q)} row_ror:8 row_mask:0xf bank_mask:0xf")
        A("s_lshl_b32 s33, s19, 8")
        A("v_lshlrev_b32 v170, 1, v5")
        A(f"v_and_b32 v171, 1, {v(VG)}")
        A("v_lshl_add_u32 v170, v171, 3, v170")
        A(f"v_lshrrev_b32 v171, 1, {v(VG)}")
        A("v_lshl_add_u32 v170, v171, 2, v170")
        A("v_add_u32 v170, s33, v170")
        A("ds_write_b32 v170, v160")
        A("ds_write_b32 v170, v164 offset:16")
        A("s_waitcnt lgkmcnt(0)")
        A("s_barrier")
        l = A.newlabel("csw")
        A("s_cmp_lg_u32 s19, 0")
        A(f"s_cbranch_scc1 {l}")
        A(f"v_lshlrev_b32 v170, 2, {v(VL)}")
        for w in range(8):
            A(f"ds_read_b32 {v(160+w)}, v170 offset:{256*w}")
        A("s_waitcnt lgkmcnt(0)")
        for w in range(1, 8):
            A(f"v_add_f32 v160, v160, {v(160+w)}")
        A(f"s_lshl_b32 s33, {item_s}, 8")
        A(f"s_add_u32 s33, s33, {WS_CS}")
        A(f"buffer_store_dword v160, v170, s[28:31], s33 offen{SC}")
        A.label(l)

    cs_setup("s14")
    for j in range(7):
        A.vmem(f"buffer_load_dwordx4 {v(GB_+4*j,4)}, v5, s[48:51], 0 offen offset:{128*j}", "hg")
    lt = A.newlabel("tok")
    A("s_or_b32 s85, s14, s19")
    A("s_cmp_lg_u32 s85, 0")
    A(f"s_cbranch_scc1 {lt}")
    A("s_or_b32 s86, s86, 1")
    A("v_mov_b32 v252, 0")
    A("v_mov_b32 v253, s86")
    A("s_mov_b64 exec, 1")
    A(f"global_store_dword v252, v253, s[56:57]{SC}")
    A("s_mov_b64 exec, -1")
    A.label(lt)
    if STAMPS:
        NST[0] -= 1
        stamp(A)
    A.vm_wait("hx")
    for j in range(28):
        A(f"v_lshlrev_b32 {v(FB_+2*j)}, 16, {v(XB_+j)}")
        A(f"v_and_b32 {v(FB_+2*j+1)}, 0xffff0000, {v(XB_+j)}")
    A(f"v_pk_add_f32 v[128:129], {v(FB_,2)}, {v(FB_+2,2)}")
    for j in range(2, 28):
        A(f"v_pk_add_f32 v[128:129], v[128:129], {v(FB_+2*j,2)}")
    A("v_add_f32 v128, v128, v129")
    red8(A, 128, 0)
    A(f"v_mul_f32 v128, {f32bits(1.0/448):#x}, v128")
    A("v_sub_f32 v172, 0, v128")
    A("v_mov_b32 v173, v172")
    for j in range(28):
        A(f"v_pk_add_f32 {v(174+2*(j&3),2)}, {v(FB_+2*j,2)}, v[172:173]")
        if j == 0:
            A(f"v_pk_mul_f32 v[182:183], {v(174,2)}, {v(174,2)}")
        else:
            A(f"v_pk_fma_f32 v[182:183], {v(174+2*(j&3),2)}, {v(174+2*(j&3),2)}, v[182:183]")
    A("v_add_f32 v129, v182, v183")
    red8(A, 129, 0)
    A(f"v_mul_f32 v129, {f32bits(1.0/448):#x}, v129")
    ln_finish(A, 128, 129)
    A("v_lshlrev_b32 v170, 3, v4")
    A(f"s_mov_b32 s33, {WS_LN1}")
    A("s_mov_b32 exec_lo, 0x01010101")
    A("s_mov_b32 exec_hi, 0x01010101")
    A.vmem(f"buffer_store_dwordx2 v[128:129], v170, s[28:31], s33 offen{SC}", "hst")
    A("s_mov_b64 exec, -1")
    cs_finish("s14")
    get_token(A)
    A("s_barrier")
    flag_store(A, 0)
    A.vm_restore([])
    if STAMPS:
        keep = NST[0]
        NST[0] = 20
        stamp(A)
        NST[0] = keep
    A("s_add_u32 s15, s14, 32")
    A("s_cmp_ge_u32 s15, 35")
    A("s_cbranch_scc1 h_no2")
    cs_setup("s15")
    cs_finish("s15")
    A.label("h_no2")
    for j in range(28):
        A(f"v_lshlrev_b32 v168, 16, {v(GB_+j)}")
        A(f"v_and_b32 v169, 0xffff0000, {v(GB_+j)}")
        A(f"v_pk_mul_f32 {v(FB_+2*j,2)}, {v(FB_+2*j,2)}, v[168:169]")
    for j in range(56):
        rbf(A, FB_ + j)
    A(f"v_pk_add_f32 v[128:129], {v(FB_,2)}, {v(FB_+2,2)}")
    for j in range(2, 28):
        A(f"v_pk_add_f32 v[128:129], v[128:129], {v(FB_+2*j,2)}")
    A("v_add_f32 v128, v128, v129")
    red8(A, 128, 0)
    rbf(A, 128)
    A(f"v_mul_f32 v128, {f32bits(-LOG2E):#x}, v128")
    A("v_exp_f32 v128, v128")
    A("s_nop 0")
    A("v_add_f32 v128, 1.0, v128")
    A("v_rcp_f32 v128, v128")
    A("s_nop 0")
    rbf(A, 128)
    A("v_lshlrev_b32 v170, 2, v4")
    A(f"s_mov_b32 s33, {WS_G}")
    A("s_mov_b32 exec_lo, 0x01010101")
    A("s_mov_b32 exec_hi, 0x01010101")
    A(f"buffer_store_dword v128, v170, s[28:31], s33 offen{SC}")
    A("s_mov_b64 exec, -1")
    A("s_waitcnt vmcnt(0)")
    A("s_barrier")
    flag_store(A, 1)
    A.label("p1_done")
    A.vm_restore(["x"])
    stamp(A)
    L_X2, L_KV = 57344, 163840 - 49152
    A("s_load_dwordx2 s[4:5], s[0:1], 0")
    A("s_load_dwordx2 s[6:7], s[0:1], 40")
    A("s_load_dwordx2 s[8:9], s[0:1], 48")
    A("s_and_b32 s14, s2, 7")
    A("s_lshr_b32 s15, s2, 3")
    small_decode(A)
    A("s_and_b32 s46, s19, 3")
    A("s_lshr_b32 s47, s19, 2")
    A("s_lshr_b32 s16, s15, 4")
    A("s_lshl_b32 s48, s14, 1")
    A("s_add_u32 s48, s48, s16")
    A("s_and_b32 s49, s15, 15")
    A(f"s_cmp_ge_u32 s2, {NWG}")
    A("s_cbranch_scc1 p2_now2")
    A(f"v_mov_b32 v5, {v(U896)}")
    l = A.newlabel("sw")
    A("s_bitcmp1_b32 s19, 1")
    A(f"s_cbranch_scc0 {l}")
    A(f"v_mov_b32 v5, {v(U896S)}")
    A.label(l)
    A("s_and_b32 s38, s19, 1")
    A("s_lshl_b32 s38, s38, 6")
    A("v_xor_b32 v5, s38, v5")
    A("s_lshl_b32 s38, s18, 7")
    A(f"s_mul_i32 s39, s19, {8*896}")
    A("s_add_u32 s38, s38, s39")
    A("s_lshl_b32 s39, s19, 10")
    A("s_waitcnt lgkmcnt(0)")
    A.srd(20, 4, 5, ACT_BYTES)
    A.srd(24, 6, 7, D * D * 2)
    A("s_barrier")
    for u in range(7):
        A("s_mov_b32 m0, s39")
        A("s_add_u32 s39, s39, 8192")
        A.vmem("buffer_load_dwordx4 v5, s[24:27], s38 offen lds", "w2")
        A(f"s_add_u32 s38, s38, {64*896}")
    A("s_waitcnt vmcnt(7)")
    A("s_barrier")
    flag_store(A, 0)
    if L2WARM:
        A("s_lshl_b32 s36, s15, 3")
        A("s_add_u32 s36, s36, s19")
        A(f"s_mul_i32 s36, s36, {2*F*2}")
        A("s_and_b32 s37, s14, 1")
        A("s_mul_i32 s37, s37, 1792")
        A("s_add_u32 s36, s36, s37")
        A.srd(68, 8, 9, D * F * 2)
        for q in range(2):
            A(f"buffer_load_dwordx4 {v(208+8*q,4)}, {v(L16)}, s[68:71], s36 offen")
            A("s_mov_b32 exec_hi, 0x0000ffff")
            A(f"buffer_load_dwordx4 {v(212+8*q,4)}, {v(L16)}, s[68:71], s36 offen offset:1024")
            A("s_mov_b32 exec_hi, -1")
            A(f"s_add_u32 s36, s36, {F*2}")
    A.label("p2_now2")

    def deps2():
        A(f"v_mul_u32_u24 v232, 5958, {v(VL)}")
        A("v_lshrrev_b32 v232, 16, v232")
        A("v_mul_u32_u24 v233, 11, v232")
        A(f"v_sub_u32 v233, {v(VL)}, v233")
        A("v_add_u32 v232, s49, v232")
        A("v_subrev_u32 v232, 2, v232")
        A("v_max_i32 v232, 0, v232")
        A("s_lshl_b32 s85, s17, 6")
        A(f"v_subrev_u32 v234, 33, {v(VL)}")
        A("v_lshrrev_b32 v235, 2, v234")
        A("v_mul_u32_u24 v235, 67, v235")
        A("v_add_u32 v235, s85, v235")
        A("v_subrev_u32 v235, 2, v235")
        A("v_max_i32 v235, 0, v235")
        A("v_min_i32 v235, 2047, v235")
        A("v_lshrrev_b32 v235, 7, v235")
        A("v_and_b32 v234, 3, v234")
        A("v_add_u32 v234, 10, v234")
        A(f"v_cmp_lt_u32 vcc, 32, {v(VL)}")
        A("s_nop 1")
        A("v_cndmask_b32 v232, v232, v235, vcc")
        A("v_cndmask_b32 v233, v233, v234, vcc")
        big_id(A, 252, 232, 233, 234)
        A(f"s_cmp_lt_u32 s2, {NWG}")
        A("s_cselect_b32 exec_hi, 0x1ff, 1")

    QF, C0, C16, FB, SCB, PB, TM, OA = 8, 12, 16, 20, 36, 104, 140, 160
    QK = 200
    AF, WFB, AC, XR, TB = 32, 64, 96, 112, 16
    A("s_mul_i32 s50, s48, 7")
    A("s_lshr_b32 s50, s50, 1")
    A("s_lshl_b32 s51, s49, 3")
    A("s_mul_i32 s52, s19, 3")
    A("s_add_u32 s52, s52, s51")
    A("s_sub_u32 s52, s52, 16")
    A("s_lshl_b32 s54, s50, 8")
    A("s_mul_i32 s55, s19, 3072")
    A(f"s_add_u32 s55, s55, {L_KV}")
    A("s_lshl_b32 s40, s48, 17")
    A(f"s_add_u32 s40, s40, {WS_V}")
    for j in range(3):
        A(f"s_add_i32 s41, s52, {j}")
        A("s_max_i32 s41, s41, 0")
        A(f"s_mul_i32 s{62+j}, s41, {RT_BYTES}")
        A(f"s_add_u32 s{62+j}, s{62+j}, s54")
        A(f"s_add_u32 s{62+j}, s{62+j}, {WS_K}")
        A("s_lshl_b32 s41, s41, 10")
        A(f"s_add_u32 s{65+j}, s41, s40")
    A("s_add_u32 s52, s51, s19")
    A(f"s_mul_i32 s52, s52, {RT_BYTES}")
    A("s_add_u32 s53, s52, s54")
    A("s_lshl_b32 s32, s17, 2")
    A("s_add_u32 s32, s32, s46")
    A(f"s_mul_i32 s33, s32, {RT_BYTES}")
    A(f"s_mul_i32 s34, s47, {7*1024}")
    A("s_add_u32 s34, s34, s33")
    A(f"s_add_u32 s34, s34, {WS_HS}")
    A("s_add_u32 s35, s34, 4096")
    poll(A, deps2, "s_waitcnt vmcnt(0)")
    A.vm_restore([])
    stamp(A)
    A(f"s_cmp_ge_u32 s2, {NWG}")
    A("s_cbranch_scc1 p2_noa")
    for u in range(7):
        A.vmem(f"buffer_load_dwordx4 {v(AF+4*u,4)}, {v(L16)}, s[28:31], s{34+u//4} offen offset:{1024*(u%4)}{SL}", ("a", u))
    A.label("p2_noa")
    for j in range(3):
        A(f"s_add_u32 m0, s55, {1024*j}")
        A("s_nop 0")
        A.vmem(f"buffer_load_dwordx4 {v(L16)}, s[28:31], s{62+j} offen{SL} lds", "kv")
        A(f"s_add_u32 m0, s55, {24576+1024*j}")
        A("s_nop 0")
        A.vmem(f"buffer_load_dwordx4 {v(L16)}, s[28:31], s{65+j} offen{SL} lds", "kv")
    A.vmem(f"buffer_load_dwordx4 {v(QK,4)}, {v(L16)}, s[28:31], s53 offen{SL}", "kv")
    A(f"s_cmp_ge_u32 s2, {NWG}")
    A("s_cbranch_scc1 p2_attn")
    A("s_lshl_b32 s40, s32, 4")
    A(f"v_add_u32 v8, s40, {v(VI)}")
    A("v_mul_u32_u24 v9, 896, v8")
    A(f"v_lshrrev_b32 v10, 1, {v(CSO)}")
    A("v_xor_b32 v11, 8, v10")
    A("v_add_u32 v11, v11, v9")
    A("v_add_u32 v9, v10, v9")
    A("s_lshl_b32 s40, s18, 7")
    A("s_lshl_b32 s41, s47, 6")
    A("s_add_u32 s40, s40, s41")
    A.vmem(f"buffer_load_dwordx2 {v(XR,2)}, v9, s[20:23], s40 offen", "x")
    A.vmem(f"buffer_load_dwordx2 {v(XR+2,2)}, v11, s[20:23], s40 offen", "x")
    A(f"s_mul_i32 s41, s47, {7*4096}")
    for t in range(4):
        A(f"v_add_u32 {v(TB+t)}, s41, {v(PB4+t)}")
    for r in unit_reads(TB, 0, WFB):
        A(r)
    A("s_xor_b32 s41, s19, 4")
    A("s_lshl_b32 s41, s41, 11")
    A(f"s_add_u32 s41, s41, {L_X2}")
    A(f"v_add_u32 v12, s41, {v(L16)}")
    A("s_lshl_b32 s41, s19, 11")
    A(f"s_add_u32 s41, s41, {L_X2}")
    A(f"v_add_u32 v13, s41, {v(L16)}")
    for u in range(7):
        A.vm_wait(("a", u), " lgkmcnt(0)")
        rd = unit_reads(TB, (u + 1) * 4096, WFB + 16 * ((u + 1) & 1)) if u < 6 else []
        for t in range(4):
            c = v(AC + 4 * t, 4)
            A(f"v_mfma_f32_16x16x32_bf16 {c}, {v(WFB+16*(u&1)+4*t,4)}, {v(AF+4*u,4)}, {c if u else 0}")
            for r in rd[4*t:4*t+4] if t < 2 else []:
                A(r)
    A.vm_wait("x")
    XU = 32
    for j in range(4):
        A(f"v_lshlrev_b32 {v(XU+2*j)}, 16, {v(XR+j)}")
        A(f"v_and_b32 {v(XU+2*j+1)}, 0xffff0000, {v(XR+j)}")
    A("s_cmp_eq_u32 s47, 0")
    A("s_cbranch_scc1 p2_x0")
    for r in range(8):
        A(f"v_swap_b32 {v(AC+r)}, {v(AC+8+r)}")
    A.label("p2_x0")
    for t in range(2):
        A(f"ds_write_b128 v12, {v(AC+8+4*t,4)} offset:{1024*t}")
    A("s_lshl_b32 s40, s18, 11")
    A("s_add_u32 s40, s40, s33")
    A("s_lshl_b32 s41, s47, 10")
    A("s_add_u32 s40, s40, s41")
    A(f"s_add_u32 s40, s40, {WS_X1}")
    A("s_waitcnt lgkmcnt(0)")
    A("s_barrier")
    for t in range(2):
        A(f"ds_read_b128 {v(AC+8+4*t,4)}, v13 offset:{1024*t}")
    A("s_waitcnt lgkmcnt(0)")
    for r in range(8):
        A(f"v_add_f32 {v(AC+r)}, {v(AC+r)}, {v(AC+8+r)}")
    for r in range(8):
        rbf(A, AC + r)
    for r in range(8):
        A(f"v_add_f32 {v(AC+r)}, {v(AC+r)}, {v(XU+r)}")
    for j in range(4):
        A(f"v_cvt_pk_bf16_f32 {v(X1K+j)}, {v(AC+2*j)}, {v(AC+2*j+1)}")
    A.vmem(f"buffer_store_dwordx4 {v(X1K,4)}, {v(L16)}, s[28:31], s40 offen{SC}", "st")
    for r in range(8):
        rbf(A, AC + r)
    A(f"v_add_f32 v12, {v(AC)}, {v(AC+1)}")
    for r in range(2, 8):
        A(f"v_add_f32 v12, v12, {v(AC+r)}")
    xlane_g(A, "v_add_f32", 12, 14, 15)
    A(f"v_mul_f32 v14, {f32bits(1.0/32):#x}, v12")
    for r in range(8):
        A(f"v_sub_f32 {v(AC+r)}, {v(AC+r)}, v14")
    A(f"v_mul_f32 v13, {v(AC)}, {v(AC)}")
    for r in range(1, 8):
        A(f"v_fmac_f32 v13, {v(AC+r)}, {v(AC+r)}")
    xlane_g(A, "v_add_f32", 13, 14, 15)
    A("v_lshlrev_b32 v8, 7, v8")
    A("s_lshl_b32 s40, s18, 4")
    A("s_lshl_b32 s41, s47, 3")
    A("s_add_u32 s40, s40, s41")
    A(f"s_add_u32 s40, s40, {WS_ST}")
    A("s_mov_b64 exec, 0xffff")
    A.vmem(f"buffer_store_dwordx2 v[12:13], v8, s[28:31], s40 offen{SC}", "st")
    A("s_mov_b64 exec, -1")
    A("s_branch p2_attn2")
    A.label("p2_attn")
    A("s_waitcnt vmcnt(0)")
    A("s_barrier")
    A.label("p2_attn2")
    A.vm_restore(["st"])
    stamp(A)
    A("s_load_dwordx4 s[4:7], s[0:1], 40")
    A("s_load_dwordx2 s[8:9], s[0:1], 56")
    A("s_load_dwordx2 s[10:11], s[0:1], 16")
    A("s_lshl_b32 s61, s19, 10")
    A(f"s_add_u32 s61, s61, {L_KV}")
    A(f"v_add_u32 v4, s61, {v(L16)}")
    for i in range(3):
        A(f"ds_read_b128 {v(FB+4*(i%4),4)}, v4 offset:{1024*i}")
    A(f"v_mov_b32 {v(TM+1)}, {NEGBIG:#x}")
    for r in range(4):
        A(f"v_lshl_add_u32 {v(TM)}, {v(VG)}, 2, {r}")
        A(f"v_cmp_gt_u32 vcc, {v(TM)}, {v(VI)}")
        A(f"v_mov_b32 {v(QF+r)}, {v(QK+r)}")
        A("s_nop 0")
        A(f"v_cndmask_b32 {v(C0+r)}, {v(TM+1)}, 0, vcc")
        A(f"v_cndmask_b32 {v(C16+r)}, 0, {v(TM+1)}, vcc")
    A("s_lshr_b32 s53, s48, 1")
    A("s_mul_i32 s53, s53, 7")
    A("s_add_u32 s53, s53, 3")
    A("s_lshr_b32 s53, s53, 1")
    A("s_xor_b32 s53, s53, s48")
    A("s_bitcmp1_b32 s48, 0")
    A("s_cselect_b32 exec_lo, 0xffff, 0")
    A("s_cselect_b32 exec_hi, 0, 0xffff0000")
    A("s_bitcmp1_b32 s53, 0")
    A("s_cbranch_scc1 p2_q01")
    A(f"v_mov_b32 {v(QF+2)}, 0")
    A(f"v_mov_b32 {v(QF+3)}, 0")
    A("s_branch p2_qz")
    A.label("p2_q01")
    A(f"v_mov_b32 {v(QF)}, 0")
    A(f"v_mov_b32 {v(QF+1)}, 0")
    A.label("p2_qz")
    A("s_mov_b64 exec, -1")
    A("s_add_u32 s61, s51, s19")
    A("s_sub_i32 s61, 16, s61")
    A("s_cmp_gt_i32 s61, 0")
    A("s_cbranch_scc1 p2_qkslow")
    for slow in range(2):
        if slow:
            A.label("p2_qkslow")
        for i in range(17):
            if i + 3 < 17:
                A(f"ds_read_b128 {v(FB+4*((i+3)%4),4)}, v4 offset:{1024*(i+3)}")
            A(f"s_waitcnt lgkmcnt({min(3, 16-i)})")
            c = v(C0, 4) if i == 0 else (v(C16, 4) if i == 16 else "0")
            if slow and i < 16:
                l1, l2 = A.newlabel("k2i"), A.newlabel("k2j")
                A(f"s_cmp_gt_i32 s61, {i}")
                A(f"s_cbranch_scc1 {l1}")
            A(f"v_mfma_f32_16x16x32_bf16 {v(SCB+4*i,4)}, {v(FB+4*(i%4),4)}, {v(QF,4)}, {c}")
            if slow and i < 16:
                A(f"s_branch {l2}")
                A.label(l1)
                for r in range(4):
                    A(f"v_mov_b32 {v(SCB+4*i+r)}, {NEGBIG:#x}")
                A.label(l2)
        if not slow:
            A("s_branch p2_qkdone")
    A.label("p2_qkdone")
    A("s_lshr_b32 s61, s19, 1")
    A("s_lshl_b32 s61, s61, 11")
    A(f"s_add_u32 s61, s61, {L_KV+24576}")
    A(f"v_add_u32 v5, s61, {v(L16)}")
    for j in range(2):
        A(f"ds_read_b128 {v(FB+4*j,4)}, v5 offset:{1024*j}")
    M = TM
    KL, NB = TM + 17, TM + 18
    A(f"v_max3_f32 {v(M)}, {v(SCB)}, {v(SCB+1)}, {v(SCB+2)}")
    A(f"v_max3_f32 {v(M+1)}, {v(SCB+3)}, {v(SCB+4)}, {v(SCB+5)}")
    idx, k = 6, 0
    while idx < 68:
        A(f"v_max3_f32 {v(M+k)}, {v(M+k)}, {v(SCB+idx)}, {v(SCB+idx+1)}")
        idx += 2
        k ^= 1
    A(f"v_max_f32 {v(M)}, {v(M)}, {v(M+1)}")
    xlane_g(A, "v_max_f32", M, M + 1, M + 2)
    A(f"v_mov_b32 {v(KL)}, {f32bits(SCALE*LOG2E):#x}")
    A(f"v_mul_f32 {v(NB)}, {f32bits(-SCALE*LOG2E):#x}, {v(M)}")
    A("s_mul_i32 s60, s48, 7")
    A(f"v_add_u32 v6, s60, {v(VG)}")
    A(f"v_and_b32 {v(TM)}, 1, v6")
    A("v_lshrrev_b32 v6, 1, v6")
    A("v_lshlrev_b32 v6, 8, v6")
    A(f"v_lshl_add_u32 v6, {v(TM)}, 3, v6")
    A(f"v_lshl_add_u32 v6, {v(VI)}, 4, v6")
    A(f"s_add_u32 s60, s52, {WS_O}")
    big_decode(A)
    PITCH = F * 2
    A(f"s_mul_i32 s34, s40, {8*PITCH}")
    A("s_lshl_b32 s35, s33, 7")
    A("s_add_u32 s34, s34, s35")
    A(f"s_mov_b32 s38, {32*PITCH}")
    A("s_and_b32 s42, s40, 2")
    A("s_lshl_b32 s42, s42, 1")
    gen3.V_WD = 204
    unit_dma_voff(A, 204, "s43", "s42", PITCH, 205, 206)
    A(f"v_cmp_lt_u32 vcc, 6, {v(VL)}")
    A("s_lshl_b32 s85, s17, 1")
    A("v_mov_b32 v232, s85")
    A("v_addc_co_u32 v232, vcc, 0, v232, vcc")
    A(f"v_cmp_lt_u32 vcc, 6, {v(VL)}")
    A(f"v_subrev_u32 v233, 7, {v(VL)}")
    A("s_nop 0")
    A(f"v_cndmask_b32 v233, {v(VL)}, v233, vcc")
    A("v_and_b32 v234, 3, v232")
    A("v_mul_u32_u24 v234, 7, v234")
    A("v_add_u32 v234, v234, v233")
    A("v_lshrrev_b32 v232, 2, v232")
    A("v_lshl_add_u32 v232, v234, 3, v232")
    A("s_add_u32 s85, s33, 7")
    A("s_and_b32 s85, s85, 31")
    A(f"s_add_u32 s85, s85, {NWG}")
    A("v_writelane_b32 v232, s85, 14")
    A("v_lshlrev_b32 v232, 7, v232")
    A("v_add_u32 v232, 32768, v232")
    sp3 = Spec(A, 232, 0x7fff, lambda tag: None)
    A.srd(24, 6, 7, D * F * 2)
    A("s_waitcnt vmcnt(0)")
    A("s_barrier")
    A.vm_restore([])
    A(f"s_cmp_ge_u32 s2, {NWG}")
    A("s_cbranch_scc1 p2_now3")
    flag_store(A, 1)
    for ds in range(3):
        for p in big_dma_parts(A, ds, 2048, V_XD)[1:]:
            p()
    if L2WARM:
        A("s_lshl_b32 s44, s15, 3")
        A("s_add_u32 s44, s44, s19")
        A("s_mul_i32 s45, s44, 1792")
        A("s_mul_i32 s44, s44, 7168")
        A.srd(68, 8, 9, D * F * 2)
        A.srd(72, 10, 11, D * D * 2)
        for q in range(7):
            A.vmem(f"buffer_load_dwordx4 v[208:211], {v(L16)}, s[68:71], s44 offen offset:{1024*(q%4)}", "warm")
            if q == 3:
                A("s_add_u32 s44, s44, 4096")
        for q in range(2):
            A.vmem(f"buffer_load_dwordx4 v[208:211], {v(L16)}, s[72:75], s45 offen offset:{896*q}", "warm")
    A.label("p2_now3")
    A("s_bitcmp1_b32 s19, 0")
    A("s_cbranch_scc1 p2_odd")
    for par in range(2):
        if par:
            A.label("p2_odd")
        zs = 17 if par == 0 else 0
        A(f"v_mov_b32 {v(PB+2*zs)}, 0")
        A(f"v_mov_b32 {v(PB+2*zs+1)}, 0")
        nread = 2
        if par:
            A.vm_restore(snap_att)
        snap_att = A.vm_snapshot()
        for c in range(9):
            if c == SP3C:
                sp3.stage1()
            els = []
            for half in range(2):
                slot = 2 * c + half
                if slot != zs:
                    els += [SCB + 4 * (slot - par) + r for r in range(4)]
            for e in els:
                A(f"v_fma_f32 {v(e)}, {v(e)}, {v(KL)}, {v(NB)}")
            for e in els:
                A(f"v_exp_f32 {v(e)}, {v(e)}")
            while nread < min(18, 2 * c + 4):
                A(f"ds_read_b128 {v(FB+4*(nread%4),4)}, v5 offset:{1024*nread}")
                nread += 1
            if c >= 7:
                A("s_nop 0")
            for half in range(2):
                slot = 2 * c + half
                if slot == zs:
                    continue
                i = slot - par
                A(f"v_cvt_pk_bf16_f32 {v(PB+2*slot)}, {v(SCB+4*i)}, {v(SCB+4*i+1)}")
                A(f"v_cvt_pk_bf16_f32 {v(PB+2*slot+1)}, {v(SCB+4*i+2)}, {v(SCB+4*i+3)}")
            A(f"s_waitcnt lgkmcnt({nread - (2*c+2)})")
            A("s_nop 0")
            for dt in range(2):
                A(f"v_mfma_f32_16x16x32_bf16 {v(OA+4*dt,4)}, {v(FB+4*((2*c+dt)%4),4)}, {v(PB+4*c,4)}, {v(OA+4*dt,4) if c else 0}")
        if par == 0:
            A("s_branch p2_out")
    A.label("p2_out")
    A(f"v_mov_b32 {v(TM)}, 0")
    A("s_lshl_b32 s35, s17, 3")
    A("s_add_u32 s35, s35, s19")
    A(f"s_mul_i32 s35, s35, {RT_BYTES}")
    A(f"s_add_u32 s35, s35, {WS_X1}")
    A("s_lshl_b32 s42, s40, 12")
    A(f"v_add_u32 {v(V_XR[0])}, s42, {v(L16)}")
    A(f"v_add_u32 {v(V_XR[1])}, {2*SLOT}, {v(V_XR[0])}")
    A("s_mov_b32 exec_lo, 0")
    A("s_mov_b32 exec_hi, 0xffff0000")
    A(f"v_mov_b32 {v(TM)}, {v(OA+4)}")
    A("s_mov_b64 exec, -1")
    xlane_g(A, "v_add_f32", TM, TM + 1, TM + 2)
    A(f"v_rcp_f32 {v(TM)}, {v(TM)}")
    A("s_nop 0")
    for r in range(8):
        A(f"v_mul_f32 {v(OA+r)}, {v(TM)}, {v(OA+r)}")
    for r in range(4):
        A(f"v_cvt_pk_bf16_f32 {v(TM+4+r)}, {v(OA+2*r)}, {v(OA+2*r+1)}")
    A.vmem(f"buffer_store_dwordx2 {v(TM+4,2)}, v6, s[28:31], s60 offen{SC}", "ost")
    ex48(A)
    A.vmem(f"buffer_store_dwordx2 {v(TM+6,2)}, v6, s[28:31], s60 offen offset:512{SC}", "ost")
    exall(A)
    l3 = A.newlabel("p3go")
    A(f"s_cmp_lt_u32 s2, {NWG}")
    A(f"s_cbranch_scc1 {l3}")
    A("s_waitcnt vmcnt(0)")
    A("s_barrier")
    flag_store(A, 2)
    A("s_endpgm")
    A.label(l3)
    A(f"v_mov_b32 {v(V_XD)}, {v(L16)}")
    big_bases(A, PB4)
    A("s_lshl_b32 s39, s17, 3")
    A("s_lshl_b32 s42, s40, 1")
    A("s_add_u32 s39, s39, s42")
    A("s_lshl_b32 s42, s39, 4")
    A(f"v_add_u32 v24, s42, {v(VI)}")
    A("v_lshlrev_b32 v24, 7, v24")
    A(f"v_lshl_add_u32 v24, {v(VG)}, 5, v24")
    A(f"s_mov_b32 s46, {WS_ST}")
    A("s_lshl_b32 s45, s33, 8")
    A(f"s_add_u32 s45, s45, {WS_CS + 7*256}")
    A(f"v_xor_b32 v203, 16, {v(CSO)}")
    A.srd(20, 58, 59, WS_SIZE)
    stamp(A)
    A.vm_wait("sflag")
    A(f"v_cmp_ne_u32 s[96:97], s{TOK}, v253")
    l = A.newlabel("sp3")
    A("s_and_b64 s[96:97], s[96:97], 0x7fff")
    A(f"s_cbranch_scc0 {l}")
    A("s_mov_b64 exec, 0x7fff")
    spin(A, 232)
    A.label(l)
    stamp(A)
    gen3.XSC[0] = SL
    for ds in range(2):
        big_dma_parts(A, ds, 2048, V_XD)[0]()
    STR = 180

    def h3a():
        for j in range(2):
            for q in range(2):
                A.vmem(f"buffer_load_dwordx4 {v(STR+8*j+4*q,4)}, v24, s[28:31], s46 offen offset:{2048*j+16*q}{SL}", "st")
        for t in range(4):
            A.vmem(f"buffer_load_dwordx4 {v(CS+4*t,4)}, {v(203 if t & 1 else CSO)}, s[28:31], s45 offen offset:{128*(t>>1)}{SL}", "st")
        A("s_load_dwordx2 s[4:5], s[0:1], 16")
        A("s_load_dwordx2 s[6:7], s[0:1], 56")
        A("s_load_dwordx2 s[8:9], s[0:1], 72")

    RS4, PF4 = 6, 4
    RING = RS4 * 4096
    L4_WO, L4_R = 0, 57344
    OFB = 204
    def o_loads(tag):
        for u in range(7):
            A.vmem(f"buffer_load_dwordx4 {v(OFB+4*u,4)}, {v(L16)}, s[28:31], s{62+u//4} offen offset:{1024*(u%4)}{SL}", tag)
        A.vmem(f"buffer_load_dword v247, v246, s[28:31], s64 offen{SL}", tag)

    sp4 = Spec(A, 245, 0x1ffff, o_loads)

    def h3b():
        A("s_mul_i32 s16, s15, 9363")
        A("s_lshr_b32 s16, s16, 16")
        A("s_mul_i32 s69, s16, 7")
        A("s_sub_u32 s69, s15, s69")
        A("s_lshl_b32 s68, s14, 2")
        A("s_add_u32 s68, s68, s16")
        A(f"v_and_b32 v245, 1, {v(VL)}")
        A("v_lshlrev_b32 v245, 4, v245")
        A("s_lshr_b32 s85, s68, 1")
        A("v_add_u32 v245, s85, v245")
        A(f"v_lshrrev_b32 v246, 1, {v(VL)}")
        A("v_lshl_add_u32 v245, v245, 3, v246")
        A("v_lshlrev_b32 v245, 7, v245")
        A("v_add_u32 v245, 65536, v245")
        A(f"s_add_u32 s85, s68, {NWG}")
        A("s_lshl_b32 s85, s85, 7")
        A("s_add_u32 s85, s85, 32768")
        A("v_writelane_b32 v245, s85, 16")
        A("s_lshl_b32 s70, s68, 2")
        A("s_add_u32 s70, s70, s40")
        A(f"s_mul_i32 s62, s70, {RT_BYTES}")
        A(f"s_mul_i32 s63, s41, {7*1024}")
        A("s_add_u32 s62, s62, s63")
        A(f"s_add_u32 s62, s62, {WS_O}")
        A("s_add_u32 s63, s62, 4096")
        A("s_lshl_b32 s85, s70, 4")
        A(f"v_add_u32 v244, s85, {v(VI)}")
        A("v_lshlrev_b32 v246, 2, v244")
        A(f"s_mov_b32 s64, {WS_G}")
        sp4.stage1()

    def h3c():
        A.vm_wait("st")
        A("s_mov_b32 exec_lo, 0")
        A("s_mov_b32 exec_hi, 0xffff0000")
        for j in range(2):
            for r in range(4, 8):
                A(f"v_mov_b32 {v(STR+8*j+r)}, 0")
        A("s_mov_b64 exec, -1")
        for j in range(2):
            b = STR + 8 * j
            m, q = MR[j], RS[j]
            A(f"v_add_f32 {v(m)}, {v(b)}, {v(b+2)}")
            A(f"v_add_f32 {v(q)}, {v(b+4)}, {v(b+6)}")
            A(f"v_add_f32 {v(m)}, {v(m)}, {v(q)}")
            xlane_g(A, "v_add_f32", m, 196, 197)
            A(f"v_mul_f32 {v(m)}, {f32bits(1.0/448):#x}, {v(m)}")
            A(f"v_add_f32 {v(q)}, {v(b+1)}, {v(b+3)}")
            A(f"v_add_f32 {v(q)}, {v(q)}, {v(b+5)}")
            A(f"v_add_f32 {v(q)}, {v(q)}, {v(b+7)}")
            for r in (0, 2, 4, 6):
                A(f"v_mul_f32 {v(b+r)}, {f32bits(1.0/32):#x}, {v(b+r)}")
                A(f"v_sub_f32 {v(b+r)}, {v(b+r)}, {v(m)}")
            A(f"v_mul_f32 {v(b)}, {v(b)}, {v(b)}")
            A(f"v_fmac_f32 {v(b)}, {v(b+2)}, {v(b+2)}")
            ex48(A)
            A(f"v_fmac_f32 {v(b)}, {v(b+4)}, {v(b+4)}")
            A(f"v_fmac_f32 {v(b)}, {v(b+6)}, {v(b+6)}")
            exall(A)
            A(f"v_fmamk_f32 {v(q)}, {v(b)}, {f32bits(32.0):#x}, {v(q)}")
            xlane_g(A, "v_add_f32", q, 196, 197)
            A(f"v_mul_f32 {v(q)}, {f32bits(1.0/448):#x}, {v(q)}")
            ln_finish(A, m, q)
            A(f"v_mov_b32 {v(m+1)}, {v(m)}")
            A(f"v_mov_b32 {v(q+1)}, {v(q)}")
        gelu_consts(A, 148)
        A(f"s_mul_i32 s42, s39, {H3_RT_BYTES}")
        A("s_lshl_b32 s43, s33, 11")
        A("s_add_u32 s42, s42, s43")
        A(f"s_add_u32 s42, s42, {WS_H3}")
        A(f"s_add_u32 s43, s42, {H3_RT_BYTES}")

    consts = (148, 150, 152)
    big_mainloop(A, False, 2048, V_XD, False, wdone=(0, 1, 2), hook=lambda: flag_store(A, 2), hooks={7: h3a, 9: h3b, 11: h3c})
    gen3.XSC[0] = ""
    stamp(A)
    A(f"v_mov_b32 v6, {v(U896)}")
    A("s_and_b32 s85, s19, 1")
    A("s_lshl_b32 s85, s85, 6")
    A("v_xor_b32 v6, s85, v6")
    A("v_xor_b32 v7, 64, v6")
    A("s_lshl_b32 s66, s69, 7")
    A(f"s_mul_i32 s65, s19, {7*8*896}")
    A("s_add_u32 s65, s65, s66")
    A("s_mul_i32 s67, s19, 7168")
    A.srd(20, 4, 5, D * D * 2)
    A("s_barrier")
    for u in range(7):
        A("s_mov_b32 m0, s67")
        A("s_add_u32 s67, s67, 1024")
        A.vmem(f"buffer_load_dwordx4 v{6+(u&1)}, s[20:23], s65 offen lds", "wo")
        A(f"s_add_u32 s65, s65, {8*896}")
    sp4.stage2()
    def st3(j, pk):
        for tp in range(2):
            A.vmem(f"buffer_store_dwordx4 {v(pk+4*tp,4)}, {v(L16)}, s[28:31], s{42+j} offen offset:{1024*tp}{SC}", "hst")

    gelu_epilogue(A, CS, MR, RS, consts, 48, 32, st3)
    stamp(A)
    NA = PF4 + 2
    AFB = 32
    WFB = AFB + NA * 8
    ACB = WFB + 32
    AWO = ACB + 32
    WOF = AWO + 16
    assert WOF + 32 <= OFB
    GR = 247
    TB, TO = 20, 24
    af = lambda sx, j: AFB + ((sx % NA) * 2 + j) * 4
    ac = lambda j, t: v(ACB + (j * 4 + t) * 4, 4)
    for m in range(1, 4):
        A(f"v_add_u32 v{8+m}, {4096*m}, {v(L16)}")
    A(f"v_mov_b32 v8, {v(L16)}")
    A(f"v_mov_b32 v4, {v(U896)}")
    l = A.newlabel("sw")
    A("s_cmp_eq_u32 s41, 0")
    A(f"s_cbranch_scc1 {l}")
    A(f"v_mov_b32 v4, {v(U896S)}")
    A.label(l)
    A("v_xor_b32 v5, 64, v4")
    A("s_lshl_b32 s32, s68, 2")
    A("s_lshl_b32 s33, s41, 1")
    A("s_add_u32 s32, s32, s33")
    A(f"s_mul_i32 s32, s32, {H3_RT_BYTES}")
    A(f"s_mul_i32 s33, s40, {14*1024}")
    A("s_add_u32 s32, s32, s33")
    A(f"s_add_u32 s32, s32, {WS_H3}")
    A(f"s_add_u32 s33, s32, {H3_RT_BYTES}")
    A(f"s_mul_i32 s36, s40, {448*896}")
    A(f"s_mul_i32 s34, s41, {16*896}")
    A("s_add_u32 s36, s36, s34")
    A("s_add_u32 s36, s36, s66")
    A(f"s_mul_i32 s35, s40, {RING}")
    A(f"s_add_u32 s35, s35, {L4_R}")
    A("s_lshl_b32 s37, s41, 11")
    A("s_add_u32 s37, s37, s35")
    A(f"s_mul_i32 s44, s41, {7*4096}")
    for t in range(4):
        A(f"v_add_u32 {v(TO+t)}, s44, {v(PB4+t)}")
        A(f"v_add_u32 {v(TB+t)}, s35, {v(PB4+t)}")
    A.srd(24, 6, 7, F * D * 2)
    A.srd(48, 8, 9, ACT_BYTES)

    ROT = os.environ.get("ROT", "0") == "1"
    if ROT:
        A("s_lshl_b32 s72, s69, 1")
        A(f"s_add_u32 s73, s36, {14*32*896}")
        A(f"s_mul_i32 s74, s72, {32*896}")
        A("s_add_u32 s36, s36, s74")
        A(f"s_add_u32 s75, s32, {14*1024}")
        A("s_lshl_b32 s74, s72, 10")
        A("s_add_u32 s32, s32, s74")

    def w_parts(sx):
        parts = []
        for j in range(2):
            def p(j=j):
                A(f"s_add_u32 m0, s37, {(sx%RS4)*4096 + j*1024}")
                A("s_nop 0")
                A.vmem(f"buffer_load_dwordx4 v{4+j}, s[24:27], s36 offen lds", ("w", sx))
                A(f"s_add_u32 s36, s36, {8*896 if j == 0 else 24*896}")
                if ROT and j == 1:
                    A(f"s_sub_u32 s74, s36, {14*32*896}")
                    A("s_cmp_ge_u32 s36, s73")
                    A("s_cselect_b32 s36, s74, s36")
            parts.append(p)
        return parts

    def a_parts(sx):
        if ROT:
            def p0():
                A(f"s_add_u32 s33, s32, {H3_RT_BYTES}")
                A.vmem(f"buffer_load_dwordx4 {v(af(sx,0),4)}, v8, s[28:31], s32 offen{SL}", ("ld", sx))

            def p1():
                A.vmem(f"buffer_load_dwordx4 {v(af(sx,1),4)}, v8, s[28:31], s33 offen{SL}", ("ld", sx))
                A("s_add_u32 s32, s32, 1024")
                A(f"s_sub_u32 s74, s32, {14*1024}")
                A("s_cmp_ge_u32 s32, s75")
                A("s_cselect_b32 s32, s74, s32")
            return [p0, p1]
        return [lambda j=j: A.vmem(f"buffer_load_dwordx4 {v(af(sx,j),4)}, v{8+sx//4}, s[28:31], s{32+j} offen offset:{1024*(sx%4)}{SL}", ("ld", sx)) for j in range(2)]

    sp4.finish()
    A("s_barrier")
    for r in unit_reads(TO, 0, WOF):
        A(r)
    for u in range(7):
        A("s_waitcnt lgkmcnt(0)")
        rd = unit_reads(TO, (u + 1) * 4096, WOF + 16 * ((u + 1) & 1)) if u < 6 else []
        for t in range(4):
            c = v(AWO + 4 * t, 4)
            A(f"v_mfma_f32_16x16x32_bf16 {c}, {v(WOF+16*(u&1)+4*t,4)}, {v(OFB+4*u,4)}, {c if u else 0}")
            for r in rd[4*t:4*t+4] if t < 2 else []:
                A(r)
            if t >= 2 and u >= 1:
                w_parts(u - 1)[t - 2]()
        if u == 1:
            A.vm_wait("hst")
            A("s_barrier")
            flag_store(A, 3)
    stamp(A)

    def deps4b():
        A("s_lshr_b32 s85, s68, 1")
        A("v_mov_b32 v232, s85")
        A(f"v_mov_b32 v233, {v(VL)}")
        big_id(A, 252, 232, 233, 234)
        A(f"v_add_u32 v252, {3*32768}, v252")
        A("s_mov_b64 exec, 0x3fff")

    poll(A, deps4b, "s_waitcnt vmcnt(0)")
    A.vm_restore([])
    stamp(A)
    na = [0]

    def take_a(n, limit):
        out = []
        while n > 0 and na[0] < 14 and na[0] <= limit:
            out += a_parts(na[0])
            na[0] += 1
            n -= 1
        return out

    for p in take_a(3, 2):
        p()
    for r in unit_reads(TB, 0, WFB):
        A(r)
    for sx in range(14):
        tags = [("ld", sx)]
        bar = sx % 2 == 0 and 0 < sx < 13
        if bar:
            tags += [("w", t) for t in (sx + 1, sx + 2) if 5 < t < 14]
        A.vm_wait(tags, " lgkmcnt(0)")
        if bar:
            A("s_barrier")
        rd = unit_reads(TB, ((sx + 1) % RS4) * 4096, WFB + 16 * ((sx + 1) & 1)) if sx < 13 else []
        parts = take_a(2, sx + 1 + PF4)
        wt = [6] if sx == 2 else []
        wt += [sx + 5] if 2 <= sx and sx + 5 < 14 else []
        for t in wt:
            parts += w_parts(t)
        mf = [f"v_mfma_f32_16x16x32_bf16 {ac(j,t)}, {v(WFB+16*(sx&1)+4*t,4)}, {v(af(sx,j),4)}, {ac(j,t) if sx else 0}" for t in range(4) for j in range(2)]
        E4 = os.environ.get("E4", "")
        for i, m in enumerate(mf):
            if "m" not in E4:
                A(m)
            for _ in range(2):
                if rd:
                    r_ = rd.pop(0)
                    if "r" not in E4:
                        A(r_)
            for _ in range(-(-len(parts) // (len(mf) - i))):
                parts.pop(0)()
        assert not rd and not parts
    stamp(A)
    A("s_lshl_b32 s52, s40, 14")
    A("s_lshl_b32 s53, s41, 13")
    A("s_add_u32 s52, s52, s53")
    A("v_add_u32 v12, s52, v8")
    A("s_lshl_b32 s52, s41, 14")
    A("s_lshl_b32 s53, s40, 12")
    A("s_add_u32 s52, s52, s53")
    A("s_add_u32 s52, s52, 65536")
    A("v_add_u32 v13, s52, v8")
    A("s_barrier")
    for t in range(4):
        A(f"ds_write_b128 v13, {v(AWO+4*t,4)} offset:{t*1024}")
    for j in range(2):
        for t in range(4):
            A(f"ds_write_b128 v12, {ac(j,t)} offset:{(j*4+t)*1024}")
    A("s_lshl_b32 s52, s40, 12")
    A("s_lshl_b32 s53, s41, 11")
    A("s_add_u32 s52, s52, s53")
    A("v_add_u32 v12, s52, v8")
    A("v_add_u32 v13, 65536, v12")
    XU = OFB
    for j in range(4):
        A(f"v_lshlrev_b32 {v(XU+2*j)}, 16, {v(X1K+j)}")
        A(f"v_and_b32 {v(XU+2*j+1)}, 0xffff0000, {v(X1K+j)}")
    A(f"v_sub_f32 v19, 1.0, {v(GR)}")
    rbf(A, 19)
    A("v_mul_u32_u24 v14, 896, v244")
    A(f"v_lshrrev_b32 v16, 1, {v(CSO)}")
    A("v_xor_b32 v15, 8, v16")
    A("v_add_u32 v15, v15, v14")
    A("v_add_u32 v14, v16, v14")
    A("s_lshl_b32 s53, s41, 6")
    A("s_add_u32 s52, s66, s53")
    A("s_waitcnt lgkmcnt(0)")
    A("s_barrier")
    RB = 32
    for q in range(4):
        for t in range(2):
            A(f"ds_read_b128 {v(RB+8*q+4*t,4)}, v12 offset:{16384*q + 1024*t}")
    for q in range(2):
        for t in range(2):
            A(f"ds_read_b128 {v(RB+32+8*q+4*t,4)}, v13 offset:{16384*q + 1024*t}")
    A("s_waitcnt lgkmcnt(4)")
    for r in range(8):
        A(f"v_add_f32 {v(RB+r)}, {v(RB+r)}, {v(RB+8+r)}")
        A(f"v_add_f32 {v(RB+16+r)}, {v(RB+16+r)}, {v(RB+24+r)}")
    for r in range(8):
        A(f"v_add_f32 {v(RB+r)}, {v(RB+r)}, {v(RB+16+r)}")
    for r in range(8):
        rbf(A, RB + r)
    for r in range(8):
        A(f"v_add_f32 {v(RB+r)}, {v(RB+r)}, {v(XU+r)}")
    for r in range(8):
        rbf(A, RB + r)
    A("s_waitcnt lgkmcnt(0)")
    AU = RB + 32
    for r in range(8):
        A(f"v_add_f32 {v(AU+r)}, {v(AU+r)}, {v(AU+8+r)}")
        A(f"v_mul_f32 {v(RB+r)}, v19, {v(RB+r)}")
    for r in range(8):
        rbf(A, AU + r)
        rbf(A, RB + r)
    for r in range(8):
        A(f"v_mul_f32 {v(AU+r)}, {v(GR)}, {v(AU+r)}")
    for r in range(8):
        rbf(A, AU + r)
    for r in range(8):
        A(f"v_add_f32 {v(RB+r)}, {v(RB+r)}, {v(AU+r)}")
    for j in range(4):
        A(f"v_cvt_pk_bf16_f32 {v(XU+j)}, {v(RB+2*j)}, {v(RB+2*j+1)}")
    A(f"buffer_store_dwordx2 {v(XU,2)}, v14, s[48:51], s52 offen")
    A(f"buffer_store_dwordx2 {v(XU+2,2)}, v15, s[48:51], s52 offen")
    stamp(A)
    A.label(Lend)
    A("s_endpgm")
    return A.text()


def build():
    hdr = open("gated_mix__sliding_block__mixer_s_mlp__prompt.s.ref").read().split("; Override launch")[0]
    out = hdr + "; @launch grid=(256,1,1) block=(512,1,1) lds=163840\n"
    out += '.amdgcn_target "amdgcn-amd-amdhsa--gfx950"\n.text\n'
    out += kernel_head(KNAME) + gen()
    out += '.section .rodata,"a"\n' + kernel_desc(KNAME, 256, 256)
    return out


if __name__ == "__main__":
    dst = sys.argv[1] if len(sys.argv) > 1 else "gated_mix__sliding_block__mixer_s_mlp__prompt.s"
    open(dst, "w").write(build())
    print("wrote", dst)
```

```python
import os
import sys
from asmlib import Asm, v, a, s, f32bits, kernel_desc, kernel_head
import gen3
from gen2 import (lane_setup, xlane_g, rbf, ln_finish, gelu_consts, ex48, exall,
                  S, D, F, MB, WS_K, WS_V, WS_HS, WS_X1, WS_O, WS_H3, WS_G, WS_ST, WS_SIZE, WS_DBG, ACT_BYTES, RT_BYTES,
                  H3_RT_BYTES, LOG2E, SCALE, NEGBIG, STAMPS, VL, VI, VG)
from gen3 import (unit_bases, unit_dma_voff, unit_reads, big_mainloop, big_dma_parts, big_decode,
                  gelu_epilogue, small_decode, SLOT, V_XD, V_XD2, V_WD, V_XR, V_TB, ACC, NWG)

KNAME = "gated_mix__sliding_block__mixer_s_mlp__prompt_kernel"
WS_FLAG = 26 * MB
WS_LN1 = 27 * MB
WS_CS = 27 * MB + 65536
TOK = 84
PB4 = 236
L16 = 240
U896, U896S = 241, 242
CSO = 243
X1K = 248
SC = " sc1"
SL = " sc1"
SP3C = int(os.environ.get("SP3C", "7"))
L2WARM = os.environ.get("L2WARM", "0") == "1"
gen3.stamp = lambda A, i: None
gen3.CZERO[0] = True
NST = [0]


def stamp(A):
    if not STAMPS:
        return
    i = NST[0]
    NST[0] += 1
    A("s_memrealtime s[86:87]")
    A("s_lshl_b32 s88, s2, 11")
    A("s_lshl_b32 s89, s19, 7")
    A("s_add_u32 s88, s88, s89")
    A(f"s_add_u32 s88, s88, {WS_DBG + 4*i}")
    A("s_mov_b64 s[90:91], exec")
    A("s_mov_b64 exec, 1")
    A("v_mov_b32 v254, 0")
    A("s_waitcnt lgkmcnt(0)")
    A("v_mov_b32 v255, s86")
    A.vmem("buffer_store_dword v255, v254, s[28:31], s88 offen", "stamp")
    A("s_mov_b64 exec, s[90:91]")


def flag_store(A, kind):
    l = A.newlabel("pub")
    A("s_cmp_lg_u32 s19, 0")
    A(f"s_cbranch_scc1 {l}")
    A("s_lshl_b32 s85, s2, 7")
    A(f"s_add_u32 s85, s85, {WS_FLAG + kind*32768}")
    A("v_mov_b32 v252, 0")
    A(f"v_mov_b32 v253, s{TOK}")
    A("s_mov_b64 exec, 1")
    A(f"buffer_store_dword v253, v252, s[28:31], s85 offen{SC}")
    A("s_mov_b64 exec, -1")
    A.label(l)


def tok_ok(A):
    A(f"s_sub_i32 s85, s82, s{TOK}")
    A("s_cmp_lt_i32 s85, 1000")
    A(f"s_cselect_b32 s85, s{TOK}, 0")
    A("s_cmp_lg_u32 s85, 0")


def get_token(A):
    l, l2 = A.newlabel("tok"), A.newlabel("tok")
    A("v_mov_b32 v252, 0")
    A("s_mov_b32 s93, 0")
    A.label(l)
    A(f"global_load_dword v253, v252, s[56:57]{SC}")
    A("s_add_u32 s93, s93, 1")
    A("s_waitcnt vmcnt(0)")
    A(f"v_readfirstlane_b32 s{TOK}, v253")
    A("s_cmp_ge_u32 s93, 0x4000")
    A(f"s_cbranch_scc1 {l2}")
    tok_ok(A)
    A(f"s_cbranch_scc0 {l}")
    A.label(l2)


def spin(A, vaddr):
    lp = A.newlabel("pol")
    A(f"s_mov_b32 s85, {WS_FLAG}")
    A("s_mov_b32 s93, 0")
    A.label(lp)
    A(f"buffer_load_dword v253, {v(vaddr)}, s[28:31], s85 offen{SC}")
    A("s_add_u32 s93, s93, 1")
    A("s_waitcnt vmcnt(0)")
    A(f"v_cmp_ne_u32 vcc, s{TOK}, v253")
    A("s_cmp_lt_u32 s93, 0x20000")
    A("s_cselect_b64 s[94:95], vcc, 0")
    A("s_cmp_lg_u64 s[94:95], 0")
    A(f"s_cbranch_scc1 {lp}")
    A("s_mov_b64 exec, -1")


def poll(A, addr_fn, extra_wait=""):
    l = A.newlabel("pol")
    A("s_cmp_lg_u32 s19, 0")
    A(f"s_cbranch_scc1 {l}")
    addr_fn()
    spin(A, 252)
    A.label(l)
    if extra_wait:
        A(extra_wait)
    A("s_barrier")


def big_id(A, dst, rt, ct, t0):
    A(f"v_lshrrev_b32 {v(dst)}, 2, {v(rt)}")
    A(f"v_lshlrev_b32 {v(dst)}, 1, {v(dst)}")
    A(f"v_cmp_lt_u32 vcc, 6, {v(ct)}")
    A("s_nop 1")
    A(f"v_addc_co_u32 {v(dst)}, vcc, 0, {v(dst)}, vcc")
    A(f"v_cmp_lt_u32 vcc, 6, {v(ct)}")
    A(f"v_and_b32 {v(t0)}, 3, {v(rt)}")
    A(f"v_mul_u32_u24 {v(t0)}, 7, {v(t0)}")
    A(f"v_add_u32 {v(t0)}, {v(t0)}, {v(ct)}")
    A(f"v_subrev_u32 {v(rt)}, 7, {v(t0)}")
    A(f"v_cndmask_b32 {v(t0)}, {v(t0)}, {v(rt)}, vcc")
    A(f"v_lshl_add_u32 {v(dst)}, {v(t0)}, 3, {v(dst)}")
    A(f"v_lshlrev_b32 {v(dst)}, 7, {v(dst)}")


def big_bases(A, src):
    A("s_lshl_b32 s42, s41, 13")
    A("s_add_u32 s42, s42, 16384")
    A(f"s_add_u32 s43, s42, {2*SLOT}")
    for t in range(4):
        A(f"v_add_u32 {v(V_TB[1]+t)}, s43, {v(src+t)}")
        A(f"v_add_u32 {v(V_TB[0]+t)}, s42, {v(src+t)}")


class Spec:
    def __init__(self, A, vflag, mask, loads):
        self.A, self.vflag, self.mask, self.loads = A, vflag, mask, loads

    def stage1(self):
        A = self.A
        A(f"s_mov_b32 s85, {WS_FLAG}")
        A(f"s_mov_b64 exec, {self.mask:#x}")
        A.vmem(f"buffer_load_dword v253, {v(self.vflag)}, s[28:31], s85 offen{SC}", "sflag")
        A("s_mov_b64 exec, -1")

    def stage2(self):
        A = self.A
        A.vm_wait("sflag")
        A(f"v_cmp_ne_u32 s[96:97], s{TOK}, v253")
        self.loads("sdata")

    def finish(self):
        A = self.A
        l = A.newlabel("spec")
        A(f"s_and_b64 s[96:97], s[96:97], {self.mask:#x}")
        A(f"s_cbranch_scc0 {l}")
        A(f"s_mov_b64 exec, {self.mask:#x}")
        spin(A, self.vflag)
        snap = A.vm_snapshot()
        self.loads("sdata")
        A.vm_restore(snap)
        A("s_waitcnt vmcnt(0)")
        A.label(l)
        A.vm_wait("sdata")


def red8(A, x, t):
    for dpp in ("quad_perm:[1,0,3,2]", "quad_perm:[2,3,0,1]", "row_half_mirror"):
        A("s_nop 1")
        A(f"v_add_f32_dpp {v(x)}, {v(x)}, {v(x)} {dpp} row_mask:0xf bank_mask:0xf")


def gen():
    A = Asm()
    Lend = "k_end"
    A("s_cmp_ge_u32 s2, 256")
    A(f"s_cbranch_scc1 {Lend}")
    A("s_load_dwordx4 s[4:7], s[0:1], 0")
    A("s_load_dwordx2 s[8:9], s[0:1], 32")
    A("s_load_dwordx4 s[56:59], s[0:1], 80")
    A("s_memrealtime s[82:83]")
    lane_setup(A)
    A(f"v_lshlrev_b32 {v(L16)}, 4, {v(VL)}")
    A(f"s_cmp_ge_u32 s2, {NWG}")
    A("s_cbranch_scc1 helper")
    big_decode(A)
    A("s_sub_u32 s46, s33, 21")
    A("s_movk_i32 s32, 896")
    A("s_cmp_lt_u32 s33, 21")
    A("s_cselect_b32 s32, 2688, s32")
    A("s_cselect_b32 s34, s33, s46")
    A("s_lshl_b32 s34, s34, 7")
    A("s_lshl_b32 s35, s40, 3")
    A("s_mul_i32 s35, s35, s32")
    A("s_add_u32 s34, s34, s35")
    A("s_lshl_b32 s38, s32, 5")
    unit_dma_voff(A, V_WD, "s43", None, "s32", 24, 25)
    A(f"v_lshrrev_b32 v24, 3, {v(VL)}")
    A("v_lshrrev_b32 v25, 1, v24")
    A(f"v_xor_b32 v25, v25, {v(VL)}")
    A("v_and_b32 v25, 7, v25")
    A(f"v_mul_u32_u24 {v(V_XD)}, 896, v24")
    A(f"v_lshl_add_u32 {v(V_XD)}, v25, 4, {v(V_XD)}")
    A(f"v_xor_b32 {v(V_XD2)}, 64, {v(V_XD)}")
    A(f"v_add_u32 {v(V_XD2)}, {8*896-1024}, {v(V_XD2)}")
    A("s_lshl_b32 s35, s17, 3")
    A("s_add_u32 s35, s35, s19")
    A(f"s_mul_i32 s35, s35, {RT_BYTES}")
    A("s_waitcnt lgkmcnt(0)")
    A.srd(20, 4, 5, ACT_BYTES)
    A(f"s_mov_b32 s26, {D*D*2}")
    A("s_cmp_lt_u32 s33, 21")
    A("s_cselect_b32 s24, s6, s8")
    A("s_cselect_b32 s25, s7, s9")
    A(f"s_cselect_b32 s26, {D*3*D*2}, s26")
    A("s_and_b32 s25, s25, 0xffff")
    A("s_mov_b32 s27, 0x00020000")
    for ds in range(2):
        for p in big_dma_parts(A, ds, 128, V_XD2):
            p()
    A.srd(28, 58, 59, WS_SIZE)
    stamp(A)
    A(f"v_lshrrev_b32 v24, 1, {v(VI)}")
    A(f"v_xor_b32 v24, v24, {v(VG)}")
    A("v_lshlrev_b32 v24, 4, v24")
    A(f"v_lshl_add_u32 v24, {v(VI)}, 7, v24")
    A("s_lshl_b32 s42, s40, 12")
    A(f"v_add_u32 {v(V_XR[0])}, s42, v24")
    A(f"v_xor_b32 {v(V_XR[2])}, 64, {v(V_XR[0])}")
    A(f"v_add_u32 {v(V_XR[1])}, {2*SLOT}, {v(V_XR[0])}")
    A(f"v_add_u32 {v(V_XR[3])}, {2*SLOT}, {v(V_XR[2])}")
    unit_bases(A, PB4, "pair", 24, 25, 26)
    unit_dma_voff(A, U896, "0", None, 896, 24, 25)
    unit_dma_voff(A, U896S, "0", "4", 896, 24, 25)
    A(f"v_lshrrev_b32 v24, 1, {v(VG)}")
    A(f"v_lshlrev_b32 {v(CSO)}, 5, {v(VG)}")
    A(f"v_lshl_add_u32 {v(CSO)}, v24, 4, {v(CSO)}")
    A("s_lshl_b32 s39, s17, 7")
    A("s_lshl_b32 s42, s40, 5")
    A("s_add_u32 s39, s39, s42")
    A("v_mov_b32 v252, 0")
    A.vmem(f"global_load_dword v200, v252, s[56:57]{SC}", "tok")
    snap = A.vm_snapshot()
    PK = 32

    def tok_hook():
        l = A.newlabel("tk")
        A.vm_wait("tok")
        A(f"v_readfirstlane_b32 s{TOK}, v200")
        tok_ok(A)
        A(f"s_cbranch_scc1 {l}")
        get_token(A)
        A.label(l)

    A("s_sub_u32 s42, s33, 14")
    A("s_cmp_lt_u32 s42, 7")
    A("s_cbranch_scc1 p1_v")
    big_bases(A, PB4)
    A("s_cmp_ge_u32 s33, 21")
    A("s_cbranch_scc1 p1_w1")
    big_mainloop(A, False, 128, V_XD2, True, hooks={7: tok_hook})
    A("s_cmp_ge_u32 s33, 7")
    A("s_cselect_b32 s43, 7, 0")
    A(f"s_cselect_b32 s42, {WS_K}, 0")
    A("s_sub_u32 s46, s33, s43")
    A("s_lshl_b32 s46, s46, 11")
    A("s_add_u32 s42, s42, s46")
    A("s_mul_i32 s43, s39, 896")
    A("s_add_u32 s42, s42, s43")
    A(f"s_add_u32 s43, s42, {RT_BYTES}")
    for j in range(2):
        for q in range(8):
            A(f"v_cvt_pk_bf16_f32 {v(PK+8*j+q)}, {v(ACC+16*j+2*q)}, {v(ACC+16*j+2*q+1)}")
        for tp in range(2):
            A(f"buffer_store_dwordx4 {v(PK+8*j+4*tp,4)}, {v(L16)}, s[28:31], s{42+j} offen offset:{1024*tp}{SC}")
    A("s_branch p1_done")
    A.label("p1_v")
    A.vm_restore(snap)
    unit_bases(A, 28, "nat", 24, 25, 26)
    big_bases(A, 28)
    A("s_sub_u32 s46, s33, 14")
    A("s_lshl_b32 s47, s39, 6")
    A(f"s_add_u32 s47, s47, {WS_V}")
    A("s_lshl_b32 s44, s46, 6")
    for t in range(4):
        o = 184 + t
        A(f"v_add_u32 v24, s44, {v(VI)}")
        A(f"v_add_u32 v24, {16*t}, v24")
        A("v_mul_u32_u24 v25, 2341, v24")
        A("v_lshrrev_b32 v25, 16, v25")
        A("v_mul_u32_u24 v26, 28, v25")
        A("v_sub_u32 v26, v24, v26")
        A(f"v_lshlrev_b32 {v(o)}, 17, v25")
        A("v_lshrrev_b32 v27, 4, v26")
        A(f"v_lshl_add_u32 {v(o)}, v27, 10, {v(o)}")
        A("v_and_b32 v27, 15, v26")
        A(f"v_lshl_add_u32 {v(o)}, v27, 4, {v(o)}")
        A(f"v_lshl_add_u32 {v(o)}, {v(VG)}, 8, {v(o)}")
    A("s_lshl_b32 s44, s46, 4")
    A("s_mul_i32 s45, s44, 9363")
    A("s_lshr_b32 s45, s45, 16")
    A(f"v_add_u32 v24, s45, {v(VG)}")
    A("v_mul_u32_u24 v25, 7, v24")
    A("v_add_u32 v25, 6, v25")
    A("s_add_u32 s44, s44, 16")
    A("v_lshlrev_b32 v24, 17, v24")
    A(f"v_lshrrev_b32 v26, 2, {v(VI)}")
    A("v_lshl_add_u32 v24, v26, 4, v24")
    A(f"v_and_b32 v27, 3, {v(VI)}")
    A("v_lshl_add_u32 v24, v27, 8, v24")
    A("v_cmp_eq_u32 vcc, 0, v26")
    A("v_mov_b32 v27, 0x3f803f80")
    A("s_nop 0")
    A("v_cndmask_b32 v188, 0, v27, vcc")
    for r in range(1, 4):
        A(f"v_mov_b32 v{188+r}, v188")
    A("v_cmp_gt_u32 vcc, s44, v25")
    A("s_and_saveexec_b64 s[44:45], vcc")
    A.vmem(f"buffer_store_dwordx4 v[188:191], v24, s[28:31], s47 offen offset:{1024+12*16}{SC}", "ones")
    A("s_mov_b64 exec, -1")
    big_mainloop(A, True, 128, V_XD2, True, hooks={7: tok_hook})
    A("s_nop 4")
    for t in range(4):
        pk = PK + 4 * t
        for j in range(2):
            src = ACC + 16 * j + 4 * t
            A(f"v_cvt_pk_bf16_f32 {v(pk+2*j)}, {v(src)}, {v(src+1)}")
            A(f"v_cvt_pk_bf16_f32 {v(pk+2*j+1)}, {v(src+2)}, {v(src+3)}")
        A(f"buffer_store_dwordx4 {v(pk,4)}, {v(184+t)}, s[28:31], s47 offen{SC}")
    A("s_branch p1_done")
    A.label("p1_w1")
    A.vm_restore(snap)
    MR, RS, CS = [140, 142], [144, 146], 164
    A("s_lshl_b32 s42, s17, 1")
    A(f"v_add_u32 v201, s42, {v(VL)}")
    A("v_writelane_b32 v201, s46, 2")
    A(f"v_lshlrev_b32 v201, 7, v201")
    A(f"v_add_u32 v201, {NWG*128}, v201")
    A(f"v_add_u32 v202, s39, {v(VI)}")
    A("v_lshlrev_b32 v202, 3, v202")
    A(f"s_mov_b32 s44, {WS_LN1}")
    A("s_lshl_b32 s45, s46, 8")
    A(f"s_add_u32 s45, s45, {WS_CS}")
    A(f"v_xor_b32 v203, 16, {v(CSO)}")

    def w1_loads(tag):
        for j in range(2):
            A.vmem(f"buffer_load_dwordx2 {v(180+2*j,2)}, v202, s[28:31], s44 offen offset:{128*j}{SL}", tag)
        for t in range(4):
            A.vmem(f"buffer_load_dwordx4 {v(CS+4*t,4)}, {v(203 if t & 1 else CSO)}, s[28:31], s45 offen offset:{128*(t>>1)}{SL}", tag)

    sp = Spec(A, 201, 7, w1_loads)

    def h7():
        tok_hook()
        sp.stage1()

    consts = gelu_consts(A, 148)
    A.srd_off(52, 58, 59, WS_HS, ACT_BYTES)
    A("s_lshl_b32 s47, s46, 3")
    for tp in range(2):
        A(f"v_add_u32 v24, s47, {v(VG)}")
        if tp:
            A("v_add_u32 v24, 4, v24")
        A("v_mul_u32_u24 v25, 4682, v24")
        A("v_lshrrev_b32 v25, 16, v25")
        A("v_lshrrev_b32 v26, 1, v25")
        A("v_add_u32 v26, 1, v26")
        A("v_and_b32 v25, 1, v25")
        A("v_sub_u32 v27, 0, v25")
        A("v_xor_b32 v26, v26, v27")
        A("v_add_u32 v26, v26, v25")
        A(f"v_add_u32 v26, v26, {v(VI)}")
        A("v_add_u32 v26, s39, v26")
        for j in range(2):
            o = 184 + 2 * j + tp
            if j:
                A("v_add_u32 v26, 16, v26")
            A("v_lshrrev_b32 v25, 4, v26")
            A("v_mul_u32_u24 v25, 14336, v25")
            A("v_and_b32 v27, 15, v26")
            A("v_lshl_add_u32 v25, v27, 4, v25")
            A("v_lshl_add_u32 v25, v24, 8, v25")
            A("v_cmp_gt_u32 vcc, 2048, v26")
            A("v_mov_b32 v27, 0x80000000")
            A("s_nop 0")
            A(f"v_cndmask_b32 {v(o)}, v27, v25, vcc")
    A("s_cmp_lg_u32 s40, 0")
    A("s_cbranch_scc1 p1_zd")
    A("s_cmp_eq_u32 s17, 0")
    A("s_cselect_b32 s48, 0, 1")
    A("s_cbranch_scc1 p1_z")
    A("s_cmp_lg_u32 s17, 15")
    A("s_cbranch_scc1 p1_zd")
    A.label("p1_z")
    A(f"v_and_b32 v24, 7, {v(VL)}")
    A("v_add_u32 v24, s47, v24")
    A("v_mul_u32_u24 v25, 4682, v24")
    A("v_lshrrev_b32 v25, 16, v25")
    A(f"v_lshrrev_b32 v26, 3, {v(VL)}")
    A("v_lshrrev_b32 v27, 1, v25")
    A("v_cmp_le_u32 s[50:51], v26, v27")
    A("v_and_b32 v25, 1, v25")
    A("v_cmp_eq_u32 vcc, s48, v25")
    A("s_and_b64 s[50:51], s[50:51], vcc")
    A("v_sub_u32 v27, 15, v26")
    A("s_cmp_eq_u32 s48, 0")
    A(f"s_cselect_b32 s49, 0, {127*14336}")
    A("s_cbranch_scc1 p1_z2")
    A("v_mov_b32 v26, v27")
    A.label("p1_z2")
    A("v_lshlrev_b32 v26, 4, v26")
    A("v_lshl_add_u32 v26, v24, 8, v26")
    for r in range(4):
        A(f"v_mov_b32 {v(188+r)}, 0")
    A("s_mov_b64 exec, s[50:51]")
    A(f"buffer_store_dwordx4 v[188:191], v26, s[52:55], s49 offen{SC}")
    A("s_mov_b64 exec, -1")
    A.label("p1_zd")
    big_mainloop(A, False, 128, V_XD2, True, hooks={7: tok_hook, 10: sp.stage1, 12: sp.stage2})
    sp.finish()
    for j in range(2):
        for r in range(2):
            A(f"v_mov_b32 {v(MR[j]+r)}, {v(180+2*j)}")
            A(f"v_mov_b32 {v(RS[j]+r)}, {v(181+2*j)}")

    def st1(j, pk):
        for tp in range(2):
            A(f"buffer_store_dwordx4 {v(pk+4*tp,4)}, {v(184+2*j+tp)}, s[52:55], 0 offen{SC}")

    gelu_epilogue(A, CS, MR, RS, consts, 48, 32, st1)
    A("s_branch p1_done")
    A.label("helper")
    A.vm_restore([])
    A("s_load_dwordx2 s[10:11], s[0:1], 64")
    A("s_load_dwordx2 s[12:13], s[0:1], 48")
    A(f"s_sub_u32 s14, s2, {NWG}")
    for r in (236, 237, 238, 239, 241, 242, 243):
        A(f"v_mov_b32 v{r}, 0")
    A(f"v_lshrrev_b32 v4, 3, {v(VL)}")
    A(f"v_and_b32 v5, 7, {v(VL)}")
    A("v_lshlrev_b32 v5, 4, v5")
    A("s_lshl_b32 s15, s14, 6")
    A("s_lshl_b32 s16, s19, 3")
    A("s_add_u32 s15, s15, s16")
    A("v_add_u32 v4, s15, v4")
    A("v_mul_u32_u24 v6, 896, v4")
    A("v_add_u32 v6, v6, v5")
    A("s_waitcnt lgkmcnt(0)")
    A.srd(20, 4, 5, ACT_BYTES)
    A.srd(28, 58, 59, WS_SIZE)
    A.srd(48, 10, 11, D * 2)
    XB_, GB_, FB_ = 8, 40, 72
    for j in range(7):
        A.vmem(f"buffer_load_dwordx4 {v(XB_+4*j,4)}, v6, s[20:23], 0 offen offset:{128*j}", "hx")
    A(f"v_lshrrev_b32 v7, 3, {v(VL)}")

    def cs_setup(item_s):
        A(f"s_cmp_lt_u32 {item_s}, 7")
        A("s_cselect_b32 s24, s8, s12")
        A("s_cselect_b32 s25, s9, s13")
        A("s_movk_i32 s32, 896")
        A(f"s_cselect_b32 s32, s32, {F*2}")
        A(f"s_cselect_b32 s33, 0, 7")
        A(f"s_mov_b32 s26, {D*F*2}")
        A(f"s_cselect_b32 s26, {D*D*2}, s26")
        A("s_and_b32 s25, s25, 0xffff")
        A("s_mov_b32 s27, 0x00020000")
        A(f"s_sub_u32 s33, {item_s}, s33")
        A("s_lshl_b32 s33, s33, 7")
        A("s_mul_i32 s34, s19, 56")
        A("s_mul_i32 s34, s34, s32")
        A("s_add_u32 s33, s33, s34")
        A("v_mul_lo_u32 v130, v7, s32")
        A("v_add_u32 v130, v130, v5")
        A("s_lshl_b32 s32, s32, 3")
        for j in range(7):
            A.vmem(f"buffer_load_dwordx4 {v(132+4*j,4)}, v130, s[24:27], s33 offen", "hw")
            A("s_add_u32 s33, s33, s32")

    def cs_finish(item_s):
        A.vm_wait("hw")
        for j in range(7):
            for q in range(4):
                src = 132 + 4 * j + q
                if j == 0:
                    A(f"v_lshlrev_b32 {v(160+2*q)}, 16, {v(src)}")
                    A(f"v_and_b32 {v(161+2*q)}, 0xffff0000, {v(src)}")
                else:
                    A(f"v_lshlrev_b32 v168, 16, {v(src)}")
                    A(f"v_and_b32 v169, 0xffff0000, {v(src)}")
                    A(f"v_pk_add_f32 {v(160+2*q,2)}, {v(160+2*q,2)}, v[168:169]")
        A("s_nop 1")
        for q in range(4):
            A(f"v_permlane32_swap_b32 {v(160+2*q)}, {v(161+2*q)}")
        A("s_nop 0")
        for q in range(4):
            A(f"v_add_f32 {v(160+2*q)}, {v(160+2*q)}, {v(161+2*q)}")
        A("s_nop 1")
        for q in range(2):
            A(f"v_permlane16_swap_b32 {v(160+4*q)}, {v(162+4*q)}")
        A("s_nop 0")
        for q in range(2):
            A(f"v_add_f32 {v(160+4*q)}, {v(160+4*q)}, {v(162+4*q)}")
        A("s_nop 1")
        for q in range(2):
            A(f"v_add_f32_dpp {v(160+4*q)}, {v(160+4*q)}, {v(160+4*q)} row_ror:8 row_mask:0xf bank_mask:0xf")
        A("s_lshl_b32 s33, s19, 8")
        A("v_lshlrev_b32 v170, 1, v5")
        A(f"v_and_b32 v171, 1, {v(VG)}")
        A("v_lshl_add_u32 v170, v171, 3, v170")
        A(f"v_lshrrev_b32 v171, 1, {v(VG)}")
        A("v_lshl_add_u32 v170, v171, 2, v170")
        A("v_add_u32 v170, s33, v170")
        A("ds_write_b32 v170, v160")
        A("ds_write_b32 v170, v164 offset:16")
        A("s_waitcnt lgkmcnt(0)")
        A("s_barrier")
        l = A.newlabel("csw")
        A("s_cmp_lg_u32 s19, 0")
        A(f"s_cbranch_scc1 {l}")
        A(f"v_lshlrev_b32 v170, 2, {v(VL)}")
        for w in range(8):
            A(f"ds_read_b32 {v(160+w)}, v170 offset:{256*w}")
        A("s_waitcnt lgkmcnt(0)")
        for w in range(1, 8):
            A(f"v_add_f32 v160, v160, {v(160+w)}")
        A(f"s_lshl_b32 s33, {item_s}, 8")
        A(f"s_add_u32 s33, s33, {WS_CS}")
        A(f"buffer_store_dword v160, v170, s[28:31], s33 offen{SC}")
        A.label(l)

    cs_setup("s14")
    for j in range(7):
        A.vmem(f"buffer_load_dwordx4 {v(GB_+4*j,4)}, v5, s[48:51], 0 offen offset:{128*j}", "hg")
    lt = A.newlabel("tok")
    A("s_or_b32 s85, s14, s19")
    A("s_cmp_lg_u32 s85, 0")
    A(f"s_cbranch_scc1 {lt}")
    A("s_or_b32 s85, s82, 1")
    A("v_mov_b32 v252, 0")
    A("v_mov_b32 v253, s85")
    A("s_mov_b64 exec, 1")
    A(f"global_store_dword v252, v253, s[56:57]{SC}")
    A("s_mov_b64 exec, -1")
    A.label(lt)
    if STAMPS:
        NST[0] -= 1
        stamp(A)
    A.vm_wait("hx")
    for j in range(28):
        A(f"v_lshlrev_b32 {v(FB_+2*j)}, 16, {v(XB_+j)}")
        A(f"v_and_b32 {v(FB_+2*j+1)}, 0xffff0000, {v(XB_+j)}")
    A(f"v_pk_add_f32 v[128:129], {v(FB_,2)}, {v(FB_+2,2)}")
    for j in range(2, 28):
        A(f"v_pk_add_f32 v[128:129], v[128:129], {v(FB_+2*j,2)}")
    A("v_add_f32 v128, v128, v129")
    red8(A, 128, 0)
    A(f"v_mul_f32 v128, {f32bits(1.0/448):#x}, v128")
    A("v_sub_f32 v172, 0, v128")
    A("v_mov_b32 v173, v172")
    for j in range(28):
        A(f"v_pk_add_f32 {v(174+2*(j&3),2)}, {v(FB_+2*j,2)}, v[172:173]")
        if j == 0:
            A(f"v_pk_mul_f32 v[182:183], {v(174,2)}, {v(174,2)}")
        else:
            A(f"v_pk_fma_f32 v[182:183], {v(174+2*(j&3),2)}, {v(174+2*(j&3),2)}, v[182:183]")
    A("v_add_f32 v129, v182, v183")
    red8(A, 129, 0)
    A(f"v_mul_f32 v129, {f32bits(1.0/448):#x}, v129")
    ln_finish(A, 128, 129)
    A("v_lshlrev_b32 v170, 3, v4")
    A(f"s_mov_b32 s33, {WS_LN1}")
    A("s_mov_b32 exec_lo, 0x01010101")
    A("s_mov_b32 exec_hi, 0x01010101")
    A.vmem(f"buffer_store_dwordx2 v[128:129], v170, s[28:31], s33 offen{SC}", "hst")
    A("s_mov_b64 exec, -1")
    cs_finish("s14")
    get_token(A)
    A("s_barrier")
    flag_store(A, 0)
    A.vm_restore([])
    if STAMPS:
        keep = NST[0]
        NST[0] = 20
        stamp(A)
        NST[0] = keep
    A("s_add_u32 s15, s14, 32")
    A("s_cmp_ge_u32 s15, 35")
    A("s_cbranch_scc1 h_no2")
    cs_setup("s15")
    cs_finish("s15")
    A.label("h_no2")
    for j in range(28):
        A(f"v_lshlrev_b32 v168, 16, {v(GB_+j)}")
        A(f"v_and_b32 v169, 0xffff0000, {v(GB_+j)}")
        A(f"v_pk_mul_f32 {v(FB_+2*j,2)}, {v(FB_+2*j,2)}, v[168:169]")
    for j in range(56):
        rbf(A, FB_ + j)
    A(f"v_pk_add_f32 v[128:129], {v(FB_,2)}, {v(FB_+2,2)}")
    for j in range(2, 28):
        A(f"v_pk_add_f32 v[128:129], v[128:129], {v(FB_+2*j,2)}")
    A("v_add_f32 v128, v128, v129")
    red8(A, 128, 0)
    rbf(A, 128)
    A(f"v_mul_f32 v128, {f32bits(-LOG2E):#x}, v128")
    A("v_exp_f32 v128, v128")
    A("s_nop 0")
    A("v_add_f32 v128, 1.0, v128")
    A("v_rcp_f32 v128, v128")
    A("s_nop 0")
    rbf(A, 128)
    A("v_lshlrev_b32 v170, 2, v4")
    A(f"s_mov_b32 s33, {WS_G}")
    A("s_mov_b32 exec_lo, 0x01010101")
    A("s_mov_b32 exec_hi, 0x01010101")
    A(f"buffer_store_dword v128, v170, s[28:31], s33 offen{SC}")
    A("s_mov_b64 exec, -1")
    A("s_waitcnt vmcnt(0)")
    A("s_barrier")
    flag_store(A, 1)
    A.label("p1_done")
    A.vm_restore(["x"])
    stamp(A)
    L_X2, L_KV = 57344, 163840 - 49152
    A("s_load_dwordx2 s[4:5], s[0:1], 0")
    A("s_load_dwordx2 s[6:7], s[0:1], 40")
    A("s_load_dwordx2 s[8:9], s[0:1], 48")
    A("s_and_b32 s14, s2, 7")
    A("s_lshr_b32 s15, s2, 3")
    small_decode(A)
    A("s_and_b32 s46, s19, 3")
    A("s_lshr_b32 s47, s19, 2")
    A("s_lshr_b32 s16, s15, 4")
    A("s_lshl_b32 s48, s14, 1")
    A("s_add_u32 s48, s48, s16")
    A("s_and_b32 s49, s15, 15")
    A(f"s_cmp_ge_u32 s2, {NWG}")
    A("s_cbranch_scc1 p2_now2")
    A(f"v_mov_b32 v5, {v(U896)}")
    l = A.newlabel("sw")
    A("s_bitcmp1_b32 s19, 1")
    A(f"s_cbranch_scc0 {l}")
    A(f"v_mov_b32 v5, {v(U896S)}")
    A.label(l)
    A("s_and_b32 s38, s19, 1")
    A("s_lshl_b32 s38, s38, 6")
    A("v_xor_b32 v5, s38, v5")
    A("s_lshl_b32 s38, s18, 7")
    A(f"s_mul_i32 s39, s19, {8*896}")
    A("s_add_u32 s38, s38, s39")
    A("s_lshl_b32 s39, s19, 10")
    A("s_waitcnt lgkmcnt(0)")
    A.srd(20, 4, 5, ACT_BYTES)
    A.srd(24, 6, 7, D * D * 2)
    A("s_barrier")
    for u in range(7):
        A("s_mov_b32 m0, s39")
        A("s_add_u32 s39, s39, 8192")
        A.vmem("buffer_load_dwordx4 v5, s[24:27], s38 offen lds", "w2")
        A(f"s_add_u32 s38, s38, {64*896}")
    A("s_waitcnt vmcnt(7)")
    A("s_barrier")
    flag_store(A, 0)
    if L2WARM:
        A("s_lshl_b32 s36, s15, 3")
        A("s_add_u32 s36, s36, s19")
        A(f"s_mul_i32 s36, s36, {2*F*2}")
        A("s_and_b32 s37, s14, 1")
        A("s_mul_i32 s37, s37, 1792")
        A("s_add_u32 s36, s36, s37")
        A.srd(68, 8, 9, D * F * 2)
        for q in range(2):
            A(f"buffer_load_dwordx4 {v(208+8*q,4)}, {v(L16)}, s[68:71], s36 offen")
            A("s_mov_b32 exec_hi, 0x0000ffff")
            A(f"buffer_load_dwordx4 {v(212+8*q,4)}, {v(L16)}, s[68:71], s36 offen offset:1024")
            A("s_mov_b32 exec_hi, -1")
            A(f"s_add_u32 s36, s36, {F*2}")
    A.label("p2_now2")

    def deps2():
        A(f"v_mul_u32_u24 v232, 5958, {v(VL)}")
        A("v_lshrrev_b32 v232, 16, v232")
        A("v_mul_u32_u24 v233, 11, v232")
        A(f"v_sub_u32 v233, {v(VL)}, v233")
        A("v_add_u32 v232, s49, v232")
        A("v_subrev_u32 v232, 2, v232")
        A("v_max_i32 v232, 0, v232")
        A("s_lshl_b32 s85, s17, 6")
        A(f"v_subrev_u32 v234, 33, {v(VL)}")
        A("v_lshrrev_b32 v235, 2, v234")
        A("v_mul_u32_u24 v235, 67, v235")
        A("v_add_u32 v235, s85, v235")
        A("v_subrev_u32 v235, 2, v235")
        A("v_max_i32 v235, 0, v235")
        A("v_min_i32 v235, 2047, v235")
        A("v_lshrrev_b32 v235, 7, v235")
        A("v_and_b32 v234, 3, v234")
        A("v_add_u32 v234, 10, v234")
        A(f"v_cmp_lt_u32 vcc, 32, {v(VL)}")
        A("s_nop 1")
        A("v_cndmask_b32 v232, v232, v235, vcc")
        A("v_cndmask_b32 v233, v233, v234, vcc")
        big_id(A, 252, 232, 233, 234)
        A(f"s_cmp_lt_u32 s2, {NWG}")
        A("s_cselect_b32 exec_hi, 0x1ff, 1")

    QF, C0, C16, FB, SCB, PB, TM, OA = 8, 12, 16, 20, 36, 104, 140, 160
    QK = 200
    AF, WFB, AC, XR, TB = 32, 64, 96, 112, 16
    A("s_mul_i32 s50, s48, 7")
    A("s_lshr_b32 s50, s50, 1")
    A("s_lshl_b32 s51, s49, 3")
    A("s_mul_i32 s52, s19, 3")
    A("s_add_u32 s52, s52, s51")
    A("s_sub_u32 s52, s52, 16")
    A("s_lshl_b32 s54, s50, 8")
    A("s_mul_i32 s55, s19, 3072")
    A(f"s_add_u32 s55, s55, {L_KV}")
    A("s_lshl_b32 s40, s48, 17")
    A(f"s_add_u32 s40, s40, {WS_V}")
    for j in range(3):
        A(f"s_add_i32 s41, s52, {j}")
        A("s_max_i32 s41, s41, 0")
        A(f"s_mul_i32 s{62+j}, s41, {RT_BYTES}")
        A(f"s_add_u32 s{62+j}, s{62+j}, s54")
        A(f"s_add_u32 s{62+j}, s{62+j}, {WS_K}")
        A("s_lshl_b32 s41, s41, 10")
        A(f"s_add_u32 s{65+j}, s41, s40")
    A("s_add_u32 s52, s51, s19")
    A(f"s_mul_i32 s52, s52, {RT_BYTES}")
    A("s_add_u32 s53, s52, s54")
    A("s_lshl_b32 s32, s17, 2")
    A("s_add_u32 s32, s32, s46")
    A(f"s_mul_i32 s33, s32, {RT_BYTES}")
    A(f"s_mul_i32 s34, s47, {7*1024}")
    A("s_add_u32 s34, s34, s33")
    A(f"s_add_u32 s34, s34, {WS_HS}")
    A("s_add_u32 s35, s34, 4096")
    poll(A, deps2, "s_waitcnt vmcnt(0)")
    A.vm_restore([])
    stamp(A)
    A(f"s_cmp_ge_u32 s2, {NWG}")
    A("s_cbranch_scc1 p2_noa")
    for u in range(7):
        A.vmem(f"buffer_load_dwordx4 {v(AF+4*u,4)}, {v(L16)}, s[28:31], s{34+u//4} offen offset:{1024*(u%4)}{SL}", ("a", u))
    A.label("p2_noa")
    for j in range(3):
        A(f"s_add_u32 m0, s55, {1024*j}")
        A("s_nop 0")
        A.vmem(f"buffer_load_dwordx4 {v(L16)}, s[28:31], s{62+j} offen{SL} lds", "kv")
        A(f"s_add_u32 m0, s55, {24576+1024*j}")
        A("s_nop 0")
        A.vmem(f"buffer_load_dwordx4 {v(L16)}, s[28:31], s{65+j} offen{SL} lds", "kv")
    A.vmem(f"buffer_load_dwordx4 {v(QK,4)}, {v(L16)}, s[28:31], s53 offen{SL}", "kv")
    A(f"s_cmp_ge_u32 s2, {NWG}")
    A("s_cbranch_scc1 p2_attn")
    A("s_lshl_b32 s40, s32, 4")
    A(f"v_add_u32 v8, s40, {v(VI)}")
    A("v_mul_u32_u24 v9, 896, v8")
    A(f"v_lshrrev_b32 v10, 1, {v(CSO)}")
    A("v_xor_b32 v11, 8, v10")
    A("v_add_u32 v11, v11, v9")
    A("v_add_u32 v9, v10, v9")
    A("s_lshl_b32 s40, s18, 7")
    A("s_lshl_b32 s41, s47, 6")
    A("s_add_u32 s40, s40, s41")
    A.vmem(f"buffer_load_dwordx2 {v(XR,2)}, v9, s[20:23], s40 offen", "x")
    A.vmem(f"buffer_load_dwordx2 {v(XR+2,2)}, v11, s[20:23], s40 offen", "x")
    A(f"s_mul_i32 s41, s47, {7*4096}")
    for t in range(4):
        A(f"v_add_u32 {v(TB+t)}, s41, {v(PB4+t)}")
    for r in unit_reads(TB, 0, WFB):
        A(r)
    A("s_xor_b32 s41, s19, 4")
    A("s_lshl_b32 s41, s41, 11")
    A(f"s_add_u32 s41, s41, {L_X2}")
    A(f"v_add_u32 v12, s41, {v(L16)}")
    A("s_lshl_b32 s41, s19, 11")
    A(f"s_add_u32 s41, s41, {L_X2}")
    A(f"v_add_u32 v13, s41, {v(L16)}")
    for u in range(7):
        A.vm_wait(("a", u), " lgkmcnt(0)")
        rd = unit_reads(TB, (u + 1) * 4096, WFB + 16 * ((u + 1) & 1)) if u < 6 else []
        for t in range(4):
            c = v(AC + 4 * t, 4)
            A(f"v_mfma_f32_16x16x32_bf16 {c}, {v(WFB+16*(u&1)+4*t,4)}, {v(AF+4*u,4)}, {c if u else 0}")
            for r in rd[4*t:4*t+4] if t < 2 else []:
                A(r)
    A.vm_wait("x")
    XU = 32
    for j in range(4):
        A(f"v_lshlrev_b32 {v(XU+2*j)}, 16, {v(XR+j)}")
        A(f"v_and_b32 {v(XU+2*j+1)}, 0xffff0000, {v(XR+j)}")
    A("s_cmp_eq_u32 s47, 0")
    A("s_cbranch_scc1 p2_x0")
    for r in range(8):
        A(f"v_swap_b32 {v(AC+r)}, {v(AC+8+r)}")
    A.label("p2_x0")
    for t in range(2):
        A(f"ds_write_b128 v12, {v(AC+8+4*t,4)} offset:{1024*t}")
    A("s_lshl_b32 s40, s18, 11")
    A("s_add_u32 s40, s40, s33")
    A("s_lshl_b32 s41, s47, 10")
    A("s_add_u32 s40, s40, s41")
    A(f"s_add_u32 s40, s40, {WS_X1}")
    A("s_waitcnt lgkmcnt(0)")
    A("s_barrier")
    for t in range(2):
        A(f"ds_read_b128 {v(AC+8+4*t,4)}, v13 offset:{1024*t}")
    A("s_waitcnt lgkmcnt(0)")
    for r in range(8):
        A(f"v_add_f32 {v(AC+r)}, {v(AC+r)}, {v(AC+8+r)}")
    for r in range(8):
        rbf(A, AC + r)
    for r in range(8):
        A(f"v_add_f32 {v(AC+r)}, {v(AC+r)}, {v(XU+r)}")
    for j in range(4):
        A(f"v_cvt_pk_bf16_f32 {v(X1K+j)}, {v(AC+2*j)}, {v(AC+2*j+1)}")
    A.vmem(f"buffer_store_dwordx4 {v(X1K,4)}, {v(L16)}, s[28:31], s40 offen{SC}", "st")
    for r in range(8):
        rbf(A, AC + r)
    A(f"v_add_f32 v12, {v(AC)}, {v(AC+1)}")
    for r in range(2, 8):
        A(f"v_add_f32 v12, v12, {v(AC+r)}")
    xlane_g(A, "v_add_f32", 12, 14, 15)
    A(f"v_mul_f32 v14, {f32bits(1.0/32):#x}, v12")
    for r in range(8):
        A(f"v_sub_f32 {v(AC+r)}, {v(AC+r)}, v14")
    A(f"v_mul_f32 v13, {v(AC)}, {v(AC)}")
    for r in range(1, 8):
        A(f"v_fmac_f32 v13, {v(AC+r)}, {v(AC+r)}")
    xlane_g(A, "v_add_f32", 13, 14, 15)
    A("v_lshlrev_b32 v8, 7, v8")
    A("s_lshl_b32 s40, s18, 4")
    A("s_lshl_b32 s41, s47, 3")
    A("s_add_u32 s40, s40, s41")
    A(f"s_add_u32 s40, s40, {WS_ST}")
    A("s_mov_b64 exec, 0xffff")
    A.vmem(f"buffer_store_dwordx2 v[12:13], v8, s[28:31], s40 offen{SC}", "st")
    A("s_mov_b64 exec, -1")
    A("s_branch p2_attn2")
    A.label("p2_attn")
    A("s_waitcnt vmcnt(0)")
    A("s_barrier")
    A.label("p2_attn2")
    A.vm_restore(["st"])
    stamp(A)
    A("s_load_dwordx4 s[4:7], s[0:1], 40")
    A("s_load_dwordx2 s[8:9], s[0:1], 56")
    A("s_load_dwordx2 s[10:11], s[0:1], 16")
    A("s_lshl_b32 s61, s19, 10")
    A(f"s_add_u32 s61, s61, {L_KV}")
    A(f"v_add_u32 v4, s61, {v(L16)}")
    for i in range(3):
        A(f"ds_read_b128 {v(FB+4*(i%4),4)}, v4 offset:{1024*i}")
    A(f"v_mov_b32 {v(TM+1)}, {NEGBIG:#x}")
    for r in range(4):
        A(f"v_lshl_add_u32 {v(TM)}, {v(VG)}, 2, {r}")
        A(f"v_cmp_gt_u32 vcc, {v(TM)}, {v(VI)}")
        A(f"v_mov_b32 {v(QF+r)}, {v(QK+r)}")
        A("s_nop 0")
        A(f"v_cndmask_b32 {v(C0+r)}, {v(TM+1)}, 0, vcc")
        A(f"v_cndmask_b32 {v(C16+r)}, 0, {v(TM+1)}, vcc")
    A("s_lshr_b32 s53, s48, 1")
    A("s_mul_i32 s53, s53, 7")
    A("s_add_u32 s53, s53, 3")
    A("s_lshr_b32 s53, s53, 1")
    A("s_xor_b32 s53, s53, s48")
    A("s_bitcmp1_b32 s48, 0")
    A("s_cselect_b32 exec_lo, 0xffff, 0")
    A("s_cselect_b32 exec_hi, 0, 0xffff0000")
    A("s_bitcmp1_b32 s53, 0")
    A("s_cbranch_scc1 p2_q01")
    A(f"v_mov_b32 {v(QF+2)}, 0")
    A(f"v_mov_b32 {v(QF+3)}, 0")
    A("s_branch p2_qz")
    A.label("p2_q01")
    A(f"v_mov_b32 {v(QF)}, 0")
    A(f"v_mov_b32 {v(QF+1)}, 0")
    A.label("p2_qz")
    A("s_mov_b64 exec, -1")
    A("s_add_u32 s61, s51, s19")
    A("s_sub_i32 s61, 16, s61")
    A("s_cmp_gt_i32 s61, 0")
    A("s_cbranch_scc1 p2_qkslow")
    for slow in range(2):
        if slow:
            A.label("p2_qkslow")
        for i in range(17):
            if i + 3 < 17:
                A(f"ds_read_b128 {v(FB+4*((i+3)%4),4)}, v4 offset:{1024*(i+3)}")
            A(f"s_waitcnt lgkmcnt({min(3, 16-i)})")
            c = v(C0, 4) if i == 0 else (v(C16, 4) if i == 16 else "0")
            if slow and i < 16:
                l1, l2 = A.newlabel("k2i"), A.newlabel("k2j")
                A(f"s_cmp_gt_i32 s61, {i}")
                A(f"s_cbranch_scc1 {l1}")
            A(f"v_mfma_f32_16x16x32_bf16 {v(SCB+4*i,4)}, {v(FB+4*(i%4),4)}, {v(QF,4)}, {c}")
            if slow and i < 16:
                A(f"s_branch {l2}")
                A.label(l1)
                for r in range(4):
                    A(f"v_mov_b32 {v(SCB+4*i+r)}, {NEGBIG:#x}")
                A.label(l2)
        if not slow:
            A("s_branch p2_qkdone")
    A.label("p2_qkdone")
    A("s_lshr_b32 s61, s19, 1")
    A("s_lshl_b32 s61, s61, 11")
    A(f"s_add_u32 s61, s61, {L_KV+24576}")
    A(f"v_add_u32 v5, s61, {v(L16)}")
    for j in range(2):
        A(f"ds_read_b128 {v(FB+4*j,4)}, v5 offset:{1024*j}")
    M = TM
    KL, NB = TM + 17, TM + 18
    A(f"v_max3_f32 {v(M)}, {v(SCB)}, {v(SCB+1)}, {v(SCB+2)}")
    A(f"v_max3_f32 {v(M+1)}, {v(SCB+3)}, {v(SCB+4)}, {v(SCB+5)}")
    idx, k = 6, 0
    while idx < 68:
        A(f"v_max3_f32 {v(M+k)}, {v(M+k)}, {v(SCB+idx)}, {v(SCB+idx+1)}")
        idx += 2
        k ^= 1
    A(f"v_max_f32 {v(M)}, {v(M)}, {v(M+1)}")
    xlane_g(A, "v_max_f32", M, M + 1, M + 2)
    A(f"v_mov_b32 {v(KL)}, {f32bits(SCALE*LOG2E):#x}")
    A(f"v_mul_f32 {v(NB)}, {f32bits(-SCALE*LOG2E):#x}, {v(M)}")
    A("s_mul_i32 s60, s48, 7")
    A(f"v_add_u32 v6, s60, {v(VG)}")
    A(f"v_and_b32 {v(TM)}, 1, v6")
    A("v_lshrrev_b32 v6, 1, v6")
    A("v_lshlrev_b32 v6, 8, v6")
    A(f"v_lshl_add_u32 v6, {v(TM)}, 3, v6")
    A(f"v_lshl_add_u32 v6, {v(VI)}, 4, v6")
    A(f"s_add_u32 s60, s52, {WS_O}")
    big_decode(A)
    PITCH = F * 2
    A(f"s_mul_i32 s34, s40, {8*PITCH}")
    A("s_lshl_b32 s35, s33, 7")
    A("s_add_u32 s34, s34, s35")
    A(f"s_mov_b32 s38, {32*PITCH}")
    A("s_and_b32 s42, s40, 2")
    A("s_lshl_b32 s42, s42, 1")
    gen3.V_WD = 204
    unit_dma_voff(A, 204, "s43", "s42", PITCH, 205, 206)
    A(f"v_cmp_lt_u32 vcc, 6, {v(VL)}")
    A("s_lshl_b32 s85, s17, 1")
    A("v_mov_b32 v232, s85")
    A("v_addc_co_u32 v232, vcc, 0, v232, vcc")
    A(f"v_cmp_lt_u32 vcc, 6, {v(VL)}")
    A(f"v_subrev_u32 v233, 7, {v(VL)}")
    A("s_nop 0")
    A(f"v_cndmask_b32 v233, {v(VL)}, v233, vcc")
    A("v_and_b32 v234, 3, v232")
    A("v_mul_u32_u24 v234, 7, v234")
    A("v_add_u32 v234, v234, v233")
    A("v_lshrrev_b32 v232, 2, v232")
    A("v_lshl_add_u32 v232, v234, 3, v232")
    A("s_add_u32 s85, s33, 7")
    A("s_and_b32 s85, s85, 31")
    A(f"s_add_u32 s85, s85, {NWG}")
    A("v_writelane_b32 v232, s85, 14")
    A("v_lshlrev_b32 v232, 7, v232")
    A("v_add_u32 v232, 32768, v232")
    sp3 = Spec(A, 232, 0x7fff, lambda tag: None)
    A.srd(24, 6, 7, D * F * 2)
    A("s_waitcnt vmcnt(0)")
    A("s_barrier")
    A.vm_restore([])
    A(f"s_cmp_ge_u32 s2, {NWG}")
    A("s_cbranch_scc1 p2_now3")
    flag_store(A, 1)
    for ds in range(3):
        for p in big_dma_parts(A, ds, 2048, V_XD)[1:]:
            p()
    if L2WARM:
        A("s_lshl_b32 s44, s15, 3")
        A("s_add_u32 s44, s44, s19")
        A("s_mul_i32 s45, s44, 1792")
        A("s_mul_i32 s44, s44, 7168")
        A.srd(68, 8, 9, D * F * 2)
        A.srd(72, 10, 11, D * D * 2)
        for q in range(7):
            A.vmem(f"buffer_load_dwordx4 v[208:211], {v(L16)}, s[68:71], s44 offen offset:{1024*(q%4)}", "warm")
            if q == 3:
                A("s_add_u32 s44, s44, 4096")
        for q in range(2):
            A.vmem(f"buffer_load_dwordx4 v[208:211], {v(L16)}, s[72:75], s45 offen offset:{896*q}", "warm")
    A.label("p2_now3")
    A("s_bitcmp1_b32 s19, 0")
    A("s_cbranch_scc1 p2_odd")
    for par in range(2):
        if par:
            A.label("p2_odd")
        zs = 17 if par == 0 else 0
        A(f"v_mov_b32 {v(PB+2*zs)}, 0")
        A(f"v_mov_b32 {v(PB+2*zs+1)}, 0")
        nread = 2
        if par:
            A.vm_restore(snap_att)
        snap_att = A.vm_snapshot()
        for c in range(9):
            if c == SP3C:
                sp3.stage1()
            els = []
            for half in range(2):
                slot = 2 * c + half
                if slot != zs:
                    els += [SCB + 4 * (slot - par) + r for r in range(4)]
            for e in els:
                A(f"v_fma_f32 {v(e)}, {v(e)}, {v(KL)}, {v(NB)}")
            for e in els:
                A(f"v_exp_f32 {v(e)}, {v(e)}")
            while nread < min(18, 2 * c + 4):
                A(f"ds_read_b128 {v(FB+4*(nread%4),4)}, v5 offset:{1024*nread}")
                nread += 1
            if c >= 7:
                A("s_nop 0")
            for half in range(2):
                slot = 2 * c + half
                if slot == zs:
                    continue
                i = slot - par
                A(f"v_cvt_pk_bf16_f32 {v(PB+2*slot)}, {v(SCB+4*i)}, {v(SCB+4*i+1)}")
                A(f"v_cvt_pk_bf16_f32 {v(PB+2*slot+1)}, {v(SCB+4*i+2)}, {v(SCB+4*i+3)}")
            A(f"s_waitcnt lgkmcnt({nread - (2*c+2)})")
            A("s_nop 0")
            for dt in range(2):
                A(f"v_mfma_f32_16x16x32_bf16 {v(OA+4*dt,4)}, {v(FB+4*((2*c+dt)%4),4)}, {v(PB+4*c,4)}, {v(OA+4*dt,4) if c else 0}")
        if par == 0:
            A("s_branch p2_out")
    A.label("p2_out")
    A(f"v_mov_b32 {v(TM)}, 0")
    A("s_lshl_b32 s35, s17, 3")
    A("s_add_u32 s35, s35, s19")
    A(f"s_mul_i32 s35, s35, {RT_BYTES}")
    A(f"s_add_u32 s35, s35, {WS_X1}")
    A("s_lshl_b32 s42, s40, 12")
    A(f"v_add_u32 {v(V_XR[0])}, s42, {v(L16)}")
    A(f"v_add_u32 {v(V_XR[1])}, {2*SLOT}, {v(V_XR[0])}")
    A("s_mov_b32 exec_lo, 0")
    A("s_mov_b32 exec_hi, 0xffff0000")
    A(f"v_mov_b32 {v(TM)}, {v(OA+4)}")
    A("s_mov_b64 exec, -1")
    xlane_g(A, "v_add_f32", TM, TM + 1, TM + 2)
    A(f"v_rcp_f32 {v(TM)}, {v(TM)}")
    A("s_nop 0")
    for r in range(8):
        A(f"v_mul_f32 {v(OA+r)}, {v(TM)}, {v(OA+r)}")
    for r in range(4):
        A(f"v_cvt_pk_bf16_f32 {v(TM+4+r)}, {v(OA+2*r)}, {v(OA+2*r+1)}")
    A.vmem(f"buffer_store_dwordx2 {v(TM+4,2)}, v6, s[28:31], s60 offen{SC}", "ost")
    ex48(A)
    A.vmem(f"buffer_store_dwordx2 {v(TM+6,2)}, v6, s[28:31], s60 offen offset:512{SC}", "ost")
    exall(A)
    l3 = A.newlabel("p3go")
    A(f"s_cmp_lt_u32 s2, {NWG}")
    A(f"s_cbranch_scc1 {l3}")
    A("s_waitcnt vmcnt(0)")
    A("s_barrier")
    flag_store(A, 2)
    A("s_endpgm")
    A.label(l3)
    A(f"v_mov_b32 {v(V_XD)}, {v(L16)}")
    big_bases(A, PB4)
    A("s_lshl_b32 s39, s17, 3")
    A("s_lshl_b32 s42, s40, 1")
    A("s_add_u32 s39, s39, s42")
    A("s_lshl_b32 s42, s39, 4")
    A(f"v_add_u32 v24, s42, {v(VI)}")
    A("v_lshlrev_b32 v24, 7, v24")
    A(f"v_lshl_add_u32 v24, {v(VG)}, 5, v24")
    A(f"s_mov_b32 s46, {WS_ST}")
    A("s_lshl_b32 s45, s33, 8")
    A(f"s_add_u32 s45, s45, {WS_CS + 7*256}")
    A(f"v_xor_b32 v203, 16, {v(CSO)}")
    A.srd(20, 58, 59, WS_SIZE)
    stamp(A)
    A.vm_wait("sflag")
    A(f"v_cmp_ne_u32 s[96:97], s{TOK}, v253")
    l = A.newlabel("sp3")
    A("s_and_b64 s[96:97], s[96:97], 0x7fff")
    A(f"s_cbranch_scc0 {l}")
    A("s_mov_b64 exec, 0x7fff")
    spin(A, 232)
    A.label(l)
    stamp(A)
    gen3.XSC[0] = SL
    for ds in range(2):
        big_dma_parts(A, ds, 2048, V_XD)[0]()
    STR = 180

    def h3a():
        for j in range(2):
            for q in range(2):
                A.vmem(f"buffer_load_dwordx4 {v(STR+8*j+4*q,4)}, v24, s[28:31], s46 offen offset:{2048*j+16*q}{SL}", "st")
        for t in range(4):
            A.vmem(f"buffer_load_dwordx4 {v(CS+4*t,4)}, {v(203 if t & 1 else CSO)}, s[28:31], s45 offen offset:{128*(t>>1)}{SL}", "st")
        A("s_load_dwordx2 s[4:5], s[0:1], 16")
        A("s_load_dwordx2 s[6:7], s[0:1], 56")
        A("s_load_dwordx2 s[8:9], s[0:1], 72")

    RS4, PF4 = 6, 4
    RING = RS4 * 4096
    L4_WO, L4_R = 0, 57344
    OFB = 204
    def o_loads(tag):
        for u in range(7):
            A.vmem(f"buffer_load_dwordx4 {v(OFB+4*u,4)}, {v(L16)}, s[28:31], s{62+u//4} offen offset:{1024*(u%4)}{SL}", tag)
        A.vmem(f"buffer_load_dword v247, v246, s[28:31], s64 offen{SL}", tag)

    sp4 = Spec(A, 245, 0x1ffff, o_loads)

    def h3b():
        A("s_mul_i32 s16, s15, 9363")
        A("s_lshr_b32 s16, s16, 16")
        A("s_mul_i32 s69, s16, 7")
        A("s_sub_u32 s69, s15, s69")
        A("s_lshl_b32 s68, s14, 2")
        A("s_add_u32 s68, s68, s16")
        A(f"v_and_b32 v245, 1, {v(VL)}")
        A("v_lshlrev_b32 v245, 4, v245")
        A("s_lshr_b32 s85, s68, 1")
        A("v_add_u32 v245, s85, v245")
        A(f"v_lshrrev_b32 v246, 1, {v(VL)}")
        A("v_lshl_add_u32 v245, v245, 3, v246")
        A("v_lshlrev_b32 v245, 7, v245")
        A("v_add_u32 v245, 65536, v245")
        A(f"s_add_u32 s85, s68, {NWG}")
        A("s_lshl_b32 s85, s85, 7")
        A("s_add_u32 s85, s85, 32768")
        A("v_writelane_b32 v245, s85, 16")
        A("s_lshl_b32 s70, s68, 2")
        A("s_add_u32 s70, s70, s40")
        A(f"s_mul_i32 s62, s70, {RT_BYTES}")
        A(f"s_mul_i32 s63, s41, {7*1024}")
        A("s_add_u32 s62, s62, s63")
        A(f"s_add_u32 s62, s62, {WS_O}")
        A("s_add_u32 s63, s62, 4096")
        A("s_lshl_b32 s85, s70, 4")
        A(f"v_add_u32 v244, s85, {v(VI)}")
        A("v_lshlrev_b32 v246, 2, v244")
        A(f"s_mov_b32 s64, {WS_G}")
        sp4.stage1()

    def h3c():
        A.vm_wait("st")
        A("s_mov_b32 exec_lo, 0")
        A("s_mov_b32 exec_hi, 0xffff0000")
        for j in range(2):
            for r in range(4, 8):
                A(f"v_mov_b32 {v(STR+8*j+r)}, 0")
        A("s_mov_b64 exec, -1")
        for j in range(2):
            b = STR + 8 * j
            m, q = MR[j], RS[j]
            A(f"v_add_f32 {v(m)}, {v(b)}, {v(b+2)}")
            A(f"v_add_f32 {v(q)}, {v(b+4)}, {v(b+6)}")
            A(f"v_add_f32 {v(m)}, {v(m)}, {v(q)}")
            xlane_g(A, "v_add_f32", m, 196, 197)
            A(f"v_mul_f32 {v(m)}, {f32bits(1.0/448):#x}, {v(m)}")
            A(f"v_add_f32 {v(q)}, {v(b+1)}, {v(b+3)}")
            A(f"v_add_f32 {v(q)}, {v(q)}, {v(b+5)}")
            A(f"v_add_f32 {v(q)}, {v(q)}, {v(b+7)}")
            for r in (0, 2, 4, 6):
                A(f"v_mul_f32 {v(b+r)}, {f32bits(1.0/32):#x}, {v(b+r)}")
                A(f"v_sub_f32 {v(b+r)}, {v(b+r)}, {v(m)}")
            A(f"v_mul_f32 {v(b)}, {v(b)}, {v(b)}")
            A(f"v_fmac_f32 {v(b)}, {v(b+2)}, {v(b+2)}")
            ex48(A)
            A(f"v_fmac_f32 {v(b)}, {v(b+4)}, {v(b+4)}")
            A(f"v_fmac_f32 {v(b)}, {v(b+6)}, {v(b+6)}")
            exall(A)
            A(f"v_fmamk_f32 {v(q)}, {v(b)}, {f32bits(32.0):#x}, {v(q)}")
            xlane_g(A, "v_add_f32", q, 196, 197)
            A(f"v_mul_f32 {v(q)}, {f32bits(1.0/448):#x}, {v(q)}")
            ln_finish(A, m, q)
            A(f"v_mov_b32 {v(m+1)}, {v(m)}")
            A(f"v_mov_b32 {v(q+1)}, {v(q)}")
        gelu_consts(A, 148)
        A(f"s_mul_i32 s42, s39, {H3_RT_BYTES}")
        A("s_lshl_b32 s43, s33, 11")
        A("s_add_u32 s42, s42, s43")
        A(f"s_add_u32 s42, s42, {WS_H3}")
        A(f"s_add_u32 s43, s42, {H3_RT_BYTES}")

    consts = (148, 150, 152)
    big_mainloop(A, False, 2048, V_XD, False, wdone=(0, 1, 2), hook=lambda: flag_store(A, 2), hooks={7: h3a, 9: h3b, 11: h3c})
    gen3.XSC[0] = ""
    stamp(A)
    A(f"v_mov_b32 v6, {v(U896)}")
    A("s_and_b32 s85, s19, 1")
    A("s_lshl_b32 s85, s85, 6")
    A("v_xor_b32 v6, s85, v6")
    A("v_xor_b32 v7, 64, v6")
    A("s_lshl_b32 s66, s69, 7")
    A(f"s_mul_i32 s65, s19, {7*8*896}")
    A("s_add_u32 s65, s65, s66")
    A("s_mul_i32 s67, s19, 7168")
    A.srd(20, 4, 5, D * D * 2)
    A("s_barrier")
    for u in range(7):
        A("s_mov_b32 m0, s67")
        A("s_add_u32 s67, s67, 1024")
        A.vmem(f"buffer_load_dwordx4 v{6+(u&1)}, s[20:23], s65 offen lds", "wo")
        A(f"s_add_u32 s65, s65, {8*896}")
    sp4.stage2()
    def st3(j, pk):
        for tp in range(2):
            A.vmem(f"buffer_store_dwordx4 {v(pk+4*tp,4)}, {v(L16)}, s[28:31], s{42+j} offen offset:{1024*tp}{SC}", "hst")

    gelu_epilogue(A, CS, MR, RS, consts, 48, 32, st3)
    stamp(A)
    NA = PF4 + 2
    AFB = 32
    WFB = AFB + NA * 8
    ACB = WFB + 32
    AWO = ACB + 32
    WOF = AWO + 16
    assert WOF + 32 <= OFB
    GR = 247
    TB, TO = 20, 24
    af = lambda sx, j: AFB + ((sx % NA) * 2 + j) * 4
    ac = lambda j, t: v(ACB + (j * 4 + t) * 4, 4)
    for m in range(1, 4):
        A(f"v_add_u32 v{8+m}, {4096*m}, {v(L16)}")
    A(f"v_mov_b32 v8, {v(L16)}")
    A(f"v_mov_b32 v4, {v(U896)}")
    l = A.newlabel("sw")
    A("s_cmp_eq_u32 s41, 0")
    A(f"s_cbranch_scc1 {l}")
    A(f"v_mov_b32 v4, {v(U896S)}")
    A.label(l)
    A("v_xor_b32 v5, 64, v4")
    A("s_lshl_b32 s32, s68, 2")
    A("s_lshl_b32 s33, s41, 1")
    A("s_add_u32 s32, s32, s33")
    A(f"s_mul_i32 s32, s32, {H3_RT_BYTES}")
    A(f"s_mul_i32 s33, s40, {14*1024}")
    A("s_add_u32 s32, s32, s33")
    A(f"s_add_u32 s32, s32, {WS_H3}")
    A(f"s_add_u32 s33, s32, {H3_RT_BYTES}")
    A(f"s_mul_i32 s36, s40, {448*896}")
    A(f"s_mul_i32 s34, s41, {16*896}")
    A("s_add_u32 s36, s36, s34")
    A("s_add_u32 s36, s36, s66")
    A(f"s_mul_i32 s35, s40, {RING}")
    A(f"s_add_u32 s35, s35, {L4_R}")
    A("s_lshl_b32 s37, s41, 11")
    A("s_add_u32 s37, s37, s35")
    A(f"s_mul_i32 s44, s41, {7*4096}")
    for t in range(4):
        A(f"v_add_u32 {v(TO+t)}, s44, {v(PB4+t)}")
        A(f"v_add_u32 {v(TB+t)}, s35, {v(PB4+t)}")
    A.srd(24, 6, 7, F * D * 2)
    A.srd(48, 8, 9, ACT_BYTES)

    ROT = os.environ.get("ROT", "0") == "1"
    if ROT:
        A("s_lshl_b32 s72, s69, 1")
        A(f"s_add_u32 s73, s36, {14*32*896}")
        A(f"s_mul_i32 s74, s72, {32*896}")
        A("s_add_u32 s36, s36, s74")
        A(f"s_add_u32 s75, s32, {14*1024}")
        A("s_lshl_b32 s74, s72, 10")
        A("s_add_u32 s32, s32, s74")

    def w_parts(sx):
        parts = []
        for j in range(2):
            def p(j=j):
                A(f"s_add_u32 m0, s37, {(sx%RS4)*4096 + j*1024}")
                A("s_nop 0")
                A.vmem(f"buffer_load_dwordx4 v{4+j}, s[24:27], s36 offen lds", ("w", sx))
                A(f"s_add_u32 s36, s36, {8*896 if j == 0 else 24*896}")
                if ROT and j == 1:
                    A(f"s_sub_u32 s74, s36, {14*32*896}")
                    A("s_cmp_ge_u32 s36, s73")
                    A("s_cselect_b32 s36, s74, s36")
            parts.append(p)
        return parts

    def a_parts(sx):
        if ROT:
            def p0():
                A(f"s_add_u32 s33, s32, {H3_RT_BYTES}")
                A.vmem(f"buffer_load_dwordx4 {v(af(sx,0),4)}, v8, s[28:31], s32 offen{SL}", ("ld", sx))

            def p1():
                A.vmem(f"buffer_load_dwordx4 {v(af(sx,1),4)}, v8, s[28:31], s33 offen{SL}", ("ld", sx))
                A("s_add_u32 s32, s32, 1024")
                A(f"s_sub_u32 s74, s32, {14*1024}")
                A("s_cmp_ge_u32 s32, s75")
                A("s_cselect_b32 s32, s74, s32")
            return [p0, p1]
        return [lambda j=j: A.vmem(f"buffer_load_dwordx4 {v(af(sx,j),4)}, v{8+sx//4}, s[28:31], s{32+j} offen offset:{1024*(sx%4)}{SL}", ("ld", sx)) for j in range(2)]

    sp4.finish()
    A("s_barrier")
    for r in unit_reads(TO, 0, WOF):
        A(r)
    for u in range(7):
        A("s_waitcnt lgkmcnt(0)")
        rd = unit_reads(TO, (u + 1) * 4096, WOF + 16 * ((u + 1) & 1)) if u < 6 else []
        for t in range(4):
            c = v(AWO + 4 * t, 4)
            A(f"v_mfma_f32_16x16x32_bf16 {c}, {v(WOF+16*(u&1)+4*t,4)}, {v(OFB+4*u,4)}, {c if u else 0}")
            for r in rd[4*t:4*t+4] if t < 2 else []:
                A(r)
            if t >= 2 and u >= 1:
                w_parts(u - 1)[t - 2]()
        if u == 1:
            A.vm_wait("hst")
            A("s_barrier")
            flag_store(A, 3)
    stamp(A)

    def deps4b():
        A("s_lshr_b32 s85, s68, 1")
        A("v_mov_b32 v232, s85")
        A(f"v_mov_b32 v233, {v(VL)}")
        big_id(A, 252, 232, 233, 234)
        A(f"v_add_u32 v252, {3*32768}, v252")
        A("s_mov_b64 exec, 0x3fff")

    poll(A, deps4b, "s_waitcnt vmcnt(0)")
    A.vm_restore([])
    stamp(A)
    na = [0]

    def take_a(n, limit):
        out = []
        while n > 0 and na[0] < 14 and na[0] <= limit:
            out += a_parts(na[0])
            na[0] += 1
            n -= 1
        return out

    for p in take_a(3, 2):
        p()
    for r in unit_reads(TB, 0, WFB):
        A(r)
    for sx in range(14):
        tags = [("ld", sx)]
        bar = sx % 2 == 0 and 0 < sx < 13
        if bar:
            tags += [("w", t) for t in (sx + 1, sx + 2) if 5 < t < 14]
        A.vm_wait(tags, " lgkmcnt(0)")
        if bar:
            A("s_barrier")
        rd = unit_reads(TB, ((sx + 1) % RS4) * 4096, WFB + 16 * ((sx + 1) & 1)) if sx < 13 else []
        parts = take_a(2, sx + 1 + PF4)
        wt = [6] if sx == 2 else []
        wt += [sx + 5] if 2 <= sx and sx + 5 < 14 else []
        for t in wt:
            parts += w_parts(t)
        mf = [f"v_mfma_f32_16x16x32_bf16 {ac(j,t)}, {v(WFB+16*(sx&1)+4*t,4)}, {v(af(sx,j),4)}, {ac(j,t) if sx else 0}" for t in range(4) for j in range(2)]
        E4 = os.environ.get("E4", "")
        for i, m in enumerate(mf):
            if "m" not in E4:
                A(m)
            for _ in range(2):
                if rd:
                    r_ = rd.pop(0)
                    if "r" not in E4:
                        A(r_)
            for _ in range(-(-len(parts) // (len(mf) - i))):
                parts.pop(0)()
        assert not rd and not parts
    stamp(A)
    A("s_lshl_b32 s52, s40, 14")
    A("s_lshl_b32 s53, s41, 13")
    A("s_add_u32 s52, s52, s53")
    A("v_add_u32 v12, s52, v8")
    A("s_lshl_b32 s52, s41, 14")
    A("s_lshl_b32 s53, s40, 12")
    A("s_add_u32 s52, s52, s53")
    A("s_add_u32 s52, s52, 65536")
    A("v_add_u32 v13, s52, v8")
    A("s_barrier")
    for t in range(4):
        A(f"ds_write_b128 v13, {v(AWO+4*t,4)} offset:{t*1024}")
    for j in range(2):
        for t in range(4):
            A(f"ds_write_b128 v12, {ac(j,t)} offset:{(j*4+t)*1024}")
    A("s_lshl_b32 s52, s40, 12")
    A("s_lshl_b32 s53, s41, 11")
    A("s_add_u32 s52, s52, s53")
    A("v_add_u32 v12, s52, v8")
    A("v_add_u32 v13, 65536, v12")
    XU = OFB
    for j in range(4):
        A(f"v_lshlrev_b32 {v(XU+2*j)}, 16, {v(X1K+j)}")
        A(f"v_and_b32 {v(XU+2*j+1)}, 0xffff0000, {v(X1K+j)}")
    A(f"v_sub_f32 v19, 1.0, {v(GR)}")
    rbf(A, 19)
    A("v_mul_u32_u24 v14, 896, v244")
    A(f"v_lshrrev_b32 v16, 1, {v(CSO)}")
    A("v_xor_b32 v15, 8, v16")
    A("v_add_u32 v15, v15, v14")
    A("v_add_u32 v14, v16, v14")
    A("s_lshl_b32 s53, s41, 6")
    A("s_add_u32 s52, s66, s53")
    A("s_waitcnt lgkmcnt(0)")
    A("s_barrier")
    RB = 32
    for q in range(4):
        for t in range(2):
            A(f"ds_read_b128 {v(RB+8*q+4*t,4)}, v12 offset:{16384*q + 1024*t}")
    for q in range(2):
        for t in range(2):
            A(f"ds_read_b128 {v(RB+32+8*q+4*t,4)}, v13 offset:{16384*q + 1024*t}")
    A("s_waitcnt lgkmcnt(4)")
    for r in range(8):
        A(f"v_add_f32 {v(RB+r)}, {v(RB+r)}, {v(RB+8+r)}")
        A(f"v_add_f32 {v(RB+16+r)}, {v(RB+16+r)}, {v(RB+24+r)}")
    for r in range(8):
        A(f"v_add_f32 {v(RB+r)}, {v(RB+r)}, {v(RB+16+r)}")
    for r in range(8):
        rbf(A, RB + r)
    for r in range(8):
        A(f"v_add_f32 {v(RB+r)}, {v(RB+r)}, {v(XU+r)}")
    for r in range(8):
        rbf(A, RB + r)
    A("s_waitcnt lgkmcnt(0)")
    AU = RB + 32
    for r in range(8):
        A(f"v_add_f32 {v(AU+r)}, {v(AU+r)}, {v(AU+8+r)}")
        A(f"v_mul_f32 {v(RB+r)}, v19, {v(RB+r)}")
    for r in range(8):
        rbf(A, AU + r)
        rbf(A, RB + r)
    for r in range(8):
        A(f"v_mul_f32 {v(AU+r)}, {v(GR)}, {v(AU+r)}")
    for r in range(8):
        rbf(A, AU + r)
    for r in range(8):
        A(f"v_add_f32 {v(RB+r)}, {v(RB+r)}, {v(AU+r)}")
    for j in range(4):
        A(f"v_cvt_pk_bf16_f32 {v(XU+j)}, {v(RB+2*j)}, {v(RB+2*j+1)}")
    A(f"buffer_store_dwordx2 {v(XU,2)}, v14, s[48:51], s52 offen")
    A(f"buffer_store_dwordx2 {v(XU+2,2)}, v15, s[48:51], s52 offen")
    stamp(A)
    A.label(Lend)
    A("s_endpgm")
    return A.text()


def build():
    hdr = open("gated_mix__sliding_block__mixer_s_mlp__prompt.s.ref").read().split("; Override launch")[0]
    out = hdr + "; @launch grid=(256,1,1) block=(512,1,1) lds=163840\n"
    out += '.amdgcn_target "amdgcn-amd-amdhsa--gfx950"\n.text\n'
    out += kernel_head(KNAME) + gen()
    out += '.section .rodata,"a"\n' + kernel_desc(KNAME, 256, 256)
    return out


if __name__ == "__main__":
    dst = sys.argv[1] if len(sys.argv) > 1 else "gated_mix__sliding_block__mixer_s_mlp__prompt.s"
    open(dst, "w").write(build())
    print("wrote", dst)
```

```python
import os
import sys
from asmlib import Asm, v, a, s, f32bits, kernel_desc, kernel_head
import gen3
from gen2 import (lane_setup, xlane_g, rbf, ln_finish, gelu_consts, ex48, exall,
                  S, D, F, MB, WS_K, WS_V, WS_HS, WS_X1, WS_O, WS_H3, WS_G, WS_ST, WS_SIZE, WS_DBG, ACT_BYTES, RT_BYTES,
                  H3_RT_BYTES, LOG2E, SCALE, NEGBIG, STAMPS, VL, VI, VG)
from gen3 import (unit_bases, unit_dma_voff, unit_reads, big_mainloop, big_dma_parts, big_decode,
                  gelu_epilogue, small_decode, SLOT, V_XD, V_XD2, V_WD, V_XR, V_TB, ACC, NWG)

KNAME = "gated_mix__sliding_block__mixer_s_mlp__prompt_kernel"
WS_FLAG = 26 * MB
WS_ST = WS_FLAG + 131072
WS_G = WS_FLAG + 393216
WS_LN1 = WS_FLAG + 409600
WS_CS = WS_FLAG + 425984
TOK = 84
PB4 = 236
L16 = 240
U896, U896S = 241, 242
CSO = 243
X1K = 248
SC = " sc1"
SL = " sc1"
SP3C = int(os.environ.get("SP3C", "8"))
PFAT = int(os.environ.get("PFAT", "8"))
PFWS = os.environ.get("PFWS", "0") == "1"
PFSM = os.environ.get("PFSM", "1") == "1"
PUBC = int(os.environ.get("PUBC", "3"))
L2WARM = os.environ.get("L2WARM", "0") == "1"
gen3.stamp = lambda A, i: None
gen3.CZERO[0] = True
NST = [0]


def stamp(A):
    if not STAMPS:
        return
    i = NST[0]
    NST[0] += 1
    A("s_memrealtime s[86:87]")
    A("s_lshl_b32 s88, s2, 11")
    A("s_lshl_b32 s89, s19, 7")
    A("s_add_u32 s88, s88, s89")
    A(f"s_add_u32 s88, s88, {WS_DBG + 4*i}")
    A("s_mov_b64 s[90:91], exec")
    A("s_mov_b64 exec, 1")
    A("v_mov_b32 v254, 0")
    A("s_waitcnt lgkmcnt(0)")
    A("v_mov_b32 v255, s86")
    A.vmem("buffer_store_dword v255, v254, s[28:31], s88 offen", "stamp")
    A("s_mov_b64 exec, s[90:91]")


def xstamp(A, i):
    if STAMPS:
        keep = NST[0]
        NST[0] = i
        stamp(A)
        NST[0] = keep


def flag_store(A, kind):
    l = A.newlabel("pub")
    A("s_cmp_lg_u32 s19, 0")
    A(f"s_cbranch_scc1 {l}")
    A("s_lshl_b32 s85, s2, 7")
    A(f"s_add_u32 s85, s85, {WS_FLAG + kind*32768}")
    A("v_mov_b32 v252, 0")
    A(f"v_mov_b32 v253, s{TOK}")
    A("s_mov_b64 exec, 1")
    A(f"buffer_store_dword v253, v252, s[28:31], s85 offen{SC}")
    A("s_mov_b64 exec, -1")
    A.label(l)


def tok_ok(A):
    A(f"s_sub_i32 s85, s82, s{TOK}")
    A("s_cmp_lt_i32 s85, 1000")
    A(f"s_cselect_b32 s85, s{TOK}, 0")
    A("s_cmp_lg_u32 s85, 0")


def get_token(A):
    l, l2 = A.newlabel("tok"), A.newlabel("tok")
    A("v_mov_b32 v252, 0")
    A("s_mov_b32 s93, 0")
    A.label(l)
    A(f"global_load_dword v253, v252, s[56:57]{SC}")
    A("s_add_u32 s93, s93, 1")
    A("s_waitcnt vmcnt(0)")
    A(f"v_readfirstlane_b32 s{TOK}, v253")
    A("s_cmp_ge_u32 s93, 0x4000")
    A(f"s_cbranch_scc1 {l2}")
    tok_ok(A)
    A(f"s_cbranch_scc0 {l}")
    A.label(l2)


def spin(A, vaddr):
    lp = A.newlabel("pol")
    A(f"s_mov_b32 s85, {WS_FLAG}")
    A("s_mov_b32 s93, 0")
    A.label(lp)
    A(f"buffer_load_dword v253, {v(vaddr)}, s[28:31], s85 offen{SC}")
    A("s_add_u32 s93, s93, 1")
    A("s_waitcnt vmcnt(0)")
    A(f"v_cmp_ne_u32 vcc, s{TOK}, v253")
    A("s_cmp_lt_u32 s93, 0x20000")
    A("s_cselect_b64 s[94:95], vcc, 0")
    A("s_cmp_lg_u64 s[94:95], 0")
    A(f"s_cbranch_scc1 {lp}")
    A("s_mov_b64 exec, -1")


def poll(A, addr_fn, extra_wait=""):
    l = A.newlabel("pol")
    A("s_cmp_lg_u32 s19, 0")
    A(f"s_cbranch_scc1 {l}")
    addr_fn()
    spin(A, 252)
    A.label(l)
    if extra_wait:
        A(extra_wait)
    A("s_barrier")


def big_id(A, dst, rt, ct, t0):
    A(f"v_lshrrev_b32 {v(dst)}, 2, {v(rt)}")
    A(f"v_lshlrev_b32 {v(dst)}, 1, {v(dst)}")
    A(f"v_cmp_lt_u32 vcc, 6, {v(ct)}")
    A("s_nop 1")
    A(f"v_addc_co_u32 {v(dst)}, vcc, 0, {v(dst)}, vcc")
    A(f"v_cmp_lt_u32 vcc, 6, {v(ct)}")
    A(f"v_and_b32 {v(t0)}, 3, {v(rt)}")
    A(f"v_mul_u32_u24 {v(t0)}, 7, {v(t0)}")
    A(f"v_add_u32 {v(t0)}, {v(t0)}, {v(ct)}")
    A(f"v_subrev_u32 {v(rt)}, 7, {v(t0)}")
    A(f"v_cndmask_b32 {v(t0)}, {v(t0)}, {v(rt)}, vcc")
    A(f"v_lshl_add_u32 {v(dst)}, {v(t0)}, 3, {v(dst)}")
    A(f"v_lshlrev_b32 {v(dst)}, 7, {v(dst)}")


def big_bases(A, src):
    A("s_lshl_b32 s42, s41, 13")
    A("s_add_u32 s42, s42, 16384")
    A(f"s_add_u32 s43, s42, {2*SLOT}")
    for t in range(4):
        A(f"v_add_u32 {v(V_TB[1]+t)}, s43, {v(src+t)}")
        A(f"v_add_u32 {v(V_TB[0]+t)}, s42, {v(src+t)}")


class Spec:
    def __init__(self, A, vflag, mask, loads):
        self.A, self.vflag, self.mask, self.loads = A, vflag, mask, loads

    def stage1(self):
        A = self.A
        A(f"s_mov_b32 s85, {WS_FLAG}")
        A(f"s_mov_b64 exec, {self.mask:#x}")
        A.vmem(f"buffer_load_dword v253, {v(self.vflag)}, s[28:31], s85 offen{SC}", "sflag")
        A("s_mov_b64 exec, -1")

    def stage2(self):
        A = self.A
        A.vm_wait("sflag")
        A(f"v_cmp_ne_u32 s[96:97], s{TOK}, v253")
        self.loads("sdata")

    def finish(self):
        A = self.A
        l = A.newlabel("spec")
        A(f"s_and_b64 s[96:97], s[96:97], {self.mask:#x}")
        A(f"s_cbranch_scc0 {l}")
        A(f"s_mov_b64 exec, {self.mask:#x}")
        spin(A, self.vflag)
        snap = A.vm_snapshot()
        self.loads("sdata")
        A.vm_restore(snap)
        A("s_waitcnt vmcnt(0)")
        A.label(l)
        A.vm_wait("sdata")


def red8(A, x, t):
    for dpp in ("quad_perm:[1,0,3,2]", "quad_perm:[2,3,0,1]", "row_half_mirror"):
        A("s_nop 1")
        A(f"v_add_f32_dpp {v(x)}, {v(x)}, {v(x)} {dpp} row_mask:0xf bank_mask:0xf")


def gen():
    A = Asm()
    Lend = "k_end"
    A("s_cmp_ge_u32 s2, 256")
    A(f"s_cbranch_scc1 {Lend}")
    A("s_load_dwordx4 s[4:7], s[0:1], 0")
    A("s_load_dwordx2 s[8:9], s[0:1], 32")
    A("s_load_dwordx4 s[56:59], s[0:1], 80")
    A("s_memrealtime s[82:83]")
    lane_setup(A)
    A(f"v_lshlrev_b32 {v(L16)}, 4, {v(VL)}")
    A(f"s_cmp_ge_u32 s2, {NWG}")
    A("s_cbranch_scc1 helper")
    big_decode(A)
    A("s_sub_u32 s46, s33, 21")
    A("s_movk_i32 s32, 896")
    A("s_cmp_lt_u32 s33, 21")
    A("s_cselect_b32 s32, 2688, s32")
    A("s_cselect_b32 s34, s33, s46")
    A("s_lshl_b32 s34, s34, 7")
    A("s_lshl_b32 s35, s40, 3")
    A("s_mul_i32 s35, s35, s32")
    A("s_add_u32 s34, s34, s35")
    A("s_lshl_b32 s38, s32, 5")
    unit_dma_voff(A, V_WD, "s43", None, "s32", 24, 25)
    A(f"v_lshrrev_b32 v24, 3, {v(VL)}")
    A("v_lshrrev_b32 v25, 1, v24")
    A(f"v_xor_b32 v25, v25, {v(VL)}")
    A("v_and_b32 v25, 7, v25")
    A(f"v_mul_u32_u24 {v(V_XD)}, 896, v24")
    A(f"v_lshl_add_u32 {v(V_XD)}, v25, 4, {v(V_XD)}")
    A(f"v_xor_b32 {v(V_XD2)}, 64, {v(V_XD)}")
    A(f"v_add_u32 {v(V_XD2)}, {8*896-1024}, {v(V_XD2)}")
    A("s_lshl_b32 s35, s17, 3")
    A("s_add_u32 s35, s35, s19")
    A(f"s_mul_i32 s35, s35, {RT_BYTES}")
    A("s_waitcnt lgkmcnt(0)")
    A.srd(20, 4, 5, ACT_BYTES)
    A(f"s_mov_b32 s26, {D*D*2}")
    A("s_cmp_lt_u32 s33, 21")
    A("s_cselect_b32 s24, s6, s8")
    A("s_cselect_b32 s25, s7, s9")
    A(f"s_cselect_b32 s26, {D*3*D*2}, s26")
    A("s_and_b32 s25, s25, 0xffff")
    A("s_mov_b32 s27, 0x00020000")
    for ds in range(2):
        for p in big_dma_parts(A, ds, 128, V_XD2):
            p()
    A.srd(28, 58, 59, WS_SIZE)
    stamp(A)
    A(f"v_lshrrev_b32 v24, 1, {v(VI)}")
    A(f"v_xor_b32 v24, v24, {v(VG)}")
    A("v_lshlrev_b32 v24, 4, v24")
    A(f"v_lshl_add_u32 v24, {v(VI)}, 7, v24")
    A("s_lshl_b32 s42, s40, 12")
    A(f"v_add_u32 {v(V_XR[0])}, s42, v24")
    A(f"v_xor_b32 {v(V_XR[2])}, 64, {v(V_XR[0])}")
    A(f"v_add_u32 {v(V_XR[1])}, {2*SLOT}, {v(V_XR[0])}")
    A(f"v_add_u32 {v(V_XR[3])}, {2*SLOT}, {v(V_XR[2])}")
    unit_bases(A, PB4, "pair", 24, 25, 26)
    unit_dma_voff(A, U896, "0", None, 896, 24, 25)
    unit_dma_voff(A, U896S, "0", "4", 896, 24, 25)
    A(f"v_lshrrev_b32 v24, 1, {v(VG)}")
    A(f"v_lshlrev_b32 {v(CSO)}, 5, {v(VG)}")
    A(f"v_lshl_add_u32 {v(CSO)}, v24, 4, {v(CSO)}")
    A("s_lshl_b32 s39, s17, 7")
    A("s_lshl_b32 s42, s40, 5")
    A("s_add_u32 s39, s39, s42")
    A("s_load_dwordx2 s[62:63], s[0:1], 16")
    A("s_load_dwordx4 s[64:67], s[0:1], 40")
    A("s_load_dwordx2 s[68:69], s[0:1], 56")
    A("v_mov_b32 v252, 0")
    A.vmem(f"global_load_dword v200, v252, s[56:57]{SC}", "tok")
    snap = A.vm_snapshot()
    PK = 32

    def pf_hook():
        A("s_lshl_b32 s60, s2, 3")
        A("s_add_u32 s60, s60, s19")
        A("s_lshl_b32 s60, s60, 10")
        for q, (lo, size, base) in enumerate(((64, D * D * 2, 0), (66, D * F * 2, 0), (62, D * D * 2, 392), (68, D * F * 2, 224))):
            A.srd(72, lo, lo + 1, size)
            A(f"s_sub_u32 s61, s60, {base*1024}")
            A.vmem(f"buffer_load_dwordx4 v[204:207], {v(L16)}, s[72:75], s61 offen", "pf")
        if PFWS:
            A(f"s_add_u32 s61, s60, {WS_O}")
            A.vmem(f"buffer_load_dwordx4 v[204:207], {v(L16)}, s[28:31], s61 offen", "pf")

    def tok_hook():
        l = A.newlabel("tk")
        A.vm_wait("tok")
        A(f"v_readfirstlane_b32 s{TOK}, v200")
        tok_ok(A)
        A(f"s_cbranch_scc1 {l}")
        get_token(A)
        A.label(l)

    A("s_sub_u32 s42, s33, 14")
    A("s_cmp_lt_u32 s42, 7")
    A("s_cbranch_scc1 p1_v")
    big_bases(A, PB4)
    A("s_cmp_ge_u32 s33, 21")
    A("s_cbranch_scc1 p1_w1")
    big_mainloop(A, False, 128, V_XD2, True, hooks={7: tok_hook, PFAT: pf_hook})
    A("s_cmp_ge_u32 s33, 7")
    A("s_cselect_b32 s43, 7, 0")
    A(f"s_cselect_b32 s42, {WS_K}, 0")
    A("s_sub_u32 s46, s33, s43")
    A("s_lshl_b32 s46, s46, 11")
    A("s_add_u32 s42, s42, s46")
    A("s_mul_i32 s43, s39, 896")
    A("s_add_u32 s42, s42, s43")
    A(f"s_add_u32 s43, s42, {RT_BYTES}")
    for j in range(2):
        for q in range(8):
            A(f"v_cvt_pk_bf16_f32 {v(PK+8*j+q)}, {v(ACC+16*j+2*q)}, {v(ACC+16*j+2*q+1)}")
        for tp in range(2):
            A(f"buffer_store_dwordx4 {v(PK+8*j+4*tp,4)}, {v(L16)}, s[28:31], s{42+j} offen offset:{1024*tp}{SC}")
    A("s_branch p1_done")
    A.label("p1_v")
    A.vm_restore(snap)
    unit_bases(A, 28, "nat", 24, 25, 26)
    big_bases(A, 28)
    A("s_sub_u32 s46, s33, 14")
    A("s_lshl_b32 s47, s39, 6")
    A(f"s_add_u32 s47, s47, {WS_V}")
    A("s_lshl_b32 s44, s46, 6")
    for t in range(4):
        o = 184 + t
        A(f"v_add_u32 v24, s44, {v(VI)}")
        A(f"v_add_u32 v24, {16*t}, v24")
        A("v_mul_u32_u24 v25, 2341, v24")
        A("v_lshrrev_b32 v25, 16, v25")
        A("v_mul_u32_u24 v26, 28, v25")
        A("v_sub_u32 v26, v24, v26")
        A(f"v_lshlrev_b32 {v(o)}, 17, v25")
        A("v_lshrrev_b32 v27, 4, v26")
        A(f"v_lshl_add_u32 {v(o)}, v27, 10, {v(o)}")
        A("v_and_b32 v27, 15, v26")
        A(f"v_lshl_add_u32 {v(o)}, v27, 4, {v(o)}")
        A(f"v_lshl_add_u32 {v(o)}, {v(VG)}, 8, {v(o)}")
    A("s_lshl_b32 s44, s46, 4")
    A("s_mul_i32 s45, s44, 9363")
    A("s_lshr_b32 s45, s45, 16")
    A(f"v_add_u32 v24, s45, {v(VG)}")
    A("v_mul_u32_u24 v25, 7, v24")
    A("v_add_u32 v25, 6, v25")
    A("s_add_u32 s44, s44, 16")
    A("v_lshlrev_b32 v24, 17, v24")
    A(f"v_lshrrev_b32 v26, 2, {v(VI)}")
    A("v_lshl_add_u32 v24, v26, 4, v24")
    A(f"v_and_b32 v27, 3, {v(VI)}")
    A("v_lshl_add_u32 v24, v27, 8, v24")
    A("v_cmp_eq_u32 vcc, 0, v26")
    A("v_mov_b32 v27, 0x3f803f80")
    A("s_nop 0")
    A("v_cndmask_b32 v188, 0, v27, vcc")
    for r in range(1, 4):
        A(f"v_mov_b32 v{188+r}, v188")
    A("v_cmp_gt_u32 vcc, s44, v25")
    A("s_and_saveexec_b64 s[44:45], vcc")
    A.vmem(f"buffer_store_dwordx4 v[188:191], v24, s[28:31], s47 offen offset:{1024+12*16}{SC}", "ones")
    A("s_mov_b64 exec, -1")
    big_mainloop(A, True, 128, V_XD2, True, hooks={7: tok_hook, PFAT: pf_hook})
    A("s_nop 4")
    for t in range(4):
        pk = PK + 4 * t
        for j in range(2):
            src = ACC + 16 * j + 4 * t
            A(f"v_cvt_pk_bf16_f32 {v(pk+2*j)}, {v(src)}, {v(src+1)}")
            A(f"v_cvt_pk_bf16_f32 {v(pk+2*j+1)}, {v(src+2)}, {v(src+3)}")
        A(f"buffer_store_dwordx4 {v(pk,4)}, {v(184+t)}, s[28:31], s47 offen{SC}")
    A("s_branch p1_done")
    A.label("p1_w1")
    A.vm_restore(snap)
    MR, RS, CS = [140, 142], [144, 146], 164
    A("s_lshl_b32 s42, s17, 1")
    A(f"v_add_u32 v201, s42, {v(VL)}")
    A("v_writelane_b32 v201, s46, 2")
    A(f"v_lshlrev_b32 v201, 7, v201")
    A(f"v_add_u32 v201, {NWG*128}, v201")
    A(f"v_add_u32 v202, s39, {v(VI)}")
    A("v_lshlrev_b32 v202, 3, v202")
    A(f"s_mov_b32 s44, {WS_LN1}")
    A("s_lshl_b32 s45, s46, 8")
    A(f"s_add_u32 s45, s45, {WS_CS}")
    A(f"v_xor_b32 v203, 16, {v(CSO)}")

    def w1_loads(tag):
        for j in range(2):
            A.vmem(f"buffer_load_dwordx2 {v(180+2*j,2)}, v202, s[28:31], s44 offen offset:{128*j}{SL}", tag)
        for t in range(4):
            A.vmem(f"buffer_load_dwordx4 {v(CS+4*t,4)}, {v(203 if t & 1 else CSO)}, s[28:31], s45 offen offset:{128*(t>>1)}{SL}", tag)

    sp = Spec(A, 201, 7, w1_loads)

    def h7():
        tok_hook()
        sp.stage1()

    consts = gelu_consts(A, 148)
    A.srd_off(52, 58, 59, WS_HS, ACT_BYTES)
    A("s_lshl_b32 s47, s46, 3")
    for tp in range(2):
        A(f"v_add_u32 v24, s47, {v(VG)}")
        if tp:
            A("v_add_u32 v24, 4, v24")
        A("v_mul_u32_u24 v25, 4682, v24")
        A("v_lshrrev_b32 v25, 16, v25")
        A("v_lshrrev_b32 v26, 1, v25")
        A("v_add_u32 v26, 1, v26")
        A("v_and_b32 v25, 1, v25")
        A("v_sub_u32 v27, 0, v25")
        A("v_xor_b32 v26, v26, v27")
        A("v_add_u32 v26, v26, v25")
        A(f"v_add_u32 v26, v26, {v(VI)}")
        A("v_add_u32 v26, s39, v26")
        for j in range(2):
            o = 184 + 2 * j + tp
            if j:
                A("v_add_u32 v26, 16, v26")
            A("v_lshrrev_b32 v25, 4, v26")
            A("v_mul_u32_u24 v25, 14336, v25")
            A("v_and_b32 v27, 15, v26")
            A("v_lshl_add_u32 v25, v27, 4, v25")
            A("v_lshl_add_u32 v25, v24, 8, v25")
            A("v_cmp_gt_u32 vcc, 2048, v26")
            A("v_mov_b32 v27, 0x80000000")
            A("s_nop 0")
            A(f"v_cndmask_b32 {v(o)}, v27, v25, vcc")
    A("s_cmp_lg_u32 s40, 0")
    A("s_cbranch_scc1 p1_zd")
    A("s_cmp_eq_u32 s17, 0")
    A("s_cselect_b32 s48, 0, 1")
    A("s_cbranch_scc1 p1_z")
    A("s_cmp_lg_u32 s17, 15")
    A("s_cbranch_scc1 p1_zd")
    A.label("p1_z")
    A(f"v_and_b32 v24, 7, {v(VL)}")
    A("v_add_u32 v24, s47, v24")
    A("v_mul_u32_u24 v25, 4682, v24")
    A("v_lshrrev_b32 v25, 16, v25")
    A(f"v_lshrrev_b32 v26, 3, {v(VL)}")
    A("v_lshrrev_b32 v27, 1, v25")
    A("v_cmp_le_u32 s[50:51], v26, v27")
    A("v_and_b32 v25, 1, v25")
    A("v_cmp_eq_u32 vcc, s48, v25")
    A("s_and_b64 s[50:51], s[50:51], vcc")
    A("v_sub_u32 v27, 15, v26")
    A("s_cmp_eq_u32 s48, 0")
    A(f"s_cselect_b32 s49, 0, {127*14336}")
    A("s_cbranch_scc1 p1_z2")
    A("v_mov_b32 v26, v27")
    A.label("p1_z2")
    A("v_lshlrev_b32 v26, 4, v26")
    A("v_lshl_add_u32 v26, v24, 8, v26")
    for r in range(4):
        A(f"v_mov_b32 {v(188+r)}, 0")
    A("s_mov_b64 exec, s[50:51]")
    A(f"buffer_store_dwordx4 v[188:191], v26, s[52:55], s49 offen{SC}")
    A("s_mov_b64 exec, -1")
    A.label("p1_zd")
    big_mainloop(A, False, 128, V_XD2, True, hooks={7: tok_hook, PFAT: pf_hook, 10: sp.stage1, 12: sp.stage2})
    sp.finish()
    for j in range(2):
        for r in range(2):
            A(f"v_mov_b32 {v(MR[j]+r)}, {v(180+2*j)}")
            A(f"v_mov_b32 {v(RS[j]+r)}, {v(181+2*j)}")

    def st1(j, pk):
        for tp in range(2):
            A(f"buffer_store_dwordx4 {v(pk+4*tp,4)}, {v(184+2*j+tp)}, s[52:55], 0 offen{SC}")

    gelu_epilogue(A, CS, MR, RS, consts, 48, 32, st1)
    A("s_branch p1_done")
    A.label("helper")
    A.vm_restore([])
    A("s_load_dwordx2 s[10:11], s[0:1], 64")
    A("s_load_dwordx2 s[12:13], s[0:1], 48")
    A(f"s_sub_u32 s14, s2, {NWG}")
    for r in (236, 237, 238, 239, 241, 242, 243):
        A(f"v_mov_b32 v{r}, 0")
    A(f"v_lshrrev_b32 v4, 3, {v(VL)}")
    A(f"v_and_b32 v5, 7, {v(VL)}")
    A("v_lshlrev_b32 v5, 4, v5")
    A("s_lshl_b32 s15, s14, 6")
    A("s_lshl_b32 s16, s19, 3")
    A("s_add_u32 s15, s15, s16")
    A("v_add_u32 v4, s15, v4")
    A("v_mul_u32_u24 v6, 896, v4")
    A("v_add_u32 v6, v6, v5")
    A("s_waitcnt lgkmcnt(0)")
    A.srd(20, 4, 5, ACT_BYTES)
    A.srd(28, 58, 59, WS_SIZE)
    A.srd(48, 10, 11, D * 2)
    XB_, GB_, FB_ = 8, 40, 72
    for j in range(7):
        A.vmem(f"buffer_load_dwordx4 {v(XB_+4*j,4)}, v6, s[20:23], 0 offen offset:{128*j}", "hx")
    A(f"v_lshrrev_b32 v7, 3, {v(VL)}")

    def cs_setup(item_s):
        A(f"s_cmp_lt_u32 {item_s}, 7")
        A("s_cselect_b32 s24, s8, s12")
        A("s_cselect_b32 s25, s9, s13")
        A("s_movk_i32 s32, 896")
        A(f"s_cselect_b32 s32, s32, {F*2}")
        A(f"s_cselect_b32 s33, 0, 7")
        A(f"s_mov_b32 s26, {D*F*2}")
        A(f"s_cselect_b32 s26, {D*D*2}, s26")
        A("s_and_b32 s25, s25, 0xffff")
        A("s_mov_b32 s27, 0x00020000")
        A(f"s_sub_u32 s33, {item_s}, s33")
        A("s_lshl_b32 s33, s33, 7")
        A("s_mul_i32 s34, s19, 56")
        A("s_mul_i32 s34, s34, s32")
        A("s_add_u32 s33, s33, s34")
        A("v_mul_lo_u32 v130, v7, s32")
        A("v_add_u32 v130, v130, v5")
        A("s_lshl_b32 s32, s32, 3")
        for j in range(7):
            A.vmem(f"buffer_load_dwordx4 {v(132+4*j,4)}, v130, s[24:27], s33 offen", "hw")
            A("s_add_u32 s33, s33, s32")

    def cs_finish(item_s):
        A.vm_wait("hw")
        for j in range(7):
            for q in range(4):
                src = 132 + 4 * j + q
                if j == 0:
                    A(f"v_lshlrev_b32 {v(160+2*q)}, 16, {v(src)}")
                    A(f"v_and_b32 {v(161+2*q)}, 0xffff0000, {v(src)}")
                else:
                    A(f"v_lshlrev_b32 v168, 16, {v(src)}")
                    A(f"v_and_b32 v169, 0xffff0000, {v(src)}")
                    A(f"v_pk_add_f32 {v(160+2*q,2)}, {v(160+2*q,2)}, v[168:169]")
        A("s_nop 1")
        for q in range(4):
            A(f"v_permlane32_swap_b32 {v(160+2*q)}, {v(161+2*q)}")
        A("s_nop 0")
        for q in range(4):
            A(f"v_add_f32 {v(160+2*q)}, {v(160+2*q)}, {v(161+2*q)}")
        A("s_nop 1")
        for q in range(2):
            A(f"v_permlane16_swap_b32 {v(160+4*q)}, {v(162+4*q)}")
        A("s_nop 0")
        for q in range(2):
            A(f"v_add_f32 {v(160+4*q)}, {v(160+4*q)}, {v(162+4*q)}")
        A("s_nop 1")
        for q in range(2):
            A(f"v_add_f32_dpp {v(160+4*q)}, {v(160+4*q)}, {v(160+4*q)} row_ror:8 row_mask:0xf bank_mask:0xf")
        A("s_lshl_b32 s33, s19, 8")
        A("v_lshlrev_b32 v170, 1, v5")
        A(f"v_and_b32 v171, 1, {v(VG)}")
        A("v_lshl_add_u32 v170, v171, 3, v170")
        A(f"v_lshrrev_b32 v171, 1, {v(VG)}")
        A("v_lshl_add_u32 v170, v171, 2, v170")
        A("v_add_u32 v170, s33, v170")
        A("ds_write_b32 v170, v160")
        A("ds_write_b32 v170, v164 offset:16")
        A("s_waitcnt lgkmcnt(0)")
        A("s_barrier")
        l = A.newlabel("csw")
        A("s_cmp_lg_u32 s19, 0")
        A(f"s_cbranch_scc1 {l}")
        A(f"v_lshlrev_b32 v170, 2, {v(VL)}")
        for w in range(8):
            A(f"ds_read_b32 {v(160+w)}, v170 offset:{256*w}")
        A("s_waitcnt lgkmcnt(0)")
        for w in range(1, 8):
            A(f"v_add_f32 v160, v160, {v(160+w)}")
        A(f"s_lshl_b32 s33, {item_s}, 8")
        A(f"s_add_u32 s33, s33, {WS_CS}")
        A(f"buffer_store_dword v160, v170, s[28:31], s33 offen{SC}")
        A.label(l)

    cs_setup("s14")
    for j in range(7):
        A.vmem(f"buffer_load_dwordx4 {v(GB_+4*j,4)}, v5, s[48:51], 0 offen offset:{128*j}", "hg")
    if PFSM:
        A("s_lshl_b32 s33, s14, 3")
        A("s_add_u32 s33, s33, s19")
        A("s_lshl_b32 s33, s33, 11")
        A(f"s_add_u32 s33, s33, {WS_FLAG}")
        for q in range(2):
            A.vmem(f"buffer_load_dwordx4 v[204:207], {v(L16)}, s[28:31], s33 offen offset:{1024*q}", "pf")
    lt = A.newlabel("tok")
    A("s_or_b32 s85, s14, s19")
    A("s_cmp_lg_u32 s85, 0")
    A(f"s_cbranch_scc1 {lt}")
    A("s_or_b32 s85, s82, 1")
    A("v_mov_b32 v252, 0")
    A("v_mov_b32 v253, s85")
    A("s_mov_b64 exec, 1")
    A(f"global_store_dword v252, v253, s[56:57]{SC}")
    A("s_mov_b64 exec, -1")
    A.label(lt)
    if STAMPS:
        NST[0] -= 1
        stamp(A)
    A.vm_wait("hx")
    for j in range(28):
        A(f"v_lshlrev_b32 {v(FB_+2*j)}, 16, {v(XB_+j)}")
        A(f"v_and_b32 {v(FB_+2*j+1)}, 0xffff0000, {v(XB_+j)}")
    A(f"v_pk_add_f32 v[128:129], {v(FB_,2)}, {v(FB_+2,2)}")
    for j in range(2, 28):
        A(f"v_pk_add_f32 v[128:129], v[128:129], {v(FB_+2*j,2)}")
    A("v_add_f32 v128, v128, v129")
    red8(A, 128, 0)
    A(f"v_mul_f32 v128, {f32bits(1.0/448):#x}, v128")
    A("v_sub_f32 v172, 0, v128")
    A("v_mov_b32 v173, v172")
    for j in range(28):
        A(f"v_pk_add_f32 {v(174+2*(j&3),2)}, {v(FB_+2*j,2)}, v[172:173]")
        if j == 0:
            A(f"v_pk_mul_f32 v[182:183], {v(174,2)}, {v(174,2)}")
        else:
            A(f"v_pk_fma_f32 v[182:183], {v(174+2*(j&3),2)}, {v(174+2*(j&3),2)}, v[182:183]")
    A("v_add_f32 v129, v182, v183")
    red8(A, 129, 0)
    A(f"v_mul_f32 v129, {f32bits(1.0/448):#x}, v129")
    ln_finish(A, 128, 129)
    A("v_lshlrev_b32 v170, 3, v4")
    A(f"s_mov_b32 s33, {WS_LN1}")
    A("s_mov_b32 exec_lo, 0x01010101")
    A("s_mov_b32 exec_hi, 0x01010101")
    A.vmem(f"buffer_store_dwordx2 v[128:129], v170, s[28:31], s33 offen{SC}", "hst")
    A("s_mov_b64 exec, -1")
    cs_finish("s14")
    get_token(A)
    A("s_barrier")
    flag_store(A, 0)
    A.vm_restore([])
    if STAMPS:
        keep = NST[0]
        NST[0] = 20
        stamp(A)
        NST[0] = keep
    A("s_add_u32 s15, s14, 32")
    A("s_cmp_ge_u32 s15, 35")
    A("s_cbranch_scc1 h_no2")
    cs_setup("s15")
    cs_finish("s15")
    A.label("h_no2")
    for j in range(28):
        A(f"v_lshlrev_b32 v168, 16, {v(GB_+j)}")
        A(f"v_and_b32 v169, 0xffff0000, {v(GB_+j)}")
        A(f"v_pk_mul_f32 {v(FB_+2*j,2)}, {v(FB_+2*j,2)}, v[168:169]")
    for j in range(56):
        rbf(A, FB_ + j)
    A(f"v_pk_add_f32 v[128:129], {v(FB_,2)}, {v(FB_+2,2)}")
    for j in range(2, 28):
        A(f"v_pk_add_f32 v[128:129], v[128:129], {v(FB_+2*j,2)}")
    A("v_add_f32 v128, v128, v129")
    red8(A, 128, 0)
    rbf(A, 128)
    A(f"v_mul_f32 v128, {f32bits(-LOG2E):#x}, v128")
    A("v_exp_f32 v128, v128")
    A("s_nop 0")
    A("v_add_f32 v128, 1.0, v128")
    A("v_rcp_f32 v128, v128")
    A("s_nop 0")
    rbf(A, 128)
    A("v_lshlrev_b32 v170, 2, v4")
    A(f"s_mov_b32 s33, {WS_G}")
    A("s_mov_b32 exec_lo, 0x01010101")
    A("s_mov_b32 exec_hi, 0x01010101")
    A(f"buffer_store_dword v128, v170, s[28:31], s33 offen{SC}")
    A("s_mov_b64 exec, -1")
    A("s_waitcnt vmcnt(0)")
    A("s_barrier")
    flag_store(A, 1)
    A.label("p1_done")
    A.vm_restore(["x"])
    stamp(A)
    L_X2, L_KV = 57344, 163840 - 49152
    A("s_load_dwordx2 s[4:5], s[0:1], 0")
    A("s_load_dwordx2 s[6:7], s[0:1], 40")
    A("s_load_dwordx2 s[8:9], s[0:1], 48")
    A("s_and_b32 s14, s2, 7")
    A("s_lshr_b32 s15, s2, 3")
    small_decode(A)
    A("s_and_b32 s46, s19, 3")
    A("s_lshr_b32 s47, s19, 2")
    A("s_lshr_b32 s16, s15, 4")
    A("s_lshl_b32 s48, s14, 1")
    A("s_add_u32 s48, s48, s16")
    A("s_and_b32 s49, s15, 15")
    A(f"s_cmp_ge_u32 s2, {NWG}")
    A("s_cbranch_scc1 p2_now2")
    A(f"v_mov_b32 v5, {v(U896)}")
    l = A.newlabel("sw")
    A("s_bitcmp1_b32 s19, 1")
    A(f"s_cbranch_scc0 {l}")
    A(f"v_mov_b32 v5, {v(U896S)}")
    A.label(l)
    A("s_and_b32 s38, s19, 1")
    A("s_lshl_b32 s38, s38, 6")
    A("v_xor_b32 v5, s38, v5")
    A("s_lshl_b32 s38, s18, 7")
    A(f"s_mul_i32 s39, s19, {8*896}")
    A("s_add_u32 s38, s38, s39")
    A("s_lshl_b32 s39, s19, 10")
    A("s_waitcnt lgkmcnt(0)")
    A.srd(20, 4, 5, ACT_BYTES)
    A.srd(24, 6, 7, D * D * 2)
    A("s_barrier")
    for u in range(7):
        A("s_mov_b32 m0, s39")
        A("s_add_u32 s39, s39, 8192")
        A.vmem("buffer_load_dwordx4 v5, s[24:27], s38 offen lds", "w2")
        A(f"s_add_u32 s38, s38, {64*896}")
    A("s_waitcnt vmcnt(7)")
    A("s_barrier")
    flag_store(A, 0)
    xstamp(A, 13)
    if L2WARM:
        A("s_lshl_b32 s36, s15, 3")
        A("s_add_u32 s36, s36, s19")
        A(f"s_mul_i32 s36, s36, {2*F*2}")
        A("s_and_b32 s37, s14, 1")
        A("s_mul_i32 s37, s37, 1792")
        A("s_add_u32 s36, s36, s37")
        A.srd(68, 8, 9, D * F * 2)
        for q in range(2):
            A(f"buffer_load_dwordx4 {v(208+8*q,4)}, {v(L16)}, s[68:71], s36 offen")
            A("s_mov_b32 exec_hi, 0x0000ffff")
            A(f"buffer_load_dwordx4 {v(212+8*q,4)}, {v(L16)}, s[68:71], s36 offen offset:1024")
            A("s_mov_b32 exec_hi, -1")
            A(f"s_add_u32 s36, s36, {F*2}")
    A.label("p2_now2")

    def deps_qk():
        A(f"v_mul_u32_u24 v232, 9363, {v(VL)}")
        A("v_lshrrev_b32 v232, 16, v232")
        A("v_mul_u32_u24 v233, 7, v232")
        A(f"v_sub_u32 v233, {v(VL)}, v233")
        A("v_add_u32 v232, s49, v232")
        A("v_subrev_u32 v232, 2, v232")
        A("v_max_i32 v232, 0, v232")
        big_id(A, 252, 232, 233, 234)
        A("s_mov_b64 exec, 0x1fffff")

    def deps_vh():
        A(f"v_lshrrev_b32 v232, 2, {v(VL)}")
        A(f"v_and_b32 v233, 3, {v(VL)}")
        A("v_add_u32 v234, 10, v233")
        A("v_add_u32 v233, 7, v233")
        A("v_subrev_u32 v235, 3, v232")
        A("v_add_u32 v232, s49, v232")
        A("v_subrev_u32 v232, 2, v232")
        A("v_max_i32 v232, 0, v232")
        A("s_lshl_b32 s85, s17, 6")
        A("v_mul_u32_u24 v235, 67, v235")
        A("v_add_u32 v235, s85, v235")
        A("v_subrev_u32 v235, 2, v235")
        A("v_max_i32 v235, 0, v235")
        A("v_min_i32 v235, 2047, v235")
        A("v_lshrrev_b32 v235, 7, v235")
        A(f"v_cmp_lt_u32 vcc, 11, {v(VL)}")
        A("s_nop 1")
        A("v_cndmask_b32 v232, v232, v235, vcc")
        A("v_cndmask_b32 v233, v233, v234, vcc")
        big_id(A, 252, 232, 233, 234)
        A("s_movk_i32 s85, 0xfff")
        A(f"s_cmp_lt_u32 s2, {NWG}")
        A("s_mov_b32 exec_hi, 0")
        A("s_cselect_b32 exec_lo, 0xfffff, s85")

    QF, C0, C16, FB, SCB, PB, TM, OA = 8, 12, 16, 20, 36, 104, 140, 160
    AF, WFB, AC, XR, TB, XU = 168, 104, 196, 212, 224, 216
    A("s_mul_i32 s50, s48, 7")
    A("s_lshr_b32 s50, s50, 1")
    A("s_lshl_b32 s51, s49, 3")
    A("s_mul_i32 s52, s19, 3")
    A("s_add_u32 s52, s52, s51")
    A("s_sub_u32 s52, s52, 16")
    A("s_lshl_b32 s54, s50, 8")
    A("s_mul_i32 s55, s19, 3072")
    A(f"s_add_u32 s55, s55, {L_KV}")
    A("s_lshl_b32 s40, s48, 17")
    A(f"s_add_u32 s40, s40, {WS_V}")
    for j in range(3):
        A(f"s_add_i32 s41, s52, {j}")
        A("s_max_i32 s41, s41, 0")
        A(f"s_mul_i32 s{62+j}, s41, {RT_BYTES}")
        A(f"s_add_u32 s{62+j}, s{62+j}, s54")
        A(f"s_add_u32 s{62+j}, s{62+j}, {WS_K}")
        A("s_lshl_b32 s41, s41, 10")
        A(f"s_add_u32 s{65+j}, s41, s40")
    A("s_add_u32 s52, s51, s19")
    A(f"s_mul_i32 s52, s52, {RT_BYTES}")
    A("s_add_u32 s79, s52, s54")
    A("s_lshl_b32 s32, s17, 2")
    A("s_add_u32 s32, s32, s46")
    A(f"s_mul_i32 s33, s32, {RT_BYTES}")
    A(f"s_mul_i32 s34, s47, {7*1024}")
    A("s_add_u32 s34, s34, s33")
    A(f"s_add_u32 s34, s34, {WS_HS}")
    A("s_add_u32 s35, s34, 4096")
    A("s_lshl_b32 s61, s19, 10")
    A(f"s_add_u32 s61, s61, {L_KV}")
    A(f"v_add_u32 v4, s61, {v(L16)}")
    A(f"v_mov_b32 {v(TM+1)}, {NEGBIG:#x}")
    for r in range(4):
        A(f"v_lshl_add_u32 {v(TM)}, {v(VG)}, 2, {r}")
        A(f"v_cmp_gt_u32 vcc, {v(TM)}, {v(VI)}")
        A("s_nop 1")
        A(f"v_cndmask_b32 {v(C0+r)}, {v(TM+1)}, 0, vcc")
        A(f"v_cndmask_b32 {v(C16+r)}, 0, {v(TM+1)}, vcc")
    A("s_lshr_b32 s53, s48, 1")
    A("s_mul_i32 s53, s53, 7")
    A("s_add_u32 s53, s53, 3")
    A("s_lshr_b32 s53, s53, 1")
    A("s_xor_b32 s53, s53, s48")
    poll(A, deps_qk)
    A.vm_restore(["w2"])
    xstamp(A, 14)
    for j in range(3):
        A(f"s_add_u32 m0, s55, {1024*j}")
        A("s_nop 0")
        A.vmem(f"buffer_load_dwordx4 {v(L16)}, s[28:31], s{62+j} offen{SL} lds", "k")
    A.vmem(f"buffer_load_dwordx4 {v(QF,4)}, {v(L16)}, s[28:31], s79 offen{SL}", "k")
    A("s_waitcnt vmcnt(0)")
    A("s_barrier")
    A.vm_restore([])
    xstamp(A, 15)
    for i in range(3):
        A(f"ds_read_b128 {v(FB+4*(i%4),4)}, v4 offset:{1024*i}")
    A("s_bitcmp1_b32 s48, 0")
    A("s_cselect_b32 exec_lo, 0xffff, 0")
    A("s_cselect_b32 exec_hi, 0, 0xffff0000")
    A("s_bitcmp1_b32 s53, 0")
    A("s_cbranch_scc1 p2_q01")
    A(f"v_mov_b32 {v(QF+2)}, 0")
    A(f"v_mov_b32 {v(QF+3)}, 0")
    A("s_branch p2_qz")
    A.label("p2_q01")
    A(f"v_mov_b32 {v(QF)}, 0")
    A(f"v_mov_b32 {v(QF+1)}, 0")
    A.label("p2_qz")
    A("s_mov_b64 exec, -1")
    A("s_add_u32 s61, s51, s19")
    A("s_sub_i32 s61, 16, s61")
    A("s_cmp_gt_i32 s61, 0")
    A("s_cbranch_scc1 p2_qkslow")
    for slow in range(2):
        if slow:
            A.label("p2_qkslow")
        for i in range(17):
            if i + 3 < 17:
                A(f"ds_read_b128 {v(FB+4*((i+3)%4),4)}, v4 offset:{1024*(i+3)}")
            A(f"s_waitcnt lgkmcnt({min(3, 16-i)})")
            c = v(C0, 4) if i == 0 else (v(C16, 4) if i == 16 else "0")
            if slow and i < 16:
                l1, l2 = A.newlabel("k2i"), A.newlabel("k2j")
                A(f"s_cmp_gt_i32 s61, {i}")
                A(f"s_cbranch_scc1 {l1}")
            A(f"v_mfma_f32_16x16x32_bf16 {v(SCB+4*i,4)}, {v(FB+4*(i%4),4)}, {v(QF,4)}, {c}")
            if slow and i < 16:
                A(f"s_branch {l2}")
                A.label(l1)
                for r in range(4):
                    A(f"v_mov_b32 {v(SCB+4*i+r)}, {NEGBIG:#x}")
                A.label(l2)
        if not slow:
            A("s_branch p2_qkdone")
    A.label("p2_qkdone")
    M = TM
    KL, NB = TM + 17, TM + 18
    A(f"v_max3_f32 {v(M)}, {v(SCB)}, {v(SCB+1)}, {v(SCB+2)}")
    A(f"v_max3_f32 {v(M+1)}, {v(SCB+3)}, {v(SCB+4)}, {v(SCB+5)}")
    idx, k = 6, 0
    while idx < 68:
        A(f"v_max3_f32 {v(M+k)}, {v(M+k)}, {v(SCB+idx)}, {v(SCB+idx+1)}")
        idx += 2
        k ^= 1
    A(f"v_max_f32 {v(M)}, {v(M)}, {v(M+1)}")
    xlane_g(A, "v_max_f32", M, M + 1, M + 2)
    A(f"v_mov_b32 {v(KL)}, {f32bits(SCALE*LOG2E):#x}")
    A(f"v_mul_f32 {v(NB)}, {f32bits(-SCALE*LOG2E):#x}, {v(M)}")
    stamp(A)
    poll(A, deps_vh)
    stamp(A)
    A(f"s_cmp_ge_u32 s2, {NWG}")
    A("s_cbranch_scc1 p2_noa")
    for u in range(7):
        A.vmem(f"buffer_load_dwordx4 {v(AF+4*u,4)}, {v(L16)}, s[28:31], s{34+u//4} offen offset:{1024*(u%4)}{SL}", ("a", u))
    A.label("p2_noa")
    for j in range(3):
        A(f"s_add_u32 m0, s55, {24576+1024*j}")
        A("s_nop 0")
        A.vmem(f"buffer_load_dwordx4 {v(L16)}, s[28:31], s{65+j} offen{SL} lds", "kv")
    A(f"s_cmp_ge_u32 s2, {NWG}")
    A("s_cbranch_scc1 p2_attn")
    A("s_lshl_b32 s40, s32, 4")
    A(f"v_add_u32 v8, s40, {v(VI)}")
    A("v_mul_u32_u24 v9, 896, v8")
    A(f"v_lshrrev_b32 v10, 1, {v(CSO)}")
    A("v_xor_b32 v11, 8, v10")
    A("v_add_u32 v11, v11, v9")
    A("v_add_u32 v9, v10, v9")
    A("s_lshl_b32 s40, s18, 7")
    A("s_lshl_b32 s41, s47, 6")
    A("s_add_u32 s40, s40, s41")
    A.vmem(f"buffer_load_dwordx2 {v(XR,2)}, v9, s[20:23], s40 offen", "x")
    A.vmem(f"buffer_load_dwordx2 {v(XR+2,2)}, v11, s[20:23], s40 offen", "x")
    A(f"s_mul_i32 s41, s47, {7*4096}")
    for t in range(4):
        A(f"v_add_u32 {v(TB+t)}, s41, {v(PB4+t)}")
    for r in unit_reads(TB, 0, WFB):
        A(r)
    A("s_xor_b32 s41, s19, 4")
    A("s_lshl_b32 s41, s41, 11")
    A(f"s_add_u32 s41, s41, {L_X2}")
    A(f"v_add_u32 v12, s41, {v(L16)}")
    A("s_lshl_b32 s41, s19, 11")
    A(f"s_add_u32 s41, s41, {L_X2}")
    A(f"v_add_u32 v13, s41, {v(L16)}")
    for u in range(7):
        A.vm_wait(("a", u), " lgkmcnt(0)")
        rd = unit_reads(TB, (u + 1) * 4096, WFB + 16 * ((u + 1) & 1)) if u < 6 else []
        for t in range(4):
            c = v(AC + 4 * t, 4)
            A(f"v_mfma_f32_16x16x32_bf16 {c}, {v(WFB+16*(u&1)+4*t,4)}, {v(AF+4*u,4)}, {c if u else 0}")
            for r in rd[4*t:4*t+4] if t < 2 else []:
                A(r)
    A.vm_wait("x")
    for j in range(4):
        A(f"v_lshlrev_b32 {v(XU+2*j)}, 16, {v(XR+j)}")
        A(f"v_and_b32 {v(XU+2*j+1)}, 0xffff0000, {v(XR+j)}")
    A("s_cmp_eq_u32 s47, 0")
    A("s_cbranch_scc1 p2_x0")
    for r in range(8):
        A(f"v_swap_b32 {v(AC+r)}, {v(AC+8+r)}")
    A.label("p2_x0")
    for t in range(2):
        A(f"ds_write_b128 v12, {v(AC+8+4*t,4)} offset:{1024*t}")
    A("s_lshl_b32 s40, s18, 11")
    A("s_add_u32 s40, s40, s33")
    A("s_lshl_b32 s41, s47, 10")
    A("s_add_u32 s40, s40, s41")
    A(f"s_add_u32 s40, s40, {WS_X1}")
    A("s_waitcnt lgkmcnt(0)")
    A("s_barrier")
    for t in range(2):
        A(f"ds_read_b128 {v(AC+8+4*t,4)}, v13 offset:{1024*t}")
    A("s_waitcnt lgkmcnt(0)")
    for r in range(8):
        A(f"v_add_f32 {v(AC+r)}, {v(AC+r)}, {v(AC+8+r)}")
    for r in range(8):
        rbf(A, AC + r)
    for r in range(8):
        A(f"v_add_f32 {v(AC+r)}, {v(AC+r)}, {v(XU+r)}")
    for j in range(4):
        A(f"v_cvt_pk_bf16_f32 {v(X1K+j)}, {v(AC+2*j)}, {v(AC+2*j+1)}")
    A.vmem(f"buffer_store_dwordx4 {v(X1K,4)}, {v(L16)}, s[28:31], s40 offen{SC}", "st")
    for r in range(8):
        rbf(A, AC + r)
    A(f"v_add_f32 v12, {v(AC)}, {v(AC+1)}")
    for r in range(2, 8):
        A(f"v_add_f32 v12, v12, {v(AC+r)}")
    xlane_g(A, "v_add_f32", 12, 14, 15)
    A(f"v_mul_f32 v14, {f32bits(1.0/32):#x}, v12")
    for r in range(8):
        A(f"v_sub_f32 {v(AC+r)}, {v(AC+r)}, v14")
    A(f"v_mul_f32 v13, {v(AC)}, {v(AC)}")
    for r in range(1, 8):
        A(f"v_fmac_f32 v13, {v(AC+r)}, {v(AC+r)}")
    xlane_g(A, "v_add_f32", 13, 14, 15)
    A("v_lshlrev_b32 v8, 7, v8")
    A("s_lshl_b32 s40, s18, 4")
    A("s_lshl_b32 s41, s47, 3")
    A("s_add_u32 s40, s40, s41")
    A(f"s_add_u32 s40, s40, {WS_ST}")
    A("s_mov_b64 exec, 0xffff")
    A.vmem(f"buffer_store_dwordx2 v[12:13], v8, s[28:31], s40 offen{SC}", "st")
    A("s_mov_b64 exec, -1")
    A("s_branch p2_attn2")
    A.label("p2_attn")
    A("s_waitcnt vmcnt(0)")
    A("s_barrier")
    A.label("p2_attn2")
    A.vm_restore(["st"])
    stamp(A)
    A("s_load_dwordx2 s[6:7], s[0:1], 48")
    A("s_lshr_b32 s61, s19, 1")
    A("s_lshl_b32 s61, s61, 11")
    A(f"s_add_u32 s61, s61, {L_KV+24576}")
    A(f"v_add_u32 v5, s61, {v(L16)}")
    for j in range(2):
        A(f"ds_read_b128 {v(FB+4*j,4)}, v5 offset:{1024*j}")
    A("s_mul_i32 s60, s48, 7")
    A(f"v_add_u32 v6, s60, {v(VG)}")
    A(f"v_and_b32 {v(TM)}, 1, v6")
    A("v_lshrrev_b32 v6, 1, v6")
    A("v_lshlrev_b32 v6, 8, v6")
    A(f"v_lshl_add_u32 v6, {v(TM)}, 3, v6")
    A(f"v_lshl_add_u32 v6, {v(VI)}, 4, v6")
    A(f"s_add_u32 s60, s52, {WS_O}")
    big_decode(A)
    PITCH = F * 2
    A(f"s_mul_i32 s34, s40, {8*PITCH}")
    A("s_lshl_b32 s35, s33, 7")
    A("s_add_u32 s34, s34, s35")
    A(f"s_mov_b32 s38, {32*PITCH}")
    A("s_and_b32 s42, s40, 2")
    A("s_lshl_b32 s42, s42, 1")
    gen3.V_WD = 204
    unit_dma_voff(A, 204, "s43", "s42", PITCH, 205, 206)
    A(f"v_cmp_lt_u32 vcc, 6, {v(VL)}")
    A("s_lshl_b32 s85, s17, 1")
    A("v_mov_b32 v232, s85")
    A("v_addc_co_u32 v232, vcc, 0, v232, vcc")
    A(f"v_cmp_lt_u32 vcc, 6, {v(VL)}")
    A(f"v_subrev_u32 v233, 7, {v(VL)}")
    A("s_nop 0")
    A(f"v_cndmask_b32 v233, {v(VL)}, v233, vcc")
    A("v_and_b32 v234, 3, v232")
    A("v_mul_u32_u24 v234, 7, v234")
    A("v_add_u32 v234, v234, v233")
    A("v_lshrrev_b32 v232, 2, v232")
    A("v_lshl_add_u32 v232, v234, 3, v232")
    A("s_add_u32 s85, s33, 7")
    A("s_and_b32 s85, s85, 31")
    A(f"s_add_u32 s85, s85, {NWG}")
    A("v_writelane_b32 v232, s85, 14")
    A("v_lshlrev_b32 v232, 7, v232")
    A("v_add_u32 v232, 32768, v232")
    sp3 = Spec(A, 232, 0x7fff, lambda tag: None)

    def pub1():
        A("s_waitcnt vmcnt(0) lgkmcnt(0)")
        A("s_barrier")
        A.vm_restore([])
        lq = A.newlabel("now3")
        A(f"s_cmp_ge_u32 s2, {NWG}")
        A(f"s_cbranch_scc1 {lq}")
        flag_store(A, 1)
        A.srd(24, 6, 7, D * F * 2)
        for ds in range(3):
            for p in big_dma_parts(A, ds, 2048, V_XD)[1:]:
                p()
        A.label(lq)

    if L2WARM:
        A("s_lshl_b32 s44, s15, 3")
        A("s_add_u32 s44, s44, s19")
        A("s_mul_i32 s45, s44, 1792")
        A("s_mul_i32 s44, s44, 7168")
        A.srd(68, 8, 9, D * F * 2)
        A.srd(72, 10, 11, D * D * 2)
        for q in range(7):
            A.vmem(f"buffer_load_dwordx4 v[208:211], {v(L16)}, s[68:71], s44 offen offset:{1024*(q%4)}", "warm")
            if q == 3:
                A("s_add_u32 s44, s44, 4096")
        for q in range(2):
            A.vmem(f"buffer_load_dwordx4 v[208:211], {v(L16)}, s[72:75], s45 offen offset:{896*q}", "warm")
    A("s_bitcmp1_b32 s19, 0")
    A("s_cbranch_scc1 p2_odd")
    for par in range(2):
        if par:
            A.label("p2_odd")
        zs = 17 if par == 0 else 0
        A(f"v_mov_b32 {v(PB+2*zs)}, 0")
        A(f"v_mov_b32 {v(PB+2*zs+1)}, 0")
        nread = 2
        if par:
            A.vm_restore(snap_att)
        snap_att = A.vm_snapshot()
        for c in range(9):
            if c == PUBC:
                pub1()
            if c == SP3C:
                sp3.stage1()
            els = []
            for half in range(2):
                slot = 2 * c + half
                if slot != zs:
                    els += [SCB + 4 * (slot - par) + r for r in range(4)]
            for e in els:
                A(f"v_fma_f32 {v(e)}, {v(e)}, {v(KL)}, {v(NB)}")
            for e in els:
                A(f"v_exp_f32 {v(e)}, {v(e)}")
            while nread < min(18, 2 * c + 4):
                A(f"ds_read_b128 {v(FB+4*(nread%4),4)}, v5 offset:{1024*nread}")
                nread += 1
            if c >= 7:
                A("s_nop 0")
            for half in range(2):
                slot = 2 * c + half
                if slot == zs:
                    continue
                i = slot - par
                A(f"v_cvt_pk_bf16_f32 {v(PB+2*slot)}, {v(SCB+4*i)}, {v(SCB+4*i+1)}")
                A(f"v_cvt_pk_bf16_f32 {v(PB+2*slot+1)}, {v(SCB+4*i+2)}, {v(SCB+4*i+3)}")
            A(f"s_waitcnt lgkmcnt({nread - (2*c+2)})")
            A("s_nop 0")
            for dt in range(2):
                A(f"v_mfma_f32_16x16x32_bf16 {v(OA+4*dt,4)}, {v(FB+4*((2*c+dt)%4),4)}, {v(PB+4*c,4)}, {v(OA+4*dt,4) if c else 0}")
        if par == 0:
            A("s_branch p2_out")
    A.label("p2_out")
    A(f"v_mov_b32 {v(TM)}, 0")
    A("s_lshl_b32 s35, s17, 3")
    A("s_add_u32 s35, s35, s19")
    A(f"s_mul_i32 s35, s35, {RT_BYTES}")
    A(f"s_add_u32 s35, s35, {WS_X1}")
    A("s_lshl_b32 s42, s40, 12")
    A(f"v_add_u32 {v(V_XR[0])}, s42, {v(L16)}")
    A(f"v_add_u32 {v(V_XR[1])}, {2*SLOT}, {v(V_XR[0])}")
    A("s_mov_b32 exec_lo, 0")
    A("s_mov_b32 exec_hi, 0xffff0000")
    A(f"v_mov_b32 {v(TM)}, {v(OA+4)}")
    A("s_mov_b64 exec, -1")
    xlane_g(A, "v_add_f32", TM, TM + 1, TM + 2)
    A(f"v_rcp_f32 {v(TM)}, {v(TM)}")
    A("s_nop 0")
    for r in range(8):
        A(f"v_mul_f32 {v(OA+r)}, {v(TM)}, {v(OA+r)}")
    for r in range(4):
        A(f"v_cvt_pk_bf16_f32 {v(TM+4+r)}, {v(OA+2*r)}, {v(OA+2*r+1)}")
    A.vmem(f"buffer_store_dwordx2 {v(TM+4,2)}, v6, s[28:31], s60 offen{SC}", "ost")
    ex48(A)
    A.vmem(f"buffer_store_dwordx2 {v(TM+6,2)}, v6, s[28:31], s60 offen offset:512{SC}", "ost")
    exall(A)
    l3 = A.newlabel("p3go")
    A(f"s_cmp_lt_u32 s2, {NWG}")
    A(f"s_cbranch_scc1 {l3}")
    A("s_waitcnt vmcnt(0)")
    A("s_barrier")
    flag_store(A, 2)
    A("s_endpgm")
    A.label(l3)
    A(f"v_mov_b32 {v(V_XD)}, {v(L16)}")
    big_bases(A, PB4)
    A("s_lshl_b32 s39, s17, 3")
    A("s_lshl_b32 s42, s40, 1")
    A("s_add_u32 s39, s39, s42")
    A("s_lshl_b32 s42, s39, 4")
    A(f"v_add_u32 v24, s42, {v(VI)}")
    A("v_lshlrev_b32 v24, 7, v24")
    A(f"v_lshl_add_u32 v24, {v(VG)}, 5, v24")
    A(f"s_mov_b32 s46, {WS_ST}")
    A("s_lshl_b32 s45, s33, 8")
    A(f"s_add_u32 s45, s45, {WS_CS + 7*256}")
    A(f"v_xor_b32 v203, 16, {v(CSO)}")
    A.srd(20, 58, 59, WS_SIZE)
    stamp(A)
    A.vm_wait("sflag")
    A(f"v_cmp_ne_u32 s[96:97], s{TOK}, v253")
    l = A.newlabel("sp3")
    A("s_and_b64 s[96:97], s[96:97], 0x7fff")
    A(f"s_cbranch_scc0 {l}")
    A("s_mov_b64 exec, 0x7fff")
    spin(A, 232)
    A.label(l)
    gen3.XSC[0] = SL
    for ds in range(2):
        big_dma_parts(A, ds, 2048, V_XD)[0]()
    STR = 180

    def h3a():
        for j in range(2):
            for q in range(2):
                A.vmem(f"buffer_load_dwordx4 {v(STR+8*j+4*q,4)}, v24, s[28:31], s46 offen offset:{2048*j+16*q}{SL}", "st")
        for t in range(4):
            A.vmem(f"buffer_load_dwordx4 {v(CS+4*t,4)}, {v(203 if t & 1 else CSO)}, s[28:31], s45 offen offset:{128*(t>>1)}{SL}", "st")
        A("s_load_dwordx2 s[4:5], s[0:1], 16")
        A("s_load_dwordx2 s[6:7], s[0:1], 56")
        A("s_load_dwordx2 s[8:9], s[0:1], 72")

    RS4, PF4 = 6, 4
    RING = RS4 * 4096
    L4_WO, L4_R = 0, 57344
    OFB = 204
    def o_loads(tag):
        for u in range(7):
            A.vmem(f"buffer_load_dwordx4 {v(OFB+4*u,4)}, {v(L16)}, s[28:31], s{62+u//4} offen offset:{1024*(u%4)}{SL}", tag)
        A.vmem(f"buffer_load_dword v247, v246, s[28:31], s64 offen{SL}", tag)

    sp4 = Spec(A, 245, 0x1ffff, o_loads)

    def h3b():
        A("s_mul_i32 s16, s15, 9363")
        A("s_lshr_b32 s16, s16, 16")
        A("s_mul_i32 s69, s16, 7")
        A("s_sub_u32 s69, s15, s69")
        A("s_lshl_b32 s68, s14, 2")
        A("s_add_u32 s68, s68, s16")
        A(f"v_and_b32 v245, 1, {v(VL)}")
        A("v_lshlrev_b32 v245, 4, v245")
        A("s_lshr_b32 s85, s68, 1")
        A("v_add_u32 v245, s85, v245")
        A(f"v_lshrrev_b32 v246, 1, {v(VL)}")
        A("v_lshl_add_u32 v245, v245, 3, v246")
        A("v_lshlrev_b32 v245, 7, v245")
        A("v_add_u32 v245, 65536, v245")
        A(f"s_add_u32 s85, s68, {NWG}")
        A("s_lshl_b32 s85, s85, 7")
        A("s_add_u32 s85, s85, 32768")
        A("v_writelane_b32 v245, s85, 16")
        A("s_lshl_b32 s70, s68, 2")
        A("s_add_u32 s70, s70, s40")
        A(f"s_mul_i32 s62, s70, {RT_BYTES}")
        A(f"s_mul_i32 s63, s41, {7*1024}")
        A("s_add_u32 s62, s62, s63")
        A(f"s_add_u32 s62, s62, {WS_O}")
        A("s_add_u32 s63, s62, 4096")
        A("s_lshl_b32 s85, s70, 4")
        A(f"v_add_u32 v244, s85, {v(VI)}")
        A("v_lshlrev_b32 v246, 2, v244")
        A(f"s_mov_b32 s64, {WS_G}")
        sp4.stage1()

    def h3c():
        A.vm_wait("st")
        A("s_mov_b32 exec_lo, 0")
        A("s_mov_b32 exec_hi, 0xffff0000")
        for j in range(2):
            for r in range(4, 8):
                A(f"v_mov_b32 {v(STR+8*j+r)}, 0")
        A("s_mov_b64 exec, -1")
        for j in range(2):
            b = STR + 8 * j
            m, q = MR[j], RS[j]
            A(f"v_add_f32 {v(m)}, {v(b)}, {v(b+2)}")
            A(f"v_add_f32 {v(q)}, {v(b+4)}, {v(b+6)}")
            A(f"v_add_f32 {v(m)}, {v(m)}, {v(q)}")
            xlane_g(A, "v_add_f32", m, 196, 197)
            A(f"v_mul_f32 {v(m)}, {f32bits(1.0/448):#x}, {v(m)}")
            A(f"v_add_f32 {v(q)}, {v(b+1)}, {v(b+3)}")
            A(f"v_add_f32 {v(q)}, {v(q)}, {v(b+5)}")
            A(f"v_add_f32 {v(q)}, {v(q)}, {v(b+7)}")
            for r in (0, 2, 4, 6):
                A(f"v_mul_f32 {v(b+r)}, {f32bits(1.0/32):#x}, {v(b+r)}")
                A(f"v_sub_f32 {v(b+r)}, {v(b+r)}, {v(m)}")
            A(f"v_mul_f32 {v(b)}, {v(b)}, {v(b)}")
            A(f"v_fmac_f32 {v(b)}, {v(b+2)}, {v(b+2)}")
            ex48(A)
            A(f"v_fmac_f32 {v(b)}, {v(b+4)}, {v(b+4)}")
            A(f"v_fmac_f32 {v(b)}, {v(b+6)}, {v(b+6)}")
            exall(A)
            A(f"v_fmamk_f32 {v(q)}, {v(b)}, {f32bits(32.0):#x}, {v(q)}")
            xlane_g(A, "v_add_f32", q, 196, 197)
            A(f"v_mul_f32 {v(q)}, {f32bits(1.0/448):#x}, {v(q)}")
            ln_finish(A, m, q)
            A(f"v_mov_b32 {v(m+1)}, {v(m)}")
            A(f"v_mov_b32 {v(q+1)}, {v(q)}")
        gelu_consts(A, 148)
        A(f"s_mul_i32 s42, s39, {H3_RT_BYTES}")
        A("s_lshl_b32 s43, s33, 11")
        A("s_add_u32 s42, s42, s43")
        A(f"s_add_u32 s42, s42, {WS_H3}")
        A(f"s_add_u32 s43, s42, {H3_RT_BYTES}")

    consts = (148, 150, 152)
    big_mainloop(A, False, 2048, V_XD, False, wdone=(0, 1, 2), hook=lambda: flag_store(A, 2), hooks={7: h3a, 9: h3b, 11: h3c})
    gen3.XSC[0] = ""
    stamp(A)
    A(f"v_mov_b32 v6, {v(U896)}")
    A("s_and_b32 s85, s19, 1")
    A("s_lshl_b32 s85, s85, 6")
    A("v_xor_b32 v6, s85, v6")
    A("v_xor_b32 v7, 64, v6")
    A("s_lshl_b32 s66, s69, 7")
    A(f"s_mul_i32 s65, s19, {7*8*896}")
    A("s_add_u32 s65, s65, s66")
    A("s_mul_i32 s67, s19, 7168")
    A.srd(20, 4, 5, D * D * 2)
    A("s_barrier")
    for u in range(7):
        A("s_mov_b32 m0, s67")
        A("s_add_u32 s67, s67, 1024")
        A.vmem(f"buffer_load_dwordx4 v{6+(u&1)}, s[20:23], s65 offen lds", "wo")
        A(f"s_add_u32 s65, s65, {8*896}")
    sp4.stage2()
    def st3(j, pk):
        for tp in range(2):
            A.vmem(f"buffer_store_dwordx4 {v(pk+4*tp,4)}, {v(L16)}, s[28:31], s{42+j} offen offset:{1024*tp}{SC}", "hst")

    gelu_epilogue(A, CS, MR, RS, consts, 48, 32, st3)
    stamp(A)
    NA = PF4 + 2
    AFB = 32
    WFB = AFB + NA * 8
    ACB = WFB + 32
    AWO = ACB + 32
    WOF = AWO + 16
    assert WOF + 32 <= OFB
    GR = 247
    TB, TO = 20, 24
    af = lambda sx, j: AFB + ((sx % NA) * 2 + j) * 4
    ac = lambda j, t: v(ACB + (j * 4 + t) * 4, 4)
    for m in range(1, 4):
        A(f"v_add_u32 v{8+m}, {4096*m}, {v(L16)}")
    A(f"v_mov_b32 v8, {v(L16)}")
    A(f"v_mov_b32 v4, {v(U896)}")
    l = A.newlabel("sw")
    A("s_cmp_eq_u32 s41, 0")
    A(f"s_cbranch_scc1 {l}")
    A(f"v_mov_b32 v4, {v(U896S)}")
    A.label(l)
    A("v_xor_b32 v5, 64, v4")
    A("s_lshl_b32 s32, s68, 2")
    A("s_lshl_b32 s33, s41, 1")
    A("s_add_u32 s32, s32, s33")
    A(f"s_mul_i32 s32, s32, {H3_RT_BYTES}")
    A(f"s_mul_i32 s33, s40, {14*1024}")
    A("s_add_u32 s32, s32, s33")
    A(f"s_add_u32 s32, s32, {WS_H3}")
    A(f"s_add_u32 s33, s32, {H3_RT_BYTES}")
    A(f"s_mul_i32 s36, s40, {448*896}")
    A(f"s_mul_i32 s34, s41, {16*896}")
    A("s_add_u32 s36, s36, s34")
    A("s_add_u32 s36, s36, s66")
    A(f"s_mul_i32 s35, s40, {RING}")
    A(f"s_add_u32 s35, s35, {L4_R}")
    A("s_lshl_b32 s37, s41, 11")
    A("s_add_u32 s37, s37, s35")
    A(f"s_mul_i32 s44, s41, {7*4096}")
    for t in range(4):
        A(f"v_add_u32 {v(TO+t)}, s44, {v(PB4+t)}")
        A(f"v_add_u32 {v(TB+t)}, s35, {v(PB4+t)}")
    A.srd(24, 6, 7, F * D * 2)
    A.srd(48, 8, 9, ACT_BYTES)

    ROT = os.environ.get("ROT", "0") == "1"
    if ROT:
        A("s_lshl_b32 s72, s69, 1")
        A(f"s_add_u32 s73, s36, {14*32*896}")
        A(f"s_mul_i32 s74, s72, {32*896}")
        A("s_add_u32 s36, s36, s74")
        A(f"s_add_u32 s75, s32, {14*1024}")
        A("s_lshl_b32 s74, s72, 10")
        A("s_add_u32 s32, s32, s74")

    def w_parts(sx):
        parts = []
        for j in range(2):
            def p(j=j):
                A(f"s_add_u32 m0, s37, {(sx%RS4)*4096 + j*1024}")
                A("s_nop 0")
                A.vmem(f"buffer_load_dwordx4 v{4+j}, s[24:27], s36 offen lds", ("w", sx))
                A(f"s_add_u32 s36, s36, {8*896 if j == 0 else 24*896}")
                if ROT and j == 1:
                    A(f"s_sub_u32 s74, s36, {14*32*896}")
                    A("s_cmp_ge_u32 s36, s73")
                    A("s_cselect_b32 s36, s74, s36")
            parts.append(p)
        return parts

    def a_parts(sx):
        if ROT:
            def p0():
                A(f"s_add_u32 s33, s32, {H3_RT_BYTES}")
                A.vmem(f"buffer_load_dwordx4 {v(af(sx,0),4)}, v8, s[28:31], s32 offen{SL}", ("ld", sx))

            def p1():
                A.vmem(f"buffer_load_dwordx4 {v(af(sx,1),4)}, v8, s[28:31], s33 offen{SL}", ("ld", sx))
                A("s_add_u32 s32, s32, 1024")
                A(f"s_sub_u32 s74, s32, {14*1024}")
                A("s_cmp_ge_u32 s32, s75")
                A("s_cselect_b32 s32, s74, s32")
            return [p0, p1]
        return [lambda j=j: A.vmem(f"buffer_load_dwordx4 {v(af(sx,j),4)}, v{8+sx//4}, s[28:31], s{32+j} offen offset:{1024*(sx%4)}{SL}", ("ld", sx)) for j in range(2)]

    sp4.finish()
    A("s_barrier")
    for r in unit_reads(TO, 0, WOF):
        A(r)
    for u in range(7):
        A("s_waitcnt lgkmcnt(0)")
        rd = unit_reads(TO, (u + 1) * 4096, WOF + 16 * ((u + 1) & 1)) if u < 6 else []
        for t in range(4):
            c = v(AWO + 4 * t, 4)
            A(f"v_mfma_f32_16x16x32_bf16 {c}, {v(WOF+16*(u&1)+4*t,4)}, {v(OFB+4*u,4)}, {c if u else 0}")
            for r in rd[4*t:4*t+4] if t < 2 else []:
                A(r)
            if t >= 2 and u >= 1:
                w_parts(u - 1)[t - 2]()
        if u == 1:
            A.vm_wait("hst")
            A("s_barrier")
            flag_store(A, 3)
    stamp(A)

    def deps4b():
        A("s_lshr_b32 s85, s68, 1")
        A("v_mov_b32 v232, s85")
        A(f"v_mov_b32 v233, {v(VL)}")
        big_id(A, 252, 232, 233, 234)
        A(f"v_add_u32 v252, {3*32768}, v252")
        A("s_mov_b64 exec, 0x3fff")

    poll(A, deps4b, "s_waitcnt vmcnt(0)")
    A.vm_restore([])
    stamp(A)
    na = [0]

    def take_a(n, limit):
        out = []
        while n > 0 and na[0] < 14 and na[0] <= limit:
            out += a_parts(na[0])
            na[0] += 1
            n -= 1
        return out

    for p in take_a(3, 2):
        p()
    for r in unit_reads(TB, 0, WFB):
        A(r)
    for sx in range(14):
        tags = [("ld", sx)]
        bar = sx % 2 == 0 and 0 < sx < 13
        if bar:
            tags += [("w", t) for t in (sx + 1, sx + 2) if 5 < t < 14]
        A.vm_wait(tags, " lgkmcnt(0)")
        if bar:
            A("s_barrier")
        rd = unit_reads(TB, ((sx + 1) % RS4) * 4096, WFB + 16 * ((sx + 1) & 1)) if sx < 13 else []
        parts = take_a(2, sx + 1 + PF4)
        wt = [6] if sx == 2 else []
        wt += [sx + 5] if 2 <= sx and sx + 5 < 14 else []
        for t in wt:
            parts += w_parts(t)
        mf = [f"v_mfma_f32_16x16x32_bf16 {ac(j,t)}, {v(WFB+16*(sx&1)+4*t,4)}, {v(af(sx,j),4)}, {ac(j,t) if sx else 0}" for t in range(4) for j in range(2)]
        E4 = os.environ.get("E4", "")
        for i, m in enumerate(mf):
            if "m" not in E4:
                A(m)
            for _ in range(2):
                if rd:
                    r_ = rd.pop(0)
                    if "r" not in E4:
                        A(r_)
            for _ in range(-(-len(parts) // (len(mf) - i))):
                parts.pop(0)()
        assert not rd and not parts
    stamp(A)
    A("s_lshl_b32 s52, s40, 14")
    A("s_lshl_b32 s53, s41, 13")
    A("s_add_u32 s52, s52, s53")
    A("v_add_u32 v12, s52, v8")
    A("s_lshl_b32 s52, s41, 14")
    A("s_lshl_b32 s53, s40, 12")
    A("s_add_u32 s52, s52, s53")
    A("s_add_u32 s52, s52, 65536")
    A("v_add_u32 v13, s52, v8")
    A("s_barrier")
    for t in range(4):
        A(f"ds_write_b128 v13, {v(AWO+4*t,4)} offset:{t*1024}")
    for j in range(2):
        for t in range(4):
            A(f"ds_write_b128 v12, {ac(j,t)} offset:{(j*4+t)*1024}")
    A("s_lshl_b32 s52, s40, 12")
    A("s_lshl_b32 s53, s41, 11")
    A("s_add_u32 s52, s52, s53")
    A("v_add_u32 v12, s52, v8")
    A("v_add_u32 v13, 65536, v12")
    XU = OFB
    for j in range(4):
        A(f"v_lshlrev_b32 {v(XU+2*j)}, 16, {v(X1K+j)}")
        A(f"v_and_b32 {v(XU+2*j+1)}, 0xffff0000, {v(X1K+j)}")
    A(f"v_sub_f32 v19, 1.0, {v(GR)}")
    rbf(A, 19)
    A("v_mul_u32_u24 v14, 896, v244")
    A(f"v_lshrrev_b32 v16, 1, {v(CSO)}")
    A("v_xor_b32 v15, 8, v16")
    A("v_add_u32 v15, v15, v14")
    A("v_add_u32 v14, v16, v14")
    A("s_lshl_b32 s53, s41, 6")
    A("s_add_u32 s52, s66, s53")
    A("s_waitcnt lgkmcnt(0)")
    A("s_barrier")
    RB = 32
    for q in range(4):
        for t in range(2):
            A(f"ds_read_b128 {v(RB+8*q+4*t,4)}, v12 offset:{16384*q + 1024*t}")
    for q in range(2):
        for t in range(2):
            A(f"ds_read_b128 {v(RB+32+8*q+4*t,4)}, v13 offset:{16384*q + 1024*t}")
    A("s_waitcnt lgkmcnt(4)")
    for r in range(8):
        A(f"v_add_f32 {v(RB+r)}, {v(RB+r)}, {v(RB+8+r)}")
        A(f"v_add_f32 {v(RB+16+r)}, {v(RB+16+r)}, {v(RB+24+r)}")
    for r in range(8):
        A(f"v_add_f32 {v(RB+r)}, {v(RB+r)}, {v(RB+16+r)}")
    for r in range(8):
        rbf(A, RB + r)
    for r in range(8):
        A(f"v_add_f32 {v(RB+r)}, {v(RB+r)}, {v(XU+r)}")
    for r in range(8):
        rbf(A, RB + r)
    A("s_waitcnt lgkmcnt(0)")
    AU = RB + 32
    for r in range(8):
        A(f"v_add_f32 {v(AU+r)}, {v(AU+r)}, {v(AU+8+r)}")
        A(f"v_mul_f32 {v(RB+r)}, v19, {v(RB+r)}")
    for r in range(8):
        rbf(A, AU + r)
        rbf(A, RB + r)
    for r in range(8):
        A(f"v_mul_f32 {v(AU+r)}, {v(GR)}, {v(AU+r)}")
    for r in range(8):
        rbf(A, AU + r)
    for r in range(8):
        A(f"v_add_f32 {v(RB+r)}, {v(RB+r)}, {v(AU+r)}")
    for j in range(4):
        A(f"v_cvt_pk_bf16_f32 {v(XU+j)}, {v(RB+2*j)}, {v(RB+2*j+1)}")
    A(f"buffer_store_dwordx2 {v(XU,2)}, v14, s[48:51], s52 offen")
    A(f"buffer_store_dwordx2 {v(XU+2,2)}, v15, s[48:51], s52 offen")
    stamp(A)
    A.label(Lend)
    A("s_endpgm")
    return A.text()


def build():
    hdr = open("gated_mix__sliding_block__mixer_s_mlp__prompt.s.ref").read().split("; Override launch")[0]
    out = hdr + "; @launch grid=(256,1,1) block=(512,1,1) lds=163840\n"
    out += '.amdgcn_target "amdgcn-amd-amdhsa--gfx950"\n.text\n'
    out += kernel_head(KNAME) + gen()
    out += '.section .rodata,"a"\n' + kernel_desc(KNAME, 256, 256)
    return out


if __name__ == "__main__":
    dst = sys.argv[1] if len(sys.argv) > 1 else "gated_mix__sliding_block__mixer_s_mlp__prompt.s"
    open(dst, "w").write(build())
    print("wrote", dst)
```

```python
import os
import sys
from asmlib import Asm, v, a, s, f32bits, kernel_desc, kernel_head
import gen3
from gen2 import (lane_setup, xlane_g, rbf, ln_finish, gelu_consts, ex48, exall,
                  S, D, F, MB, WS_K, WS_V, WS_HS, WS_X1, WS_O, WS_H3, WS_G, WS_ST, WS_SIZE, WS_DBG, ACT_BYTES, RT_BYTES,
                  H3_RT_BYTES, LOG2E, SCALE, NEGBIG, STAMPS, VL, VI, VG)
from gen3 import (unit_bases, unit_dma_voff, unit_reads, big_mainloop, big_dma_parts, big_decode,
                  gelu_epilogue, small_decode, SLOT, V_XD, V_XD2, V_WD, V_XR, V_TB, ACC, NWG)

KNAME = "gated_mix__sliding_block__mixer_s_mlp__prompt_kernel"
WS_FLAG = 26 * MB
WS_ST = WS_FLAG + 131072
WS_G = WS_FLAG + 393216
WS_LN1 = WS_FLAG + 409600
WS_CS = WS_FLAG + 425984
TOK = 84
PB4 = 236
L16 = 240
U896, U896S = 241, 242
CSO = 243
X1K = 248
SC = " sc1"
SL = " sc1"
SP3C = int(os.environ.get("SP3C", "5"))
PFAT = int(os.environ.get("PFAT", "8"))
PFWS = os.environ.get("PFWS", "0") == "1"
PFSM = os.environ.get("PFSM", "1") == "1"
PFCODE = os.environ.get("PFCODE", "1") == "1"
PUBC = int(os.environ.get("PUBC", "3"))
L2WARM = os.environ.get("L2WARM", "0") == "1"
gen3.stamp = lambda A, i: None
gen3.CZERO[0] = True
NST = [0]


def stamp(A):
    if not STAMPS:
        return
    i = NST[0]
    NST[0] += 1
    A("s_memrealtime s[86:87]")
    A("s_lshl_b32 s88, s2, 11")
    A("s_lshl_b32 s89, s19, 7")
    A("s_add_u32 s88, s88, s89")
    A(f"s_add_u32 s88, s88, {WS_DBG + 4*i}")
    A("s_mov_b64 s[90:91], exec")
    A("s_mov_b64 exec, 1")
    A("v_mov_b32 v254, 0")
    A("s_waitcnt lgkmcnt(0)")
    A("v_mov_b32 v255, s86")
    A.vmem("buffer_store_dword v255, v254, s[28:31], s88 offen", "stamp")
    A("s_mov_b64 exec, s[90:91]")


def xstamp(A, i):
    if STAMPS:
        keep = NST[0]
        NST[0] = i
        stamp(A)
        NST[0] = keep


def flag_store(A, kind):
    l = A.newlabel("pub")
    A("s_cmp_lg_u32 s19, 0")
    A(f"s_cbranch_scc1 {l}")
    A("s_lshl_b32 s85, s2, 7")
    A(f"s_add_u32 s85, s85, {WS_FLAG + kind*32768}")
    A("v_mov_b32 v252, 0")
    A(f"v_mov_b32 v253, s{TOK}")
    A("s_mov_b64 exec, 1")
    A(f"buffer_store_dword v253, v252, s[28:31], s85 offen{SC}")
    A("s_mov_b64 exec, -1")
    A.label(l)


def tok_ok(A):
    A(f"s_sub_i32 s85, s82, s{TOK}")
    A("s_cmp_lt_i32 s85, 1500")
    A(f"s_cselect_b32 s85, s{TOK}, 0")
    A("s_cmp_lg_u32 s85, 0")


def get_token(A):
    l, l2 = A.newlabel("tok"), A.newlabel("tok")
    A("v_mov_b32 v252, 0")
    A("s_mov_b32 s93, 0")
    A.label(l)
    A(f"global_load_dword v253, v252, s[56:57]{SC}")
    A("s_add_u32 s93, s93, 1")
    A("s_waitcnt vmcnt(0)")
    A(f"v_readfirstlane_b32 s{TOK}, v253")
    A("s_cmp_ge_u32 s93, 0x4000")
    A(f"s_cbranch_scc1 {l2}")
    tok_ok(A)
    A(f"s_cbranch_scc0 {l}")
    A.label(l2)


def spin(A, vaddr):
    lp = A.newlabel("pol")
    A(f"s_mov_b32 s85, {WS_FLAG}")
    A("s_mov_b32 s93, 0")
    A.label(lp)
    A(f"buffer_load_dword v253, {v(vaddr)}, s[28:31], s85 offen{SC}")
    A("s_add_u32 s93, s93, 1")
    A("s_waitcnt vmcnt(0)")
    A(f"v_cmp_ne_u32 vcc, s{TOK}, v253")
    A("s_cmp_lt_u32 s93, 0x20000")
    A("s_cselect_b64 s[94:95], vcc, 0")
    A("s_cmp_lg_u64 s[94:95], 0")
    A(f"s_cbranch_scc1 {lp}")
    A("s_mov_b64 exec, -1")


def poll(A, addr_fn, extra_wait=""):
    l = A.newlabel("pol")
    A("s_cmp_lg_u32 s19, 0")
    A(f"s_cbranch_scc1 {l}")
    addr_fn()
    spin(A, 252)
    A.label(l)
    if extra_wait:
        A(extra_wait)
    A("s_barrier")


def big_id(A, dst, rt, ct, t0):
    A(f"v_lshrrev_b32 {v(dst)}, 2, {v(rt)}")
    A(f"v_lshlrev_b32 {v(dst)}, 1, {v(dst)}")
    A(f"v_cmp_lt_u32 vcc, 6, {v(ct)}")
    A("s_nop 1")
    A(f"v_addc_co_u32 {v(dst)}, vcc, 0, {v(dst)}, vcc")
    A(f"v_cmp_lt_u32 vcc, 6, {v(ct)}")
    A(f"v_and_b32 {v(t0)}, 3, {v(rt)}")
    A(f"v_mul_u32_u24 {v(t0)}, 7, {v(t0)}")
    A(f"v_add_u32 {v(t0)}, {v(t0)}, {v(ct)}")
    A(f"v_subrev_u32 {v(rt)}, 7, {v(t0)}")
    A(f"v_cndmask_b32 {v(t0)}, {v(t0)}, {v(rt)}, vcc")
    A(f"v_lshl_add_u32 {v(dst)}, {v(t0)}, 3, {v(dst)}")
    A(f"v_lshlrev_b32 {v(dst)}, 7, {v(dst)}")


def big_bases(A, src):
    A("s_lshl_b32 s42, s41, 13")
    A("s_add_u32 s42, s42, 16384")
    A(f"s_add_u32 s43, s42, {2*SLOT}")
    for t in range(4):
        A(f"v_add_u32 {v(V_TB[1]+t)}, s43, {v(src+t)}")
        A(f"v_add_u32 {v(V_TB[0]+t)}, s42, {v(src+t)}")


class Spec:
    def __init__(self, A, vflag, mask, loads):
        self.A, self.vflag, self.mask, self.loads = A, vflag, mask, loads

    def stage1(self):
        A = self.A
        A(f"s_mov_b32 s85, {WS_FLAG}")
        A(f"s_mov_b64 exec, {self.mask:#x}")
        A.vmem(f"buffer_load_dword v253, {v(self.vflag)}, s[28:31], s85 offen{SC}", "sflag")
        A("s_mov_b64 exec, -1")

    def stage2(self):
        A = self.A
        A.vm_wait("sflag")
        A(f"v_cmp_ne_u32 s[96:97], s{TOK}, v253")
        self.loads("sdata")

    def finish(self):
        A = self.A
        l = A.newlabel("spec")
        A(f"s_and_b64 s[96:97], s[96:97], {self.mask:#x}")
        A(f"s_cbranch_scc0 {l}")
        A(f"s_mov_b64 exec, {self.mask:#x}")
        spin(A, self.vflag)
        snap = A.vm_snapshot()
        self.loads("sdata")
        A.vm_restore(snap)
        A("s_waitcnt vmcnt(0)")
        A.label(l)
        A.vm_wait("sdata")


def red8(A, x, t):
    for dpp in ("quad_perm:[1,0,3,2]", "quad_perm:[2,3,0,1]", "row_half_mirror"):
        A("s_nop 1")
        A(f"v_add_f32_dpp {v(x)}, {v(x)}, {v(x)} {dpp} row_mask:0xf bank_mask:0xf")


def gen():
    A = Asm()
    Lend = "k_end"
    A("s_cmp_ge_u32 s2, 256")
    A(f"s_cbranch_scc1 {Lend}")
    A("s_load_dwordx4 s[4:7], s[0:1], 0")
    A("s_load_dwordx2 s[8:9], s[0:1], 32")
    A("s_load_dwordx4 s[56:59], s[0:1], 80")
    A("s_memrealtime s[82:83]")
    lane_setup(A)
    A(f"v_lshlrev_b32 {v(L16)}, 4, {v(VL)}")
    A(f"s_cmp_ge_u32 s2, {NWG}")
    A("s_cbranch_scc1 helper")
    big_decode(A)
    A("s_sub_u32 s46, s33, 21")
    A("s_movk_i32 s32, 896")
    A("s_cmp_lt_u32 s33, 21")
    A("s_cselect_b32 s32, 2688, s32")
    A("s_cselect_b32 s34, s33, s46")
    A("s_lshl_b32 s34, s34, 7")
    A("s_lshl_b32 s35, s40, 3")
    A("s_mul_i32 s35, s35, s32")
    A("s_add_u32 s34, s34, s35")
    A("s_lshl_b32 s38, s32, 5")
    unit_dma_voff(A, V_WD, "s43", None, "s32", 24, 25)
    A(f"v_lshrrev_b32 v24, 3, {v(VL)}")
    A("v_lshrrev_b32 v25, 1, v24")
    A(f"v_xor_b32 v25, v25, {v(VL)}")
    A("v_and_b32 v25, 7, v25")
    A(f"v_mul_u32_u24 {v(V_XD)}, 896, v24")
    A(f"v_lshl_add_u32 {v(V_XD)}, v25, 4, {v(V_XD)}")
    A(f"v_xor_b32 {v(V_XD2)}, 64, {v(V_XD)}")
    A(f"v_add_u32 {v(V_XD2)}, {8*896-1024}, {v(V_XD2)}")
    A("s_lshl_b32 s35, s17, 3")
    A("s_add_u32 s35, s35, s19")
    A(f"s_mul_i32 s35, s35, {RT_BYTES}")
    A("s_waitcnt lgkmcnt(0)")
    A.srd(20, 4, 5, ACT_BYTES)
    A(f"s_mov_b32 s26, {D*D*2}")
    A("s_cmp_lt_u32 s33, 21")
    A("s_cselect_b32 s24, s6, s8")
    A("s_cselect_b32 s25, s7, s9")
    A(f"s_cselect_b32 s26, {D*3*D*2}, s26")
    A("s_and_b32 s25, s25, 0xffff")
    A("s_mov_b32 s27, 0x00020000")
    P1PRO = int(os.environ.get("P1PRO", "2"))
    DMA_SAVE = dict(gen3.DMA_AT)
    if P1PRO == 4:
        gen3.DMA_AT.clear()
        gen3.DMA_AT.update({1: 4, 3: 5, 5: 6})
    if P1PRO == 3:
        gen3.DMA_AT.clear()
        gen3.DMA_AT.update({0: 3, 1: 4, 3: 5, 5: 6})
    for ds in range(P1PRO):
        for p in big_dma_parts(A, ds, 128, V_XD2):
            p()
    A.srd(28, 58, 59, WS_SIZE)
    if PFCODE:
        lc = A.newlabel("pfc")
        A("s_getpc_b64 s[60:61]")
        A.label("k_pc")
        A("s_lshr_b32 s70, s2, 3")
        A("s_lshl_b32 s70, s70, 3")
        A("s_add_u32 s70, s70, s19")
        A("s_lshl_b32 s70, s70, 10")
        A(f"s_cmp_ge_u32 s70, k_codeend-k_pc")
        A(f"s_cbranch_scc1 {lc}")
        A(f"v_add_u32 v204, s70, {v(L16)}")
        A("global_load_dwordx4 v[204:207], v204, s[60:61]")
        A.label(lc)
    stamp(A)
    A(f"v_lshrrev_b32 v24, 1, {v(VI)}")
    A(f"v_xor_b32 v24, v24, {v(VG)}")
    A("v_lshlrev_b32 v24, 4, v24")
    A(f"v_lshl_add_u32 v24, {v(VI)}, 7, v24")
    A("s_lshl_b32 s42, s40, 12")
    A(f"v_add_u32 {v(V_XR[0])}, s42, v24")
    A(f"v_xor_b32 {v(V_XR[2])}, 64, {v(V_XR[0])}")
    A(f"v_add_u32 {v(V_XR[1])}, {2*SLOT}, {v(V_XR[0])}")
    A(f"v_add_u32 {v(V_XR[3])}, {2*SLOT}, {v(V_XR[2])}")
    unit_bases(A, PB4, "pair", 24, 25, 26)
    unit_dma_voff(A, U896, "0", None, 896, 24, 25)
    unit_dma_voff(A, U896S, "0", "4", 896, 24, 25)
    A(f"v_lshrrev_b32 v24, 1, {v(VG)}")
    A(f"v_lshlrev_b32 {v(CSO)}, 5, {v(VG)}")
    A(f"v_lshl_add_u32 {v(CSO)}, v24, 4, {v(CSO)}")
    A("s_lshl_b32 s39, s17, 7")
    A("s_lshl_b32 s42, s40, 5")
    A("s_add_u32 s39, s39, s42")
    A("s_load_dwordx2 s[62:63], s[0:1], 16")
    A("s_load_dwordx4 s[64:67], s[0:1], 40")
    A("s_load_dwordx2 s[68:69], s[0:1], 56")
    A("v_mov_b32 v252, 0")
    A.vmem(f"global_load_dword v200, v252, s[56:57]{SC}", "tok")
    snap = A.vm_snapshot()
    PK = 32

    def pf_hook():
        A("s_lshl_b32 s60, s2, 3")
        A("s_add_u32 s60, s60, s19")
        A("s_lshl_b32 s60, s60, 10")
        for q, (lo, size, base) in enumerate(((64, D * D * 2, 0), (66, D * F * 2, 0), (62, D * D * 2, 392), (68, D * F * 2, 224))):
            A.srd(72, lo, lo + 1, size)
            A(f"s_sub_u32 s61, s60, {base*1024}")
            A.vmem(f"buffer_load_dwordx4 v[204:207], {v(L16)}, s[72:75], s61 offen", "pf")
        if PFWS:
            A(f"s_add_u32 s61, s60, {WS_O}")
            A.vmem(f"buffer_load_dwordx4 v[204:207], {v(L16)}, s[28:31], s61 offen", "pf")

    def tok_hook():
        l = A.newlabel("tk")
        A.vm_wait("tok")
        A(f"v_readfirstlane_b32 s{TOK}, v200")
        tok_ok(A)
        A(f"s_cbranch_scc1 {l}")
        get_token(A)
        A.label(l)

    A("s_sub_u32 s42, s33, 14")
    A("s_cmp_lt_u32 s42, 7")
    A("s_cbranch_scc1 p1_v")
    big_bases(A, PB4)
    A("s_cmp_ge_u32 s33, 21")
    A("s_cbranch_scc1 p1_w1")
    big_mainloop(A, False, 128, V_XD2, True, hooks={7: tok_hook, PFAT: pf_hook})
    A("s_cmp_ge_u32 s33, 7")
    A("s_cselect_b32 s43, 7, 0")
    A(f"s_cselect_b32 s42, {WS_K}, 0")
    A("s_sub_u32 s46, s33, s43")
    A("s_lshl_b32 s46, s46, 11")
    A("s_add_u32 s42, s42, s46")
    A("s_mul_i32 s43, s39, 896")
    A("s_add_u32 s42, s42, s43")
    A(f"s_add_u32 s43, s42, {RT_BYTES}")
    for j in range(2):
        for q in range(8):
            A(f"v_cvt_pk_bf16_f32 {v(PK+8*j+q)}, {v(ACC+16*j+2*q)}, {v(ACC+16*j+2*q+1)}")
        for tp in range(2):
            A(f"buffer_store_dwordx4 {v(PK+8*j+4*tp,4)}, {v(L16)}, s[28:31], s{42+j} offen offset:{1024*tp}{SC}")
    A("s_branch p1_done")
    A.label("p1_v")
    A.vm_restore(snap)
    unit_bases(A, 28, "nat", 24, 25, 26)
    big_bases(A, 28)
    A("s_sub_u32 s46, s33, 14")
    A("s_lshl_b32 s47, s39, 6")
    A(f"s_add_u32 s47, s47, {WS_V}")
    A("s_lshl_b32 s44, s46, 6")
    for t in range(4):
        o = 184 + t
        A(f"v_add_u32 v24, s44, {v(VI)}")
        A(f"v_add_u32 v24, {16*t}, v24")
        A("v_mul_u32_u24 v25, 2341, v24")
        A("v_lshrrev_b32 v25, 16, v25")
        A("v_mul_u32_u24 v26, 28, v25")
        A("v_sub_u32 v26, v24, v26")
        A(f"v_lshlrev_b32 {v(o)}, 17, v25")
        A("v_lshrrev_b32 v27, 4, v26")
        A(f"v_lshl_add_u32 {v(o)}, v27, 10, {v(o)}")
        A("v_and_b32 v27, 15, v26")
        A(f"v_lshl_add_u32 {v(o)}, v27, 4, {v(o)}")
        A(f"v_lshl_add_u32 {v(o)}, {v(VG)}, 8, {v(o)}")
    A("s_lshl_b32 s44, s46, 4")
    A("s_mul_i32 s45, s44, 9363")
    A("s_lshr_b32 s45, s45, 16")
    A(f"v_add_u32 v24, s45, {v(VG)}")
    A("v_mul_u32_u24 v25, 7, v24")
    A("v_add_u32 v25, 6, v25")
    A("s_add_u32 s44, s44, 16")
    A("v_lshlrev_b32 v24, 17, v24")
    A(f"v_lshrrev_b32 v26, 2, {v(VI)}")
    A("v_lshl_add_u32 v24, v26, 4, v24")
    A(f"v_and_b32 v27, 3, {v(VI)}")
    A("v_lshl_add_u32 v24, v27, 8, v24")
    A("v_cmp_eq_u32 vcc, 0, v26")
    A("v_mov_b32 v27, 0x3f803f80")
    A("s_nop 0")
    A("v_cndmask_b32 v188, 0, v27, vcc")
    for r in range(1, 4):
        A(f"v_mov_b32 v{188+r}, v188")
    A("v_cmp_gt_u32 vcc, s44, v25")
    A("s_and_saveexec_b64 s[44:45], vcc")
    A.vmem(f"buffer_store_dwordx4 v[188:191], v24, s[28:31], s47 offen offset:{1024+12*16}{SC}", "ones")
    A("s_mov_b64 exec, -1")
    big_mainloop(A, True, 128, V_XD2, True, hooks={7: tok_hook, PFAT: pf_hook})
    A("s_nop 4")
    for t in range(4):
        pk = PK + 4 * t
        for j in range(2):
            src = ACC + 16 * j + 4 * t
            A(f"v_cvt_pk_bf16_f32 {v(pk+2*j)}, {v(src)}, {v(src+1)}")
            A(f"v_cvt_pk_bf16_f32 {v(pk+2*j+1)}, {v(src+2)}, {v(src+3)}")
        A(f"buffer_store_dwordx4 {v(pk,4)}, {v(184+t)}, s[28:31], s47 offen{SC}")
    A("s_branch p1_done")
    A.label("p1_w1")
    A.vm_restore(snap)
    MR, RS, CS = [140, 142], [144, 146], 164
    A("s_lshl_b32 s42, s17, 1")
    A(f"v_add_u32 v201, s42, {v(VL)}")
    A("v_writelane_b32 v201, s46, 2")
    A(f"v_lshlrev_b32 v201, 7, v201")
    A(f"v_add_u32 v201, {NWG*128}, v201")
    A(f"v_add_u32 v202, s39, {v(VI)}")
    A("v_lshlrev_b32 v202, 3, v202")
    A(f"s_mov_b32 s44, {WS_LN1}")
    A("s_lshl_b32 s45, s46, 8")
    A(f"s_add_u32 s45, s45, {WS_CS}")
    A(f"v_xor_b32 v203, 16, {v(CSO)}")

    def w1_loads(tag):
        for j in range(2):
            A.vmem(f"buffer_load_dwordx2 {v(180+2*j,2)}, v202, s[28:31], s44 offen offset:{128*j}{SL}", tag)
        for t in range(4):
            A.vmem(f"buffer_load_dwordx4 {v(CS+4*t,4)}, {v(203 if t & 1 else CSO)}, s[28:31], s45 offen offset:{128*(t>>1)}{SL}", tag)

    sp = Spec(A, 201, 7, w1_loads)

    def h7():
        tok_hook()
        sp.stage1()

    consts = gelu_consts(A, 148)
    A.srd_off(52, 58, 59, WS_HS, ACT_BYTES)
    A("s_lshl_b32 s47, s46, 3")
    for tp in range(2):
        A(f"v_add_u32 v24, s47, {v(VG)}")
        if tp:
            A("v_add_u32 v24, 4, v24")
        A("v_mul_u32_u24 v25, 4682, v24")
        A("v_lshrrev_b32 v25, 16, v25")
        A("v_lshrrev_b32 v26, 1, v25")
        A("v_add_u32 v26, 1, v26")
        A("v_and_b32 v25, 1, v25")
        A("v_sub_u32 v27, 0, v25")
        A("v_xor_b32 v26, v26, v27")
        A("v_add_u32 v26, v26, v25")
        A(f"v_add_u32 v26, v26, {v(VI)}")
        A("v_add_u32 v26, s39, v26")
        for j in range(2):
            o = 184 + 2 * j + tp
            if j:
                A("v_add_u32 v26, 16, v26")
            A("v_lshrrev_b32 v25, 4, v26")
            A("v_mul_u32_u24 v25, 14336, v25")
            A("v_and_b32 v27, 15, v26")
            A("v_lshl_add_u32 v25, v27, 4, v25")
            A("v_lshl_add_u32 v25, v24, 8, v25")
            A("v_cmp_gt_u32 vcc, 2048, v26")
            A("v_mov_b32 v27, 0x80000000")
            A("s_nop 0")
            A(f"v_cndmask_b32 {v(o)}, v27, v25, vcc")
    A("s_cmp_lg_u32 s40, 0")
    A("s_cbranch_scc1 p1_zd")
    A("s_cmp_eq_u32 s17, 0")
    A("s_cselect_b32 s48, 0, 1")
    A("s_cbranch_scc1 p1_z")
    A("s_cmp_lg_u32 s17, 15")
    A("s_cbranch_scc1 p1_zd")
    A.label("p1_z")
    A(f"v_and_b32 v24, 7, {v(VL)}")
    A("v_add_u32 v24, s47, v24")
    A("v_mul_u32_u24 v25, 4682, v24")
    A("v_lshrrev_b32 v25, 16, v25")
    A(f"v_lshrrev_b32 v26, 3, {v(VL)}")
    A("v_lshrrev_b32 v27, 1, v25")
    A("v_cmp_le_u32 s[50:51], v26, v27")
    A("v_and_b32 v25, 1, v25")
    A("v_cmp_eq_u32 vcc, s48, v25")
    A("s_and_b64 s[50:51], s[50:51], vcc")
    A("v_sub_u32 v27, 15, v26")
    A("s_cmp_eq_u32 s48, 0")
    A(f"s_cselect_b32 s49, 0, {127*14336}")
    A("s_cbranch_scc1 p1_z2")
    A("v_mov_b32 v26, v27")
    A.label("p1_z2")
    A("v_lshlrev_b32 v26, 4, v26")
    A("v_lshl_add_u32 v26, v24, 8, v26")
    for r in range(4):
        A(f"v_mov_b32 {v(188+r)}, 0")
    A("s_mov_b64 exec, s[50:51]")
    A(f"buffer_store_dwordx4 v[188:191], v26, s[52:55], s49 offen{SC}")
    A("s_mov_b64 exec, -1")
    A.label("p1_zd")
    big_mainloop(A, False, 128, V_XD2, True, hooks={7: tok_hook, PFAT: pf_hook, 10: sp.stage1, 12: sp.stage2})
    sp.finish()
    for j in range(2):
        for r in range(2):
            A(f"v_mov_b32 {v(MR[j]+r)}, {v(180+2*j)}")
            A(f"v_mov_b32 {v(RS[j]+r)}, {v(181+2*j)}")

    def st1(j, pk):
        for tp in range(2):
            A(f"buffer_store_dwordx4 {v(pk+4*tp,4)}, {v(184+2*j+tp)}, s[52:55], 0 offen{SC}")

    gelu_epilogue(A, CS, MR, RS, consts, 48, 32, st1)
    A("s_branch p1_done")
    A.label("helper")
    gen3.DMA_AT.clear()
    gen3.DMA_AT.update(DMA_SAVE)
    A.vm_restore([])
    A("s_load_dwordx2 s[10:11], s[0:1], 64")
    A("s_load_dwordx2 s[12:13], s[0:1], 48")
    A(f"s_sub_u32 s14, s2, {NWG}")
    for r in (236, 237, 238, 239, 241, 242, 243):
        A(f"v_mov_b32 v{r}, 0")
    A(f"v_lshrrev_b32 v4, 3, {v(VL)}")
    A(f"v_and_b32 v5, 7, {v(VL)}")
    A("v_lshlrev_b32 v5, 4, v5")
    A("s_lshl_b32 s15, s14, 6")
    A("s_lshl_b32 s16, s19, 3")
    A("s_add_u32 s15, s15, s16")
    A("v_add_u32 v4, s15, v4")
    A("v_mul_u32_u24 v6, 896, v4")
    A("v_add_u32 v6, v6, v5")
    A("s_waitcnt lgkmcnt(0)")
    A.srd(20, 4, 5, ACT_BYTES)
    A.srd(28, 58, 59, WS_SIZE)
    A.srd(48, 10, 11, D * 2)
    XB_, GB_, FB_ = 8, 40, 72
    for j in range(7):
        A.vmem(f"buffer_load_dwordx4 {v(XB_+4*j,4)}, v6, s[20:23], 0 offen offset:{128*j}", "hx")
    A(f"v_lshrrev_b32 v7, 3, {v(VL)}")

    def cs_setup(item_s):
        A(f"s_cmp_lt_u32 {item_s}, 7")
        A("s_cselect_b32 s24, s8, s12")
        A("s_cselect_b32 s25, s9, s13")
        A("s_movk_i32 s32, 896")
        A(f"s_cselect_b32 s32, s32, {F*2}")
        A(f"s_cselect_b32 s33, 0, 7")
        A(f"s_mov_b32 s26, {D*F*2}")
        A(f"s_cselect_b32 s26, {D*D*2}, s26")
        A("s_and_b32 s25, s25, 0xffff")
        A("s_mov_b32 s27, 0x00020000")
        A(f"s_sub_u32 s33, {item_s}, s33")
        A("s_lshl_b32 s33, s33, 7")
        A("s_mul_i32 s34, s19, 56")
        A("s_mul_i32 s34, s34, s32")
        A("s_add_u32 s33, s33, s34")
        A("v_mul_lo_u32 v130, v7, s32")
        A("v_add_u32 v130, v130, v5")
        A("s_lshl_b32 s32, s32, 3")
        for j in range(7):
            A.vmem(f"buffer_load_dwordx4 {v(132+4*j,4)}, v130, s[24:27], s33 offen", "hw")
            A("s_add_u32 s33, s33, s32")

    def cs_finish(item_s):
        A.vm_wait("hw")
        for j in range(7):
            for q in range(4):
                src = 132 + 4 * j + q
                if j == 0:
                    A(f"v_lshlrev_b32 {v(160+2*q)}, 16, {v(src)}")
                    A(f"v_and_b32 {v(161+2*q)}, 0xffff0000, {v(src)}")
                else:
                    A(f"v_lshlrev_b32 v168, 16, {v(src)}")
                    A(f"v_and_b32 v169, 0xffff0000, {v(src)}")
                    A(f"v_pk_add_f32 {v(160+2*q,2)}, {v(160+2*q,2)}, v[168:169]")
        A("s_nop 1")
        for q in range(4):
            A(f"v_permlane32_swap_b32 {v(160+2*q)}, {v(161+2*q)}")
        A("s_nop 0")
        for q in range(4):
            A(f"v_add_f32 {v(160+2*q)}, {v(160+2*q)}, {v(161+2*q)}")
        A("s_nop 1")
        for q in range(2):
            A(f"v_permlane16_swap_b32 {v(160+4*q)}, {v(162+4*q)}")
        A("s_nop 0")
        for q in range(2):
            A(f"v_add_f32 {v(160+4*q)}, {v(160+4*q)}, {v(162+4*q)}")
        A("s_nop 1")
        for q in range(2):
            A(f"v_add_f32_dpp {v(160+4*q)}, {v(160+4*q)}, {v(160+4*q)} row_ror:8 row_mask:0xf bank_mask:0xf")
        A("s_lshl_b32 s33, s19, 8")
        A("v_lshlrev_b32 v170, 1, v5")
        A(f"v_and_b32 v171, 1, {v(VG)}")
        A("v_lshl_add_u32 v170, v171, 3, v170")
        A(f"v_lshrrev_b32 v171, 1, {v(VG)}")
        A("v_lshl_add_u32 v170, v171, 2, v170")
        A("v_add_u32 v170, s33, v170")
        A("ds_write_b32 v170, v160")
        A("ds_write_b32 v170, v164 offset:16")
        A("s_waitcnt lgkmcnt(0)")
        A("s_barrier")
        l = A.newlabel("csw")
        A("s_cmp_lg_u32 s19, 0")
        A(f"s_cbranch_scc1 {l}")
        A(f"v_lshlrev_b32 v170, 2, {v(VL)}")
        for w in range(8):
            A(f"ds_read_b32 {v(160+w)}, v170 offset:{256*w}")
        A("s_waitcnt lgkmcnt(0)")
        for w in range(1, 8):
            A(f"v_add_f32 v160, v160, {v(160+w)}")
        A(f"s_lshl_b32 s33, {item_s}, 8")
        A(f"s_add_u32 s33, s33, {WS_CS}")
        A(f"buffer_store_dword v160, v170, s[28:31], s33 offen{SC}")
        A.label(l)

    cs_setup("s14")
    for j in range(7):
        A.vmem(f"buffer_load_dwordx4 {v(GB_+4*j,4)}, v5, s[48:51], 0 offen offset:{128*j}", "hg")
    if PFSM:
        A("s_lshl_b32 s33, s14, 3")
        A("s_add_u32 s33, s33, s19")
        A("s_lshl_b32 s33, s33, 11")
        A(f"s_add_u32 s33, s33, {WS_FLAG}")
        for q in range(2):
            A.vmem(f"buffer_load_dwordx4 v[204:207], {v(L16)}, s[28:31], s33 offen offset:{1024*q}", "pf")
    lt = A.newlabel("tok")
    A("s_or_b32 s85, s14, s19")
    A("s_cmp_lg_u32 s85, 0")
    A(f"s_cbranch_scc1 {lt}")
    A("s_or_b32 s85, s82, 1")
    A("v_mov_b32 v252, 0")
    A("v_mov_b32 v253, s85")
    A("s_mov_b64 exec, 1")
    A(f"global_store_dword v252, v253, s[56:57]{SC}")
    A("s_mov_b64 exec, -1")
    A.label(lt)
    if STAMPS:
        NST[0] -= 1
        stamp(A)
    A.vm_wait("hx")
    for j in range(28):
        A(f"v_lshlrev_b32 {v(FB_+2*j)}, 16, {v(XB_+j)}")
        A(f"v_and_b32 {v(FB_+2*j+1)}, 0xffff0000, {v(XB_+j)}")
    A(f"v_pk_add_f32 v[128:129], {v(FB_,2)}, {v(FB_+2,2)}")
    for j in range(2, 28):
        A(f"v_pk_add_f32 v[128:129], v[128:129], {v(FB_+2*j,2)}")
    A("v_add_f32 v128, v128, v129")
    red8(A, 128, 0)
    A(f"v_mul_f32 v128, {f32bits(1.0/448):#x}, v128")
    A("v_sub_f32 v172, 0, v128")
    A("v_mov_b32 v173, v172")
    for j in range(28):
        A(f"v_pk_add_f32 {v(174+2*(j&3),2)}, {v(FB_+2*j,2)}, v[172:173]")
        if j == 0:
            A(f"v_pk_mul_f32 v[182:183], {v(174,2)}, {v(174,2)}")
        else:
            A(f"v_pk_fma_f32 v[182:183], {v(174+2*(j&3),2)}, {v(174+2*(j&3),2)}, v[182:183]")
    A("v_add_f32 v129, v182, v183")
    red8(A, 129, 0)
    A(f"v_mul_f32 v129, {f32bits(1.0/448):#x}, v129")
    ln_finish(A, 128, 129)
    A("v_lshlrev_b32 v170, 3, v4")
    A(f"s_mov_b32 s33, {WS_LN1}")
    A("s_mov_b32 exec_lo, 0x01010101")
    A("s_mov_b32 exec_hi, 0x01010101")
    A.vmem(f"buffer_store_dwordx2 v[128:129], v170, s[28:31], s33 offen{SC}", "hst")
    A("s_mov_b64 exec, -1")
    cs_finish("s14")
    get_token(A)
    A("s_barrier")
    flag_store(A, 0)
    A.vm_restore([])
    if STAMPS:
        keep = NST[0]
        NST[0] = 20
        stamp(A)
        NST[0] = keep
    A("s_add_u32 s15, s14, 32")
    A("s_cmp_ge_u32 s15, 35")
    A("s_cbranch_scc1 h_no2")
    cs_setup("s15")
    cs_finish("s15")
    A.label("h_no2")
    for j in range(28):
        A(f"v_lshlrev_b32 v168, 16, {v(GB_+j)}")
        A(f"v_and_b32 v169, 0xffff0000, {v(GB_+j)}")
        A(f"v_pk_mul_f32 {v(FB_+2*j,2)}, {v(FB_+2*j,2)}, v[168:169]")
    for j in range(56):
        rbf(A, FB_ + j)
    A(f"v_pk_add_f32 v[128:129], {v(FB_,2)}, {v(FB_+2,2)}")
    for j in range(2, 28):
        A(f"v_pk_add_f32 v[128:129], v[128:129], {v(FB_+2*j,2)}")
    A("v_add_f32 v128, v128, v129")
    red8(A, 128, 0)
    rbf(A, 128)
    A(f"v_mul_f32 v128, {f32bits(-LOG2E):#x}, v128")
    A("v_exp_f32 v128, v128")
    A("s_nop 0")
    A("v_add_f32 v128, 1.0, v128")
    A("v_rcp_f32 v128, v128")
    A("s_nop 0")
    rbf(A, 128)
    A("v_lshlrev_b32 v170, 2, v4")
    A(f"s_mov_b32 s33, {WS_G}")
    A("s_mov_b32 exec_lo, 0x01010101")
    A("s_mov_b32 exec_hi, 0x01010101")
    A(f"buffer_store_dword v128, v170, s[28:31], s33 offen{SC}")
    A("s_mov_b64 exec, -1")
    A("s_waitcnt vmcnt(0)")
    A("s_barrier")
    flag_store(A, 1)
    A.label("p1_done")
    A.vm_restore(["x"])
    stamp(A)
    L_X2, L_KV = 57344, 163840 - 49152
    A("s_load_dwordx2 s[4:5], s[0:1], 0")
    A("s_load_dwordx2 s[6:7], s[0:1], 40")
    A("s_load_dwordx2 s[8:9], s[0:1], 48")
    A("s_and_b32 s14, s2, 7")
    A("s_lshr_b32 s15, s2, 3")
    small_decode(A)
    A("s_and_b32 s46, s19, 3")
    A("s_lshr_b32 s47, s19, 2")
    A("s_lshr_b32 s16, s15, 4")
    A("s_lshl_b32 s48, s14, 1")
    A("s_add_u32 s48, s48, s16")
    A("s_and_b32 s49, s15, 15")
    A(f"s_cmp_ge_u32 s2, {NWG}")
    A("s_cbranch_scc1 p2_now2")
    A(f"v_mov_b32 v5, {v(U896)}")
    l = A.newlabel("sw")
    A("s_bitcmp1_b32 s19, 1")
    A(f"s_cbranch_scc0 {l}")
    A(f"v_mov_b32 v5, {v(U896S)}")
    A.label(l)
    A("s_and_b32 s38, s19, 1")
    A("s_lshl_b32 s38, s38, 6")
    A("v_xor_b32 v5, s38, v5")
    A("s_lshl_b32 s38, s18, 7")
    A(f"s_mul_i32 s39, s19, {8*896}")
    A("s_add_u32 s38, s38, s39")
    A("s_lshl_b32 s39, s19, 10")
    A("s_waitcnt lgkmcnt(0)")
    A.srd(20, 4, 5, ACT_BYTES)
    A.srd(24, 6, 7, D * D * 2)
    A("s_barrier")
    for u in range(7):
        A("s_mov_b32 m0, s39")
        A("s_add_u32 s39, s39, 8192")
        A.vmem("buffer_load_dwordx4 v5, s[24:27], s38 offen lds", "w2")
        A(f"s_add_u32 s38, s38, {64*896}")
    A("s_waitcnt vmcnt(7)")
    A("s_barrier")
    flag_store(A, 0)
    if L2WARM:
        A("s_lshl_b32 s36, s15, 3")
        A("s_add_u32 s36, s36, s19")
        A(f"s_mul_i32 s36, s36, {2*F*2}")
        A("s_and_b32 s37, s14, 1")
        A("s_mul_i32 s37, s37, 1792")
        A("s_add_u32 s36, s36, s37")
        A.srd(68, 8, 9, D * F * 2)
        for q in range(2):
            A(f"buffer_load_dwordx4 {v(208+8*q,4)}, {v(L16)}, s[68:71], s36 offen")
            A("s_mov_b32 exec_hi, 0x0000ffff")
            A(f"buffer_load_dwordx4 {v(212+8*q,4)}, {v(L16)}, s[68:71], s36 offen offset:1024")
            A("s_mov_b32 exec_hi, -1")
            A(f"s_add_u32 s36, s36, {F*2}")
    A.label("p2_now2")

    def deps2():
        A(f"v_mul_u32_u24 v232, 5958, {v(VL)}")
        A("v_lshrrev_b32 v232, 16, v232")
        A("v_mul_u32_u24 v233, 11, v232")
        A(f"v_sub_u32 v233, {v(VL)}, v233")
        A("v_add_u32 v232, s49, v232")
        A("v_subrev_u32 v232, 2, v232")
        A("v_max_i32 v232, 0, v232")
        A("s_lshl_b32 s85, s17, 6")
        A(f"v_subrev_u32 v234, 33, {v(VL)}")
        A("v_lshrrev_b32 v235, 2, v234")
        A("v_mul_u32_u24 v235, 67, v235")
        A("v_add_u32 v235, s85, v235")
        A("v_subrev_u32 v235, 2, v235")
        A("v_max_i32 v235, 0, v235")
        A("v_min_i32 v235, 2047, v235")
        A("v_lshrrev_b32 v235, 7, v235")
        A("v_and_b32 v234, 3, v234")
        A("v_add_u32 v234, 10, v234")
        A(f"v_cmp_lt_u32 vcc, 32, {v(VL)}")
        A("s_nop 1")
        A("v_cndmask_b32 v232, v232, v235, vcc")
        A("v_cndmask_b32 v233, v233, v234, vcc")
        big_id(A, 252, 232, 233, 234)
        A(f"s_cmp_lt_u32 s2, {NWG}")
        A("s_cselect_b32 exec_hi, 0x1ff, 1")

    QF, C0, C16, FB, SCB, PB, TM, OA = 8, 12, 16, 20, 36, 104, 140, 160
    QK = 200
    AF, WFB, AC, XR, TB = 32, 64, 96, 112, 16
    A("s_mul_i32 s50, s48, 7")
    A("s_lshr_b32 s50, s50, 1")
    A("s_lshl_b32 s51, s49, 3")
    A("s_mul_i32 s52, s19, 3")
    A("s_add_u32 s52, s52, s51")
    A("s_sub_u32 s52, s52, 16")
    A("s_lshl_b32 s54, s50, 8")
    A("s_mul_i32 s55, s19, 3072")
    A(f"s_add_u32 s55, s55, {L_KV}")
    A("s_lshl_b32 s40, s48, 17")
    A(f"s_add_u32 s40, s40, {WS_V}")
    for j in range(3):
        A(f"s_add_i32 s41, s52, {j}")
        A("s_max_i32 s41, s41, 0")
        A(f"s_mul_i32 s{62+j}, s41, {RT_BYTES}")
        A(f"s_add_u32 s{62+j}, s{62+j}, s54")
        A(f"s_add_u32 s{62+j}, s{62+j}, {WS_K}")
        A("s_lshl_b32 s41, s41, 10")
        A(f"s_add_u32 s{65+j}, s41, s40")
    A("s_add_u32 s52, s51, s19")
    A(f"s_mul_i32 s52, s52, {RT_BYTES}")
    A("s_add_u32 s53, s52, s54")
    A("s_lshl_b32 s32, s17, 2")
    A("s_add_u32 s32, s32, s46")
    A(f"s_mul_i32 s33, s32, {RT_BYTES}")
    A(f"s_mul_i32 s34, s47, {7*1024}")
    A("s_add_u32 s34, s34, s33")
    A(f"s_add_u32 s34, s34, {WS_HS}")
    A("s_add_u32 s35, s34, 4096")
    poll(A, deps2, "s_waitcnt vmcnt(0)")
    A.vm_restore([])
    stamp(A)
    A(f"s_cmp_ge_u32 s2, {NWG}")
    A("s_cbranch_scc1 p2_noa")
    for u in range(7):
        A.vmem(f"buffer_load_dwordx4 {v(AF+4*u,4)}, {v(L16)}, s[28:31], s{34+u//4} offen offset:{1024*(u%4)}{SL}", ("a", u))
    A.label("p2_noa")
    for j in range(3):
        A(f"s_add_u32 m0, s55, {1024*j}")
        A("s_nop 0")
        A.vmem(f"buffer_load_dwordx4 {v(L16)}, s[28:31], s{62+j} offen{SL} lds", "kv")
        A(f"s_add_u32 m0, s55, {24576+1024*j}")
        A("s_nop 0")
        A.vmem(f"buffer_load_dwordx4 {v(L16)}, s[28:31], s{65+j} offen{SL} lds", "kv")
    A.vmem(f"buffer_load_dwordx4 {v(QK,4)}, {v(L16)}, s[28:31], s53 offen{SL}", "kv")
    A(f"s_cmp_ge_u32 s2, {NWG}")
    A("s_cbranch_scc1 p2_attn")
    A("s_lshl_b32 s40, s32, 4")
    A(f"v_add_u32 v8, s40, {v(VI)}")
    A("v_mul_u32_u24 v9, 896, v8")
    A(f"v_lshrrev_b32 v10, 1, {v(CSO)}")
    A("v_xor_b32 v11, 8, v10")
    A("v_add_u32 v11, v11, v9")
    A("v_add_u32 v9, v10, v9")
    A("s_lshl_b32 s40, s18, 7")
    A("s_lshl_b32 s41, s47, 6")
    A("s_add_u32 s40, s40, s41")
    A.vmem(f"buffer_load_dwordx2 {v(XR,2)}, v9, s[20:23], s40 offen", "x")
    A.vmem(f"buffer_load_dwordx2 {v(XR+2,2)}, v11, s[20:23], s40 offen", "x")
    A(f"s_mul_i32 s41, s47, {7*4096}")
    for t in range(4):
        A(f"v_add_u32 {v(TB+t)}, s41, {v(PB4+t)}")
    for r in unit_reads(TB, 0, WFB):
        A(r)
    A("s_xor_b32 s41, s19, 4")
    A("s_lshl_b32 s41, s41, 11")
    A(f"s_add_u32 s41, s41, {L_X2}")
    A(f"v_add_u32 v12, s41, {v(L16)}")
    A("s_lshl_b32 s41, s19, 11")
    A(f"s_add_u32 s41, s41, {L_X2}")
    A(f"v_add_u32 v13, s41, {v(L16)}")
    for u in range(7):
        A.vm_wait(("a", u), " lgkmcnt(0)")
        rd = unit_reads(TB, (u + 1) * 4096, WFB + 16 * ((u + 1) & 1)) if u < 6 else []
        for t in range(4):
            c = v(AC + 4 * t, 4)
            A(f"v_mfma_f32_16x16x32_bf16 {c}, {v(WFB+16*(u&1)+4*t,4)}, {v(AF+4*u,4)}, {c if u else 0}")
            for r in rd[4*t:4*t+4] if t < 2 else []:
                A(r)
    A.vm_wait("x")
    XU = 32
    for j in range(4):
        A(f"v_lshlrev_b32 {v(XU+2*j)}, 16, {v(XR+j)}")
        A(f"v_and_b32 {v(XU+2*j+1)}, 0xffff0000, {v(XR+j)}")
    A("s_cmp_eq_u32 s47, 0")
    A("s_cbranch_scc1 p2_x0")
    for r in range(8):
        A(f"v_swap_b32 {v(AC+r)}, {v(AC+8+r)}")
    A.label("p2_x0")
    for t in range(2):
        A(f"ds_write_b128 v12, {v(AC+8+4*t,4)} offset:{1024*t}")
    A("s_lshl_b32 s40, s18, 11")
    A("s_add_u32 s40, s40, s33")
    A("s_lshl_b32 s41, s47, 10")
    A("s_add_u32 s40, s40, s41")
    A(f"s_add_u32 s40, s40, {WS_X1}")
    A("s_waitcnt lgkmcnt(0)")
    A("s_barrier")
    for t in range(2):
        A(f"ds_read_b128 {v(AC+8+4*t,4)}, v13 offset:{1024*t}")
    A("s_waitcnt lgkmcnt(0)")
    for r in range(8):
        A(f"v_add_f32 {v(AC+r)}, {v(AC+r)}, {v(AC+8+r)}")
    for r in range(8):
        rbf(A, AC + r)
    for r in range(8):
        A(f"v_add_f32 {v(AC+r)}, {v(AC+r)}, {v(XU+r)}")
    for j in range(4):
        A(f"v_cvt_pk_bf16_f32 {v(X1K+j)}, {v(AC+2*j)}, {v(AC+2*j+1)}")
    A.vmem(f"buffer_store_dwordx4 {v(X1K,4)}, {v(L16)}, s[28:31], s40 offen{SC}", "st")
    for r in range(8):
        rbf(A, AC + r)
    A(f"v_add_f32 v12, {v(AC)}, {v(AC+1)}")
    for r in range(2, 8):
        A(f"v_add_f32 v12, v12, {v(AC+r)}")
    xlane_g(A, "v_add_f32", 12, 14, 15)
    A(f"v_mul_f32 v14, {f32bits(1.0/32):#x}, v12")
    for r in range(8):
        A(f"v_sub_f32 {v(AC+r)}, {v(AC+r)}, v14")
    A(f"v_mul_f32 v13, {v(AC)}, {v(AC)}")
    for r in range(1, 8):
        A(f"v_fmac_f32 v13, {v(AC+r)}, {v(AC+r)}")
    xlane_g(A, "v_add_f32", 13, 14, 15)
    A("v_lshlrev_b32 v8, 7, v8")
    A("s_lshl_b32 s40, s18, 4")
    A("s_lshl_b32 s41, s47, 3")
    A("s_add_u32 s40, s40, s41")
    A(f"s_add_u32 s40, s40, {WS_ST}")
    A("s_mov_b64 exec, 0xffff")
    A.vmem(f"buffer_store_dwordx2 v[12:13], v8, s[28:31], s40 offen{SC}", "st")
    A("s_mov_b64 exec, -1")
    A("s_branch p2_attn2")
    A.label("p2_attn")
    A("s_waitcnt vmcnt(0)")
    A("s_barrier")
    A.label("p2_attn2")
    A.vm_restore(["st"])
    stamp(A)
    A("s_load_dwordx4 s[4:7], s[0:1], 40")
    A("s_load_dwordx2 s[8:9], s[0:1], 56")
    A("s_load_dwordx2 s[10:11], s[0:1], 16")
    A("s_lshl_b32 s61, s19, 10")
    A(f"s_add_u32 s61, s61, {L_KV}")
    A(f"v_add_u32 v4, s61, {v(L16)}")
    for i in range(3):
        A(f"ds_read_b128 {v(FB+4*(i%4),4)}, v4 offset:{1024*i}")
    A(f"v_mov_b32 {v(TM+1)}, {NEGBIG:#x}")
    for r in range(4):
        A(f"v_lshl_add_u32 {v(TM)}, {v(VG)}, 2, {r}")
        A(f"v_cmp_gt_u32 vcc, {v(TM)}, {v(VI)}")
        A(f"v_mov_b32 {v(QF+r)}, {v(QK+r)}")
        A("s_nop 0")
        A(f"v_cndmask_b32 {v(C0+r)}, {v(TM+1)}, 0, vcc")
        A(f"v_cndmask_b32 {v(C16+r)}, 0, {v(TM+1)}, vcc")
    A("s_lshr_b32 s53, s48, 1")
    A("s_mul_i32 s53, s53, 7")
    A("s_add_u32 s53, s53, 3")
    A("s_lshr_b32 s53, s53, 1")
    A("s_xor_b32 s53, s53, s48")
    A("s_bitcmp1_b32 s48, 0")
    A("s_cselect_b32 exec_lo, 0xffff, 0")
    A("s_cselect_b32 exec_hi, 0, 0xffff0000")
    A("s_bitcmp1_b32 s53, 0")
    A("s_cbranch_scc1 p2_q01")
    A(f"v_mov_b32 {v(QF+2)}, 0")
    A(f"v_mov_b32 {v(QF+3)}, 0")
    A("s_branch p2_qz")
    A.label("p2_q01")
    A(f"v_mov_b32 {v(QF)}, 0")
    A(f"v_mov_b32 {v(QF+1)}, 0")
    A.label("p2_qz")
    A("s_mov_b64 exec, -1")
    A("s_add_u32 s61, s51, s19")
    A("s_sub_i32 s61, 16, s61")
    A("s_cmp_gt_i32 s61, 0")
    A("s_cbranch_scc1 p2_qkslow")
    for slow in range(2):
        if slow:
            A.label("p2_qkslow")
        for i in range(17):
            if i + 3 < 17:
                A(f"ds_read_b128 {v(FB+4*((i+3)%4),4)}, v4 offset:{1024*(i+3)}")
            A(f"s_waitcnt lgkmcnt({min(3, 16-i)})")
            c = v(C0, 4) if i == 0 else (v(C16, 4) if i == 16 else "0")
            if slow and i < 16:
                l1, l2 = A.newlabel("k2i"), A.newlabel("k2j")
                A(f"s_cmp_gt_i32 s61, {i}")
                A(f"s_cbranch_scc1 {l1}")
            A(f"v_mfma_f32_16x16x32_bf16 {v(SCB+4*i,4)}, {v(FB+4*(i%4),4)}, {v(QF,4)}, {c}")
            if slow and i < 16:
                A(f"s_branch {l2}")
                A.label(l1)
                for r in range(4):
                    A(f"v_mov_b32 {v(SCB+4*i+r)}, {NEGBIG:#x}")
                A.label(l2)
        if not slow:
            A("s_branch p2_qkdone")
    A.label("p2_qkdone")
    A("s_lshr_b32 s61, s19, 1")
    A("s_lshl_b32 s61, s61, 11")
    A(f"s_add_u32 s61, s61, {L_KV+24576}")
    A(f"v_add_u32 v5, s61, {v(L16)}")
    for j in range(2):
        A(f"ds_read_b128 {v(FB+4*j,4)}, v5 offset:{1024*j}")
    M = TM
    KL, NB = TM + 17, TM + 18
    A(f"v_max3_f32 {v(M)}, {v(SCB)}, {v(SCB+1)}, {v(SCB+2)}")
    A(f"v_max3_f32 {v(M+1)}, {v(SCB+3)}, {v(SCB+4)}, {v(SCB+5)}")
    idx, k = 6, 0
    while idx < 68:
        A(f"v_max3_f32 {v(M+k)}, {v(M+k)}, {v(SCB+idx)}, {v(SCB+idx+1)}")
        idx += 2
        k ^= 1
    A(f"v_max_f32 {v(M)}, {v(M)}, {v(M+1)}")
    xlane_g(A, "v_max_f32", M, M + 1, M + 2)
    A(f"v_mov_b32 {v(KL)}, {f32bits(SCALE*LOG2E):#x}")
    A(f"v_mul_f32 {v(NB)}, {f32bits(-SCALE*LOG2E):#x}, {v(M)}")
    A("s_mul_i32 s60, s48, 7")
    A(f"v_add_u32 v6, s60, {v(VG)}")
    A(f"v_and_b32 {v(TM)}, 1, v6")
    A("v_lshrrev_b32 v6, 1, v6")
    A("v_lshlrev_b32 v6, 8, v6")
    A(f"v_lshl_add_u32 v6, {v(TM)}, 3, v6")
    A(f"v_lshl_add_u32 v6, {v(VI)}, 4, v6")
    A(f"s_add_u32 s60, s52, {WS_O}")
    big_decode(A)
    PITCH = F * 2
    A(f"s_mul_i32 s34, s40, {8*PITCH}")
    A("s_lshl_b32 s35, s33, 7")
    A("s_add_u32 s34, s34, s35")
    A(f"s_mov_b32 s38, {32*PITCH}")
    A("s_and_b32 s42, s40, 2")
    A("s_lshl_b32 s42, s42, 1")
    gen3.V_WD = 204
    unit_dma_voff(A, 204, "s43", "s42", PITCH, 205, 206)
    A(f"v_cmp_lt_u32 vcc, 6, {v(VL)}")
    A("s_lshl_b32 s85, s17, 1")
    A("v_mov_b32 v232, s85")
    A("v_addc_co_u32 v232, vcc, 0, v232, vcc")
    A(f"v_cmp_lt_u32 vcc, 6, {v(VL)}")
    A(f"v_subrev_u32 v233, 7, {v(VL)}")
    A("s_nop 0")
    A(f"v_cndmask_b32 v233, {v(VL)}, v233, vcc")
    A("v_and_b32 v234, 3, v232")
    A("v_mul_u32_u24 v234, 7, v234")
    A("v_add_u32 v234, v234, v233")
    A("v_lshrrev_b32 v232, 2, v232")
    A("v_lshl_add_u32 v232, v234, 3, v232")
    A("s_add_u32 s85, s33, 7")
    A("s_and_b32 s85, s85, 31")
    A(f"s_add_u32 s85, s85, {NWG}")
    A("v_writelane_b32 v232, s85, 14")
    A("v_lshlrev_b32 v232, 7, v232")
    A("v_add_u32 v232, 32768, v232")
    sp3 = Spec(A, 232, 0x7fff, lambda tag: None)
    A("s_lshl_b32 s35, s17, 3")
    A("s_add_u32 s35, s35, s19")
    A(f"s_mul_i32 s35, s35, {RT_BYTES}")
    A(f"s_add_u32 s35, s35, {WS_X1}")
    A(f"v_mov_b32 {v(V_XD)}, {v(L16)}")
    A.srd(20, 58, 59, WS_SIZE)
    A("s_mov_b32 s98, 0")

    def early_x():
        lx = A.newlabel("ex")
        A.vm_wait("sflag")
        A(f"v_cmp_ne_u32 s[96:97], s{TOK}, v253")
        A(f"s_cmp_ge_u32 s2, {NWG}")
        A(f"s_cbranch_scc1 {lx}")
        A("s_and_b64 s[96:97], s[96:97], 0x7fff")
        A(f"s_cbranch_scc1 {lx}")
        snap_x = A.vm_snapshot()
        gen3.XSC[0] = SL
        for ds in range(2):
            big_dma_parts(A, ds, 2048, V_XD)[0]()
        gen3.XSC[0] = ""
        A.vm_restore(snap_x)
        A("s_mov_b32 s98, 1")
        A.label(lx)
    A.srd(24, 6, 7, D * F * 2)
    A("s_waitcnt vmcnt(0)")
    A("s_barrier")
    A.vm_restore([])
    A(f"s_cmp_ge_u32 s2, {NWG}")
    A("s_cbranch_scc1 p2_now3")
    flag_store(A, 1)
    for ds in range(3):
        for p in big_dma_parts(A, ds, 2048, V_XD)[1:]:
            p()
    if L2WARM:
        A("s_lshl_b32 s44, s15, 3")
        A("s_add_u32 s44, s44, s19")
        A("s_mul_i32 s45, s44, 1792")
        A("s_mul_i32 s44, s44, 7168")
        A.srd(68, 8, 9, D * F * 2)
        A.srd(72, 10, 11, D * D * 2)
        for q in range(7):
            A.vmem(f"buffer_load_dwordx4 v[208:211], {v(L16)}, s[68:71], s44 offen offset:{1024*(q%4)}", "warm")
            if q == 3:
                A("s_add_u32 s44, s44, 4096")
        for q in range(2):
            A.vmem(f"buffer_load_dwordx4 v[208:211], {v(L16)}, s[72:75], s45 offen offset:{896*q}", "warm")
    A.label("p2_now3")
    A("s_bitcmp1_b32 s19, 0")
    A("s_cbranch_scc1 p2_odd")
    for par in range(2):
        if par:
            A.label("p2_odd")
        zs = 17 if par == 0 else 0
        A(f"v_mov_b32 {v(PB+2*zs)}, 0")
        A(f"v_mov_b32 {v(PB+2*zs+1)}, 0")
        nread = 2
        if par:
            A.vm_restore(snap_att)
        snap_att = A.vm_snapshot()
        for c in range(9):
            if c == SP3C:
                sp3.stage1()
            if c == SP3C + 2:
                early_x()
            els = []
            for half in range(2):
                slot = 2 * c + half
                if slot != zs:
                    els += [SCB + 4 * (slot - par) + r for r in range(4)]
            for e in els:
                A(f"v_fma_f32 {v(e)}, {v(e)}, {v(KL)}, {v(NB)}")
            for e in els:
                A(f"v_exp_f32 {v(e)}, {v(e)}")
            while nread < min(18, 2 * c + 4):
                A(f"ds_read_b128 {v(FB+4*(nread%4),4)}, v5 offset:{1024*nread}")
                nread += 1
            if c >= 7:
                A("s_nop 0")
            for half in range(2):
                slot = 2 * c + half
                if slot == zs:
                    continue
                i = slot - par
                A(f"v_cvt_pk_bf16_f32 {v(PB+2*slot)}, {v(SCB+4*i)}, {v(SCB+4*i+1)}")
                A(f"v_cvt_pk_bf16_f32 {v(PB+2*slot+1)}, {v(SCB+4*i+2)}, {v(SCB+4*i+3)}")
            A(f"s_waitcnt lgkmcnt({nread - (2*c+2)})")
            A("s_nop 0")
            for dt in range(2):
                A(f"v_mfma_f32_16x16x32_bf16 {v(OA+4*dt,4)}, {v(FB+4*((2*c+dt)%4),4)}, {v(PB+4*c,4)}, {v(OA+4*dt,4) if c else 0}")
        if par == 0:
            A("s_branch p2_out")
    A.label("p2_out")
    A(f"v_mov_b32 {v(TM)}, 0")
    A("s_lshl_b32 s42, s40, 12")
    A(f"v_add_u32 {v(V_XR[0])}, s42, {v(L16)}")
    A(f"v_add_u32 {v(V_XR[1])}, {2*SLOT}, {v(V_XR[0])}")
    A("s_mov_b32 exec_lo, 0")
    A("s_mov_b32 exec_hi, 0xffff0000")
    A(f"v_mov_b32 {v(TM)}, {v(OA+4)}")
    A("s_mov_b64 exec, -1")
    xlane_g(A, "v_add_f32", TM, TM + 1, TM + 2)
    A(f"v_rcp_f32 {v(TM)}, {v(TM)}")
    A("s_nop 0")
    for r in range(8):
        A(f"v_mul_f32 {v(OA+r)}, {v(TM)}, {v(OA+r)}")
    for r in range(4):
        A(f"v_cvt_pk_bf16_f32 {v(TM+4+r)}, {v(OA+2*r)}, {v(OA+2*r+1)}")
    A.vmem(f"buffer_store_dwordx2 {v(TM+4,2)}, v6, s[28:31], s60 offen{SC}", "ost")
    ex48(A)
    A.vmem(f"buffer_store_dwordx2 {v(TM+6,2)}, v6, s[28:31], s60 offen offset:512{SC}", "ost")
    exall(A)
    l3 = A.newlabel("p3go")
    A(f"s_cmp_lt_u32 s2, {NWG}")
    A(f"s_cbranch_scc1 {l3}")
    A("s_waitcnt vmcnt(0)")
    A("s_barrier")
    flag_store(A, 2)
    A("s_endpgm")
    A.label(l3)
    big_bases(A, PB4)
    A("s_lshl_b32 s39, s17, 3")
    A("s_lshl_b32 s42, s40, 1")
    A("s_add_u32 s39, s39, s42")
    A("s_lshl_b32 s42, s39, 4")
    A(f"v_add_u32 v24, s42, {v(VI)}")
    A("v_lshlrev_b32 v24, 7, v24")
    A(f"v_lshl_add_u32 v24, {v(VG)}, 5, v24")
    A(f"s_mov_b32 s46, {WS_ST}")
    A("s_lshl_b32 s45, s33, 8")
    A(f"s_add_u32 s45, s45, {WS_CS + 7*256}")
    A(f"v_xor_b32 v203, 16, {v(CSO)}")
    stamp(A)
    l = A.newlabel("sp3")
    A("s_cmp_eq_u32 s98, 1")
    A(f"s_cbranch_scc1 {l}")
    A("s_mov_b64 exec, 0x7fff")
    spin(A, 232)
    gen3.XSC[0] = SL
    for ds in range(2):
        big_dma_parts(A, ds, 2048, V_XD)[0]()
    A.label(l)
    stamp(A)
    STR = 180

    def h3a():
        for j in range(2):
            for q in range(2):
                A.vmem(f"buffer_load_dwordx4 {v(STR+8*j+4*q,4)}, v24, s[28:31], s46 offen offset:{2048*j+16*q}{SL}", "st")
        for t in range(4):
            A.vmem(f"buffer_load_dwordx4 {v(CS+4*t,4)}, {v(203 if t & 1 else CSO)}, s[28:31], s45 offen offset:{128*(t>>1)}{SL}", "st")
        A("s_load_dwordx2 s[4:5], s[0:1], 16")
        A("s_load_dwordx2 s[6:7], s[0:1], 56")
        A("s_load_dwordx2 s[8:9], s[0:1], 72")

    RS4, PF4 = 6, 4
    RING = RS4 * 4096
    L4_WO, L4_R = 0, 57344
    OFB = 204
    def o_loads(tag):
        for u in range(7):
            A.vmem(f"buffer_load_dwordx4 {v(OFB+4*u,4)}, {v(L16)}, s[28:31], s{62+u//4} offen offset:{1024*(u%4)}{SL}", tag)
        A.vmem(f"buffer_load_dword v247, v246, s[28:31], s64 offen{SL}", tag)

    sp4 = Spec(A, 245, 0x1ffff, o_loads)

    def h3b():
        A("s_mul_i32 s16, s15, 9363")
        A("s_lshr_b32 s16, s16, 16")
        A("s_mul_i32 s69, s16, 7")
        A("s_sub_u32 s69, s15, s69")
        A("s_lshl_b32 s68, s14, 2")
        A("s_add_u32 s68, s68, s16")
        A(f"v_and_b32 v245, 1, {v(VL)}")
        A("v_lshlrev_b32 v245, 4, v245")
        A("s_lshr_b32 s85, s68, 1")
        A("v_add_u32 v245, s85, v245")
        A(f"v_lshrrev_b32 v246, 1, {v(VL)}")
        A("v_lshl_add_u32 v245, v245, 3, v246")
        A("v_lshlrev_b32 v245, 7, v245")
        A("v_add_u32 v245, 65536, v245")
        A(f"s_add_u32 s85, s68, {NWG}")
        A("s_lshl_b32 s85, s85, 7")
        A("s_add_u32 s85, s85, 32768")
        A("v_writelane_b32 v245, s85, 16")
        A("s_lshl_b32 s70, s68, 2")
        A("s_add_u32 s70, s70, s40")
        A(f"s_mul_i32 s62, s70, {RT_BYTES}")
        A(f"s_mul_i32 s63, s41, {7*1024}")
        A("s_add_u32 s62, s62, s63")
        A(f"s_add_u32 s62, s62, {WS_O}")
        A("s_add_u32 s63, s62, 4096")
        A("s_lshl_b32 s85, s70, 4")
        A(f"v_add_u32 v244, s85, {v(VI)}")
        A("v_lshlrev_b32 v246, 2, v244")
        A(f"s_mov_b32 s64, {WS_G}")
        sp4.stage1()

    def h3c():
        A.vm_wait("st")
        A("s_mov_b32 exec_lo, 0")
        A("s_mov_b32 exec_hi, 0xffff0000")
        for j in range(2):
            for r in range(4, 8):
                A(f"v_mov_b32 {v(STR+8*j+r)}, 0")
        A("s_mov_b64 exec, -1")
        for j in range(2):
            b = STR + 8 * j
            m, q = MR[j], RS[j]
            A(f"v_add_f32 {v(m)}, {v(b)}, {v(b+2)}")
            A(f"v_add_f32 {v(q)}, {v(b+4)}, {v(b+6)}")
            A(f"v_add_f32 {v(m)}, {v(m)}, {v(q)}")
            xlane_g(A, "v_add_f32", m, 196, 197)
            A(f"v_mul_f32 {v(m)}, {f32bits(1.0/448):#x}, {v(m)}")
            A(f"v_add_f32 {v(q)}, {v(b+1)}, {v(b+3)}")
            A(f"v_add_f32 {v(q)}, {v(q)}, {v(b+5)}")
            A(f"v_add_f32 {v(q)}, {v(q)}, {v(b+7)}")
            for r in (0, 2, 4, 6):
                A(f"v_mul_f32 {v(b+r)}, {f32bits(1.0/32):#x}, {v(b+r)}")
                A(f"v_sub_f32 {v(b+r)}, {v(b+r)}, {v(m)}")
            A(f"v_mul_f32 {v(b)}, {v(b)}, {v(b)}")
            A(f"v_fmac_f32 {v(b)}, {v(b+2)}, {v(b+2)}")
            ex48(A)
            A(f"v_fmac_f32 {v(b)}, {v(b+4)}, {v(b+4)}")
            A(f"v_fmac_f32 {v(b)}, {v(b+6)}, {v(b+6)}")
            exall(A)
            A(f"v_fmamk_f32 {v(q)}, {v(b)}, {f32bits(32.0):#x}, {v(q)}")
            xlane_g(A, "v_add_f32", q, 196, 197)
            A(f"v_mul_f32 {v(q)}, {f32bits(1.0/448):#x}, {v(q)}")
            ln_finish(A, m, q)
            A(f"v_mov_b32 {v(m+1)}, {v(m)}")
            A(f"v_mov_b32 {v(q+1)}, {v(q)}")
        gelu_consts(A, 148)
        A(f"s_mul_i32 s42, s39, {H3_RT_BYTES}")
        A("s_lshl_b32 s43, s33, 11")
        A("s_add_u32 s42, s42, s43")
        A(f"s_add_u32 s42, s42, {WS_H3}")
        A(f"s_add_u32 s43, s42, {H3_RT_BYTES}")

    consts = (148, 150, 152)
    big_mainloop(A, False, 2048, V_XD, False, wdone=(0, 1, 2), hooks={4: lambda: flag_store(A, 2), 7: h3a, 9: h3b, 11: h3c})
    gen3.XSC[0] = ""
    stamp(A)
    A(f"v_mov_b32 v6, {v(U896)}")
    A("s_and_b32 s85, s19, 1")
    A("s_lshl_b32 s85, s85, 6")
    A("v_xor_b32 v6, s85, v6")
    A("v_xor_b32 v7, 64, v6")
    A("s_lshl_b32 s66, s69, 7")
    A(f"s_mul_i32 s65, s19, {7*8*896}")
    A("s_add_u32 s65, s65, s66")
    A("s_mul_i32 s67, s19, 7168")
    A.srd(20, 4, 5, D * D * 2)
    A("s_barrier")
    for u in range(7):
        A("s_mov_b32 m0, s67")
        A("s_add_u32 s67, s67, 1024")
        A.vmem(f"buffer_load_dwordx4 v{6+(u&1)}, s[20:23], s65 offen lds", "wo")
        A(f"s_add_u32 s65, s65, {8*896}")
    sp4.stage2()
    def st3(j, pk):
        for tp in range(2):
            A.vmem(f"buffer_store_dwordx4 {v(pk+4*tp,4)}, {v(L16)}, s[28:31], s{42+j} offen offset:{1024*tp}{SC}", "hst")

    gelu_epilogue(A, CS, MR, RS, consts, 48, 32, st3)
    stamp(A)
    NA = PF4 + 2
    AFB = 32
    WFB = AFB + NA * 8
    ACB = WFB + 32
    AWO = ACB + 32
    WOF = AWO + 16
    assert WOF + 32 <= OFB
    GR = 247
    TB, TO = 20, 24
    af = lambda sx, j: AFB + ((sx % NA) * 2 + j) * 4
    ac = lambda j, t: v(ACB + (j * 4 + t) * 4, 4)
    for m in range(1, 4):
        A(f"v_add_u32 v{8+m}, {4096*m}, {v(L16)}")
    A(f"v_mov_b32 v8, {v(L16)}")
    A(f"v_mov_b32 v4, {v(U896)}")
    l = A.newlabel("sw")
    A("s_cmp_eq_u32 s41, 0")
    A(f"s_cbranch_scc1 {l}")
    A(f"v_mov_b32 v4, {v(U896S)}")
    A.label(l)
    A("v_xor_b32 v5, 64, v4")
    A("s_lshl_b32 s32, s68, 2")
    A("s_lshl_b32 s33, s41, 1")
    A("s_add_u32 s32, s32, s33")
    A(f"s_mul_i32 s32, s32, {H3_RT_BYTES}")
    A(f"s_mul_i32 s33, s40, {14*1024}")
    A("s_add_u32 s32, s32, s33")
    A(f"s_add_u32 s32, s32, {WS_H3}")
    A(f"s_add_u32 s33, s32, {H3_RT_BYTES}")
    A(f"s_mul_i32 s36, s40, {448*896}")
    A(f"s_mul_i32 s34, s41, {16*896}")
    A("s_add_u32 s36, s36, s34")
    A("s_add_u32 s36, s36, s66")
    A(f"s_mul_i32 s35, s40, {RING}")
    A(f"s_add_u32 s35, s35, {L4_R}")
    A("s_lshl_b32 s37, s41, 11")
    A("s_add_u32 s37, s37, s35")
    A(f"s_mul_i32 s44, s41, {7*4096}")
    for t in range(4):
        A(f"v_add_u32 {v(TO+t)}, s44, {v(PB4+t)}")
        A(f"v_add_u32 {v(TB+t)}, s35, {v(PB4+t)}")
    A.srd(24, 6, 7, F * D * 2)
    A.srd(48, 8, 9, ACT_BYTES)

    ROT = os.environ.get("ROT", "0") == "1"
    if ROT:
        A("s_lshl_b32 s72, s69, 1")
        A(f"s_add_u32 s73, s36, {14*32*896}")
        A(f"s_mul_i32 s74, s72, {32*896}")
        A("s_add_u32 s36, s36, s74")
        A(f"s_add_u32 s75, s32, {14*1024}")
        A("s_lshl_b32 s74, s72, 10")
        A("s_add_u32 s32, s32, s74")

    def w_parts(sx):
        parts = []
        for j in range(2):
            def p(j=j):
                A(f"s_add_u32 m0, s37, {(sx%RS4)*4096 + j*1024}")
                A("s_nop 0")
                A.vmem(f"buffer_load_dwordx4 v{4+j}, s[24:27], s36 offen lds", ("w", sx))
                A(f"s_add_u32 s36, s36, {8*896 if j == 0 else 24*896}")
                if ROT and j == 1:
                    A(f"s_sub_u32 s74, s36, {14*32*896}")
                    A("s_cmp_ge_u32 s36, s73")
                    A("s_cselect_b32 s36, s74, s36")
            parts.append(p)
        return parts

    def a_parts(sx):
        if ROT:
            def p0():
                A(f"s_add_u32 s33, s32, {H3_RT_BYTES}")
                A.vmem(f"buffer_load_dwordx4 {v(af(sx,0),4)}, v8, s[28:31], s32 offen{SL}", ("ld", sx))

            def p1():
                A.vmem(f"buffer_load_dwordx4 {v(af(sx,1),4)}, v8, s[28:31], s33 offen{SL}", ("ld", sx))
                A("s_add_u32 s32, s32, 1024")
                A(f"s_sub_u32 s74, s32, {14*1024}")
                A("s_cmp_ge_u32 s32, s75")
                A("s_cselect_b32 s32, s74, s32")
            return [p0, p1]
        return [lambda j=j: A.vmem(f"buffer_load_dwordx4 {v(af(sx,j),4)}, v{8+sx//4}, s[28:31], s{32+j} offen offset:{1024*(sx%4)}{SL}", ("ld", sx)) for j in range(2)]

    sp4.finish()
    A("s_barrier")
    for r in unit_reads(TO, 0, WOF):
        A(r)
    for u in range(7):
        A("s_waitcnt lgkmcnt(0)")
        rd = unit_reads(TO, (u + 1) * 4096, WOF + 16 * ((u + 1) & 1)) if u < 6 else []
        for t in range(4):
            c = v(AWO + 4 * t, 4)
            A(f"v_mfma_f32_16x16x32_bf16 {c}, {v(WOF+16*(u&1)+4*t,4)}, {v(OFB+4*u,4)}, {c if u else 0}")
            for r in rd[4*t:4*t+4] if t < 2 else []:
                A(r)
            if t >= 2 and u >= 1:
                w_parts(u - 1)[t - 2]()
        if u == 1:
            A.vm_wait("hst")
            A("s_barrier")
            flag_store(A, 3)
    stamp(A)

    def deps4b():
        A("s_lshr_b32 s85, s68, 1")
        A("v_mov_b32 v232, s85")
        A(f"v_mov_b32 v233, {v(VL)}")
        big_id(A, 252, 232, 233, 234)
        A(f"v_add_u32 v252, {3*32768}, v252")
        A("s_mov_b64 exec, 0x3fff")

    poll(A, deps4b, "s_waitcnt vmcnt(0)")
    A.vm_restore([])
    stamp(A)
    na = [0]

    def take_a(n, limit):
        out = []
        while n > 0 and na[0] < 14 and na[0] <= limit:
            out += a_parts(na[0])
            na[0] += 1
            n -= 1
        return out

    for p in take_a(3, 2):
        p()
    for r in unit_reads(TB, 0, WFB):
        A(r)
    for sx in range(14):
        tags = [("ld", sx)]
        bar = sx % 2 == 0 and 0 < sx < 13
        if bar:
            tags += [("w", t) for t in (sx + 1, sx + 2) if 5 < t < 14]
        A.vm_wait(tags, " lgkmcnt(0)")
        if bar:
            A("s_barrier")
        rd = unit_reads(TB, ((sx + 1) % RS4) * 4096, WFB + 16 * ((sx + 1) & 1)) if sx < 13 else []
        parts = take_a(2, sx + 1 + PF4)
        wt = [6] if sx == 2 else []
        wt += [sx + 5] if 2 <= sx and sx + 5 < 14 else []
        for t in wt:
            parts += w_parts(t)
        mf = [f"v_mfma_f32_16x16x32_bf16 {ac(j,t)}, {v(WFB+16*(sx&1)+4*t,4)}, {v(af(sx,j),4)}, {ac(j,t) if sx else 0}" for t in range(4) for j in range(2)]
        E4 = os.environ.get("E4", "")
        for i, m in enumerate(mf):
            if "m" not in E4:
                A(m)
            for _ in range(2):
                if rd:
                    r_ = rd.pop(0)
                    if "r" not in E4:
                        A(r_)
            for _ in range(-(-len(parts) // (len(mf) - i))):
                parts.pop(0)()
        assert not rd and not parts
    stamp(A)
    A("s_lshl_b32 s52, s40, 14")
    A("s_lshl_b32 s53, s41, 13")
    A("s_add_u32 s52, s52, s53")
    A("v_add_u32 v12, s52, v8")
    A("s_lshl_b32 s52, s41, 14")
    A("s_lshl_b32 s53, s40, 12")
    A("s_add_u32 s52, s52, s53")
    A("s_add_u32 s52, s52, 65536")
    A("v_add_u32 v13, s52, v8")
    A("s_barrier")
    for t in range(4):
        A(f"ds_write_b128 v13, {v(AWO+4*t,4)} offset:{t*1024}")
    for j in range(2):
        for t in range(4):
            A(f"ds_write_b128 v12, {ac(j,t)} offset:{(j*4+t)*1024}")
    A("s_lshl_b32 s52, s40, 12")
    A("s_lshl_b32 s53, s41, 11")
    A("s_add_u32 s52, s52, s53")
    A("v_add_u32 v12, s52, v8")
    A("v_add_u32 v13, 65536, v12")
    XU = OFB
    for j in range(4):
        A(f"v_lshlrev_b32 {v(XU+2*j)}, 16, {v(X1K+j)}")
        A(f"v_and_b32 {v(XU+2*j+1)}, 0xffff0000, {v(X1K+j)}")
    A(f"v_sub_f32 v19, 1.0, {v(GR)}")
    rbf(A, 19)
    A("v_mul_u32_u24 v14, 896, v244")
    A(f"v_lshrrev_b32 v16, 1, {v(CSO)}")
    A("v_xor_b32 v15, 8, v16")
    A("v_add_u32 v15, v15, v14")
    A("v_add_u32 v14, v16, v14")
    A("s_lshl_b32 s53, s41, 6")
    A("s_add_u32 s52, s66, s53")
    A("s_waitcnt lgkmcnt(0)")
    A("s_barrier")
    RB = 32
    for q in range(4):
        for t in range(2):
            A(f"ds_read_b128 {v(RB+8*q+4*t,4)}, v12 offset:{16384*q + 1024*t}")
    for q in range(2):
        for t in range(2):
            A(f"ds_read_b128 {v(RB+32+8*q+4*t,4)}, v13 offset:{16384*q + 1024*t}")
    A("s_waitcnt lgkmcnt(4)")
    for r in range(8):
        A(f"v_add_f32 {v(RB+r)}, {v(RB+r)}, {v(RB+8+r)}")
        A(f"v_add_f32 {v(RB+16+r)}, {v(RB+16+r)}, {v(RB+24+r)}")
    for r in range(8):
        A(f"v_add_f32 {v(RB+r)}, {v(RB+r)}, {v(RB+16+r)}")
    for r in range(8):
        rbf(A, RB + r)
    for r in range(8):
        A(f"v_add_f32 {v(RB+r)}, {v(RB+r)}, {v(XU+r)}")
    for r in range(8):
        rbf(A, RB + r)
    A("s_waitcnt lgkmcnt(0)")
    AU = RB + 32
    for r in range(8):
        A(f"v_add_f32 {v(AU+r)}, {v(AU+r)}, {v(AU+8+r)}")
        A(f"v_mul_f32 {v(RB+r)}, v19, {v(RB+r)}")
    for r in range(8):
        rbf(A, AU + r)
        rbf(A, RB + r)
    for r in range(8):
        A(f"v_mul_f32 {v(AU+r)}, {v(GR)}, {v(AU+r)}")
    for r in range(8):
        rbf(A, AU + r)
    for r in range(8):
        A(f"v_add_f32 {v(RB+r)}, {v(RB+r)}, {v(AU+r)}")
    for j in range(4):
        A(f"v_cvt_pk_bf16_f32 {v(XU+j)}, {v(RB+2*j)}, {v(RB+2*j+1)}")
    A(f"buffer_store_dwordx2 {v(XU,2)}, v14, s[48:51], s52 offen")
    A(f"buffer_store_dwordx2 {v(XU+2,2)}, v15, s[48:51], s52 offen")
    stamp(A)
    A.label(Lend)
    A("s_endpgm")
    if PFCODE:
        for _ in range(256):
            A("s_nop 0")
        A.label("k_codeend")
        for _ in range(256):
            A("s_nop 0")
        A("s_endpgm")
    return A.text()


def build():
    hdr = open("gated_mix__sliding_block__mixer_s_mlp__prompt.s.ref").read().split("; Override launch")[0]
    out = hdr + "; @launch grid=(256,1,1) block=(512,1,1) lds=163840\n"
    out += '.amdgcn_target "amdgcn-amd-amdhsa--gfx950"\n.text\n'
    out += kernel_head(KNAME) + gen()
    out += '.section .rodata,"a"\n' + kernel_desc(KNAME, 256, 256)
    return out


if __name__ == "__main__":
    dst = sys.argv[1] if len(sys.argv) > 1 else "gated_mix__sliding_block__mixer_s_mlp__prompt.s"
    open(dst, "w").write(build())
    print("wrote", dst)
```

```python
import os
import sys
from asmlib import Asm, v, a, s, f32bits, kernel_desc, kernel_head
import gen3
from gen2 import (lane_setup, xlane_g, rbf, ln_finish, gelu_consts, ex48, exall,
                  S, D, F, MB, WS_K, WS_V, WS_HS, WS_X1, WS_O, WS_H3, WS_G, WS_ST, WS_SIZE, WS_DBG, ACT_BYTES, RT_BYTES,
                  H3_RT_BYTES, LOG2E, SCALE, NEGBIG, STAMPS, VL, VI, VG)
from gen3 import (unit_bases, unit_dma_voff, unit_reads, big_mainloop, big_dma_parts, big_decode,
                  gelu_epilogue, small_decode, SLOT, V_XD, V_XD2, V_WD, V_XR, V_TB, ACC, NWG)

KNAME = "gated_mix__sliding_block__mixer_s_mlp__prompt_kernel"
WS_FLAG = 26 * MB
WS_ST = WS_FLAG + 131072
WS_G = WS_FLAG + 393216
WS_LN1 = WS_FLAG + 409600
WS_CS = WS_FLAG + 425984
TOK = 84
PB4 = 236
L16 = 240
U896, U896S = 241, 242
CSO = 243
X1K = 248
SC = " sc1"
SL = " sc1"
SP3C = int(os.environ.get("SP3C", "5"))
PFAT = int(os.environ.get("PFAT", "8"))
PFWS = os.environ.get("PFWS", "0") == "1"
PFSM = os.environ.get("PFSM", "1") == "1"
PFCODE = os.environ.get("PFCODE", "1") == "1"
PFLATE = os.environ.get("PFLATE", "0") == "1"
PFH = os.environ.get("PFH", "0")
FILLN = int(os.environ.get("FILLN", "1"))
PUBC = int(os.environ.get("PUBC", "3"))
L2WARM = os.environ.get("L2WARM", "0") == "1"
gen3.stamp = lambda A, i: None
gen3.CZERO[0] = True
NST = [0]


def stamp(A):
    if not STAMPS:
        return
    i = NST[0]
    NST[0] += 1
    A("s_memrealtime s[86:87]")
    A("s_lshl_b32 s88, s2, 11")
    A("s_lshl_b32 s89, s19, 7")
    A("s_add_u32 s88, s88, s89")
    A(f"s_add_u32 s88, s88, {WS_DBG + 4*i}")
    A("s_mov_b64 s[90:91], exec")
    A("s_mov_b64 exec, 1")
    A("v_mov_b32 v254, 0")
    A("s_waitcnt lgkmcnt(0)")
    A("v_mov_b32 v255, s86")
    A.vmem("buffer_store_dword v255, v254, s[28:31], s88 offen", "stamp")
    A("s_mov_b64 exec, s[90:91]")


def xstamp(A, i):
    if STAMPS:
        keep = NST[0]
        NST[0] = i
        stamp(A)
        NST[0] = keep


def flag_store(A, kind):
    l = A.newlabel("pub")
    A("s_cmp_lg_u32 s19, 0")
    A(f"s_cbranch_scc1 {l}")
    A("s_lshl_b32 s85, s2, 7")
    A(f"s_add_u32 s85, s85, {WS_FLAG + kind*32768}")
    A("v_mov_b32 v252, 0")
    A(f"v_mov_b32 v253, s{TOK}")
    A("s_mov_b64 exec, 1")
    A(f"buffer_store_dword v253, v252, s[28:31], s85 offen{SC}")
    A("s_mov_b64 exec, -1")
    A.label(l)


def tok_ok(A):
    A(f"s_sub_i32 s85, s82, s{TOK}")
    A("s_cmp_lt_i32 s85, 1500")
    A(f"s_cselect_b32 s85, s{TOK}, 0")
    A("s_cmp_lg_u32 s85, 0")


def get_token(A):
    l, l2 = A.newlabel("tok"), A.newlabel("tok")
    A("v_mov_b32 v252, 0")
    A("s_mov_b32 s93, 0")
    A.label(l)
    A(f"global_load_dword v253, v252, s[56:57]{SC}")
    A("s_add_u32 s93, s93, 1")
    A("s_waitcnt vmcnt(0)")
    A(f"v_readfirstlane_b32 s{TOK}, v253")
    A("s_cmp_ge_u32 s93, 0x4000")
    A(f"s_cbranch_scc1 {l2}")
    tok_ok(A)
    A(f"s_cbranch_scc0 {l}")
    A.label(l2)


def spin(A, vaddr):
    lp = A.newlabel("pol")
    A(f"s_mov_b32 s85, {WS_FLAG}")
    A("s_mov_b32 s93, 0")
    A.label(lp)
    A(f"buffer_load_dword v253, {v(vaddr)}, s[28:31], s85 offen{SC}")
    A("s_add_u32 s93, s93, 1")
    A("s_waitcnt vmcnt(0)")
    A(f"v_cmp_ne_u32 vcc, s{TOK}, v253")
    A("s_cmp_lt_u32 s93, 0x20000")
    A("s_cselect_b64 s[94:95], vcc, 0")
    A("s_cmp_lg_u64 s[94:95], 0")
    A(f"s_cbranch_scc1 {lp}")
    A("s_mov_b64 exec, -1")


def poll(A, addr_fn, extra_wait=""):
    l = A.newlabel("pol")
    A("s_cmp_lg_u32 s19, 0")
    A(f"s_cbranch_scc1 {l}")
    addr_fn()
    spin(A, 252)
    A.label(l)
    if extra_wait:
        A(extra_wait)
    A("s_barrier")


def big_id(A, dst, rt, ct, t0):
    A(f"v_lshrrev_b32 {v(dst)}, 2, {v(rt)}")
    A(f"v_lshlrev_b32 {v(dst)}, 1, {v(dst)}")
    A(f"v_cmp_lt_u32 vcc, 6, {v(ct)}")
    A("s_nop 1")
    A(f"v_addc_co_u32 {v(dst)}, vcc, 0, {v(dst)}, vcc")
    A(f"v_cmp_lt_u32 vcc, 6, {v(ct)}")
    A(f"v_and_b32 {v(t0)}, 3, {v(rt)}")
    A(f"v_mul_u32_u24 {v(t0)}, 7, {v(t0)}")
    A(f"v_add_u32 {v(t0)}, {v(t0)}, {v(ct)}")
    A(f"v_subrev_u32 {v(rt)}, 7, {v(t0)}")
    A(f"v_cndmask_b32 {v(t0)}, {v(t0)}, {v(rt)}, vcc")
    A(f"v_lshl_add_u32 {v(dst)}, {v(t0)}, 3, {v(dst)}")
    A(f"v_lshlrev_b32 {v(dst)}, 7, {v(dst)}")


def big_bases(A, src):
    A("s_lshl_b32 s42, s41, 13")
    A("s_add_u32 s42, s42, 16384")
    A(f"s_add_u32 s43, s42, {2*SLOT}")
    for t in range(4):
        A(f"v_add_u32 {v(V_TB[1]+t)}, s43, {v(src+t)}")
        A(f"v_add_u32 {v(V_TB[0]+t)}, s42, {v(src+t)}")


class Spec:
    def __init__(self, A, vflag, mask, loads):
        self.A, self.vflag, self.mask, self.loads = A, vflag, mask, loads

    def stage1(self):
        A = self.A
        A(f"s_mov_b32 s85, {WS_FLAG}")
        A(f"s_mov_b64 exec, {self.mask:#x}")
        A.vmem(f"buffer_load_dword v253, {v(self.vflag)}, s[28:31], s85 offen{SC}", "sflag")
        A("s_mov_b64 exec, -1")

    def stage2(self):
        A = self.A
        A.vm_wait("sflag")
        A(f"v_cmp_ne_u32 s[96:97], s{TOK}, v253")
        self.loads("sdata")

    def finish(self):
        A = self.A
        l = A.newlabel("spec")
        A(f"s_and_b64 s[96:97], s[96:97], {self.mask:#x}")
        A(f"s_cbranch_scc0 {l}")
        A(f"s_mov_b64 exec, {self.mask:#x}")
        spin(A, self.vflag)
        snap = A.vm_snapshot()
        self.loads("sdata")
        A.vm_restore(snap)
        A("s_waitcnt vmcnt(0)")
        A.label(l)
        A.vm_wait("sdata")


def red8(A, x, t):
    for dpp in ("quad_perm:[1,0,3,2]", "quad_perm:[2,3,0,1]", "row_half_mirror"):
        A("s_nop 1")
        A(f"v_add_f32_dpp {v(x)}, {v(x)}, {v(x)} {dpp} row_mask:0xf bank_mask:0xf")


def gen():
    A = Asm()
    Lend = "k_end"
    A("s_cmp_ge_u32 s2, 256")
    A(f"s_cbranch_scc1 {Lend}")
    A("s_load_dwordx4 s[4:7], s[0:1], 0")
    A("s_load_dwordx2 s[8:9], s[0:1], 32")
    A("s_load_dwordx4 s[56:59], s[0:1], 80")
    A("s_memrealtime s[82:83]")
    lane_setup(A)
    A(f"v_lshlrev_b32 {v(L16)}, 4, {v(VL)}")
    A(f"s_cmp_ge_u32 s2, {NWG}")
    A("s_cbranch_scc1 helper")
    big_decode(A)
    A("s_sub_u32 s46, s33, 21")
    A("s_movk_i32 s32, 896")
    A("s_cmp_lt_u32 s33, 21")
    A("s_cselect_b32 s32, 2688, s32")
    A("s_cselect_b32 s34, s33, s46")
    A("s_lshl_b32 s34, s34, 7")
    A("s_lshl_b32 s35, s40, 3")
    A("s_mul_i32 s35, s35, s32")
    A("s_add_u32 s34, s34, s35")
    A("s_lshl_b32 s38, s32, 5")
    unit_dma_voff(A, V_WD, "s43", None, "s32", 24, 25)
    A(f"v_lshrrev_b32 v24, 3, {v(VL)}")
    A("v_lshrrev_b32 v25, 1, v24")
    A(f"v_xor_b32 v25, v25, {v(VL)}")
    A("v_and_b32 v25, 7, v25")
    A(f"v_mul_u32_u24 {v(V_XD)}, 896, v24")
    A(f"v_lshl_add_u32 {v(V_XD)}, v25, 4, {v(V_XD)}")
    A(f"v_xor_b32 {v(V_XD2)}, 64, {v(V_XD)}")
    A(f"v_add_u32 {v(V_XD2)}, {8*896-1024}, {v(V_XD2)}")
    A("s_lshl_b32 s35, s17, 3")
    A("s_add_u32 s35, s35, s19")
    A(f"s_mul_i32 s35, s35, {RT_BYTES}")
    A("s_waitcnt lgkmcnt(0)")
    A.srd(20, 4, 5, ACT_BYTES)
    A(f"s_mov_b32 s26, {D*D*2}")
    A("s_cmp_lt_u32 s33, 21")
    A("s_cselect_b32 s24, s6, s8")
    A("s_cselect_b32 s25, s7, s9")
    A(f"s_cselect_b32 s26, {D*3*D*2}, s26")
    A("s_and_b32 s25, s25, 0xffff")
    A("s_mov_b32 s27, 0x00020000")
    PF0 = os.environ.get("PF0", "0")
    if PF0 != "0":
        A("s_lshl_b32 s60, s2, 3")
        A("s_add_u32 s60, s60, s19")
        A("s_lshl_b32 s60, s60, 10")
        A.srd(72, 6, 7, D * 3 * D * 2)
        A.srd(76, 8, 9, D * D * 2)
        A(f"s_sub_u32 s61, s60, {1176*1024}")
        A.vmem(f"buffer_load_dwordx4 v[212:215], {v(L16)}, s[72:75], s60 offen", "pf0")
        A.vmem(f"buffer_load_dwordx4 v[212:215], {v(L16)}, s[76:79], s61 offen", "pf0")
        if PF0 == "2":
            A.vmem(f"buffer_load_dwordx4 v[212:215], {v(L16)}, s[20:23], s60 offen", "pf0")
    P1PRO = int(os.environ.get("P1PRO", "2"))
    DMA_SAVE = dict(gen3.DMA_AT)
    if P1PRO == 4:
        gen3.DMA_AT.clear()
        gen3.DMA_AT.update({1: 4, 3: 5, 5: 6})
    if P1PRO == 3:
        gen3.DMA_AT.clear()
        gen3.DMA_AT.update({0: 3, 1: 4, 3: 5, 5: 6})
    for ds in range(P1PRO):
        for p in big_dma_parts(A, ds, 128, V_XD2):
            p()
    A.srd(28, 58, 59, WS_SIZE)
    if PFCODE:
        lc = A.newlabel("pfc")
        A("s_getpc_b64 s[60:61]")
        A.label("k_pc")
        A("s_lshr_b32 s70, s2, 3")
        A("s_lshl_b32 s70, s70, 3")
        A("s_add_u32 s70, s70, s19")
        A("s_lshl_b32 s70, s70, 10")
        A(f"s_cmp_ge_u32 s70, k_codeend-k_pc")
        A(f"s_cbranch_scc1 {lc}")
        A(f"v_add_u32 v204, s70, {v(L16)}")
        A("global_load_dwordx4 v[208:211], v204, s[60:61]")
        A.label(lc)
    stamp(A)
    A(f"v_lshrrev_b32 v24, 1, {v(VI)}")
    A(f"v_xor_b32 v24, v24, {v(VG)}")
    A("v_lshlrev_b32 v24, 4, v24")
    A(f"v_lshl_add_u32 v24, {v(VI)}, 7, v24")
    A("s_lshl_b32 s42, s40, 12")
    A(f"v_add_u32 {v(V_XR[0])}, s42, v24")
    A(f"v_xor_b32 {v(V_XR[2])}, 64, {v(V_XR[0])}")
    A(f"v_add_u32 {v(V_XR[1])}, {2*SLOT}, {v(V_XR[0])}")
    A(f"v_add_u32 {v(V_XR[3])}, {2*SLOT}, {v(V_XR[2])}")
    unit_bases(A, PB4, "pair", 24, 25, 26)
    unit_dma_voff(A, U896, "0", None, 896, 24, 25)
    unit_dma_voff(A, U896S, "0", "4", 896, 24, 25)
    A(f"v_lshrrev_b32 v24, 1, {v(VG)}")
    A(f"v_lshlrev_b32 {v(CSO)}, 5, {v(VG)}")
    A(f"v_lshl_add_u32 {v(CSO)}, v24, 4, {v(CSO)}")
    A("s_lshl_b32 s39, s17, 7")
    A("s_lshl_b32 s42, s40, 5")
    A("s_add_u32 s39, s39, s42")
    A("s_load_dwordx2 s[62:63], s[0:1], 16")
    A("s_load_dwordx4 s[64:67], s[0:1], 40")
    A("s_load_dwordx2 s[68:69], s[0:1], 56")
    A("v_mov_b32 v252, 0")
    A.vmem(f"global_load_dword v200, v252, s[56:57]{SC}", "tok")
    snap = A.vm_snapshot()
    PK = 32

    def pf_hook():
        A("s_lshl_b32 s60, s2, 3")
        A("s_add_u32 s60, s60, s19")
        A("s_lshl_b32 s60, s60, 10")
        lst = ((64, D * D * 2, 0), (66, D * F * 2, 0), (62, D * D * 2, 392), (68, D * F * 2, 224))
        if PFLATE:
            lst = lst[:1]
        for q, (lo, size, base) in enumerate(lst):
            A.srd(72, lo, lo + 1, size)
            A(f"s_sub_u32 s61, s60, {base*1024}")
            A.vmem(f"buffer_load_dwordx4 v[204:207], {v(L16)}, s[72:75], s61 offen", "pf")
        if PFWS:
            A(f"s_add_u32 s61, s60, {WS_O}")
            A.vmem(f"buffer_load_dwordx4 v[204:207], {v(L16)}, s[28:31], s61 offen", "pf")

    def tok_hook():
        l = A.newlabel("tk")
        A.vm_wait("tok")
        A(f"v_readfirstlane_b32 s{TOK}, v200")
        tok_ok(A)
        A(f"s_cbranch_scc1 {l}")
        get_token(A)
        A.label(l)

    A("s_sub_u32 s42, s33, 14")
    A("s_cmp_lt_u32 s42, 7")
    A("s_cbranch_scc1 p1_v")
    big_bases(A, PB4)
    A("s_cmp_ge_u32 s33, 21")
    A("s_cbranch_scc1 p1_w1")
    big_mainloop(A, False, 128, V_XD2, True, hooks={7: tok_hook, PFAT: pf_hook})
    A("s_cmp_ge_u32 s33, 7")
    A("s_cselect_b32 s43, 7, 0")
    A(f"s_cselect_b32 s42, {WS_K}, 0")
    A("s_sub_u32 s46, s33, s43")
    A("s_lshl_b32 s46, s46, 11")
    A("s_add_u32 s42, s42, s46")
    A("s_mul_i32 s43, s39, 896")
    A("s_add_u32 s42, s42, s43")
    A(f"s_add_u32 s43, s42, {RT_BYTES}")
    for j in range(2):
        for q in range(8):
            A(f"v_cvt_pk_bf16_f32 {v(PK+8*j+q)}, {v(ACC+16*j+2*q)}, {v(ACC+16*j+2*q+1)}")
        for tp in range(2):
            A(f"buffer_store_dwordx4 {v(PK+8*j+4*tp,4)}, {v(L16)}, s[28:31], s{42+j} offen offset:{1024*tp}{SC}")
    A("s_branch p1_done")
    A.label("p1_v")
    A.vm_restore(snap)
    unit_bases(A, 28, "nat", 24, 25, 26)
    big_bases(A, 28)
    A("s_sub_u32 s46, s33, 14")
    A("s_lshl_b32 s47, s39, 6")
    A(f"s_add_u32 s47, s47, {WS_V}")
    A("s_lshl_b32 s44, s46, 6")
    for t in range(4):
        o = 184 + t
        A(f"v_add_u32 v24, s44, {v(VI)}")
        A(f"v_add_u32 v24, {16*t}, v24")
        A("v_mul_u32_u24 v25, 2341, v24")
        A("v_lshrrev_b32 v25, 16, v25")
        A("v_mul_u32_u24 v26, 28, v25")
        A("v_sub_u32 v26, v24, v26")
        A(f"v_lshlrev_b32 {v(o)}, 17, v25")
        A("v_lshrrev_b32 v27, 4, v26")
        A(f"v_lshl_add_u32 {v(o)}, v27, 10, {v(o)}")
        A("v_and_b32 v27, 15, v26")
        A(f"v_lshl_add_u32 {v(o)}, v27, 4, {v(o)}")
        A(f"v_lshl_add_u32 {v(o)}, {v(VG)}, 8, {v(o)}")
    A("s_lshl_b32 s44, s46, 4")
    A("s_mul_i32 s45, s44, 9363")
    A("s_lshr_b32 s45, s45, 16")
    A(f"v_add_u32 v24, s45, {v(VG)}")
    A("v_mul_u32_u24 v25, 7, v24")
    A("v_add_u32 v25, 6, v25")
    A("s_add_u32 s44, s44, 16")
    A("v_lshlrev_b32 v24, 17, v24")
    A(f"v_lshrrev_b32 v26, 2, {v(VI)}")
    A("v_lshl_add_u32 v24, v26, 4, v24")
    A(f"v_and_b32 v27, 3, {v(VI)}")
    A("v_lshl_add_u32 v24, v27, 8, v24")
    A("v_cmp_eq_u32 vcc, 0, v26")
    A("v_mov_b32 v27, 0x3f803f80")
    A("s_nop 0")
    A("v_cndmask_b32 v188, 0, v27, vcc")
    for r in range(1, 4):
        A(f"v_mov_b32 v{188+r}, v188")
    A("v_cmp_gt_u32 vcc, s44, v25")
    A("s_and_saveexec_b64 s[44:45], vcc")
    A.vmem(f"buffer_store_dwordx4 v[188:191], v24, s[28:31], s47 offen offset:{1024+12*16}{SC}", "ones")
    A("s_mov_b64 exec, -1")
    big_mainloop(A, True, 128, V_XD2, True, hooks={7: tok_hook, PFAT: pf_hook})
    A("s_nop 4")
    for t in range(4):
        pk = PK + 4 * t
        for j in range(2):
            src = ACC + 16 * j + 4 * t
            A(f"v_cvt_pk_bf16_f32 {v(pk+2*j)}, {v(src)}, {v(src+1)}")
            A(f"v_cvt_pk_bf16_f32 {v(pk+2*j+1)}, {v(src+2)}, {v(src+3)}")
        A(f"buffer_store_dwordx4 {v(pk,4)}, {v(184+t)}, s[28:31], s47 offen{SC}")
    A("s_branch p1_done")
    A.label("p1_w1")
    A.vm_restore(snap)
    MR, RS, CS = [140, 142], [144, 146], 164
    A("s_lshl_b32 s42, s17, 1")
    A(f"v_add_u32 v201, s42, {v(VL)}")
    A("v_writelane_b32 v201, s46, 2")
    A(f"v_lshlrev_b32 v201, 7, v201")
    A(f"v_add_u32 v201, {NWG*128}, v201")
    A(f"v_add_u32 v202, s39, {v(VI)}")
    A("v_lshlrev_b32 v202, 3, v202")
    A(f"s_mov_b32 s44, {WS_LN1}")
    A("s_lshl_b32 s45, s46, 8")
    A(f"s_add_u32 s45, s45, {WS_CS}")
    A(f"v_xor_b32 v203, 16, {v(CSO)}")

    def w1_loads(tag):
        for j in range(2):
            A.vmem(f"buffer_load_dwordx2 {v(180+2*j,2)}, v202, s[28:31], s44 offen offset:{128*j}{SL}", tag)
        for t in range(4):
            A.vmem(f"buffer_load_dwordx4 {v(CS+4*t,4)}, {v(203 if t & 1 else CSO)}, s[28:31], s45 offen offset:{128*(t>>1)}{SL}", tag)

    sp = Spec(A, 201, 7, w1_loads)

    def h7():
        tok_hook()
        sp.stage1()

    consts = gelu_consts(A, 148)
    A.srd_off(52, 58, 59, WS_HS, ACT_BYTES)
    A("s_lshl_b32 s47, s46, 3")
    for tp in range(2):
        A(f"v_add_u32 v24, s47, {v(VG)}")
        if tp:
            A("v_add_u32 v24, 4, v24")
        A("v_mul_u32_u24 v25, 4682, v24")
        A("v_lshrrev_b32 v25, 16, v25")
        A("v_lshrrev_b32 v26, 1, v25")
        A("v_add_u32 v26, 1, v26")
        A("v_and_b32 v25, 1, v25")
        A("v_sub_u32 v27, 0, v25")
        A("v_xor_b32 v26, v26, v27")
        A("v_add_u32 v26, v26, v25")
        A(f"v_add_u32 v26, v26, {v(VI)}")
        A("v_add_u32 v26, s39, v26")
        for j in range(2):
            o = 184 + 2 * j + tp
            if j:
                A("v_add_u32 v26, 16, v26")
            A("v_lshrrev_b32 v25, 4, v26")
            A("v_mul_u32_u24 v25, 14336, v25")
            A("v_and_b32 v27, 15, v26")
            A("v_lshl_add_u32 v25, v27, 4, v25")
            A("v_lshl_add_u32 v25, v24, 8, v25")
            A("v_cmp_gt_u32 vcc, 2048, v26")
            A("v_mov_b32 v27, 0x80000000")
            A("s_nop 0")
            A(f"v_cndmask_b32 {v(o)}, v27, v25, vcc")
    A("s_cmp_lg_u32 s40, 0")
    A("s_cbranch_scc1 p1_zd")
    A("s_cmp_eq_u32 s17, 0")
    A("s_cselect_b32 s48, 0, 1")
    A("s_cbranch_scc1 p1_z")
    A("s_cmp_lg_u32 s17, 15")
    A("s_cbranch_scc1 p1_zd")
    A.label("p1_z")
    A(f"v_and_b32 v24, 7, {v(VL)}")
    A("v_add_u32 v24, s47, v24")
    A("v_mul_u32_u24 v25, 4682, v24")
    A("v_lshrrev_b32 v25, 16, v25")
    A(f"v_lshrrev_b32 v26, 3, {v(VL)}")
    A("v_lshrrev_b32 v27, 1, v25")
    A("v_cmp_le_u32 s[50:51], v26, v27")
    A("v_and_b32 v25, 1, v25")
    A("v_cmp_eq_u32 vcc, s48, v25")
    A("s_and_b64 s[50:51], s[50:51], vcc")
    A("v_sub_u32 v27, 15, v26")
    A("s_cmp_eq_u32 s48, 0")
    A(f"s_cselect_b32 s49, 0, {127*14336}")
    A("s_cbranch_scc1 p1_z2")
    A("v_mov_b32 v26, v27")
    A.label("p1_z2")
    A("v_lshlrev_b32 v26, 4, v26")
    A("v_lshl_add_u32 v26, v24, 8, v26")
    for r in range(4):
        A(f"v_mov_b32 {v(188+r)}, 0")
    A("s_mov_b64 exec, s[50:51]")
    A(f"buffer_store_dwordx4 v[188:191], v26, s[52:55], s49 offen{SC}")
    A("s_mov_b64 exec, -1")
    A.label("p1_zd")
    big_mainloop(A, False, 128, V_XD2, True, hooks={7: tok_hook, PFAT: pf_hook, 10: sp.stage1, 12: sp.stage2})
    sp.finish()
    for j in range(2):
        for r in range(2):
            A(f"v_mov_b32 {v(MR[j]+r)}, {v(180+2*j)}")
            A(f"v_mov_b32 {v(RS[j]+r)}, {v(181+2*j)}")

    def st1(j, pk):
        for tp in range(2):
            A(f"buffer_store_dwordx4 {v(pk+4*tp,4)}, {v(184+2*j+tp)}, s[52:55], 0 offen{SC}")

    gelu_epilogue(A, CS, MR, RS, consts, 48, 32, st1)
    A("s_branch p1_done")
    A.label("helper")
    gen3.DMA_AT.clear()
    gen3.DMA_AT.update(DMA_SAVE)
    A.vm_restore([])
    A("s_load_dwordx2 s[10:11], s[0:1], 64")
    A("s_load_dwordx2 s[12:13], s[0:1], 48")
    A(f"s_sub_u32 s14, s2, {NWG}")
    for r in (236, 237, 238, 239, 241, 242, 243):
        A(f"v_mov_b32 v{r}, 0")
    A(f"v_lshrrev_b32 v4, 3, {v(VL)}")
    A(f"v_and_b32 v5, 7, {v(VL)}")
    A("v_lshlrev_b32 v5, 4, v5")
    A("s_lshl_b32 s15, s14, 6")
    A("s_lshl_b32 s16, s19, 3")
    A("s_add_u32 s15, s15, s16")
    A("v_add_u32 v4, s15, v4")
    A("v_mul_u32_u24 v6, 896, v4")
    A("v_add_u32 v6, v6, v5")
    A("s_waitcnt lgkmcnt(0)")
    A.srd(20, 4, 5, ACT_BYTES)
    A.srd(28, 58, 59, WS_SIZE)
    A.srd(48, 10, 11, D * 2)
    XB_, GB_, FB_ = 8, 40, 72
    for j in range(7):
        A.vmem(f"buffer_load_dwordx4 {v(XB_+4*j,4)}, v6, s[20:23], 0 offen offset:{128*j}", "hx")
    A(f"v_lshrrev_b32 v7, 3, {v(VL)}")

    def cs_setup(item_s):
        A(f"s_cmp_lt_u32 {item_s}, 7")
        A("s_cselect_b32 s24, s8, s12")
        A("s_cselect_b32 s25, s9, s13")
        A("s_movk_i32 s32, 896")
        A(f"s_cselect_b32 s32, s32, {F*2}")
        A(f"s_cselect_b32 s33, 0, 7")
        A(f"s_mov_b32 s26, {D*F*2}")
        A(f"s_cselect_b32 s26, {D*D*2}, s26")
        A("s_and_b32 s25, s25, 0xffff")
        A("s_mov_b32 s27, 0x00020000")
        A(f"s_sub_u32 s33, {item_s}, s33")
        A("s_lshl_b32 s33, s33, 7")
        A("s_mul_i32 s34, s19, 56")
        A("s_mul_i32 s34, s34, s32")
        A("s_add_u32 s33, s33, s34")
        A("v_mul_lo_u32 v130, v7, s32")
        A("v_add_u32 v130, v130, v5")
        A("s_lshl_b32 s32, s32, 3")
        for j in range(7):
            A.vmem(f"buffer_load_dwordx4 {v(132+4*j,4)}, v130, s[24:27], s33 offen", "hw")
            A("s_add_u32 s33, s33, s32")

    def cs_finish(item_s):
        A.vm_wait("hw")
        for j in range(7):
            for q in range(4):
                src = 132 + 4 * j + q
                if j == 0:
                    A(f"v_lshlrev_b32 {v(160+2*q)}, 16, {v(src)}")
                    A(f"v_and_b32 {v(161+2*q)}, 0xffff0000, {v(src)}")
                else:
                    A(f"v_lshlrev_b32 v168, 16, {v(src)}")
                    A(f"v_and_b32 v169, 0xffff0000, {v(src)}")
                    A(f"v_pk_add_f32 {v(160+2*q,2)}, {v(160+2*q,2)}, v[168:169]")
        A("s_nop 1")
        for q in range(4):
            A(f"v_permlane32_swap_b32 {v(160+2*q)}, {v(161+2*q)}")
        A("s_nop 0")
        for q in range(4):
            A(f"v_add_f32 {v(160+2*q)}, {v(160+2*q)}, {v(161+2*q)}")
        A("s_nop 1")
        for q in range(2):
            A(f"v_permlane16_swap_b32 {v(160+4*q)}, {v(162+4*q)}")
        A("s_nop 0")
        for q in range(2):
            A(f"v_add_f32 {v(160+4*q)}, {v(160+4*q)}, {v(162+4*q)}")
        A("s_nop 1")
        for q in range(2):
            A(f"v_add_f32_dpp {v(160+4*q)}, {v(160+4*q)}, {v(160+4*q)} row_ror:8 row_mask:0xf bank_mask:0xf")
        A("s_lshl_b32 s33, s19, 8")
        A("v_lshlrev_b32 v170, 1, v5")
        A(f"v_and_b32 v171, 1, {v(VG)}")
        A("v_lshl_add_u32 v170, v171, 3, v170")
        A(f"v_lshrrev_b32 v171, 1, {v(VG)}")
        A("v_lshl_add_u32 v170, v171, 2, v170")
        A("v_add_u32 v170, s33, v170")
        A("ds_write_b32 v170, v160")
        A("ds_write_b32 v170, v164 offset:16")
        A("s_waitcnt lgkmcnt(0)")
        A("s_barrier")
        l = A.newlabel("csw")
        A("s_cmp_lg_u32 s19, 0")
        A(f"s_cbranch_scc1 {l}")
        A(f"v_lshlrev_b32 v170, 2, {v(VL)}")
        for w in range(8):
            A(f"ds_read_b32 {v(160+w)}, v170 offset:{256*w}")
        A("s_waitcnt lgkmcnt(0)")
        for w in range(1, 8):
            A(f"v_add_f32 v160, v160, {v(160+w)}")
        A(f"s_lshl_b32 s33, {item_s}, 8")
        A(f"s_add_u32 s33, s33, {WS_CS}")
        A(f"buffer_store_dword v160, v170, s[28:31], s33 offen{SC}")
        A.label(l)

    def helper_pf():
        A("s_load_dwordx2 s[62:63], s[0:1], 16")
        A("s_load_dwordx4 s[64:67], s[0:1], 40")
        A("s_load_dwordx2 s[68:69], s[0:1], 56")
        A("s_lshl_b32 s60, s14, 3")
        A("s_add_u32 s60, s60, s19")
        A("s_lshl_b32 s60, s60, 10")
        A("s_waitcnt lgkmcnt(0)")
        for lo, size in ((64, D * D * 2), (66, D * F * 2), (62, D * D * 2), (68, D * F * 2)):
            A.srd(72, lo, lo + 1, size)
            for off in range(0, size, 262144):
                A(f"s_add_u32 s61, s60, {off}")
                A(f"buffer_load_dwordx4 v[204:207], {v(L16)}, s[72:75], s61 offen")

    cs_setup("s14")
    for j in range(7):
        A.vmem(f"buffer_load_dwordx4 {v(GB_+4*j,4)}, v5, s[48:51], 0 offen offset:{128*j}", "hg")
    if PFSM:
        A("s_lshl_b32 s33, s14, 3")
        A("s_add_u32 s33, s33, s19")
        A("s_lshl_b32 s33, s33, 11")
        A(f"s_add_u32 s33, s33, {WS_FLAG}")
        for q in range(2):
            A.vmem(f"buffer_load_dwordx4 v[204:207], {v(L16)}, s[28:31], s33 offen offset:{1024*q}", "pf")
    lt = A.newlabel("tok")
    A("s_or_b32 s85, s14, s19")
    A("s_cmp_lg_u32 s85, 0")
    A(f"s_cbranch_scc1 {lt}")
    A("s_or_b32 s85, s82, 1")
    A("v_mov_b32 v252, 0")
    A("v_mov_b32 v253, s85")
    A("s_mov_b64 exec, 1")
    A(f"global_store_dword v252, v253, s[56:57]{SC}")
    A("s_mov_b64 exec, -1")
    A.label(lt)
    if STAMPS:
        NST[0] -= 1
        stamp(A)
    if PFH == "1":
        A.vm_wait("hg")
        helper_pf()
    A.vm_wait("hx")
    for j in range(28):
        A(f"v_lshlrev_b32 {v(FB_+2*j)}, 16, {v(XB_+j)}")
        A(f"v_and_b32 {v(FB_+2*j+1)}, 0xffff0000, {v(XB_+j)}")
    A(f"v_pk_add_f32 v[128:129], {v(FB_,2)}, {v(FB_+2,2)}")
    for j in range(2, 28):
        A(f"v_pk_add_f32 v[128:129], v[128:129], {v(FB_+2*j,2)}")
    A("v_add_f32 v128, v128, v129")
    red8(A, 128, 0)
    A(f"v_mul_f32 v128, {f32bits(1.0/448):#x}, v128")
    A("v_sub_f32 v172, 0, v128")
    A("v_mov_b32 v173, v172")
    for j in range(28):
        A(f"v_pk_add_f32 {v(174+2*(j&3),2)}, {v(FB_+2*j,2)}, v[172:173]")
        if j == 0:
            A(f"v_pk_mul_f32 v[182:183], {v(174,2)}, {v(174,2)}")
        else:
            A(f"v_pk_fma_f32 v[182:183], {v(174+2*(j&3),2)}, {v(174+2*(j&3),2)}, v[182:183]")
    A("v_add_f32 v129, v182, v183")
    red8(A, 129, 0)
    A(f"v_mul_f32 v129, {f32bits(1.0/448):#x}, v129")
    ln_finish(A, 128, 129)
    A("v_lshlrev_b32 v170, 3, v4")
    A(f"s_mov_b32 s33, {WS_LN1}")
    A("s_mov_b32 exec_lo, 0x01010101")
    A("s_mov_b32 exec_hi, 0x01010101")
    A.vmem(f"buffer_store_dwordx2 v[128:129], v170, s[28:31], s33 offen{SC}", "hst")
    A("s_mov_b64 exec, -1")
    cs_finish("s14")
    get_token(A)
    A("s_barrier")
    flag_store(A, 0)
    A.vm_restore([])
    if STAMPS:
        keep = NST[0]
        NST[0] = 20
        stamp(A)
        NST[0] = keep
    if PFH == "2":
        helper_pf()
    A("s_add_u32 s15, s14, 32")
    A("s_cmp_ge_u32 s15, 35")
    A("s_cbranch_scc1 h_no2")
    cs_setup("s15")
    cs_finish("s15")
    A.label("h_no2")
    for j in range(28):
        A(f"v_lshlrev_b32 v168, 16, {v(GB_+j)}")
        A(f"v_and_b32 v169, 0xffff0000, {v(GB_+j)}")
        A(f"v_pk_mul_f32 {v(FB_+2*j,2)}, {v(FB_+2*j,2)}, v[168:169]")
    for j in range(56):
        rbf(A, FB_ + j)
    A(f"v_pk_add_f32 v[128:129], {v(FB_,2)}, {v(FB_+2,2)}")
    for j in range(2, 28):
        A(f"v_pk_add_f32 v[128:129], v[128:129], {v(FB_+2*j,2)}")
    A("v_add_f32 v128, v128, v129")
    red8(A, 128, 0)
    rbf(A, 128)
    A(f"v_mul_f32 v128, {f32bits(-LOG2E):#x}, v128")
    A("v_exp_f32 v128, v128")
    A("s_nop 0")
    A("v_add_f32 v128, 1.0, v128")
    A("v_rcp_f32 v128, v128")
    A("s_nop 0")
    rbf(A, 128)
    A("v_lshlrev_b32 v170, 2, v4")
    A(f"s_mov_b32 s33, {WS_G}")
    A("s_mov_b32 exec_lo, 0x01010101")
    A("s_mov_b32 exec_hi, 0x01010101")
    A(f"buffer_store_dword v128, v170, s[28:31], s33 offen{SC}")
    A("s_mov_b64 exec, -1")
    A("s_waitcnt vmcnt(0)")
    A("s_barrier")
    flag_store(A, 1)
    A.label("p1_done")
    A.vm_restore(["x"])
    stamp(A)
    L_X2, L_KV = 57344, 163840 - 49152
    A("s_load_dwordx2 s[4:5], s[0:1], 0")
    A("s_load_dwordx2 s[6:7], s[0:1], 40")
    A("s_load_dwordx2 s[8:9], s[0:1], 48")
    A("s_and_b32 s14, s2, 7")
    A("s_lshr_b32 s15, s2, 3")
    small_decode(A)
    A("s_and_b32 s46, s19, 3")
    A("s_lshr_b32 s47, s19, 2")
    A("s_lshr_b32 s16, s15, 4")
    A("s_lshl_b32 s48, s14, 1")
    A("s_add_u32 s48, s48, s16")
    A("s_and_b32 s49, s15, 15")
    A(f"s_cmp_ge_u32 s2, {NWG}")
    A("s_cbranch_scc1 p2_now2")
    A(f"v_mov_b32 v5, {v(U896)}")
    l = A.newlabel("sw")
    A("s_bitcmp1_b32 s19, 1")
    A(f"s_cbranch_scc0 {l}")
    A(f"v_mov_b32 v5, {v(U896S)}")
    A.label(l)
    A("s_and_b32 s38, s19, 1")
    A("s_lshl_b32 s38, s38, 6")
    A("v_xor_b32 v5, s38, v5")
    A("s_lshl_b32 s38, s18, 7")
    A(f"s_mul_i32 s39, s19, {8*896}")
    A("s_add_u32 s38, s38, s39")
    A("s_lshl_b32 s39, s19, 10")
    A("s_waitcnt lgkmcnt(0)")
    A.srd(20, 4, 5, ACT_BYTES)
    A.srd(24, 6, 7, D * D * 2)
    A("s_barrier")
    for u in range(7):
        A("s_mov_b32 m0, s39")
        A("s_add_u32 s39, s39, 8192")
        A.vmem("buffer_load_dwordx4 v5, s[24:27], s38 offen lds", "w2")
        A(f"s_add_u32 s38, s38, {64*896}")
    A("s_waitcnt vmcnt(7)")
    A("s_barrier")
    flag_store(A, 0)
    if PFLATE:
        lp_ = A.newlabel("pfl")
        A("s_cmp_eq_u32 s19, 0")
        A(f"s_cbranch_scc1 {lp_}")
        A("s_mul_i32 s60, s2, 7")
        A("s_add_u32 s60, s60, s19")
        A("s_sub_u32 s60, s60, 1")
        A("s_lshl_b32 s60, s60, 10")
        for lo, size in ((66, D * F * 2), (68, D * F * 2), (62, D * D * 2)):
            A.srd(72, lo, lo + 1, size)
            A(f"buffer_load_dwordx4 v[204:207], {v(L16)}, s[72:75], s60 offen")
        A.label(lp_)
    if L2WARM:
        A("s_lshl_b32 s36, s15, 3")
        A("s_add_u32 s36, s36, s19")
        A(f"s_mul_i32 s36, s36, {2*F*2}")
        A("s_and_b32 s37, s14, 1")
        A("s_mul_i32 s37, s37, 1792")
        A("s_add_u32 s36, s36, s37")
        A.srd(68, 8, 9, D * F * 2)
        for q in range(2):
            A(f"buffer_load_dwordx4 {v(208+8*q,4)}, {v(L16)}, s[68:71], s36 offen")
            A("s_mov_b32 exec_hi, 0x0000ffff")
            A(f"buffer_load_dwordx4 {v(212+8*q,4)}, {v(L16)}, s[68:71], s36 offen offset:1024")
            A("s_mov_b32 exec_hi, -1")
            A(f"s_add_u32 s36, s36, {F*2}")
    A.label("p2_now2")

    def deps2():
        A(f"v_mul_u32_u24 v232, 5958, {v(VL)}")
        A("v_lshrrev_b32 v232, 16, v232")
        A("v_mul_u32_u24 v233, 11, v232")
        A(f"v_sub_u32 v233, {v(VL)}, v233")
        A("v_add_u32 v232, s49, v232")
        A("v_subrev_u32 v232, 2, v232")
        A("v_max_i32 v232, 0, v232")
        A("s_lshl_b32 s85, s17, 6")
        A(f"v_subrev_u32 v234, 33, {v(VL)}")
        A("v_lshrrev_b32 v235, 2, v234")
        A("v_mul_u32_u24 v235, 67, v235")
        A("v_add_u32 v235, s85, v235")
        A("v_subrev_u32 v235, 2, v235")
        A("v_max_i32 v235, 0, v235")
        A("v_min_i32 v235, 2047, v235")
        A("v_lshrrev_b32 v235, 7, v235")
        A("v_and_b32 v234, 3, v234")
        A("v_add_u32 v234, 10, v234")
        A(f"v_cmp_lt_u32 vcc, 32, {v(VL)}")
        A("s_nop 1")
        A("v_cndmask_b32 v232, v232, v235, vcc")
        A("v_cndmask_b32 v233, v233, v234, vcc")
        big_id(A, 252, 232, 233, 234)
        A(f"s_cmp_lt_u32 s2, {NWG}")
        A("s_cselect_b32 exec_hi, 0x1ff, 1")

    QF, C0, C16, FB, SCB, PB, TM, OA = 8, 12, 16, 20, 36, 104, 140, 160
    QK = 200
    AF, WFB, AC, XR, TB = 32, 64, 96, 112, 16
    A("s_mul_i32 s50, s48, 7")
    A("s_lshr_b32 s50, s50, 1")
    A("s_lshl_b32 s51, s49, 3")
    A("s_mul_i32 s52, s19, 3")
    A("s_add_u32 s52, s52, s51")
    A("s_sub_u32 s52, s52, 16")
    A("s_lshl_b32 s54, s50, 8")
    A("s_mul_i32 s55, s19, 3072")
    A(f"s_add_u32 s55, s55, {L_KV}")
    A("s_lshl_b32 s40, s48, 17")
    A(f"s_add_u32 s40, s40, {WS_V}")
    for j in range(3):
        A(f"s_add_i32 s41, s52, {j}")
        A("s_max_i32 s41, s41, 0")
        A(f"s_mul_i32 s{62+j}, s41, {RT_BYTES}")
        A(f"s_add_u32 s{62+j}, s{62+j}, s54")
        A(f"s_add_u32 s{62+j}, s{62+j}, {WS_K}")
        A("s_lshl_b32 s41, s41, 10")
        A(f"s_add_u32 s{65+j}, s41, s40")
    A("s_add_u32 s52, s51, s19")
    A(f"s_mul_i32 s52, s52, {RT_BYTES}")
    A("s_add_u32 s53, s52, s54")
    A("s_lshl_b32 s32, s17, 2")
    A("s_add_u32 s32, s32, s46")
    A(f"s_mul_i32 s33, s32, {RT_BYTES}")
    A(f"s_mul_i32 s34, s47, {7*1024}")
    A("s_add_u32 s34, s34, s33")
    A(f"s_add_u32 s34, s34, {WS_HS}")
    A("s_add_u32 s35, s34, 4096")
    poll(A, deps2, "s_waitcnt vmcnt(0)")
    A.vm_restore([])
    stamp(A)
    A(f"s_cmp_ge_u32 s2, {NWG}")
    A("s_cbranch_scc1 p2_noa")
    for u in range(7):
        A.vmem(f"buffer_load_dwordx4 {v(AF+4*u,4)}, {v(L16)}, s[28:31], s{34+u//4} offen offset:{1024*(u%4)}{SL}", ("a", u))
    A.label("p2_noa")
    for j in range(3):
        A(f"s_add_u32 m0, s55, {1024*j}")
        A("s_nop 0")
        A.vmem(f"buffer_load_dwordx4 {v(L16)}, s[28:31], s{62+j} offen{SL} lds", "kv")
        A(f"s_add_u32 m0, s55, {24576+1024*j}")
        A("s_nop 0")
        A.vmem(f"buffer_load_dwordx4 {v(L16)}, s[28:31], s{65+j} offen{SL} lds", "kv")
    A.vmem(f"buffer_load_dwordx4 {v(QK,4)}, {v(L16)}, s[28:31], s53 offen{SL}", "kv")
    A(f"s_cmp_ge_u32 s2, {NWG}")
    A("s_cbranch_scc1 p2_attn")
    A("s_lshl_b32 s40, s32, 4")
    A(f"v_add_u32 v8, s40, {v(VI)}")
    A("v_mul_u32_u24 v9, 896, v8")
    A(f"v_lshrrev_b32 v10, 1, {v(CSO)}")
    A("v_xor_b32 v11, 8, v10")
    A("v_add_u32 v11, v11, v9")
    A("v_add_u32 v9, v10, v9")
    A("s_lshl_b32 s40, s18, 7")
    A("s_lshl_b32 s41, s47, 6")
    A("s_add_u32 s40, s40, s41")
    A.vmem(f"buffer_load_dwordx2 {v(XR,2)}, v9, s[20:23], s40 offen", "x")
    A.vmem(f"buffer_load_dwordx2 {v(XR+2,2)}, v11, s[20:23], s40 offen", "x")
    A(f"s_mul_i32 s41, s47, {7*4096}")
    for t in range(4):
        A(f"v_add_u32 {v(TB+t)}, s41, {v(PB4+t)}")
    for r in unit_reads(TB, 0, WFB):
        A(r)
    A("s_xor_b32 s41, s19, 4")
    A("s_lshl_b32 s41, s41, 11")
    A(f"s_add_u32 s41, s41, {L_X2}")
    A(f"v_add_u32 v12, s41, {v(L16)}")
    A("s_lshl_b32 s41, s19, 11")
    A(f"s_add_u32 s41, s41, {L_X2}")
    A(f"v_add_u32 v13, s41, {v(L16)}")
    for u in range(7):
        A.vm_wait(("a", u), " lgkmcnt(0)")
        rd = unit_reads(TB, (u + 1) * 4096, WFB + 16 * ((u + 1) & 1)) if u < 6 else []
        for t in range(4):
            c = v(AC + 4 * t, 4)
            A(f"v_mfma_f32_16x16x32_bf16 {c}, {v(WFB+16*(u&1)+4*t,4)}, {v(AF+4*u,4)}, {c if u else 0}")
            for r in rd[4*t:4*t+4] if t < 2 else []:
                A(r)
    A.vm_wait("x")
    XU = 32
    for j in range(4):
        A(f"v_lshlrev_b32 {v(XU+2*j)}, 16, {v(XR+j)}")
        A(f"v_and_b32 {v(XU+2*j+1)}, 0xffff0000, {v(XR+j)}")
    A("s_cmp_eq_u32 s47, 0")
    A("s_cbranch_scc1 p2_x0")
    for r in range(8):
        A(f"v_swap_b32 {v(AC+r)}, {v(AC+8+r)}")
    A.label("p2_x0")
    for t in range(2):
        A(f"ds_write_b128 v12, {v(AC+8+4*t,4)} offset:{1024*t}")
    A("s_lshl_b32 s40, s18, 11")
    A("s_add_u32 s40, s40, s33")
    A("s_lshl_b32 s41, s47, 10")
    A("s_add_u32 s40, s40, s41")
    A(f"s_add_u32 s40, s40, {WS_X1}")
    A("s_waitcnt lgkmcnt(0)")
    A("s_barrier")
    for t in range(2):
        A(f"ds_read_b128 {v(AC+8+4*t,4)}, v13 offset:{1024*t}")
    A("s_waitcnt lgkmcnt(0)")
    for r in range(8):
        A(f"v_add_f32 {v(AC+r)}, {v(AC+r)}, {v(AC+8+r)}")
    for r in range(8):
        rbf(A, AC + r)
    for r in range(8):
        A(f"v_add_f32 {v(AC+r)}, {v(AC+r)}, {v(XU+r)}")
    for j in range(4):
        A(f"v_cvt_pk_bf16_f32 {v(X1K+j)}, {v(AC+2*j)}, {v(AC+2*j+1)}")
    A.vmem(f"buffer_store_dwordx4 {v(X1K,4)}, {v(L16)}, s[28:31], s40 offen{SC}", "st")
    for r in range(8):
        rbf(A, AC + r)
    A(f"v_add_f32 v12, {v(AC)}, {v(AC+1)}")
    for r in range(2, 8):
        A(f"v_add_f32 v12, v12, {v(AC+r)}")
    xlane_g(A, "v_add_f32", 12, 14, 15)
    A(f"v_mul_f32 v14, {f32bits(1.0/32):#x}, v12")
    for r in range(8):
        A(f"v_sub_f32 {v(AC+r)}, {v(AC+r)}, v14")
    A(f"v_mul_f32 v13, {v(AC)}, {v(AC)}")
    for r in range(1, 8):
        A(f"v_fmac_f32 v13, {v(AC+r)}, {v(AC+r)}")
    xlane_g(A, "v_add_f32", 13, 14, 15)
    A("v_lshlrev_b32 v8, 7, v8")
    A("s_lshl_b32 s40, s18, 4")
    A("s_lshl_b32 s41, s47, 3")
    A("s_add_u32 s40, s40, s41")
    A(f"s_add_u32 s40, s40, {WS_ST}")
    A("s_mov_b64 exec, 0xffff")
    A.vmem(f"buffer_store_dwordx2 v[12:13], v8, s[28:31], s40 offen{SC}", "st")
    A("s_mov_b64 exec, -1")
    A("s_branch p2_attn2")
    A.label("p2_attn")
    A("s_waitcnt vmcnt(0)")
    A("s_barrier")
    A.label("p2_attn2")
    A.vm_restore(["st"])
    stamp(A)
    A("s_load_dwordx4 s[4:7], s[0:1], 40")
    A("s_load_dwordx2 s[8:9], s[0:1], 56")
    A("s_load_dwordx2 s[10:11], s[0:1], 16")
    A("s_lshl_b32 s61, s19, 10")
    A(f"s_add_u32 s61, s61, {L_KV}")
    A(f"v_add_u32 v4, s61, {v(L16)}")
    for i in range(3):
        A(f"ds_read_b128 {v(FB+4*(i%4),4)}, v4 offset:{1024*i}")
    A(f"v_mov_b32 {v(TM+1)}, {NEGBIG:#x}")
    for r in range(4):
        A(f"v_lshl_add_u32 {v(TM)}, {v(VG)}, 2, {r}")
        A(f"v_cmp_gt_u32 vcc, {v(TM)}, {v(VI)}")
        A(f"v_mov_b32 {v(QF+r)}, {v(QK+r)}")
        A("s_nop 0")
        A(f"v_cndmask_b32 {v(C0+r)}, {v(TM+1)}, 0, vcc")
        A(f"v_cndmask_b32 {v(C16+r)}, 0, {v(TM+1)}, vcc")
    A("s_lshr_b32 s53, s48, 1")
    A("s_mul_i32 s53, s53, 7")
    A("s_add_u32 s53, s53, 3")
    A("s_lshr_b32 s53, s53, 1")
    A("s_xor_b32 s53, s53, s48")
    A("s_bitcmp1_b32 s48, 0")
    A("s_cselect_b32 exec_lo, 0xffff, 0")
    A("s_cselect_b32 exec_hi, 0, 0xffff0000")
    A("s_bitcmp1_b32 s53, 0")
    A("s_cbranch_scc1 p2_q01")
    A(f"v_mov_b32 {v(QF+2)}, 0")
    A(f"v_mov_b32 {v(QF+3)}, 0")
    A("s_branch p2_qz")
    A.label("p2_q01")
    A(f"v_mov_b32 {v(QF)}, 0")
    A(f"v_mov_b32 {v(QF+1)}, 0")
    A.label("p2_qz")
    A("s_mov_b64 exec, -1")
    A("s_add_u32 s61, s51, s19")
    A("s_sub_i32 s61, 16, s61")
    A("s_cmp_gt_i32 s61, 0")
    A("s_cbranch_scc1 p2_qkslow")
    for slow in range(2):
        if slow:
            A.label("p2_qkslow")
        for i in range(17):
            if i + 3 < 17:
                A(f"ds_read_b128 {v(FB+4*((i+3)%4),4)}, v4 offset:{1024*(i+3)}")
            A(f"s_waitcnt lgkmcnt({min(3, 16-i)})")
            c = v(C0, 4) if i == 0 else (v(C16, 4) if i == 16 else "0")
            if slow and i < 16:
                l1, l2 = A.newlabel("k2i"), A.newlabel("k2j")
                A(f"s_cmp_gt_i32 s61, {i}")
                A(f"s_cbranch_scc1 {l1}")
            A(f"v_mfma_f32_16x16x32_bf16 {v(SCB+4*i,4)}, {v(FB+4*(i%4),4)}, {v(QF,4)}, {c}")
            if slow and i < 16:
                A(f"s_branch {l2}")
                A.label(l1)
                for r in range(4):
                    A(f"v_mov_b32 {v(SCB+4*i+r)}, {NEGBIG:#x}")
                A.label(l2)
        if not slow:
            A("s_branch p2_qkdone")
    A.label("p2_qkdone")
    A("s_lshr_b32 s61, s19, 1")
    A("s_lshl_b32 s61, s61, 11")
    A(f"s_add_u32 s61, s61, {L_KV+24576}")
    A(f"v_add_u32 v5, s61, {v(L16)}")
    for j in range(2):
        A(f"ds_read_b128 {v(FB+4*j,4)}, v5 offset:{1024*j}")
    M = TM
    KL, NB = TM + 17, TM + 18
    A(f"v_max3_f32 {v(M)}, {v(SCB)}, {v(SCB+1)}, {v(SCB+2)}")
    A(f"v_max3_f32 {v(M+1)}, {v(SCB+3)}, {v(SCB+4)}, {v(SCB+5)}")
    idx, k = 6, 0
    while idx < 68:
        A(f"v_max3_f32 {v(M+k)}, {v(M+k)}, {v(SCB+idx)}, {v(SCB+idx+1)}")
        idx += 2
        k ^= 1
    A(f"v_max_f32 {v(M)}, {v(M)}, {v(M+1)}")
    xlane_g(A, "v_max_f32", M, M + 1, M + 2)
    A(f"v_mov_b32 {v(KL)}, {f32bits(SCALE*LOG2E):#x}")
    A(f"v_mul_f32 {v(NB)}, {f32bits(-SCALE*LOG2E):#x}, {v(M)}")
    A("s_mul_i32 s60, s48, 7")
    A(f"v_add_u32 v6, s60, {v(VG)}")
    A(f"v_and_b32 {v(TM)}, 1, v6")
    A("v_lshrrev_b32 v6, 1, v6")
    A("v_lshlrev_b32 v6, 8, v6")
    A(f"v_lshl_add_u32 v6, {v(TM)}, 3, v6")
    A(f"v_lshl_add_u32 v6, {v(VI)}, 4, v6")
    A(f"s_add_u32 s60, s52, {WS_O}")
    big_decode(A)
    PITCH = F * 2
    A(f"s_mul_i32 s34, s40, {8*PITCH}")
    A("s_lshl_b32 s35, s33, 7")
    A("s_add_u32 s34, s34, s35")
    A(f"s_mov_b32 s38, {32*PITCH}")
    A("s_and_b32 s42, s40, 2")
    A("s_lshl_b32 s42, s42, 1")
    gen3.V_WD = 204
    unit_dma_voff(A, 204, "s43", "s42", PITCH, 205, 206)
    A(f"v_cmp_lt_u32 vcc, 6, {v(VL)}")
    A("s_lshl_b32 s85, s17, 1")
    A("v_mov_b32 v232, s85")
    A("v_addc_co_u32 v232, vcc, 0, v232, vcc")
    A(f"v_cmp_lt_u32 vcc, 6, {v(VL)}")
    A(f"v_subrev_u32 v233, 7, {v(VL)}")
    A("s_nop 0")
    A(f"v_cndmask_b32 v233, {v(VL)}, v233, vcc")
    A("v_and_b32 v234, 3, v232")
    A("v_mul_u32_u24 v234, 7, v234")
    A("v_add_u32 v234, v234, v233")
    A("v_lshrrev_b32 v232, 2, v232")
    A("v_lshl_add_u32 v232, v234, 3, v232")
    A("s_add_u32 s85, s33, 7")
    A("s_and_b32 s85, s85, 31")
    A(f"s_add_u32 s85, s85, {NWG}")
    A("v_writelane_b32 v232, s85, 14")
    A("v_lshlrev_b32 v232, 7, v232")
    A("v_add_u32 v232, 32768, v232")
    sp3 = Spec(A, 232, 0x7fff, lambda tag: None)
    A("s_lshl_b32 s35, s17, 3")
    A("s_add_u32 s35, s35, s19")
    A(f"s_mul_i32 s35, s35, {RT_BYTES}")
    A(f"s_add_u32 s35, s35, {WS_X1}")
    A(f"v_mov_b32 {v(V_XD)}, {v(L16)}")
    A.srd(20, 58, 59, WS_SIZE)
    A("s_mov_b32 s98, 0")

    def early_x():
        lx = A.newlabel("ex")
        A.vm_wait("sflag")
        A(f"v_cmp_ne_u32 s[96:97], s{TOK}, v253")
        A(f"s_cmp_ge_u32 s2, {NWG}")
        A(f"s_cbranch_scc1 {lx}")
        A("s_and_b64 s[96:97], s[96:97], 0x7fff")
        A(f"s_cbranch_scc1 {lx}")
        snap_x = A.vm_snapshot()
        gen3.XSC[0] = SL
        for ds in range(2):
            big_dma_parts(A, ds, 2048, V_XD)[0]()
        gen3.XSC[0] = ""
        A.vm_restore(snap_x)
        A("s_mov_b32 s98, 1")
        A.label(lx)
    A.srd(24, 6, 7, D * F * 2)
    A("s_waitcnt vmcnt(0)")
    A("s_barrier")
    A.vm_restore([])
    A(f"s_cmp_ge_u32 s2, {NWG}")
    A("s_cbranch_scc1 p2_now3")
    flag_store(A, 1)
    for ds in range(3):
        for p in big_dma_parts(A, ds, 2048, V_XD)[1:]:
            p()
    if L2WARM:
        A("s_lshl_b32 s44, s15, 3")
        A("s_add_u32 s44, s44, s19")
        A("s_mul_i32 s45, s44, 1792")
        A("s_mul_i32 s44, s44, 7168")
        A.srd(68, 8, 9, D * F * 2)
        A.srd(72, 10, 11, D * D * 2)
        for q in range(7):
            A.vmem(f"buffer_load_dwordx4 v[208:211], {v(L16)}, s[68:71], s44 offen offset:{1024*(q%4)}", "warm")
            if q == 3:
                A("s_add_u32 s44, s44, 4096")
        for q in range(2):
            A.vmem(f"buffer_load_dwordx4 v[208:211], {v(L16)}, s[72:75], s45 offen offset:{896*q}", "warm")
    A.label("p2_now3")
    A("s_bitcmp1_b32 s19, 0")
    A("s_cbranch_scc1 p2_odd")
    for par in range(2):
        if par:
            A.label("p2_odd")
        zs = 17 if par == 0 else 0
        A(f"v_mov_b32 {v(PB+2*zs)}, 0")
        A(f"v_mov_b32 {v(PB+2*zs+1)}, 0")
        nread = 2
        if par:
            A.vm_restore(snap_att)
        snap_att = A.vm_snapshot()
        for c in range(9):
            if c == SP3C:
                sp3.stage1()
            if c == SP3C + 2:
                early_x()
            els = []
            for half in range(2):
                slot = 2 * c + half
                if slot != zs:
                    els += [SCB + 4 * (slot - par) + r for r in range(4)]
            for e in els:
                A(f"v_fma_f32 {v(e)}, {v(e)}, {v(KL)}, {v(NB)}")
            for e in els:
                A(f"v_exp_f32 {v(e)}, {v(e)}")
            while nread < min(18, 2 * c + 4):
                A(f"ds_read_b128 {v(FB+4*(nread%4),4)}, v5 offset:{1024*nread}")
                nread += 1
            if c >= 7:
                A("s_nop 0")
            for half in range(2):
                slot = 2 * c + half
                if slot == zs:
                    continue
                i = slot - par
                A(f"v_cvt_pk_bf16_f32 {v(PB+2*slot)}, {v(SCB+4*i)}, {v(SCB+4*i+1)}")
                A(f"v_cvt_pk_bf16_f32 {v(PB+2*slot+1)}, {v(SCB+4*i+2)}, {v(SCB+4*i+3)}")
            A(f"s_waitcnt lgkmcnt({nread - (2*c+2)})")
            A("s_nop 0")
            for dt in range(2):
                A(f"v_mfma_f32_16x16x32_bf16 {v(OA+4*dt,4)}, {v(FB+4*((2*c+dt)%4),4)}, {v(PB+4*c,4)}, {v(OA+4*dt,4) if c else 0}")
        if par == 0:
            A("s_branch p2_out")
    A.label("p2_out")
    A(f"v_mov_b32 {v(TM)}, 0")
    A("s_lshl_b32 s42, s40, 12")
    A(f"v_add_u32 {v(V_XR[0])}, s42, {v(L16)}")
    A(f"v_add_u32 {v(V_XR[1])}, {2*SLOT}, {v(V_XR[0])}")
    A("s_mov_b32 exec_lo, 0")
    A("s_mov_b32 exec_hi, 0xffff0000")
    A(f"v_mov_b32 {v(TM)}, {v(OA+4)}")
    A("s_mov_b64 exec, -1")
    xlane_g(A, "v_add_f32", TM, TM + 1, TM + 2)
    A(f"v_rcp_f32 {v(TM)}, {v(TM)}")
    A("s_nop 0")
    for r in range(8):
        A(f"v_mul_f32 {v(OA+r)}, {v(TM)}, {v(OA+r)}")
    for r in range(4):
        A(f"v_cvt_pk_bf16_f32 {v(TM+4+r)}, {v(OA+2*r)}, {v(OA+2*r+1)}")
    A.vmem(f"buffer_store_dwordx2 {v(TM+4,2)}, v6, s[28:31], s60 offen{SC}", "ost")
    ex48(A)
    A.vmem(f"buffer_store_dwordx2 {v(TM+6,2)}, v6, s[28:31], s60 offen offset:512{SC}", "ost")
    exall(A)
    l3 = A.newlabel("p3go")
    A(f"s_cmp_lt_u32 s2, {NWG}")
    A(f"s_cbranch_scc1 {l3}")
    A("s_waitcnt vmcnt(0)")
    A("s_barrier")
    flag_store(A, 2)
    A("s_endpgm")
    A.label(l3)
    big_bases(A, PB4)
    A("s_lshl_b32 s39, s17, 3")
    A("s_lshl_b32 s42, s40, 1")
    A("s_add_u32 s39, s39, s42")
    A("s_lshl_b32 s42, s39, 4")
    A(f"v_add_u32 v24, s42, {v(VI)}")
    A("v_lshlrev_b32 v24, 7, v24")
    A(f"v_lshl_add_u32 v24, {v(VG)}, 5, v24")
    A(f"s_mov_b32 s46, {WS_ST}")
    A("s_lshl_b32 s45, s33, 8")
    A(f"s_add_u32 s45, s45, {WS_CS + 7*256}")
    A(f"v_xor_b32 v203, 16, {v(CSO)}")
    stamp(A)
    l = A.newlabel("sp3")
    A("s_cmp_eq_u32 s98, 1")
    A(f"s_cbranch_scc1 {l}")
    A("s_mov_b64 exec, 0x7fff")
    spin(A, 232)
    gen3.XSC[0] = SL
    for ds in range(2):
        big_dma_parts(A, ds, 2048, V_XD)[0]()
    A.label(l)
    stamp(A)
    STR = 180

    def h3a():
        for j in range(2):
            for q in range(2):
                A.vmem(f"buffer_load_dwordx4 {v(STR+8*j+4*q,4)}, v24, s[28:31], s46 offen offset:{2048*j+16*q}{SL}", "st")
        for t in range(4):
            A.vmem(f"buffer_load_dwordx4 {v(CS+4*t,4)}, {v(203 if t & 1 else CSO)}, s[28:31], s45 offen offset:{128*(t>>1)}{SL}", "st")
        A("s_load_dwordx2 s[4:5], s[0:1], 16")
        A("s_load_dwordx2 s[6:7], s[0:1], 56")
        A("s_load_dwordx2 s[8:9], s[0:1], 72")

    RS4, PF4 = 6, 4
    RING = RS4 * 4096
    L4_WO, L4_R = 0, 57344
    OFB = 204
    def o_loads(tag):
        for u in range(7):
            A.vmem(f"buffer_load_dwordx4 {v(OFB+4*u,4)}, {v(L16)}, s[28:31], s{62+u//4} offen offset:{1024*(u%4)}{SL}", tag)
        A.vmem(f"buffer_load_dword v247, v246, s[28:31], s64 offen{SL}", tag)

    sp4 = Spec(A, 245, 0x1ffff, o_loads)

    def h3b():
        A("s_mul_i32 s16, s15, 9363")
        A("s_lshr_b32 s16, s16, 16")
        A("s_mul_i32 s69, s16, 7")
        A("s_sub_u32 s69, s15, s69")
        A("s_lshl_b32 s68, s14, 2")
        A("s_add_u32 s68, s68, s16")
        A(f"v_and_b32 v245, 1, {v(VL)}")
        A("v_lshlrev_b32 v245, 4, v245")
        A("s_lshr_b32 s85, s68, 1")
        A("v_add_u32 v245, s85, v245")
        A(f"v_lshrrev_b32 v246, 1, {v(VL)}")
        A("v_lshl_add_u32 v245, v245, 3, v246")
        A("v_lshlrev_b32 v245, 7, v245")
        A("v_add_u32 v245, 65536, v245")
        A(f"s_add_u32 s85, s68, {NWG}")
        A("s_lshl_b32 s85, s85, 7")
        A("s_add_u32 s85, s85, 32768")
        A("v_writelane_b32 v245, s85, 16")
        A("s_lshl_b32 s70, s68, 2")
        A("s_add_u32 s70, s70, s40")
        A(f"s_mul_i32 s62, s70, {RT_BYTES}")
        A(f"s_mul_i32 s63, s41, {7*1024}")
        A("s_add_u32 s62, s62, s63")
        A(f"s_add_u32 s62, s62, {WS_O}")
        A("s_add_u32 s63, s62, 4096")
        A("s_lshl_b32 s85, s70, 4")
        A(f"v_add_u32 v244, s85, {v(VI)}")
        A("v_lshlrev_b32 v246, 2, v244")
        A(f"s_mov_b32 s64, {WS_G}")
        sp4.stage1()

    def h3c():
        A.vm_wait("st")
        A("s_mov_b32 exec_lo, 0")
        A("s_mov_b32 exec_hi, 0xffff0000")
        for j in range(2):
            for r in range(4, 8):
                A(f"v_mov_b32 {v(STR+8*j+r)}, 0")
        A("s_mov_b64 exec, -1")
        for j in range(2):
            b = STR + 8 * j
            m, q = MR[j], RS[j]
            A(f"v_add_f32 {v(m)}, {v(b)}, {v(b+2)}")
            A(f"v_add_f32 {v(q)}, {v(b+4)}, {v(b+6)}")
            A(f"v_add_f32 {v(m)}, {v(m)}, {v(q)}")
            xlane_g(A, "v_add_f32", m, 196, 197)
            A(f"v_mul_f32 {v(m)}, {f32bits(1.0/448):#x}, {v(m)}")
            A(f"v_add_f32 {v(q)}, {v(b+1)}, {v(b+3)}")
            A(f"v_add_f32 {v(q)}, {v(q)}, {v(b+5)}")
            A(f"v_add_f32 {v(q)}, {v(q)}, {v(b+7)}")
            for r in (0, 2, 4, 6):
                A(f"v_mul_f32 {v(b+r)}, {f32bits(1.0/32):#x}, {v(b+r)}")
                A(f"v_sub_f32 {v(b+r)}, {v(b+r)}, {v(m)}")
            A(f"v_mul_f32 {v(b)}, {v(b)}, {v(b)}")
            A(f"v_fmac_f32 {v(b)}, {v(b+2)}, {v(b+2)}")
            ex48(A)
            A(f"v_fmac_f32 {v(b)}, {v(b+4)}, {v(b+4)}")
            A(f"v_fmac_f32 {v(b)}, {v(b+6)}, {v(b+6)}")
            exall(A)
            A(f"v_fmamk_f32 {v(q)}, {v(b)}, {f32bits(32.0):#x}, {v(q)}")
            xlane_g(A, "v_add_f32", q, 196, 197)
            A(f"v_mul_f32 {v(q)}, {f32bits(1.0/448):#x}, {v(q)}")
            ln_finish(A, m, q)
            A(f"v_mov_b32 {v(m+1)}, {v(m)}")
            A(f"v_mov_b32 {v(q+1)}, {v(q)}")
        gelu_consts(A, 148)
        A(f"s_mul_i32 s42, s39, {H3_RT_BYTES}")
        A("s_lshl_b32 s43, s33, 11")
        A("s_add_u32 s42, s42, s43")
        A(f"s_add_u32 s42, s42, {WS_H3}")
        A(f"s_add_u32 s43, s42, {H3_RT_BYTES}")

    consts = (148, 150, 152)
    big_mainloop(A, False, 2048, V_XD, False, wdone=(0, 1, 2), hooks={4: lambda: flag_store(A, 2), 7: h3a, 9: h3b, 11: h3c})
    gen3.XSC[0] = ""
    stamp(A)
    A(f"v_mov_b32 v6, {v(U896)}")
    A("s_and_b32 s85, s19, 1")
    A("s_lshl_b32 s85, s85, 6")
    A("v_xor_b32 v6, s85, v6")
    A("v_xor_b32 v7, 64, v6")
    A("s_lshl_b32 s66, s69, 7")
    A(f"s_mul_i32 s65, s19, {7*8*896}")
    A("s_add_u32 s65, s65, s66")
    A("s_mul_i32 s67, s19, 7168")
    A.srd(20, 4, 5, D * D * 2)
    A("s_barrier")
    fill3 = []
    for u in range(7):
        def f_(u=u):
            A("s_mov_b32 m0, s67")
            A("s_add_u32 s67, s67, 1024")
            A.vmem(f"buffer_load_dwordx4 v{6+(u&1)}, s[20:23], s65 offen lds", "wo")
            A(f"s_add_u32 s65, s65, {8*896}")
        fill3.append(f_)

    def f_flag():
        A.vm_wait("sflag")
        A(f"v_cmp_ne_u32 s[96:97], s{TOK}, v253")
    fill3.append(f_flag)
    for u in range(7):
        fill3.append(lambda u=u: A.vmem(f"buffer_load_dwordx4 {v(OFB+4*u,4)}, {v(L16)}, s[28:31], s{62+u//4} offen offset:{1024*(u%4)}{SL}", "sdata"))
    fill3.append(lambda: A.vmem(f"buffer_load_dword v247, v246, s[28:31], s64 offen{SL}", "sdata"))

    class Inter:
        def __init__(self, n):
            self.n, self.c = n, 0

        def __call__(self, line):
            A(line)
            self.c += 1
            if self.c % self.n == 0 and fill3:
                fill3.pop(0)()

    def st3(j, pk):
        for tp in range(2):
            A.vmem(f"buffer_store_dwordx4 {v(pk+4*tp,4)}, {v(L16)}, s[28:31], s{42+j} offen offset:{1024*tp}{SC}", "hst")

    gelu_epilogue(Inter(FILLN), CS, MR, RS, consts, 48, 32, st3)
    while fill3:
        fill3.pop(0)()
    stamp(A)
    NA = PF4 + 2
    AFB = 32
    WFB = AFB + NA * 8
    ACB = WFB + 32
    AWO = ACB + 32
    WOF = AWO + 16
    assert WOF + 32 <= OFB
    GR = 247
    TB, TO = 20, 24
    af = lambda sx, j: AFB + ((sx % NA) * 2 + j) * 4
    ac = lambda j, t: v(ACB + (j * 4 + t) * 4, 4)
    for m in range(1, 4):
        A(f"v_add_u32 v{8+m}, {4096*m}, {v(L16)}")
    A(f"v_mov_b32 v8, {v(L16)}")
    A(f"v_mov_b32 v4, {v(U896)}")
    l = A.newlabel("sw")
    A("s_cmp_eq_u32 s41, 0")
    A(f"s_cbranch_scc1 {l}")
    A(f"v_mov_b32 v4, {v(U896S)}")
    A.label(l)
    A("v_xor_b32 v5, 64, v4")
    A("s_lshl_b32 s32, s68, 2")
    A("s_lshl_b32 s33, s41, 1")
    A("s_add_u32 s32, s32, s33")
    A(f"s_mul_i32 s32, s32, {H3_RT_BYTES}")
    A(f"s_mul_i32 s33, s40, {14*1024}")
    A("s_add_u32 s32, s32, s33")
    A(f"s_add_u32 s32, s32, {WS_H3}")
    A(f"s_add_u32 s33, s32, {H3_RT_BYTES}")
    A(f"s_mul_i32 s36, s40, {448*896}")
    A(f"s_mul_i32 s34, s41, {16*896}")
    A("s_add_u32 s36, s36, s34")
    A("s_add_u32 s36, s36, s66")
    A(f"s_mul_i32 s35, s40, {RING}")
    A(f"s_add_u32 s35, s35, {L4_R}")
    A("s_lshl_b32 s37, s41, 11")
    A("s_add_u32 s37, s37, s35")
    A(f"s_mul_i32 s44, s41, {7*4096}")
    for t in range(4):
        A(f"v_add_u32 {v(TO+t)}, s44, {v(PB4+t)}")
        A(f"v_add_u32 {v(TB+t)}, s35, {v(PB4+t)}")
    A.srd(24, 6, 7, F * D * 2)
    A.srd(48, 8, 9, ACT_BYTES)

    ROT = os.environ.get("ROT", "0") == "1"
    if ROT:
        A("s_lshl_b32 s72, s69, 1")
        A(f"s_add_u32 s73, s36, {14*32*896}")
        A(f"s_mul_i32 s74, s72, {32*896}")
        A("s_add_u32 s36, s36, s74")
        A(f"s_add_u32 s75, s32, {14*1024}")
        A("s_lshl_b32 s74, s72, 10")
        A("s_add_u32 s32, s32, s74")

    def w_parts(sx):
        parts = []
        for j in range(2):
            def p(j=j):
                A(f"s_add_u32 m0, s37, {(sx%RS4)*4096 + j*1024}")
                A("s_nop 0")
                A.vmem(f"buffer_load_dwordx4 v{4+j}, s[24:27], s36 offen lds", ("w", sx))
                A(f"s_add_u32 s36, s36, {8*896 if j == 0 else 24*896}")
                if ROT and j == 1:
                    A(f"s_sub_u32 s74, s36, {14*32*896}")
                    A("s_cmp_ge_u32 s36, s73")
                    A("s_cselect_b32 s36, s74, s36")
            parts.append(p)
        return parts

    def a_parts(sx):
        if ROT:
            def p0():
                A(f"s_add_u32 s33, s32, {H3_RT_BYTES}")
                A.vmem(f"buffer_load_dwordx4 {v(af(sx,0),4)}, v8, s[28:31], s32 offen{SL}", ("ld", sx))

            def p1():
                A.vmem(f"buffer_load_dwordx4 {v(af(sx,1),4)}, v8, s[28:31], s33 offen{SL}", ("ld", sx))
                A("s_add_u32 s32, s32, 1024")
                A(f"s_sub_u32 s74, s32, {14*1024}")
                A("s_cmp_ge_u32 s32, s75")
                A("s_cselect_b32 s32, s74, s32")
            return [p0, p1]
        return [lambda j=j: A.vmem(f"buffer_load_dwordx4 {v(af(sx,j),4)}, v{8+sx//4}, s[28:31], s{32+j} offen offset:{1024*(sx%4)}{SL}", ("ld", sx)) for j in range(2)]

    sp4.finish()
    A("s_barrier")
    for r in unit_reads(TO, 0, WOF):
        A(r)
    for u in range(7):
        A("s_waitcnt lgkmcnt(0)")
        rd = unit_reads(TO, (u + 1) * 4096, WOF + 16 * ((u + 1) & 1)) if u < 6 else []
        for t in range(4):
            c = v(AWO + 4 * t, 4)
            A(f"v_mfma_f32_16x16x32_bf16 {c}, {v(WOF+16*(u&1)+4*t,4)}, {v(OFB+4*u,4)}, {c if u else 0}")
            for r in rd[4*t:4*t+4] if t < 2 else []:
                A(r)
            if t >= 2 and u >= 1:
                w_parts(u - 1)[t - 2]()
        if u == 1:
            A.vm_wait("hst")
            A("s_barrier")
            flag_store(A, 3)
    stamp(A)

    def deps4b():
        A("s_lshr_b32 s85, s68, 1")
        A("v_mov_b32 v232, s85")
        A(f"v_mov_b32 v233, {v(VL)}")
        big_id(A, 252, 232, 233, 234)
        A(f"v_add_u32 v252, {3*32768}, v252")
        A("s_mov_b64 exec, 0x3fff")

    poll(A, deps4b, "s_waitcnt vmcnt(0)")
    A.vm_restore([])
    stamp(A)
    na = [0]

    def take_a(n, limit):
        out = []
        while n > 0 and na[0] < 14 and na[0] <= limit:
            out += a_parts(na[0])
            na[0] += 1
            n -= 1
        return out

    for p in take_a(3, 2):
        p()
    for r in unit_reads(TB, 0, WFB):
        A(r)
    for sx in range(14):
        tags = [("ld", sx)]
        bar = sx % 2 == 0 and 0 < sx < 13
        if bar:
            tags += [("w", t) for t in (sx + 1, sx + 2) if 5 < t < 14]
        A.vm_wait(tags, " lgkmcnt(0)")
        if bar:
            A("s_barrier")
        rd = unit_reads(TB, ((sx + 1) % RS4) * 4096, WFB + 16 * ((sx + 1) & 1)) if sx < 13 else []
        parts = take_a(2, sx + 1 + PF4)
        wt = [6] if sx == 2 else []
        wt += [sx + 5] if 2 <= sx and sx + 5 < 14 else []
        for t in wt:
            parts += w_parts(t)
        mf = [f"v_mfma_f32_16x16x32_bf16 {ac(j,t)}, {v(WFB+16*(sx&1)+4*t,4)}, {v(af(sx,j),4)}, {ac(j,t) if sx else 0}" for t in range(4) for j in range(2)]
        E4 = os.environ.get("E4", "")
        for i, m in enumerate(mf):
            if "m" not in E4:
                A(m)
            for _ in range(2):
                if rd:
                    r_ = rd.pop(0)
                    if "r" not in E4:
                        A(r_)
            for _ in range(-(-len(parts) // (len(mf) - i))):
                parts.pop(0)()
        assert not rd and not parts
    stamp(A)
    A("s_lshl_b32 s52, s40, 14")
    A("s_lshl_b32 s53, s41, 13")
    A("s_add_u32 s52, s52, s53")
    A("v_add_u32 v12, s52, v8")
    A("s_lshl_b32 s52, s41, 14")
    A("s_lshl_b32 s53, s40, 12")
    A("s_add_u32 s52, s52, s53")
    A("s_add_u32 s52, s52, 65536")
    A("v_add_u32 v13, s52, v8")
    A("s_barrier")
    for t in range(4):
        A(f"ds_write_b128 v13, {v(AWO+4*t,4)} offset:{t*1024}")
    for j in range(2):
        for t in range(4):
            A(f"ds_write_b128 v12, {ac(j,t)} offset:{(j*4+t)*1024}")
    A("s_lshl_b32 s52, s40, 12")
    A("s_lshl_b32 s53, s41, 11")
    A("s_add_u32 s52, s52, s53")
    A("v_add_u32 v12, s52, v8")
    A("v_add_u32 v13, 65536, v12")
    XU = OFB
    for j in range(4):
        A(f"v_lshlrev_b32 {v(XU+2*j)}, 16, {v(X1K+j)}")
        A(f"v_and_b32 {v(XU+2*j+1)}, 0xffff0000, {v(X1K+j)}")
    A(f"v_sub_f32 v19, 1.0, {v(GR)}")
    rbf(A, 19)
    A("v_mul_u32_u24 v14, 896, v244")
    A(f"v_lshrrev_b32 v16, 1, {v(CSO)}")
    A("v_xor_b32 v15, 8, v16")
    A("v_add_u32 v15, v15, v14")
    A("v_add_u32 v14, v16, v14")
    A("s_lshl_b32 s53, s41, 6")
    A("s_add_u32 s52, s66, s53")
    A("s_waitcnt lgkmcnt(0)")
    A("s_barrier")
    RB = 32
    for q in range(4):
        for t in range(2):
            A(f"ds_read_b128 {v(RB+8*q+4*t,4)}, v12 offset:{16384*q + 1024*t}")
    for q in range(2):
        for t in range(2):
            A(f"ds_read_b128 {v(RB+32+8*q+4*t,4)}, v13 offset:{16384*q + 1024*t}")
    A("s_waitcnt lgkmcnt(4)")
    for r in range(8):
        A(f"v_add_f32 {v(RB+r)}, {v(RB+r)}, {v(RB+8+r)}")
        A(f"v_add_f32 {v(RB+16+r)}, {v(RB+16+r)}, {v(RB+24+r)}")
    for r in range(8):
        A(f"v_add_f32 {v(RB+r)}, {v(RB+r)}, {v(RB+16+r)}")
    for r in range(8):
        rbf(A, RB + r)
    for r in range(8):
        A(f"v_add_f32 {v(RB+r)}, {v(RB+r)}, {v(XU+r)}")
    for r in range(8):
        rbf(A, RB + r)
    A("s_waitcnt lgkmcnt(0)")
    AU = RB + 32
    for r in range(8):
        A(f"v_add_f32 {v(AU+r)}, {v(AU+r)}, {v(AU+8+r)}")
        A(f"v_mul_f32 {v(RB+r)}, v19, {v(RB+r)}")
    for r in range(8):
        rbf(A, AU + r)
        rbf(A, RB + r)
    for r in range(8):
        A(f"v_mul_f32 {v(AU+r)}, {v(GR)}, {v(AU+r)}")
    for r in range(8):
        rbf(A, AU + r)
    for r in range(8):
        A(f"v_add_f32 {v(RB+r)}, {v(RB+r)}, {v(AU+r)}")
    for j in range(4):
        A(f"v_cvt_pk_bf16_f32 {v(XU+j)}, {v(RB+2*j)}, {v(RB+2*j+1)}")
    A(f"buffer_store_dwordx2 {v(XU,2)}, v14, s[48:51], s52 offen")
    A(f"buffer_store_dwordx2 {v(XU+2,2)}, v15, s[48:51], s52 offen")
    stamp(A)
    A.label(Lend)
    A("s_endpgm")
    if PFCODE:
        for _ in range(256):
            A("s_nop 0")
        A.label("k_codeend")
        for _ in range(256):
            A("s_nop 0")
        A("s_endpgm")
    return A.text()


def build():
    hdr = open("gated_mix__sliding_block__mixer_s_mlp__prompt.s.ref").read().split("; Override launch")[0]
    out = hdr + "; @launch grid=(256,1,1) block=(512,1,1) lds=163840\n"
    out += '.amdgcn_target "amdgcn-amd-amdhsa--gfx950"\n.text\n'
    out += kernel_head(KNAME) + gen()
    out += '.section .rodata,"a"\n' + kernel_desc(KNAME, 256, 256)
    return out


if __name__ == "__main__":
    dst = sys.argv[1] if len(sys.argv) > 1 else "gated_mix__sliding_block__mixer_s_mlp__prompt.s"
    open(dst, "w").write(build())
    print("wrote", dst)
```

```python
import os
import sys
from asmlib import Asm, v, a, s, f32bits, kernel_desc, kernel_head
import gen3
from gen2 import (lane_setup, xlane_g, rbf, ln_finish, gelu_consts, ex48, exall,
                  S, D, F, MB, WS_K, WS_V, WS_HS, WS_X1, WS_O, WS_H3, WS_G, WS_ST, WS_SIZE, WS_DBG, ACT_BYTES, RT_BYTES,
                  H3_RT_BYTES, LOG2E, SCALE, NEGBIG, STAMPS, VL, VI, VG)
from gen3 import (unit_bases, unit_dma_voff, unit_reads, big_mainloop, big_dma_parts, big_decode,
                  gelu_epilogue, small_decode, SLOT, V_XD, V_XD2, V_WD, V_XR, V_TB, ACC, NWG)

KNAME = "gated_mix__sliding_block__mixer_s_mlp__prompt_kernel"
WS_FLAG = 26 * MB
WS_ST = WS_FLAG + 131072
WS_G = WS_FLAG + 393216
WS_LN1 = WS_FLAG + 409600
WS_CS = WS_FLAG + 425984
TOK = 84
PB4 = 236
L16 = 240
U896, U896S = 241, 242
CSO = 243
X1K = 248
SC = " sc1"
SL = " sc1"
SP3C = int(os.environ.get("SP3C", "5"))
PFAT = int(os.environ.get("PFAT", "8"))
PFWS = os.environ.get("PFWS", "0") == "1"
PFSM = os.environ.get("PFSM", "1") == "1"
PFCODE = os.environ.get("PFCODE", "1") == "1"
PFLATE = os.environ.get("PFLATE", "0") == "1"
PFH = os.environ.get("PFH", "0")
FILLN = int(os.environ.get("FILLN", "1"))
PUBC = int(os.environ.get("PUBC", "3"))
L2WARM = os.environ.get("L2WARM", "0") == "1"
gen3.stamp = lambda A, i: None
gen3.CZERO[0] = True
NST = [0]


def stamp(A):
    if not STAMPS:
        return
    i = NST[0]
    NST[0] += 1
    A("s_memrealtime s[86:87]")
    A("s_lshl_b32 s88, s2, 11")
    A("s_lshl_b32 s89, s19, 7")
    A("s_add_u32 s88, s88, s89")
    A(f"s_add_u32 s88, s88, {WS_DBG + 4*i}")
    A("s_mov_b64 s[90:91], exec")
    A("s_mov_b64 exec, 1")
    A("v_mov_b32 v254, 0")
    A("s_waitcnt lgkmcnt(0)")
    A("v_mov_b32 v255, s86")
    A.vmem("buffer_store_dword v255, v254, s[28:31], s88 offen", "stamp")
    A("s_mov_b64 exec, s[90:91]")


def xstamp(A, i):
    if STAMPS:
        keep = NST[0]
        NST[0] = i
        stamp(A)
        NST[0] = keep


def flag_store(A, kind):
    l = A.newlabel("pub")
    A("s_cmp_lg_u32 s19, 0")
    A(f"s_cbranch_scc1 {l}")
    A("s_lshl_b32 s85, s2, 7")
    A(f"s_add_u32 s85, s85, {WS_FLAG + kind*32768}")
    A("v_mov_b32 v252, 0")
    A(f"v_mov_b32 v253, s{TOK}")
    A("s_mov_b64 exec, 1")
    A(f"buffer_store_dword v253, v252, s[28:31], s85 offen{SC}")
    A("s_mov_b64 exec, -1")
    A.label(l)


def tok_ok(A):
    A(f"s_sub_i32 s85, s82, s{TOK}")
    A("s_cmp_lt_i32 s85, 1500")
    A(f"s_cselect_b32 s85, s{TOK}, 0")
    A("s_cmp_lg_u32 s85, 0")


def get_token(A):
    l, l2 = A.newlabel("tok"), A.newlabel("tok")
    A("v_mov_b32 v252, 0")
    A("s_mov_b32 s93, 0")
    A.label(l)
    A(f"global_load_dword v253, v252, s[56:57]{SC}")
    A("s_add_u32 s93, s93, 1")
    A("s_waitcnt vmcnt(0)")
    A(f"v_readfirstlane_b32 s{TOK}, v253")
    A("s_cmp_ge_u32 s93, 0x4000")
    A(f"s_cbranch_scc1 {l2}")
    tok_ok(A)
    A(f"s_cbranch_scc0 {l}")
    A.label(l2)


def spin(A, vaddr):
    lp = A.newlabel("pol")
    A(f"s_mov_b32 s85, {WS_FLAG}")
    A("s_mov_b32 s93, 0")
    A.label(lp)
    A(f"buffer_load_dword v253, {v(vaddr)}, s[28:31], s85 offen{SC}")
    A("s_add_u32 s93, s93, 1")
    A("s_waitcnt vmcnt(0)")
    A(f"v_cmp_ne_u32 vcc, s{TOK}, v253")
    A("s_cmp_lt_u32 s93, 0x20000")
    A("s_cselect_b64 s[94:95], vcc, 0")
    A("s_cmp_lg_u64 s[94:95], 0")
    A(f"s_cbranch_scc1 {lp}")
    A("s_mov_b64 exec, -1")


def poll(A, addr_fn, extra_wait=""):
    l = A.newlabel("pol")
    A("s_cmp_lg_u32 s19, 0")
    A(f"s_cbranch_scc1 {l}")
    addr_fn()
    spin(A, 252)
    A.label(l)
    if extra_wait:
        A(extra_wait)
    A("s_barrier")


def big_id(A, dst, rt, ct, t0):
    A(f"v_lshrrev_b32 {v(dst)}, 2, {v(rt)}")
    A(f"v_lshlrev_b32 {v(dst)}, 1, {v(dst)}")
    A(f"v_cmp_lt_u32 vcc, 6, {v(ct)}")
    A("s_nop 1")
    A(f"v_addc_co_u32 {v(dst)}, vcc, 0, {v(dst)}, vcc")
    A(f"v_cmp_lt_u32 vcc, 6, {v(ct)}")
    A(f"v_and_b32 {v(t0)}, 3, {v(rt)}")
    A(f"v_mul_u32_u24 {v(t0)}, 7, {v(t0)}")
    A(f"v_add_u32 {v(t0)}, {v(t0)}, {v(ct)}")
    A(f"v_subrev_u32 {v(rt)}, 7, {v(t0)}")
    A(f"v_cndmask_b32 {v(t0)}, {v(t0)}, {v(rt)}, vcc")
    A(f"v_lshl_add_u32 {v(dst)}, {v(t0)}, 3, {v(dst)}")
    A(f"v_lshlrev_b32 {v(dst)}, 7, {v(dst)}")


def big_bases(A, src):
    A("s_lshl_b32 s42, s41, 13")
    A("s_add_u32 s42, s42, 16384")
    A(f"s_add_u32 s43, s42, {2*SLOT}")
    for t in range(4):
        A(f"v_add_u32 {v(V_TB[1]+t)}, s43, {v(src+t)}")
        A(f"v_add_u32 {v(V_TB[0]+t)}, s42, {v(src+t)}")


class Spec:
    def __init__(self, A, vflag, mask, loads):
        self.A, self.vflag, self.mask, self.loads = A, vflag, mask, loads

    def stage1(self):
        A = self.A
        A(f"s_mov_b32 s85, {WS_FLAG}")
        A(f"s_mov_b64 exec, {self.mask:#x}")
        A.vmem(f"buffer_load_dword v253, {v(self.vflag)}, s[28:31], s85 offen{SC}", "sflag")
        A("s_mov_b64 exec, -1")

    def stage2(self):
        A = self.A
        A.vm_wait("sflag")
        A(f"v_cmp_ne_u32 s[96:97], s{TOK}, v253")
        self.loads("sdata")

    def finish(self):
        A = self.A
        l = A.newlabel("spec")
        A(f"s_and_b64 s[96:97], s[96:97], {self.mask:#x}")
        A(f"s_cbranch_scc0 {l}")
        A(f"s_mov_b64 exec, {self.mask:#x}")
        spin(A, self.vflag)
        snap = A.vm_snapshot()
        self.loads("sdata")
        A.vm_restore(snap)
        A("s_waitcnt vmcnt(0)")
        A.label(l)
        A.vm_wait("sdata")


def gelu_epi(A, cs, rowc, tmp, pk, store_fn):
    for j in range(2):
        nm, k0, k1, sd = (rowc[j] + 2 * q for q in range(4))
        pairs = [ACC + j * 16 + 2 * i for i in range(8)]
        T = [tmp + 2 * i for i in range(8)]
        for i, p in enumerate(pairs):
            A(f"v_pk_fma_f32 {v(p,2)}, {v(cs+2*i,2)}, {v(nm,2)}, {v(p,2)}")
        for i, p in enumerate(pairs):
            A(f"v_pk_mul_f32 {v(T[i],2)}, {v(p,2)}, {v(p,2)}")
        for i, p in enumerate(pairs):
            A(f"v_pk_fma_f32 {v(T[i],2)}, {v(T[i],2)}, {v(k1,2)}, {v(k0,2)}")
        for i, p in enumerate(pairs):
            A(f"v_pk_mul_f32 {v(T[i],2)}, {v(T[i],2)}, {v(p,2)}")
        for i in range(8):
            A(f"v_exp_f32 {v(T[i])}, {v(T[i])}")
            A(f"v_exp_f32 {v(T[i]+1)}, {v(T[i]+1)}")
        for i in range(8):
            A(f"v_pk_fma_f32 {v(T[i],2)}, {v(T[i],2)}, {v(sd,2)}, {v(sd,2)}")
        for i in range(8):
            A(f"v_rcp_f32 {v(T[i])}, {v(T[i])}")
            A(f"v_rcp_f32 {v(T[i]+1)}, {v(T[i]+1)}")
        for i, p in enumerate(pairs):
            A(f"v_pk_mul_f32 {v(p,2)}, {v(p,2)}, {v(T[i],2)}")
        for i, p in enumerate(pairs):
            A(f"v_cvt_pk_bf16_f32 {v(pk+8*j+i)}, {v(p)}, {v(p+1)}")
        store_fn(j, pk + 8 * j)


def row_consts(A, dst, nm, rs):
    from gen2 import GELU_C0, GELU_C1
    A(f"v_rcp_f32 {v(dst+6)}, {v(rs)}")
    A(f"v_mul_f32 {v(dst+2)}, {f32bits(GELU_C0):#x}, {v(rs)}")
    A(f"v_mul_f32 {v(dst+4)}, {v(rs)}, {v(rs)}")
    A(f"v_mul_f32 {v(dst+4)}, {v(dst+4)}, {v(rs)}")
    A(f"v_mul_f32 {v(dst+4)}, {f32bits(GELU_C1):#x}, {v(dst+4)}")
    A(f"v_mov_b32 {v(dst)}, {v(nm)}")
    for q in range(4):
        A(f"v_mov_b32 {v(dst+2*q+1)}, {v(dst+2*q)}")


def red8(A, x, t):
    for dpp in ("quad_perm:[1,0,3,2]", "quad_perm:[2,3,0,1]", "row_half_mirror"):
        A("s_nop 1")
        A(f"v_add_f32_dpp {v(x)}, {v(x)}, {v(x)} {dpp} row_mask:0xf bank_mask:0xf")


def gen():
    A = Asm()
    Lend = "k_end"
    A("s_cmp_ge_u32 s2, 256")
    A(f"s_cbranch_scc1 {Lend}")
    A("s_load_dwordx4 s[4:7], s[0:1], 0")
    A("s_load_dwordx2 s[8:9], s[0:1], 32")
    A("s_load_dwordx4 s[56:59], s[0:1], 80")
    A("s_memrealtime s[82:83]")
    lane_setup(A)
    A(f"v_lshlrev_b32 {v(L16)}, 4, {v(VL)}")
    A(f"s_cmp_ge_u32 s2, {NWG}")
    A("s_cbranch_scc1 helper")
    big_decode(A)
    A("s_sub_u32 s46, s33, 21")
    A("s_movk_i32 s32, 896")
    A("s_cmp_lt_u32 s33, 21")
    A("s_cselect_b32 s32, 2688, s32")
    A("s_cselect_b32 s34, s33, s46")
    A("s_lshl_b32 s34, s34, 7")
    A("s_lshl_b32 s35, s40, 3")
    A("s_mul_i32 s35, s35, s32")
    A("s_add_u32 s34, s34, s35")
    A("s_lshl_b32 s38, s32, 5")
    unit_dma_voff(A, V_WD, "s43", None, "s32", 24, 25)
    A(f"v_lshrrev_b32 v24, 3, {v(VL)}")
    A("v_lshrrev_b32 v25, 1, v24")
    A(f"v_xor_b32 v25, v25, {v(VL)}")
    A("v_and_b32 v25, 7, v25")
    A(f"v_mul_u32_u24 {v(V_XD)}, 896, v24")
    A(f"v_lshl_add_u32 {v(V_XD)}, v25, 4, {v(V_XD)}")
    A(f"v_xor_b32 {v(V_XD2)}, 64, {v(V_XD)}")
    A(f"v_add_u32 {v(V_XD2)}, {8*896-1024}, {v(V_XD2)}")
    A("s_lshl_b32 s35, s17, 3")
    A("s_add_u32 s35, s35, s19")
    A(f"s_mul_i32 s35, s35, {RT_BYTES}")
    A("s_waitcnt lgkmcnt(0)")
    A.srd(20, 4, 5, ACT_BYTES)
    A(f"s_mov_b32 s26, {D*D*2}")
    A("s_cmp_lt_u32 s33, 21")
    A("s_cselect_b32 s24, s6, s8")
    A("s_cselect_b32 s25, s7, s9")
    A(f"s_cselect_b32 s26, {D*3*D*2}, s26")
    A("s_and_b32 s25, s25, 0xffff")
    A("s_mov_b32 s27, 0x00020000")
    PF0 = os.environ.get("PF0", "0")
    if PF0 != "0":
        A("s_lshl_b32 s60, s2, 3")
        A("s_add_u32 s60, s60, s19")
        A("s_lshl_b32 s60, s60, 10")
        A.srd(72, 6, 7, D * 3 * D * 2)
        A.srd(76, 8, 9, D * D * 2)
        A(f"s_sub_u32 s61, s60, {1176*1024}")
        A.vmem(f"buffer_load_dwordx4 v[212:215], {v(L16)}, s[72:75], s60 offen", "pf0")
        A.vmem(f"buffer_load_dwordx4 v[212:215], {v(L16)}, s[76:79], s61 offen", "pf0")
        if PF0 == "2":
            A.vmem(f"buffer_load_dwordx4 v[212:215], {v(L16)}, s[20:23], s60 offen", "pf0")
    P1PRO = int(os.environ.get("P1PRO", "2"))
    DMA_SAVE = dict(gen3.DMA_AT)
    if P1PRO == 4:
        gen3.DMA_AT.clear()
        gen3.DMA_AT.update({1: 4, 3: 5, 5: 6})
    if P1PRO == 3:
        gen3.DMA_AT.clear()
        gen3.DMA_AT.update({0: 3, 1: 4, 3: 5, 5: 6})
    for ds in range(P1PRO):
        for p in big_dma_parts(A, ds, 128, V_XD2):
            p()
    A.srd(28, 58, 59, WS_SIZE)
    if PFCODE:
        lc = A.newlabel("pfc")
        A("s_getpc_b64 s[60:61]")
        A.label("k_pc")
        A("s_lshr_b32 s70, s2, 3")
        A("s_lshl_b32 s70, s70, 3")
        A("s_add_u32 s70, s70, s19")
        A("s_lshl_b32 s70, s70, 10")
        A(f"s_cmp_ge_u32 s70, k_codeend-k_pc")
        A(f"s_cbranch_scc1 {lc}")
        A(f"v_add_u32 v204, s70, {v(L16)}")
        A("global_load_dwordx4 v[208:211], v204, s[60:61]")
        A.label(lc)
    stamp(A)
    A(f"v_lshrrev_b32 v24, 1, {v(VI)}")
    A(f"v_xor_b32 v24, v24, {v(VG)}")
    A("v_lshlrev_b32 v24, 4, v24")
    A(f"v_lshl_add_u32 v24, {v(VI)}, 7, v24")
    A("s_lshl_b32 s42, s40, 12")
    A(f"v_add_u32 {v(V_XR[0])}, s42, v24")
    A(f"v_xor_b32 {v(V_XR[2])}, 64, {v(V_XR[0])}")
    A(f"v_add_u32 {v(V_XR[1])}, {2*SLOT}, {v(V_XR[0])}")
    A(f"v_add_u32 {v(V_XR[3])}, {2*SLOT}, {v(V_XR[2])}")
    unit_bases(A, PB4, "pair", 24, 25, 26)
    unit_dma_voff(A, U896, "0", None, 896, 24, 25)
    unit_dma_voff(A, U896S, "0", "4", 896, 24, 25)
    A(f"v_lshrrev_b32 v24, 1, {v(VG)}")
    A(f"v_lshlrev_b32 {v(CSO)}, 5, {v(VG)}")
    A(f"v_lshl_add_u32 {v(CSO)}, v24, 4, {v(CSO)}")
    A("s_lshl_b32 s39, s17, 7")
    A("s_lshl_b32 s42, s40, 5")
    A("s_add_u32 s39, s39, s42")
    A("s_load_dwordx2 s[62:63], s[0:1], 16")
    A("s_load_dwordx4 s[64:67], s[0:1], 40")
    A("s_load_dwordx2 s[68:69], s[0:1], 56")
    A("v_mov_b32 v252, 0")
    A.vmem(f"global_load_dword v200, v252, s[56:57]{SC}", "tok")
    snap = A.vm_snapshot()
    PK = 32

    def pf_hook():
        A("s_lshl_b32 s60, s2, 3")
        A("s_add_u32 s60, s60, s19")
        A("s_lshl_b32 s60, s60, 10")
        lst = ((64, D * D * 2, 0), (66, D * F * 2, 0), (62, D * D * 2, 392), (68, D * F * 2, 224))
        if PFLATE:
            lst = lst[:1]
        for q, (lo, size, base) in enumerate(lst):
            A.srd(72, lo, lo + 1, size)
            A(f"s_sub_u32 s61, s60, {base*1024}")
            A.vmem(f"buffer_load_dwordx4 v[204:207], {v(L16)}, s[72:75], s61 offen", "pf")
        if PFWS:
            A(f"s_add_u32 s61, s60, {WS_O}")
            A.vmem(f"buffer_load_dwordx4 v[204:207], {v(L16)}, s[28:31], s61 offen", "pf")

    def tok_hook():
        l = A.newlabel("tk")
        A.vm_wait("tok")
        A(f"v_readfirstlane_b32 s{TOK}, v200")
        tok_ok(A)
        A(f"s_cbranch_scc1 {l}")
        get_token(A)
        A.label(l)

    A("s_sub_u32 s42, s33, 14")
    A("s_cmp_lt_u32 s42, 7")
    A("s_cbranch_scc1 p1_v")
    big_bases(A, PB4)
    A("s_cmp_ge_u32 s33, 21")
    A("s_cbranch_scc1 p1_w1")
    big_mainloop(A, False, 128, V_XD2, True, hooks={7: tok_hook, PFAT: pf_hook})
    A("s_cmp_ge_u32 s33, 7")
    A("s_cselect_b32 s43, 7, 0")
    A(f"s_cselect_b32 s42, {WS_K}, 0")
    A("s_sub_u32 s46, s33, s43")
    A("s_lshl_b32 s46, s46, 11")
    A("s_add_u32 s42, s42, s46")
    A("s_mul_i32 s43, s39, 896")
    A("s_add_u32 s42, s42, s43")
    A(f"s_add_u32 s43, s42, {RT_BYTES}")
    for j in range(2):
        for q in range(8):
            A(f"v_cvt_pk_bf16_f32 {v(PK+8*j+q)}, {v(ACC+16*j+2*q)}, {v(ACC+16*j+2*q+1)}")
        for tp in range(2):
            A(f"buffer_store_dwordx4 {v(PK+8*j+4*tp,4)}, {v(L16)}, s[28:31], s{42+j} offen offset:{1024*tp}{SC}")
    A("s_branch p1_done")
    A.label("p1_v")
    A.vm_restore(snap)
    unit_bases(A, 28, "nat", 24, 25, 26)
    big_bases(A, 28)
    A("s_sub_u32 s46, s33, 14")
    A("s_lshl_b32 s47, s39, 6")
    A(f"s_add_u32 s47, s47, {WS_V}")
    A("s_lshl_b32 s44, s46, 6")
    for t in range(4):
        o = 184 + t
        A(f"v_add_u32 v24, s44, {v(VI)}")
        A(f"v_add_u32 v24, {16*t}, v24")
        A("v_mul_u32_u24 v25, 2341, v24")
        A("v_lshrrev_b32 v25, 16, v25")
        A("v_mul_u32_u24 v26, 28, v25")
        A("v_sub_u32 v26, v24, v26")
        A(f"v_lshlrev_b32 {v(o)}, 17, v25")
        A("v_lshrrev_b32 v27, 4, v26")
        A(f"v_lshl_add_u32 {v(o)}, v27, 10, {v(o)}")
        A("v_and_b32 v27, 15, v26")
        A(f"v_lshl_add_u32 {v(o)}, v27, 4, {v(o)}")
        A(f"v_lshl_add_u32 {v(o)}, {v(VG)}, 8, {v(o)}")
    A("s_lshl_b32 s44, s46, 4")
    A("s_mul_i32 s45, s44, 9363")
    A("s_lshr_b32 s45, s45, 16")
    A(f"v_add_u32 v24, s45, {v(VG)}")
    A("v_mul_u32_u24 v25, 7, v24")
    A("v_add_u32 v25, 6, v25")
    A("s_add_u32 s44, s44, 16")
    A("v_lshlrev_b32 v24, 17, v24")
    A(f"v_lshrrev_b32 v26, 2, {v(VI)}")
    A("v_lshl_add_u32 v24, v26, 4, v24")
    A(f"v_and_b32 v27, 3, {v(VI)}")
    A("v_lshl_add_u32 v24, v27, 8, v24")
    A("v_cmp_eq_u32 vcc, 0, v26")
    A("v_mov_b32 v27, 0x3f803f80")
    A("s_nop 0")
    A("v_cndmask_b32 v188, 0, v27, vcc")
    for r in range(1, 4):
        A(f"v_mov_b32 v{188+r}, v188")
    A("v_cmp_gt_u32 vcc, s44, v25")
    A("s_and_saveexec_b64 s[44:45], vcc")
    A.vmem(f"buffer_store_dwordx4 v[188:191], v24, s[28:31], s47 offen offset:{1024+12*16}{SC}", "ones")
    A("s_mov_b64 exec, -1")
    big_mainloop(A, True, 128, V_XD2, True, hooks={7: tok_hook, PFAT: pf_hook})
    A("s_nop 4")
    for t in range(4):
        pk = PK + 4 * t
        for j in range(2):
            src = ACC + 16 * j + 4 * t
            A(f"v_cvt_pk_bf16_f32 {v(pk+2*j)}, {v(src)}, {v(src+1)}")
            A(f"v_cvt_pk_bf16_f32 {v(pk+2*j+1)}, {v(src+2)}, {v(src+3)}")
        A(f"buffer_store_dwordx4 {v(pk,4)}, {v(184+t)}, s[28:31], s47 offen{SC}")
    A("s_branch p1_done")
    A.label("p1_w1")
    A.vm_restore(snap)
    MR, RS, CS = [140, 142], [144, 146], 164
    A("s_lshl_b32 s42, s17, 1")
    A(f"v_add_u32 v201, s42, {v(VL)}")
    A("v_writelane_b32 v201, s46, 2")
    A(f"v_lshlrev_b32 v201, 7, v201")
    A(f"v_add_u32 v201, {NWG*128}, v201")
    A(f"v_add_u32 v202, s39, {v(VI)}")
    A("v_lshlrev_b32 v202, 3, v202")
    A(f"s_mov_b32 s44, {WS_LN1}")
    A("s_lshl_b32 s45, s46, 8")
    A(f"s_add_u32 s45, s45, {WS_CS}")
    A(f"v_xor_b32 v203, 16, {v(CSO)}")

    def w1_loads(tag):
        for j in range(2):
            A.vmem(f"buffer_load_dwordx2 {v(180+2*j,2)}, v202, s[28:31], s44 offen offset:{128*j}{SL}", tag)
        for t in range(4):
            A.vmem(f"buffer_load_dwordx4 {v(CS+4*t,4)}, {v(203 if t & 1 else CSO)}, s[28:31], s45 offen offset:{128*(t>>1)}{SL}", tag)

    sp = Spec(A, 201, 7, w1_loads)

    def h7():
        tok_hook()
        sp.stage1()

    A.srd_off(52, 58, 59, WS_HS, ACT_BYTES)
    A("s_lshl_b32 s47, s46, 3")
    for tp in range(2):
        A(f"v_add_u32 v24, s47, {v(VG)}")
        if tp:
            A("v_add_u32 v24, 4, v24")
        A("v_mul_u32_u24 v25, 4682, v24")
        A("v_lshrrev_b32 v25, 16, v25")
        A("v_lshrrev_b32 v26, 1, v25")
        A("v_add_u32 v26, 1, v26")
        A("v_and_b32 v25, 1, v25")
        A("v_sub_u32 v27, 0, v25")
        A("v_xor_b32 v26, v26, v27")
        A("v_add_u32 v26, v26, v25")
        A(f"v_add_u32 v26, v26, {v(VI)}")
        A("v_add_u32 v26, s39, v26")
        for j in range(2):
            o = 184 + 2 * j + tp
            if j:
                A("v_add_u32 v26, 16, v26")
            A("v_lshrrev_b32 v25, 4, v26")
            A("v_mul_u32_u24 v25, 14336, v25")
            A("v_and_b32 v27, 15, v26")
            A("v_lshl_add_u32 v25, v27, 4, v25")
            A("v_lshl_add_u32 v25, v24, 8, v25")
            A("v_cmp_gt_u32 vcc, 2048, v26")
            A("v_mov_b32 v27, 0x80000000")
            A("s_nop 0")
            A(f"v_cndmask_b32 {v(o)}, v27, v25, vcc")
    A("s_cmp_lg_u32 s40, 0")
    A("s_cbranch_scc1 p1_zd")
    A("s_cmp_eq_u32 s17, 0")
    A("s_cselect_b32 s48, 0, 1")
    A("s_cbranch_scc1 p1_z")
    A("s_cmp_lg_u32 s17, 15")
    A("s_cbranch_scc1 p1_zd")
    A.label("p1_z")
    A(f"v_and_b32 v24, 7, {v(VL)}")
    A("v_add_u32 v24, s47, v24")
    A("v_mul_u32_u24 v25, 4682, v24")
    A("v_lshrrev_b32 v25, 16, v25")
    A(f"v_lshrrev_b32 v26, 3, {v(VL)}")
    A("v_lshrrev_b32 v27, 1, v25")
    A("v_cmp_le_u32 s[50:51], v26, v27")
    A("v_and_b32 v25, 1, v25")
    A("v_cmp_eq_u32 vcc, s48, v25")
    A("s_and_b64 s[50:51], s[50:51], vcc")
    A("v_sub_u32 v27, 15, v26")
    A("s_cmp_eq_u32 s48, 0")
    A(f"s_cselect_b32 s49, 0, {127*14336}")
    A("s_cbranch_scc1 p1_z2")
    A("v_mov_b32 v26, v27")
    A.label("p1_z2")
    A("v_lshlrev_b32 v26, 4, v26")
    A("v_lshl_add_u32 v26, v24, 8, v26")
    for r in range(4):
        A(f"v_mov_b32 {v(188+r)}, 0")
    A("s_mov_b64 exec, s[50:51]")
    A(f"buffer_store_dwordx4 v[188:191], v26, s[52:55], s49 offen{SC}")
    A("s_mov_b64 exec, -1")
    A.label("p1_zd")
    big_mainloop(A, False, 128, V_XD2, True, hooks={7: tok_hook, PFAT: pf_hook, 10: sp.stage1, 12: sp.stage2})
    sp.finish()
    for j in range(2):
        row_consts(A, 140 + 8 * j, 180 + 2 * j, 181 + 2 * j)

    def st1(j, pk):
        for tp in range(2):
            A(f"buffer_store_dwordx4 {v(pk+4*tp,4)}, {v(184+2*j+tp)}, s[52:55], 0 offen{SC}")

    gelu_epi(A, CS, (140, 148), 48, 32, st1)
    A("s_branch p1_done")
    A.label("helper")
    gen3.DMA_AT.clear()
    gen3.DMA_AT.update(DMA_SAVE)
    A.vm_restore([])
    A("s_load_dwordx2 s[10:11], s[0:1], 64")
    A("s_load_dwordx2 s[12:13], s[0:1], 48")
    A(f"s_sub_u32 s14, s2, {NWG}")
    for r in (236, 237, 238, 239, 241, 242, 243):
        A(f"v_mov_b32 v{r}, 0")
    A(f"v_lshrrev_b32 v4, 3, {v(VL)}")
    A(f"v_and_b32 v5, 7, {v(VL)}")
    A("v_lshlrev_b32 v5, 4, v5")
    A("s_lshl_b32 s15, s14, 6")
    A("s_lshl_b32 s16, s19, 3")
    A("s_add_u32 s15, s15, s16")
    A("v_add_u32 v4, s15, v4")
    A("v_mul_u32_u24 v6, 896, v4")
    A("v_add_u32 v6, v6, v5")
    A("s_waitcnt lgkmcnt(0)")
    A.srd(20, 4, 5, ACT_BYTES)
    A.srd(28, 58, 59, WS_SIZE)
    A.srd(48, 10, 11, D * 2)
    XB_, GB_, FB_ = 8, 40, 72
    for j in range(7):
        A.vmem(f"buffer_load_dwordx4 {v(XB_+4*j,4)}, v6, s[20:23], 0 offen offset:{128*j}", "hx")
    A(f"v_lshrrev_b32 v7, 3, {v(VL)}")

    def cs_setup(item_s):
        A(f"s_cmp_lt_u32 {item_s}, 7")
        A("s_cselect_b32 s24, s8, s12")
        A("s_cselect_b32 s25, s9, s13")
        A("s_movk_i32 s32, 896")
        A(f"s_cselect_b32 s32, s32, {F*2}")
        A(f"s_cselect_b32 s33, 0, 7")
        A(f"s_mov_b32 s26, {D*F*2}")
        A(f"s_cselect_b32 s26, {D*D*2}, s26")
        A("s_and_b32 s25, s25, 0xffff")
        A("s_mov_b32 s27, 0x00020000")
        A(f"s_sub_u32 s33, {item_s}, s33")
        A("s_lshl_b32 s33, s33, 7")
        A("s_mul_i32 s34, s19, 56")
        A("s_mul_i32 s34, s34, s32")
        A("s_add_u32 s33, s33, s34")
        A("v_mul_lo_u32 v130, v7, s32")
        A("v_add_u32 v130, v130, v5")
        A("s_lshl_b32 s32, s32, 3")
        for j in range(7):
            A.vmem(f"buffer_load_dwordx4 {v(132+4*j,4)}, v130, s[24:27], s33 offen", "hw")
            A("s_add_u32 s33, s33, s32")

    def cs_finish(item_s):
        A.vm_wait("hw")
        for j in range(7):
            for q in range(4):
                src = 132 + 4 * j + q
                if j == 0:
                    A(f"v_lshlrev_b32 {v(160+2*q)}, 16, {v(src)}")
                    A(f"v_and_b32 {v(161+2*q)}, 0xffff0000, {v(src)}")
                else:
                    A(f"v_lshlrev_b32 v168, 16, {v(src)}")
                    A(f"v_and_b32 v169, 0xffff0000, {v(src)}")
                    A(f"v_pk_add_f32 {v(160+2*q,2)}, {v(160+2*q,2)}, v[168:169]")
        A("s_nop 1")
        for q in range(4):
            A(f"v_permlane32_swap_b32 {v(160+2*q)}, {v(161+2*q)}")
        A("s_nop 0")
        for q in range(4):
            A(f"v_add_f32 {v(160+2*q)}, {v(160+2*q)}, {v(161+2*q)}")
        A("s_nop 1")
        for q in range(2):
            A(f"v_permlane16_swap_b32 {v(160+4*q)}, {v(162+4*q)}")
        A("s_nop 0")
        for q in range(2):
            A(f"v_add_f32 {v(160+4*q)}, {v(160+4*q)}, {v(162+4*q)}")
        A("s_nop 1")
        for q in range(2):
            A(f"v_add_f32_dpp {v(160+4*q)}, {v(160+4*q)}, {v(160+4*q)} row_ror:8 row_mask:0xf bank_mask:0xf")
        A("s_lshl_b32 s33, s19, 8")
        A("v_lshlrev_b32 v170, 1, v5")
        A(f"v_and_b32 v171, 1, {v(VG)}")
        A("v_lshl_add_u32 v170, v171, 3, v170")
        A(f"v_lshrrev_b32 v171, 1, {v(VG)}")
        A("v_lshl_add_u32 v170, v171, 2, v170")
        A("v_add_u32 v170, s33, v170")
        A("ds_write_b32 v170, v160")
        A("ds_write_b32 v170, v164 offset:16")
        A("s_waitcnt lgkmcnt(0)")
        A("s_barrier")
        l = A.newlabel("csw")
        A("s_cmp_lg_u32 s19, 0")
        A(f"s_cbranch_scc1 {l}")
        A(f"v_lshlrev_b32 v170, 2, {v(VL)}")
        for w in range(8):
            A(f"ds_read_b32 {v(160+w)}, v170 offset:{256*w}")
        A("s_waitcnt lgkmcnt(0)")
        for w in range(1, 8):
            A(f"v_add_f32 v160, v160, {v(160+w)}")
        A(f"s_lshl_b32 s33, {item_s}, 8")
        A(f"s_add_u32 s33, s33, {WS_CS}")
        A(f"buffer_store_dword v160, v170, s[28:31], s33 offen{SC}")
        A.label(l)

    def helper_pf():
        A("s_load_dwordx2 s[62:63], s[0:1], 16")
        A("s_load_dwordx4 s[64:67], s[0:1], 40")
        A("s_load_dwordx2 s[68:69], s[0:1], 56")
        A("s_lshl_b32 s60, s14, 3")
        A("s_add_u32 s60, s60, s19")
        A("s_lshl_b32 s60, s60, 10")
        A("s_waitcnt lgkmcnt(0)")
        for lo, size in ((64, D * D * 2), (66, D * F * 2), (62, D * D * 2), (68, D * F * 2)):
            A.srd(72, lo, lo + 1, size)
            for off in range(0, size, 262144):
                A(f"s_add_u32 s61, s60, {off}")
                A(f"buffer_load_dwordx4 v[204:207], {v(L16)}, s[72:75], s61 offen")

    cs_setup("s14")
    for j in range(7):
        A.vmem(f"buffer_load_dwordx4 {v(GB_+4*j,4)}, v5, s[48:51], 0 offen offset:{128*j}", "hg")
    if PFSM:
        A("s_lshl_b32 s33, s14, 3")
        A("s_add_u32 s33, s33, s19")
        A("s_lshl_b32 s33, s33, 11")
        A(f"s_add_u32 s33, s33, {WS_FLAG}")
        for q in range(2):
            A.vmem(f"buffer_load_dwordx4 v[204:207], {v(L16)}, s[28:31], s33 offen offset:{1024*q}", "pf")
    lt = A.newlabel("tok")
    A("s_or_b32 s85, s14, s19")
    A("s_cmp_lg_u32 s85, 0")
    A(f"s_cbranch_scc1 {lt}")
    A("s_or_b32 s85, s82, 1")
    A("v_mov_b32 v252, 0")
    A("v_mov_b32 v253, s85")
    A("s_mov_b64 exec, 1")
    A(f"global_store_dword v252, v253, s[56:57]{SC}")
    A("s_mov_b64 exec, -1")
    A.label(lt)
    if STAMPS:
        NST[0] -= 1
        stamp(A)
    if PFH == "1":
        A.vm_wait("hg")
        helper_pf()
    A.vm_wait("hx")
    for j in range(28):
        A(f"v_lshlrev_b32 {v(FB_+2*j)}, 16, {v(XB_+j)}")
        A(f"v_and_b32 {v(FB_+2*j+1)}, 0xffff0000, {v(XB_+j)}")
    A(f"v_pk_add_f32 v[128:129], {v(FB_,2)}, {v(FB_+2,2)}")
    for j in range(2, 28):
        A(f"v_pk_add_f32 v[128:129], v[128:129], {v(FB_+2*j,2)}")
    A("v_add_f32 v128, v128, v129")
    red8(A, 128, 0)
    A(f"v_mul_f32 v128, {f32bits(1.0/448):#x}, v128")
    A("v_sub_f32 v172, 0, v128")
    A("v_mov_b32 v173, v172")
    for j in range(28):
        A(f"v_pk_add_f32 {v(174+2*(j&3),2)}, {v(FB_+2*j,2)}, v[172:173]")
        if j == 0:
            A(f"v_pk_mul_f32 v[182:183], {v(174,2)}, {v(174,2)}")
        else:
            A(f"v_pk_fma_f32 v[182:183], {v(174+2*(j&3),2)}, {v(174+2*(j&3),2)}, v[182:183]")
    A("v_add_f32 v129, v182, v183")
    red8(A, 129, 0)
    A(f"v_mul_f32 v129, {f32bits(1.0/448):#x}, v129")
    ln_finish(A, 128, 129)
    A("v_lshlrev_b32 v170, 3, v4")
    A(f"s_mov_b32 s33, {WS_LN1}")
    A("s_mov_b32 exec_lo, 0x01010101")
    A("s_mov_b32 exec_hi, 0x01010101")
    A.vmem(f"buffer_store_dwordx2 v[128:129], v170, s[28:31], s33 offen{SC}", "hst")
    A("s_mov_b64 exec, -1")
    cs_finish("s14")
    get_token(A)
    A("s_barrier")
    flag_store(A, 0)
    A.vm_restore([])
    if STAMPS:
        keep = NST[0]
        NST[0] = 20
        stamp(A)
        NST[0] = keep
    if PFH == "2":
        helper_pf()
    A("s_add_u32 s15, s14, 32")
    A("s_cmp_ge_u32 s15, 35")
    A("s_cbranch_scc1 h_no2")
    cs_setup("s15")
    cs_finish("s15")
    A.label("h_no2")
    for j in range(28):
        A(f"v_lshlrev_b32 v168, 16, {v(GB_+j)}")
        A(f"v_and_b32 v169, 0xffff0000, {v(GB_+j)}")
        A(f"v_pk_mul_f32 {v(FB_+2*j,2)}, {v(FB_+2*j,2)}, v[168:169]")
    for j in range(56):
        rbf(A, FB_ + j)
    A(f"v_pk_add_f32 v[128:129], {v(FB_,2)}, {v(FB_+2,2)}")
    for j in range(2, 28):
        A(f"v_pk_add_f32 v[128:129], v[128:129], {v(FB_+2*j,2)}")
    A("v_add_f32 v128, v128, v129")
    red8(A, 128, 0)
    rbf(A, 128)
    A(f"v_mul_f32 v128, {f32bits(-LOG2E):#x}, v128")
    A("v_exp_f32 v128, v128")
    A("s_nop 0")
    A("v_add_f32 v128, 1.0, v128")
    A("v_rcp_f32 v128, v128")
    A("s_nop 0")
    rbf(A, 128)
    A("v_lshlrev_b32 v170, 2, v4")
    A(f"s_mov_b32 s33, {WS_G}")
    A("s_mov_b32 exec_lo, 0x01010101")
    A("s_mov_b32 exec_hi, 0x01010101")
    A(f"buffer_store_dword v128, v170, s[28:31], s33 offen{SC}")
    A("s_mov_b64 exec, -1")
    A("s_waitcnt vmcnt(0)")
    A("s_barrier")
    flag_store(A, 1)
    A.label("p1_done")
    A.vm_restore(["x"])
    stamp(A)
    L_X2, L_KV = 57344, 163840 - 49152
    A("s_load_dwordx2 s[4:5], s[0:1], 0")
    A("s_load_dwordx2 s[6:7], s[0:1], 40")
    A("s_load_dwordx2 s[8:9], s[0:1], 48")
    A("s_and_b32 s14, s2, 7")
    A("s_lshr_b32 s15, s2, 3")
    small_decode(A)
    A("s_and_b32 s46, s19, 3")
    A("s_lshr_b32 s47, s19, 2")
    A("s_lshr_b32 s16, s15, 4")
    A("s_lshl_b32 s48, s14, 1")
    A("s_add_u32 s48, s48, s16")
    A("s_and_b32 s49, s15, 15")
    A(f"s_cmp_ge_u32 s2, {NWG}")
    A("s_cbranch_scc1 p2_now2")
    A(f"v_mov_b32 v5, {v(U896)}")
    l = A.newlabel("sw")
    A("s_bitcmp1_b32 s19, 1")
    A(f"s_cbranch_scc0 {l}")
    A(f"v_mov_b32 v5, {v(U896S)}")
    A.label(l)
    A("s_and_b32 s38, s19, 1")
    A("s_lshl_b32 s38, s38, 6")
    A("v_xor_b32 v5, s38, v5")
    A("s_lshl_b32 s38, s18, 7")
    A(f"s_mul_i32 s39, s19, {8*896}")
    A("s_add_u32 s38, s38, s39")
    A("s_lshl_b32 s39, s19, 10")
    A("s_waitcnt lgkmcnt(0)")
    A.srd(20, 4, 5, ACT_BYTES)
    A.srd(24, 6, 7, D * D * 2)
    A("s_barrier")
    for u in range(7):
        A("s_mov_b32 m0, s39")
        A("s_add_u32 s39, s39, 8192")
        A.vmem("buffer_load_dwordx4 v5, s[24:27], s38 offen lds", "w2")
        A(f"s_add_u32 s38, s38, {64*896}")
    A("s_waitcnt vmcnt(7)")
    A("s_barrier")
    flag_store(A, 0)
    if PFLATE:
        lp_ = A.newlabel("pfl")
        A("s_cmp_eq_u32 s19, 0")
        A(f"s_cbranch_scc1 {lp_}")
        A("s_mul_i32 s60, s2, 7")
        A("s_add_u32 s60, s60, s19")
        A("s_sub_u32 s60, s60, 1")
        A("s_lshl_b32 s60, s60, 10")
        for lo, size in ((66, D * F * 2), (68, D * F * 2), (62, D * D * 2)):
            A.srd(72, lo, lo + 1, size)
            A(f"buffer_load_dwordx4 v[204:207], {v(L16)}, s[72:75], s60 offen")
        A.label(lp_)
    if L2WARM:
        A("s_lshl_b32 s36, s15, 3")
        A("s_add_u32 s36, s36, s19")
        A(f"s_mul_i32 s36, s36, {2*F*2}")
        A("s_and_b32 s37, s14, 1")
        A("s_mul_i32 s37, s37, 1792")
        A("s_add_u32 s36, s36, s37")
        A.srd(68, 8, 9, D * F * 2)
        for q in range(2):
            A(f"buffer_load_dwordx4 {v(208+8*q,4)}, {v(L16)}, s[68:71], s36 offen")
            A("s_mov_b32 exec_hi, 0x0000ffff")
            A(f"buffer_load_dwordx4 {v(212+8*q,4)}, {v(L16)}, s[68:71], s36 offen offset:1024")
            A("s_mov_b32 exec_hi, -1")
            A(f"s_add_u32 s36, s36, {F*2}")
    A.label("p2_now2")

    def deps2():
        A(f"v_mul_u32_u24 v232, 5958, {v(VL)}")
        A("v_lshrrev_b32 v232, 16, v232")
        A("v_mul_u32_u24 v233, 11, v232")
        A(f"v_sub_u32 v233, {v(VL)}, v233")
        A("v_add_u32 v232, s49, v232")
        A("v_subrev_u32 v232, 2, v232")
        A("v_max_i32 v232, 0, v232")
        A("s_lshl_b32 s85, s17, 6")
        A(f"v_subrev_u32 v234, 33, {v(VL)}")
        A("v_lshrrev_b32 v235, 2, v234")
        A("v_mul_u32_u24 v235, 67, v235")
        A("v_add_u32 v235, s85, v235")
        A("v_subrev_u32 v235, 2, v235")
        A("v_max_i32 v235, 0, v235")
        A("v_min_i32 v235, 2047, v235")
        A("v_lshrrev_b32 v235, 7, v235")
        A("v_and_b32 v234, 3, v234")
        A("v_add_u32 v234, 10, v234")
        A(f"v_cmp_lt_u32 vcc, 32, {v(VL)}")
        A("s_nop 1")
        A("v_cndmask_b32 v232, v232, v235, vcc")
        A("v_cndmask_b32 v233, v233, v234, vcc")
        big_id(A, 252, 232, 233, 234)
        A(f"s_cmp_lt_u32 s2, {NWG}")
        A("s_cselect_b32 exec_hi, 0x1ff, 1")

    QF, C0, C16, FB, SCB, PB, TM, OA = 8, 12, 16, 20, 36, 104, 140, 160
    QK = 200
    AF, WFB, AC, XR, TB = 32, 64, 96, 112, 16
    A("s_mul_i32 s50, s48, 7")
    A("s_lshr_b32 s50, s50, 1")
    A("s_lshl_b32 s51, s49, 3")
    A("s_mul_i32 s52, s19, 3")
    A("s_add_u32 s52, s52, s51")
    A("s_sub_u32 s52, s52, 16")
    A("s_lshl_b32 s54, s50, 8")
    A("s_mul_i32 s55, s19, 3072")
    A(f"s_add_u32 s55, s55, {L_KV}")
    A("s_lshl_b32 s40, s48, 17")
    A(f"s_add_u32 s40, s40, {WS_V}")
    for j in range(3):
        A(f"s_add_i32 s41, s52, {j}")
        A("s_max_i32 s41, s41, 0")
        A(f"s_mul_i32 s{62+j}, s41, {RT_BYTES}")
        A(f"s_add_u32 s{62+j}, s{62+j}, s54")
        A(f"s_add_u32 s{62+j}, s{62+j}, {WS_K}")
        A("s_lshl_b32 s41, s41, 10")
        A(f"s_add_u32 s{65+j}, s41, s40")
    A("s_add_u32 s52, s51, s19")
    A(f"s_mul_i32 s52, s52, {RT_BYTES}")
    A("s_add_u32 s53, s52, s54")
    A("s_lshl_b32 s32, s17, 2")
    A("s_add_u32 s32, s32, s46")
    A(f"s_mul_i32 s33, s32, {RT_BYTES}")
    A(f"s_mul_i32 s34, s47, {7*1024}")
    A("s_add_u32 s34, s34, s33")
    A(f"s_add_u32 s34, s34, {WS_HS}")
    A("s_add_u32 s35, s34, 4096")
    poll(A, deps2, "s_waitcnt vmcnt(0)")
    A.vm_restore([])
    stamp(A)
    A(f"s_cmp_ge_u32 s2, {NWG}")
    A("s_cbranch_scc1 p2_noa")
    for u in range(7):
        A.vmem(f"buffer_load_dwordx4 {v(AF+4*u,4)}, {v(L16)}, s[28:31], s{34+u//4} offen offset:{1024*(u%4)}{SL}", ("a", u))
    A.label("p2_noa")
    for j in range(3):
        A(f"s_add_u32 m0, s55, {1024*j}")
        A("s_nop 0")
        A.vmem(f"buffer_load_dwordx4 {v(L16)}, s[28:31], s{62+j} offen{SL} lds", "kv")
        A(f"s_add_u32 m0, s55, {24576+1024*j}")
        A("s_nop 0")
        A.vmem(f"buffer_load_dwordx4 {v(L16)}, s[28:31], s{65+j} offen{SL} lds", "kv")
    A.vmem(f"buffer_load_dwordx4 {v(QK,4)}, {v(L16)}, s[28:31], s53 offen{SL}", "kv")
    A(f"s_cmp_ge_u32 s2, {NWG}")
    A("s_cbranch_scc1 p2_attn")
    A("s_lshl_b32 s40, s32, 4")
    A(f"v_add_u32 v8, s40, {v(VI)}")
    A("v_mul_u32_u24 v9, 896, v8")
    A(f"v_lshrrev_b32 v10, 1, {v(CSO)}")
    A("v_xor_b32 v11, 8, v10")
    A("v_add_u32 v11, v11, v9")
    A("v_add_u32 v9, v10, v9")
    A("s_lshl_b32 s40, s18, 7")
    A("s_lshl_b32 s41, s47, 6")
    A("s_add_u32 s40, s40, s41")
    A.vmem(f"buffer_load_dwordx2 {v(XR,2)}, v9, s[20:23], s40 offen", "x")
    A.vmem(f"buffer_load_dwordx2 {v(XR+2,2)}, v11, s[20:23], s40 offen", "x")
    A(f"s_mul_i32 s41, s47, {7*4096}")
    for t in range(4):
        A(f"v_add_u32 {v(TB+t)}, s41, {v(PB4+t)}")
    for r in unit_reads(TB, 0, WFB):
        A(r)
    A("s_xor_b32 s41, s19, 4")
    A("s_lshl_b32 s41, s41, 11")
    A(f"s_add_u32 s41, s41, {L_X2}")
    A(f"v_add_u32 v12, s41, {v(L16)}")
    A("s_lshl_b32 s41, s19, 11")
    A(f"s_add_u32 s41, s41, {L_X2}")
    A(f"v_add_u32 v13, s41, {v(L16)}")
    for u in range(7):
        A.vm_wait(("a", u), " lgkmcnt(0)")
        rd = unit_reads(TB, (u + 1) * 4096, WFB + 16 * ((u + 1) & 1)) if u < 6 else []
        for t in range(4):
            c = v(AC + 4 * t, 4)
            A(f"v_mfma_f32_16x16x32_bf16 {c}, {v(WFB+16*(u&1)+4*t,4)}, {v(AF+4*u,4)}, {c if u else 0}")
            for r in rd[4*t:4*t+4] if t < 2 else []:
                A(r)
    A.vm_wait("x")
    XU = 32
    for j in range(4):
        A(f"v_lshlrev_b32 {v(XU+2*j)}, 16, {v(XR+j)}")
        A(f"v_and_b32 {v(XU+2*j+1)}, 0xffff0000, {v(XR+j)}")
    A("s_cmp_eq_u32 s47, 0")
    A("s_cbranch_scc1 p2_x0")
    for r in range(8):
        A(f"v_swap_b32 {v(AC+r)}, {v(AC+8+r)}")
    A.label("p2_x0")
    for t in range(2):
        A(f"ds_write_b128 v12, {v(AC+8+4*t,4)} offset:{1024*t}")
    A("s_lshl_b32 s40, s18, 11")
    A("s_add_u32 s40, s40, s33")
    A("s_lshl_b32 s41, s47, 10")
    A("s_add_u32 s40, s40, s41")
    A(f"s_add_u32 s40, s40, {WS_X1}")
    A("s_waitcnt lgkmcnt(0)")
    A("s_barrier")
    for t in range(2):
        A(f"ds_read_b128 {v(AC+8+4*t,4)}, v13 offset:{1024*t}")
    A("s_waitcnt lgkmcnt(0)")
    for r in range(8):
        A(f"v_add_f32 {v(AC+r)}, {v(AC+r)}, {v(AC+8+r)}")
    for r in range(8):
        A(f"v_add_f32 {v(AC+r)}, {v(AC+r)}, {v(XU+r)}")
    for j in range(4):
        A(f"v_cvt_pk_bf16_f32 {v(X1K+j)}, {v(AC+2*j)}, {v(AC+2*j+1)}")
    A.vmem(f"buffer_store_dwordx4 {v(X1K,4)}, {v(L16)}, s[28:31], s40 offen{SC}", "st")
    for r in range(8):
        rbf(A, AC + r)
    A(f"v_add_f32 v12, {v(AC)}, {v(AC+1)}")
    for r in range(2, 8):
        A(f"v_add_f32 v12, v12, {v(AC+r)}")
    xlane_g(A, "v_add_f32", 12, 14, 15)
    A(f"v_mul_f32 v14, {f32bits(1.0/32):#x}, v12")
    for r in range(8):
        A(f"v_sub_f32 {v(AC+r)}, {v(AC+r)}, v14")
    A(f"v_mul_f32 v13, {v(AC)}, {v(AC)}")
    for r in range(1, 8):
        A(f"v_fmac_f32 v13, {v(AC+r)}, {v(AC+r)}")
    xlane_g(A, "v_add_f32", 13, 14, 15)
    A("v_lshlrev_b32 v8, 7, v8")
    A("s_lshl_b32 s40, s18, 4")
    A("s_lshl_b32 s41, s47, 3")
    A("s_add_u32 s40, s40, s41")
    A(f"s_add_u32 s40, s40, {WS_ST}")
    A("s_mov_b64 exec, 0xffff")
    A.vmem(f"buffer_store_dwordx2 v[12:13], v8, s[28:31], s40 offen{SC}", "st")
    A("s_mov_b64 exec, -1")
    A("s_branch p2_attn2")
    A.label("p2_attn")
    A("s_waitcnt vmcnt(0)")
    A("s_barrier")
    A.label("p2_attn2")
    A.vm_restore(["st"])
    stamp(A)
    A("s_load_dwordx4 s[4:7], s[0:1], 40")
    A("s_load_dwordx2 s[8:9], s[0:1], 56")
    A("s_load_dwordx2 s[10:11], s[0:1], 16")
    A("s_lshl_b32 s61, s19, 10")
    A(f"s_add_u32 s61, s61, {L_KV}")
    A(f"v_add_u32 v4, s61, {v(L16)}")
    for i in range(3):
        A(f"ds_read_b128 {v(FB+4*(i%4),4)}, v4 offset:{1024*i}")
    A(f"v_mov_b32 {v(TM+1)}, {NEGBIG:#x}")
    for r in range(4):
        A(f"v_lshl_add_u32 {v(TM)}, {v(VG)}, 2, {r}")
        A(f"v_cmp_gt_u32 vcc, {v(TM)}, {v(VI)}")
        A(f"v_mov_b32 {v(QF+r)}, {v(QK+r)}")
        A("s_nop 0")
        A(f"v_cndmask_b32 {v(C0+r)}, {v(TM+1)}, 0, vcc")
        A(f"v_cndmask_b32 {v(C16+r)}, 0, {v(TM+1)}, vcc")
    A("s_lshr_b32 s53, s48, 1")
    A("s_mul_i32 s53, s53, 7")
    A("s_add_u32 s53, s53, 3")
    A("s_lshr_b32 s53, s53, 1")
    A("s_xor_b32 s53, s53, s48")
    A("s_bitcmp1_b32 s48, 0")
    A("s_cselect_b32 exec_lo, 0xffff, 0")
    A("s_cselect_b32 exec_hi, 0, 0xffff0000")
    A("s_bitcmp1_b32 s53, 0")
    A("s_cbranch_scc1 p2_q01")
    A(f"v_mov_b32 {v(QF+2)}, 0")
    A(f"v_mov_b32 {v(QF+3)}, 0")
    A("s_branch p2_qz")
    A.label("p2_q01")
    A(f"v_mov_b32 {v(QF)}, 0")
    A(f"v_mov_b32 {v(QF+1)}, 0")
    A.label("p2_qz")
    A("s_mov_b64 exec, -1")
    A("s_add_u32 s61, s51, s19")
    A("s_sub_i32 s61, 16, s61")
    A("s_cmp_gt_i32 s61, 0")
    A("s_cbranch_scc1 p2_qkslow")
    for slow in range(2):
        if slow:
            A.label("p2_qkslow")
        for i in range(17):
            if i + 3 < 17:
                A(f"ds_read_b128 {v(FB+4*((i+3)%4),4)}, v4 offset:{1024*(i+3)}")
            A(f"s_waitcnt lgkmcnt({min(3, 16-i)})")
            c = v(C0, 4) if i == 0 else (v(C16, 4) if i == 16 else "0")
            if slow and i < 16:
                l1, l2 = A.newlabel("k2i"), A.newlabel("k2j")
                A(f"s_cmp_gt_i32 s61, {i}")
                A(f"s_cbranch_scc1 {l1}")
            A(f"v_mfma_f32_16x16x32_bf16 {v(SCB+4*i,4)}, {v(FB+4*(i%4),4)}, {v(QF,4)}, {c}")
            if slow and i < 16:
                A(f"s_branch {l2}")
                A.label(l1)
                for r in range(4):
                    A(f"v_mov_b32 {v(SCB+4*i+r)}, {NEGBIG:#x}")
                A.label(l2)
        if not slow:
            A("s_branch p2_qkdone")
    A.label("p2_qkdone")
    A("s_lshr_b32 s61, s19, 1")
    A("s_lshl_b32 s61, s61, 11")
    A(f"s_add_u32 s61, s61, {L_KV+24576}")
    A(f"v_add_u32 v5, s61, {v(L16)}")
    for j in range(2):
        A(f"ds_read_b128 {v(FB+4*j,4)}, v5 offset:{1024*j}")
    M = TM
    KL, NB = TM + 17, TM + 18
    A(f"v_max3_f32 {v(M)}, {v(SCB)}, {v(SCB+1)}, {v(SCB+2)}")
    A(f"v_max3_f32 {v(M+1)}, {v(SCB+3)}, {v(SCB+4)}, {v(SCB+5)}")
    idx, k = 6, 0
    while idx < 68:
        A(f"v_max3_f32 {v(M+k)}, {v(M+k)}, {v(SCB+idx)}, {v(SCB+idx+1)}")
        idx += 2
        k ^= 1
    A(f"v_max_f32 {v(M)}, {v(M)}, {v(M+1)}")
    xlane_g(A, "v_max_f32", M, M + 1, M + 2)
    A(f"v_mov_b32 {v(KL)}, {f32bits(SCALE*LOG2E):#x}")
    A(f"v_mul_f32 {v(NB)}, {f32bits(-SCALE*LOG2E):#x}, {v(M)}")
    A("s_mul_i32 s60, s48, 7")
    A(f"v_add_u32 v6, s60, {v(VG)}")
    A(f"v_and_b32 {v(TM)}, 1, v6")
    A("v_lshrrev_b32 v6, 1, v6")
    A("v_lshlrev_b32 v6, 8, v6")
    A(f"v_lshl_add_u32 v6, {v(TM)}, 3, v6")
    A(f"v_lshl_add_u32 v6, {v(VI)}, 4, v6")
    A(f"s_add_u32 s60, s52, {WS_O}")
    big_decode(A)
    PITCH = F * 2
    A(f"s_mul_i32 s34, s40, {8*PITCH}")
    A("s_lshl_b32 s35, s33, 7")
    A("s_add_u32 s34, s34, s35")
    A(f"s_mov_b32 s38, {32*PITCH}")
    A("s_and_b32 s42, s40, 2")
    A("s_lshl_b32 s42, s42, 1")
    gen3.V_WD = 204
    unit_dma_voff(A, 204, "s43", "s42", PITCH, 205, 206)
    A(f"v_cmp_lt_u32 vcc, 6, {v(VL)}")
    A("s_lshl_b32 s85, s17, 1")
    A("v_mov_b32 v232, s85")
    A("v_addc_co_u32 v232, vcc, 0, v232, vcc")
    A(f"v_cmp_lt_u32 vcc, 6, {v(VL)}")
    A(f"v_subrev_u32 v233, 7, {v(VL)}")
    A("s_nop 0")
    A(f"v_cndmask_b32 v233, {v(VL)}, v233, vcc")
    A("v_and_b32 v234, 3, v232")
    A("v_mul_u32_u24 v234, 7, v234")
    A("v_add_u32 v234, v234, v233")
    A("v_lshrrev_b32 v232, 2, v232")
    A("v_lshl_add_u32 v232, v234, 3, v232")
    A("s_add_u32 s85, s33, 7")
    A("s_and_b32 s85, s85, 31")
    A(f"s_add_u32 s85, s85, {NWG}")
    A("v_writelane_b32 v232, s85, 14")
    A("v_lshlrev_b32 v232, 7, v232")
    A("v_add_u32 v232, 32768, v232")
    sp3 = Spec(A, 232, 0x7fff, lambda tag: None)
    A("s_lshl_b32 s35, s17, 3")
    A("s_add_u32 s35, s35, s19")
    A(f"s_mul_i32 s35, s35, {RT_BYTES}")
    A(f"s_add_u32 s35, s35, {WS_X1}")
    A(f"v_mov_b32 {v(V_XD)}, {v(L16)}")
    A.srd(20, 58, 59, WS_SIZE)
    A("s_mov_b32 s98, 0")

    def early_x():
        lx = A.newlabel("ex")
        A.vm_wait("sflag")
        A(f"v_cmp_ne_u32 s[96:97], s{TOK}, v253")
        A(f"s_cmp_ge_u32 s2, {NWG}")
        A(f"s_cbranch_scc1 {lx}")
        A("s_and_b64 s[96:97], s[96:97], 0x7fff")
        A(f"s_cbranch_scc1 {lx}")
        snap_x = A.vm_snapshot()
        gen3.XSC[0] = SL
        for ds in range(2):
            big_dma_parts(A, ds, 2048, V_XD)[0]()
        gen3.XSC[0] = ""
        A.vm_restore(snap_x)
        A("s_mov_b32 s98, 1")
        A.label(lx)
    A.srd(24, 6, 7, D * F * 2)
    A("s_waitcnt vmcnt(0)")
    A("s_barrier")
    A.vm_restore([])
    A(f"s_cmp_ge_u32 s2, {NWG}")
    A("s_cbranch_scc1 p2_now3")
    flag_store(A, 1)
    for ds in range(3):
        for p in big_dma_parts(A, ds, 2048, V_XD)[1:]:
            p()
    if L2WARM:
        A("s_lshl_b32 s44, s15, 3")
        A("s_add_u32 s44, s44, s19")
        A("s_mul_i32 s45, s44, 1792")
        A("s_mul_i32 s44, s44, 7168")
        A.srd(68, 8, 9, D * F * 2)
        A.srd(72, 10, 11, D * D * 2)
        for q in range(7):
            A.vmem(f"buffer_load_dwordx4 v[208:211], {v(L16)}, s[68:71], s44 offen offset:{1024*(q%4)}", "warm")
            if q == 3:
                A("s_add_u32 s44, s44, 4096")
        for q in range(2):
            A.vmem(f"buffer_load_dwordx4 v[208:211], {v(L16)}, s[72:75], s45 offen offset:{896*q}", "warm")
    A.label("p2_now3")
    A("s_bitcmp1_b32 s19, 0")
    A("s_cbranch_scc1 p2_odd")
    for par in range(2):
        if par:
            A.label("p2_odd")
        zs = 17 if par == 0 else 0
        A(f"v_mov_b32 {v(PB+2*zs)}, 0")
        A(f"v_mov_b32 {v(PB+2*zs+1)}, 0")
        nread = 2
        if par:
            A.vm_restore(snap_att)
        snap_att = A.vm_snapshot()
        for c in range(9):
            if c == SP3C:
                sp3.stage1()
            if c == SP3C + 2:
                early_x()
            els = []
            for half in range(2):
                slot = 2 * c + half
                if slot != zs:
                    els += [SCB + 4 * (slot - par) + r for r in range(4)]
            for e in els:
                A(f"v_fma_f32 {v(e)}, {v(e)}, {v(KL)}, {v(NB)}")
            for e in els:
                A(f"v_exp_f32 {v(e)}, {v(e)}")
            while nread < min(18, 2 * c + 4):
                A(f"ds_read_b128 {v(FB+4*(nread%4),4)}, v5 offset:{1024*nread}")
                nread += 1
            if c >= 7:
                A("s_nop 0")
            for half in range(2):
                slot = 2 * c + half
                if slot == zs:
                    continue
                i = slot - par
                A(f"v_cvt_pk_bf16_f32 {v(PB+2*slot)}, {v(SCB+4*i)}, {v(SCB+4*i+1)}")
                A(f"v_cvt_pk_bf16_f32 {v(PB+2*slot+1)}, {v(SCB+4*i+2)}, {v(SCB+4*i+3)}")
            A(f"s_waitcnt lgkmcnt({nread - (2*c+2)})")
            A("s_nop 0")
            for dt in range(2):
                A(f"v_mfma_f32_16x16x32_bf16 {v(OA+4*dt,4)}, {v(FB+4*((2*c+dt)%4),4)}, {v(PB+4*c,4)}, {v(OA+4*dt,4) if c else 0}")
        if par == 0:
            A("s_branch p2_out")
    A.label("p2_out")
    A(f"v_mov_b32 {v(TM)}, 0")
    A("s_lshl_b32 s42, s40, 12")
    A(f"v_add_u32 {v(V_XR[0])}, s42, {v(L16)}")
    A(f"v_add_u32 {v(V_XR[1])}, {2*SLOT}, {v(V_XR[0])}")
    A("s_mov_b32 exec_lo, 0")
    A("s_mov_b32 exec_hi, 0xffff0000")
    A(f"v_mov_b32 {v(TM)}, {v(OA+4)}")
    A("s_mov_b64 exec, -1")
    xlane_g(A, "v_add_f32", TM, TM + 1, TM + 2)
    A(f"v_rcp_f32 {v(TM)}, {v(TM)}")
    A("s_nop 0")
    for r in range(8):
        A(f"v_mul_f32 {v(OA+r)}, {v(TM)}, {v(OA+r)}")
    for r in range(4):
        A(f"v_cvt_pk_bf16_f32 {v(TM+4+r)}, {v(OA+2*r)}, {v(OA+2*r+1)}")
    A.vmem(f"buffer_store_dwordx2 {v(TM+4,2)}, v6, s[28:31], s60 offen{SC}", "ost")
    ex48(A)
    A.vmem(f"buffer_store_dwordx2 {v(TM+6,2)}, v6, s[28:31], s60 offen offset:512{SC}", "ost")
    exall(A)
    l3 = A.newlabel("p3go")
    A(f"s_cmp_lt_u32 s2, {NWG}")
    A(f"s_cbranch_scc1 {l3}")
    A("s_waitcnt vmcnt(0)")
    A("s_barrier")
    flag_store(A, 2)
    A("s_endpgm")
    A.label(l3)
    big_bases(A, PB4)
    A("s_lshl_b32 s39, s17, 3")
    A("s_lshl_b32 s42, s40, 1")
    A("s_add_u32 s39, s39, s42")
    A("s_lshl_b32 s42, s39, 4")
    A(f"v_add_u32 v24, s42, {v(VI)}")
    A("v_lshlrev_b32 v24, 7, v24")
    A(f"v_lshl_add_u32 v24, {v(VG)}, 5, v24")
    A(f"s_mov_b32 s46, {WS_ST}")
    A("s_lshl_b32 s45, s33, 8")
    A(f"s_add_u32 s45, s45, {WS_CS + 7*256}")
    A(f"v_xor_b32 v203, 16, {v(CSO)}")
    stamp(A)
    l = A.newlabel("sp3")
    A("s_cmp_eq_u32 s98, 1")
    A(f"s_cbranch_scc1 {l}")
    A("s_mov_b64 exec, 0x7fff")
    spin(A, 232)
    gen3.XSC[0] = SL
    for ds in range(2):
        big_dma_parts(A, ds, 2048, V_XD)[0]()
    A.label(l)
    stamp(A)
    STR = 180

    def h3a():
        for j in range(2):
            for q in range(2):
                A.vmem(f"buffer_load_dwordx4 {v(STR+8*j+4*q,4)}, v24, s[28:31], s46 offen offset:{2048*j+16*q}{SL}", "st")
        for t in range(4):
            A.vmem(f"buffer_load_dwordx4 {v(CS+4*t,4)}, {v(203 if t & 1 else CSO)}, s[28:31], s45 offen offset:{128*(t>>1)}{SL}", "st")
        A("s_load_dwordx2 s[4:5], s[0:1], 16")
        A("s_load_dwordx2 s[6:7], s[0:1], 56")
        A("s_load_dwordx2 s[8:9], s[0:1], 72")

    RS4, PF4 = 6, 4
    RING = RS4 * 4096
    L4_WO, L4_R = 0, 57344
    OFB = 204
    def o_loads(tag):
        for u in range(7):
            A.vmem(f"buffer_load_dwordx4 {v(OFB+4*u,4)}, {v(L16)}, s[28:31], s{62+u//4} offen offset:{1024*(u%4)}{SL}", tag)
        A.vmem(f"buffer_load_dword v247, v246, s[28:31], s64 offen{SL}", tag)

    sp4 = Spec(A, 245, 0x1ffff, o_loads)

    def h3b():
        A("s_mul_i32 s16, s15, 9363")
        A("s_lshr_b32 s16, s16, 16")
        A("s_mul_i32 s69, s16, 7")
        A("s_sub_u32 s69, s15, s69")
        A("s_lshl_b32 s68, s14, 2")
        A("s_add_u32 s68, s68, s16")
        A(f"v_and_b32 v245, 1, {v(VL)}")
        A("v_lshlrev_b32 v245, 4, v245")
        A("s_lshr_b32 s85, s68, 1")
        A("v_add_u32 v245, s85, v245")
        A(f"v_lshrrev_b32 v246, 1, {v(VL)}")
        A("v_lshl_add_u32 v245, v245, 3, v246")
        A("v_lshlrev_b32 v245, 7, v245")
        A("v_add_u32 v245, 65536, v245")
        A(f"s_add_u32 s85, s68, {NWG}")
        A("s_lshl_b32 s85, s85, 7")
        A("s_add_u32 s85, s85, 32768")
        A("v_writelane_b32 v245, s85, 16")
        A("s_lshl_b32 s70, s68, 2")
        A("s_add_u32 s70, s70, s40")
        A(f"s_mul_i32 s62, s70, {RT_BYTES}")
        A(f"s_mul_i32 s63, s41, {7*1024}")
        A("s_add_u32 s62, s62, s63")
        A(f"s_add_u32 s62, s62, {WS_O}")
        A("s_add_u32 s63, s62, 4096")
        A("s_lshl_b32 s85, s70, 4")
        A(f"v_add_u32 v244, s85, {v(VI)}")
        A("v_lshlrev_b32 v246, 2, v244")
        A(f"s_mov_b32 s64, {WS_G}")
        sp4.stage1()

    def h3c():
        A.vm_wait("st")
        A("s_mov_b32 exec_lo, 0")
        A("s_mov_b32 exec_hi, 0xffff0000")
        for j in range(2):
            for r in range(4, 8):
                A(f"v_mov_b32 {v(STR+8*j+r)}, 0")
        A("s_mov_b64 exec, -1")
        for j in range(2):
            b = STR + 8 * j
            m, q = 198, 199
            A(f"v_add_f32 {v(m)}, {v(b)}, {v(b+2)}")
            A(f"v_add_f32 {v(q)}, {v(b+4)}, {v(b+6)}")
            A(f"v_add_f32 {v(m)}, {v(m)}, {v(q)}")
            xlane_g(A, "v_add_f32", m, 196, 197)
            A(f"v_mul_f32 {v(m)}, {f32bits(1.0/448):#x}, {v(m)}")
            A(f"v_add_f32 {v(q)}, {v(b+1)}, {v(b+3)}")
            A(f"v_add_f32 {v(q)}, {v(q)}, {v(b+5)}")
            A(f"v_add_f32 {v(q)}, {v(q)}, {v(b+7)}")
            for r in (0, 2, 4, 6):
                A(f"v_mul_f32 {v(b+r)}, {f32bits(1.0/32):#x}, {v(b+r)}")
                A(f"v_sub_f32 {v(b+r)}, {v(b+r)}, {v(m)}")
            A(f"v_mul_f32 {v(b)}, {v(b)}, {v(b)}")
            A(f"v_fmac_f32 {v(b)}, {v(b+2)}, {v(b+2)}")
            ex48(A)
            A(f"v_fmac_f32 {v(b)}, {v(b+4)}, {v(b+4)}")
            A(f"v_fmac_f32 {v(b)}, {v(b+6)}, {v(b+6)}")
            exall(A)
            A(f"v_fmamk_f32 {v(q)}, {v(b)}, {f32bits(32.0):#x}, {v(q)}")
            xlane_g(A, "v_add_f32", q, 196, 197)
            A(f"v_mul_f32 {v(q)}, {f32bits(1.0/448):#x}, {v(q)}")
            ln_finish(A, m, q)
            row_consts(A, 140 + 8 * j, m, q)
        A(f"s_mul_i32 s42, s39, {H3_RT_BYTES}")
        A("s_lshl_b32 s43, s33, 11")
        A("s_add_u32 s42, s42, s43")
        A(f"s_add_u32 s42, s42, {WS_H3}")
        A(f"s_add_u32 s43, s42, {H3_RT_BYTES}")

    consts = (148, 150, 152)
    big_mainloop(A, False, 2048, V_XD, False, wdone=(0, 1, 2), hooks={4: lambda: flag_store(A, 2), 7: h3a, 9: h3b, 11: h3c})
    gen3.XSC[0] = ""
    stamp(A)
    A(f"v_mov_b32 v6, {v(U896)}")
    A("s_and_b32 s85, s19, 1")
    A("s_lshl_b32 s85, s85, 6")
    A("v_xor_b32 v6, s85, v6")
    A("v_xor_b32 v7, 64, v6")
    A("s_lshl_b32 s66, s69, 7")
    A(f"s_mul_i32 s65, s19, {7*8*896}")
    A("s_add_u32 s65, s65, s66")
    A("s_mul_i32 s67, s19, 7168")
    A.srd(20, 4, 5, D * D * 2)
    A("s_barrier")
    fill3 = []
    for u in range(7):
        def f_(u=u):
            A("s_mov_b32 m0, s67")
            A("s_add_u32 s67, s67, 1024")
            A.vmem(f"buffer_load_dwordx4 v{6+(u&1)}, s[20:23], s65 offen lds", "wo")
            A(f"s_add_u32 s65, s65, {8*896}")
        fill3.append(f_)

    def f_flag():
        A.vm_wait("sflag")
        A(f"v_cmp_ne_u32 s[96:97], s{TOK}, v253")
    fill3.append(f_flag)
    for u in range(7):
        fill3.append(lambda u=u: A.vmem(f"buffer_load_dwordx4 {v(OFB+4*u,4)}, {v(L16)}, s[28:31], s{62+u//4} offen offset:{1024*(u%4)}{SL}", "sdata"))
    fill3.append(lambda: A.vmem(f"buffer_load_dword v247, v246, s[28:31], s64 offen{SL}", "sdata"))

    class Inter:
        def __init__(self, n):
            self.n, self.c = n, 0

        def __call__(self, line):
            A(line)
            self.c += 1
            if self.c % self.n == 0 and fill3:
                fill3.pop(0)()

    def st3(j, pk):
        for tp in range(2):
            A.vmem(f"buffer_store_dwordx4 {v(pk+4*tp,4)}, {v(L16)}, s[28:31], s{42+j} offen offset:{1024*tp}{SC}", "hst")

    gelu_epi(Inter(FILLN), CS, (140, 148), 48, 32, st3)
    while fill3:
        fill3.pop(0)()
    stamp(A)
    NA = PF4 + 2
    AFB = 32
    WFB = AFB + NA * 8
    ACB = WFB + 32
    AWO = ACB + 32
    WOF = AWO + 16
    assert WOF + 32 <= OFB
    GR = 247
    TB, TO = 20, 24
    af = lambda sx, j: AFB + ((sx % NA) * 2 + j) * 4
    ac = lambda j, t: v(ACB + (j * 4 + t) * 4, 4)
    for m in range(1, 4):
        A(f"v_add_u32 v{8+m}, {4096*m}, {v(L16)}")
    A(f"v_mov_b32 v8, {v(L16)}")
    A(f"v_mov_b32 v4, {v(U896)}")
    l = A.newlabel("sw")
    A("s_cmp_eq_u32 s41, 0")
    A(f"s_cbranch_scc1 {l}")
    A(f"v_mov_b32 v4, {v(U896S)}")
    A.label(l)
    A("v_xor_b32 v5, 64, v4")
    A("s_lshl_b32 s32, s68, 2")
    A("s_lshl_b32 s33, s41, 1")
    A("s_add_u32 s32, s32, s33")
    A(f"s_mul_i32 s32, s32, {H3_RT_BYTES}")
    A(f"s_mul_i32 s33, s40, {14*1024}")
    A("s_add_u32 s32, s32, s33")
    A(f"s_add_u32 s32, s32, {WS_H3}")
    A(f"s_add_u32 s33, s32, {H3_RT_BYTES}")
    A(f"s_mul_i32 s36, s40, {448*896}")
    A(f"s_mul_i32 s34, s41, {16*896}")
    A("s_add_u32 s36, s36, s34")
    A("s_add_u32 s36, s36, s66")
    A(f"s_mul_i32 s35, s40, {RING}")
    A(f"s_add_u32 s35, s35, {L4_R}")
    A("s_lshl_b32 s37, s41, 11")
    A("s_add_u32 s37, s37, s35")
    A(f"s_mul_i32 s44, s41, {7*4096}")
    for t in range(4):
        A(f"v_add_u32 {v(TO+t)}, s44, {v(PB4+t)}")
        A(f"v_add_u32 {v(TB+t)}, s35, {v(PB4+t)}")
    A.srd(24, 6, 7, F * D * 2)
    A.srd(48, 8, 9, ACT_BYTES)

    ROT = os.environ.get("ROT", "0") == "1"
    if ROT:
        A("s_lshl_b32 s72, s69, 1")
        A(f"s_add_u32 s73, s36, {14*32*896}")
        A(f"s_mul_i32 s74, s72, {32*896}")
        A("s_add_u32 s36, s36, s74")
        A(f"s_add_u32 s75, s32, {14*1024}")
        A("s_lshl_b32 s74, s72, 10")
        A("s_add_u32 s32, s32, s74")

    def w_parts(sx):
        parts = []
        for j in range(2):
            def p(j=j):
                A(f"s_add_u32 m0, s37, {(sx%RS4)*4096 + j*1024}")
                A("s_nop 0")
                A.vmem(f"buffer_load_dwordx4 v{4+j}, s[24:27], s36 offen lds", ("w", sx))
                A(f"s_add_u32 s36, s36, {8*896 if j == 0 else 24*896}")
                if ROT and j == 1:
                    A(f"s_sub_u32 s74, s36, {14*32*896}")
                    A("s_cmp_ge_u32 s36, s73")
                    A("s_cselect_b32 s36, s74, s36")
            parts.append(p)
        return parts

    def a_parts(sx):
        if ROT:
            def p0():
                A(f"s_add_u32 s33, s32, {H3_RT_BYTES}")
                A.vmem(f"buffer_load_dwordx4 {v(af(sx,0),4)}, v8, s[28:31], s32 offen{SL}", ("ld", sx))

            def p1():
                A.vmem(f"buffer_load_dwordx4 {v(af(sx,1),4)}, v8, s[28:31], s33 offen{SL}", ("ld", sx))
                A("s_add_u32 s32, s32, 1024")
                A(f"s_sub_u32 s74, s32, {14*1024}")
                A("s_cmp_ge_u32 s32, s75")
                A("s_cselect_b32 s32, s74, s32")
            return [p0, p1]
        return [lambda j=j: A.vmem(f"buffer_load_dwordx4 {v(af(sx,j),4)}, v{8+sx//4}, s[28:31], s{32+j} offen offset:{1024*(sx%4)}{SL}", ("ld", sx)) for j in range(2)]

    sp4.finish()
    A("s_barrier")
    for r in unit_reads(TO, 0, WOF):
        A(r)
    for u in range(7):
        A("s_waitcnt lgkmcnt(0)")
        rd = unit_reads(TO, (u + 1) * 4096, WOF + 16 * ((u + 1) & 1)) if u < 6 else []
        for t in range(4):
            c = v(AWO + 4 * t, 4)
            A(f"v_mfma_f32_16x16x32_bf16 {c}, {v(WOF+16*(u&1)+4*t,4)}, {v(OFB+4*u,4)}, {c if u else 0}")
            for r in rd[4*t:4*t+4] if t < 2 else []:
                A(r)
            if t >= 2 and u >= 1:
                w_parts(u - 1)[t - 2]()
        if u == 1:
            A.vm_wait("hst")
            A("s_barrier")
            flag_store(A, 3)
    stamp(A)

    def deps4b():
        A("s_lshr_b32 s85, s68, 1")
        A("v_mov_b32 v232, s85")
        A(f"v_mov_b32 v233, {v(VL)}")
        big_id(A, 252, 232, 233, 234)
        A(f"v_add_u32 v252, {3*32768}, v252")
        A("s_mov_b64 exec, 0x3fff")

    poll(A, deps4b, "s_waitcnt vmcnt(0)")
    A.vm_restore([])
    stamp(A)
    na = [0]

    def take_a(n, limit):
        out = []
        while n > 0 and na[0] < 14 and na[0] <= limit:
            out += a_parts(na[0])
            na[0] += 1
            n -= 1
        return out

    for p in take_a(3, 2):
        p()
    for r in unit_reads(TB, 0, WFB):
        A(r)
    for sx in range(14):
        tags = [("ld", sx)]
        bar = sx % 2 == 0 and 0 < sx < 13
        if bar:
            tags += [("w", t) for t in (sx + 1, sx + 2) if 5 < t < 14]
        A.vm_wait(tags, " lgkmcnt(0)")
        if bar:
            A("s_barrier")
        rd = unit_reads(TB, ((sx + 1) % RS4) * 4096, WFB + 16 * ((sx + 1) & 1)) if sx < 13 else []
        parts = take_a(2, sx + 1 + PF4)
        wt = [6] if sx == 2 else []
        wt += [sx + 5] if 2 <= sx and sx + 5 < 14 else []
        for t in wt:
            parts += w_parts(t)
        mf = [f"v_mfma_f32_16x16x32_bf16 {ac(j,t)}, {v(WFB+16*(sx&1)+4*t,4)}, {v(af(sx,j),4)}, {ac(j,t) if sx else 0}" for t in range(4) for j in range(2)]
        E4 = os.environ.get("E4", "")
        for i, m in enumerate(mf):
            if "m" not in E4:
                A(m)
            for _ in range(2):
                if rd:
                    r_ = rd.pop(0)
                    if "r" not in E4:
                        A(r_)
            for _ in range(-(-len(parts) // (len(mf) - i))):
                parts.pop(0)()
        assert not rd and not parts
    stamp(A)
    A("s_lshl_b32 s52, s40, 14")
    A("s_lshl_b32 s53, s41, 13")
    A("s_add_u32 s52, s52, s53")
    A("v_add_u32 v12, s52, v8")
    A("s_lshl_b32 s52, s41, 14")
    A("s_lshl_b32 s53, s40, 12")
    A("s_add_u32 s52, s52, s53")
    A("s_add_u32 s52, s52, 65536")
    A("v_add_u32 v13, s52, v8")
    A("s_barrier")
    for t in range(4):
        A(f"ds_write_b128 v13, {v(AWO+4*t,4)} offset:{t*1024}")
    for j in range(2):
        for t in range(4):
            A(f"ds_write_b128 v12, {ac(j,t)} offset:{(j*4+t)*1024}")
    A("s_lshl_b32 s52, s40, 12")
    A("s_lshl_b32 s53, s41, 11")
    A("s_add_u32 s52, s52, s53")
    A("v_add_u32 v12, s52, v8")
    A("v_add_u32 v13, 65536, v12")
    XU = OFB
    for j in range(4):
        A(f"v_lshlrev_b32 {v(XU+2*j)}, 16, {v(X1K+j)}")
        A(f"v_and_b32 {v(XU+2*j+1)}, 0xffff0000, {v(X1K+j)}")
    A(f"v_sub_f32 v19, 1.0, {v(GR)}")
    rbf(A, 19)
    A("v_mul_u32_u24 v14, 896, v244")
    A(f"v_lshrrev_b32 v16, 1, {v(CSO)}")
    A("v_xor_b32 v15, 8, v16")
    A("v_add_u32 v15, v15, v14")
    A("v_add_u32 v14, v16, v14")
    A("s_lshl_b32 s53, s41, 6")
    A("s_add_u32 s52, s66, s53")
    A("s_waitcnt lgkmcnt(0)")
    A("s_barrier")
    RB = 32
    for q in range(4):
        for t in range(2):
            A(f"ds_read_b128 {v(RB+8*q+4*t,4)}, v12 offset:{16384*q + 1024*t}")
    for q in range(2):
        for t in range(2):
            A(f"ds_read_b128 {v(RB+32+8*q+4*t,4)}, v13 offset:{16384*q + 1024*t}")
    A("s_waitcnt lgkmcnt(4)")
    for r in range(8):
        A(f"v_add_f32 {v(RB+r)}, {v(RB+r)}, {v(RB+8+r)}")
        A(f"v_add_f32 {v(RB+16+r)}, {v(RB+16+r)}, {v(RB+24+r)}")
    for r in range(8):
        A(f"v_add_f32 {v(RB+r)}, {v(RB+r)}, {v(RB+16+r)}")
    for r in range(8):
        A(f"v_add_f32 {v(RB+r)}, {v(RB+r)}, {v(XU+r)}")
    for r in range(8):
        A(f"v_mul_f32 {v(RB+r)}, v19, {v(RB+r)}")
    A("s_waitcnt lgkmcnt(0)")
    AU = RB + 32
    for r in range(8):
        A(f"v_add_f32 {v(AU+r)}, {v(AU+r)}, {v(AU+8+r)}")
    for r in range(8):
        A(f"v_fmac_f32 {v(RB+r)}, {v(GR)}, {v(AU+r)}")
    for j in range(4):
        A(f"v_cvt_pk_bf16_f32 {v(XU+j)}, {v(RB+2*j)}, {v(RB+2*j+1)}")
    A(f"buffer_store_dwordx2 {v(XU,2)}, v14, s[48:51], s52 offen")
    A(f"buffer_store_dwordx2 {v(XU+2,2)}, v15, s[48:51], s52 offen")
    stamp(A)
    A.label(Lend)
    A("s_endpgm")
    if PFCODE:
        for _ in range(256):
            A("s_nop 0")
        A.label("k_codeend")
        for _ in range(256):
            A("s_nop 0")
        A("s_endpgm")
    return A.text()


def build():
    hdr = open("gated_mix__sliding_block__mixer_s_mlp__prompt.s.ref").read().split("; Override launch")[0]
    out = hdr + "; @launch grid=(256,1,1) block=(512,1,1) lds=163840\n"
    out += '.amdgcn_target "amdgcn-amd-amdhsa--gfx950"\n.text\n'
    out += kernel_head(KNAME) + gen()
    out += '.section .rodata,"a"\n' + kernel_desc(KNAME, 256, 256)
    return out


if __name__ == "__main__":
    dst = sys.argv[1] if len(sys.argv) > 1 else "gated_mix__sliding_block__mixer_s_mlp__prompt.s"
    open(dst, "w").write(build())
    print("wrote", dst)
```

```python
import os
import sys
from asmlib import Asm, v, a, s, f32bits, kernel_desc, kernel_head
import gen3
from gen2 import (lane_setup, xlane_g, rbf, ln_finish, gelu_consts, ex48, exall,
                  S, D, F, MB, WS_K, WS_V, WS_HS, WS_X1, WS_O, WS_H3, WS_G, WS_ST, WS_SIZE, WS_DBG, ACT_BYTES, RT_BYTES,
                  H3_RT_BYTES, LOG2E, SCALE, NEGBIG, STAMPS, VL, VI, VG)
from gen3 import (unit_bases, unit_dma_voff, unit_reads, big_mainloop, big_dma_parts, big_decode,
                  gelu_epilogue, small_decode, SLOT, V_XD, V_XD2, V_WD, V_XR, V_TB, ACC, NWG)

KNAME = "gated_mix__sliding_block__mixer_s_mlp__prompt_kernel"
WS_FLAG = 26 * MB
if os.environ.get("COMPACT", "0") == "1":
    WS_K = 1835008
    WS_V = 3670016
    WS_HS = 5767168
    WS_X1 = 7602176
    WS_O = 9437184
    WS_FLAG = 11272192
    WS_H3 = 11796480
WS_ST = WS_FLAG + 131072
WS_G = WS_FLAG + 393216
WS_LN1 = WS_FLAG + 409600
WS_CS = WS_FLAG + 425984
TOK = 84
PB4 = 236
L16 = 240
U896, U896S = 241, 242
CSO = 243
X1K = 248
SC = " sc1"
SL = " sc1"
SP3C = int(os.environ.get("SP3C", "5"))
PFAT = int(os.environ.get("PFAT", "8"))
PFWS = os.environ.get("PFWS", "0") == "1"
PFSM = os.environ.get("PFSM", "1") == "1"
PFCODE = os.environ.get("PFCODE", "1") == "1"
PFLATE = os.environ.get("PFLATE", "0") == "1"
PFH = os.environ.get("PFH", "0")
FILLN = int(os.environ.get("FILLN", "1"))
PUBC = int(os.environ.get("PUBC", "3"))
L2WARM = os.environ.get("L2WARM", "0") == "1"
gen3.stamp = lambda A, i: None
gen3.CZERO[0] = True
NST = [0]


def stamp(A):
    if not STAMPS:
        return
    i = NST[0]
    NST[0] += 1
    A("s_memrealtime s[86:87]")
    A("s_lshl_b32 s88, s2, 11")
    A("s_lshl_b32 s89, s19, 7")
    A("s_add_u32 s88, s88, s89")
    A(f"s_add_u32 s88, s88, {WS_DBG + 4*i}")
    A("s_mov_b64 s[90:91], exec")
    A("s_mov_b64 exec, 1")
    A("v_mov_b32 v254, 0")
    A("s_waitcnt lgkmcnt(0)")
    A("v_mov_b32 v255, s86")
    A.vmem("buffer_store_dword v255, v254, s[28:31], s88 offen", "stamp")
    A("s_mov_b64 exec, s[90:91]")


def xstamp(A, i):
    if STAMPS:
        keep = NST[0]
        NST[0] = i
        stamp(A)
        NST[0] = keep


def flag_store(A, kind):
    l = A.newlabel("pub")
    A("s_cmp_lg_u32 s19, 0")
    A(f"s_cbranch_scc1 {l}")
    A("s_lshl_b32 s85, s2, 7")
    A(f"s_add_u32 s85, s85, {WS_FLAG + kind*32768}")
    A("v_mov_b32 v252, 0")
    A(f"v_mov_b32 v253, s{TOK}")
    A("s_mov_b64 exec, 1")
    A(f"buffer_store_dword v253, v252, s[28:31], s85 offen{SC}")
    A("s_mov_b64 exec, -1")
    A.label(l)


def tok_ok(A):
    A(f"s_sub_i32 s85, s82, s{TOK}")
    A("s_cmp_lt_i32 s85, 1500")
    A(f"s_cselect_b32 s85, s{TOK}, 0")
    A("s_cmp_lg_u32 s85, 0")


def get_token(A):
    l, l2 = A.newlabel("tok"), A.newlabel("tok")
    A("v_mov_b32 v252, 0")
    A("s_mov_b32 s93, 0")
    A.label(l)
    A(f"global_load_dword v253, v252, s[56:57]{SC}")
    A("s_add_u32 s93, s93, 1")
    A("s_waitcnt vmcnt(0)")
    A(f"v_readfirstlane_b32 s{TOK}, v253")
    A("s_cmp_ge_u32 s93, 0x4000")
    A(f"s_cbranch_scc1 {l2}")
    tok_ok(A)
    A(f"s_cbranch_scc0 {l}")
    A.label(l2)


def spin(A, vaddr):
    lp = A.newlabel("pol")
    A(f"s_mov_b32 s85, {WS_FLAG}")
    A("s_mov_b32 s93, 0")
    A.label(lp)
    A(f"buffer_load_dword v253, {v(vaddr)}, s[28:31], s85 offen{SC}")
    A("s_add_u32 s93, s93, 1")
    A("s_waitcnt vmcnt(0)")
    A(f"v_cmp_ne_u32 vcc, s{TOK}, v253")
    A("s_cmp_lt_u32 s93, 0x20000")
    A("s_cselect_b64 s[94:95], vcc, 0")
    A("s_cmp_lg_u64 s[94:95], 0")
    A(f"s_cbranch_scc1 {lp}")
    A("s_mov_b64 exec, -1")


def poll(A, addr_fn, extra_wait=""):
    l = A.newlabel("pol")
    A("s_cmp_lg_u32 s19, 0")
    A(f"s_cbranch_scc1 {l}")
    addr_fn()
    spin(A, 252)
    A.label(l)
    if extra_wait:
        A(extra_wait)
    A("s_barrier")


def big_id(A, dst, rt, ct, t0):
    A(f"v_lshrrev_b32 {v(dst)}, 2, {v(rt)}")
    A(f"v_lshlrev_b32 {v(dst)}, 1, {v(dst)}")
    A(f"v_cmp_lt_u32 vcc, 6, {v(ct)}")
    A("s_nop 1")
    A(f"v_addc_co_u32 {v(dst)}, vcc, 0, {v(dst)}, vcc")
    A(f"v_cmp_lt_u32 vcc, 6, {v(ct)}")
    A(f"v_and_b32 {v(t0)}, 3, {v(rt)}")
    A(f"v_mul_u32_u24 {v(t0)}, 7, {v(t0)}")
    A(f"v_add_u32 {v(t0)}, {v(t0)}, {v(ct)}")
    A(f"v_subrev_u32 {v(rt)}, 7, {v(t0)}")
    A(f"v_cndmask_b32 {v(t0)}, {v(t0)}, {v(rt)}, vcc")
    A(f"v_lshl_add_u32 {v(dst)}, {v(t0)}, 3, {v(dst)}")
    A(f"v_lshlrev_b32 {v(dst)}, 7, {v(dst)}")


def big_bases(A, src):
    A("s_lshl_b32 s42, s41, 13")
    A("s_add_u32 s42, s42, 16384")
    A(f"s_add_u32 s43, s42, {2*SLOT}")
    for t in range(4):
        A(f"v_add_u32 {v(V_TB[1]+t)}, s43, {v(src+t)}")
        A(f"v_add_u32 {v(V_TB[0]+t)}, s42, {v(src+t)}")


class Spec:
    def __init__(self, A, vflag, mask, loads):
        self.A, self.vflag, self.mask, self.loads = A, vflag, mask, loads

    def stage1(self):
        A = self.A
        A(f"s_mov_b32 s85, {WS_FLAG}")
        A(f"s_mov_b64 exec, {self.mask:#x}")
        A.vmem(f"buffer_load_dword v253, {v(self.vflag)}, s[28:31], s85 offen{SC}", "sflag")
        A("s_mov_b64 exec, -1")

    def stage2(self):
        A = self.A
        A.vm_wait("sflag")
        A(f"v_cmp_ne_u32 s[96:97], s{TOK}, v253")
        self.loads("sdata")

    def finish(self):
        A = self.A
        l = A.newlabel("spec")
        A(f"s_and_b64 s[96:97], s[96:97], {self.mask:#x}")
        A(f"s_cbranch_scc0 {l}")
        A(f"s_mov_b64 exec, {self.mask:#x}")
        spin(A, self.vflag)
        snap = A.vm_snapshot()
        self.loads("sdata")
        A.vm_restore(snap)
        A("s_waitcnt vmcnt(0)")
        A.label(l)
        A.vm_wait("sdata")


def gelu_epi(A, cs, rowc, tmp, pk, store_fn):
    for j in range(2):
        nm, k0, k1, sd = (rowc[j] + 2 * q for q in range(4))
        pairs = [ACC + j * 16 + 2 * i for i in range(8)]
        T = [tmp + 2 * i for i in range(8)]
        for i, p in enumerate(pairs):
            A(f"v_pk_fma_f32 {v(p,2)}, {v(cs+2*i,2)}, {v(nm,2)}, {v(p,2)}")
        for i, p in enumerate(pairs):
            A(f"v_pk_mul_f32 {v(T[i],2)}, {v(p,2)}, {v(p,2)}")
        for i, p in enumerate(pairs):
            A(f"v_pk_fma_f32 {v(T[i],2)}, {v(T[i],2)}, {v(k1,2)}, {v(k0,2)}")
        for i, p in enumerate(pairs):
            A(f"v_pk_mul_f32 {v(T[i],2)}, {v(T[i],2)}, {v(p,2)}")
        for i in range(8):
            A(f"v_exp_f32 {v(T[i])}, {v(T[i])}")
            A(f"v_exp_f32 {v(T[i]+1)}, {v(T[i]+1)}")
        for i in range(8):
            A(f"v_pk_fma_f32 {v(T[i],2)}, {v(T[i],2)}, {v(sd,2)}, {v(sd,2)}")
        for i in range(8):
            A(f"v_rcp_f32 {v(T[i])}, {v(T[i])}")
            A(f"v_rcp_f32 {v(T[i]+1)}, {v(T[i]+1)}")
        for i, p in enumerate(pairs):
            A(f"v_pk_mul_f32 {v(p,2)}, {v(p,2)}, {v(T[i],2)}")
        for i, p in enumerate(pairs):
            A(f"v_cvt_pk_bf16_f32 {v(pk+8*j+i)}, {v(p)}, {v(p+1)}")
        store_fn(j, pk + 8 * j)


def row_consts(A, dst, nm, rs):
    from gen2 import GELU_C0, GELU_C1
    A(f"v_rcp_f32 {v(dst+6)}, {v(rs)}")
    A(f"v_mul_f32 {v(dst+2)}, {f32bits(GELU_C0):#x}, {v(rs)}")
    A(f"v_mul_f32 {v(dst+4)}, {v(rs)}, {v(rs)}")
    A(f"v_mul_f32 {v(dst+4)}, {v(dst+4)}, {v(rs)}")
    A(f"v_mul_f32 {v(dst+4)}, {f32bits(GELU_C1):#x}, {v(dst+4)}")
    A(f"v_mov_b32 {v(dst)}, {v(nm)}")
    for q in range(4):
        A(f"v_mov_b32 {v(dst+2*q+1)}, {v(dst+2*q)}")


def red8(A, x, t):
    for dpp in ("quad_perm:[1,0,3,2]", "quad_perm:[2,3,0,1]", "row_half_mirror"):
        A("s_nop 1")
        A(f"v_add_f32_dpp {v(x)}, {v(x)}, {v(x)} {dpp} row_mask:0xf bank_mask:0xf")


def gen():
    A = Asm()
    Lend = "k_end"
    A("s_cmp_ge_u32 s2, 256")
    A(f"s_cbranch_scc1 {Lend}")
    A("s_load_dwordx4 s[4:7], s[0:1], 0")
    A("s_load_dwordx2 s[8:9], s[0:1], 32")
    A("s_load_dwordx4 s[56:59], s[0:1], 80")
    A("s_memrealtime s[82:83]")
    lane_setup(A)
    A(f"v_lshlrev_b32 {v(L16)}, 4, {v(VL)}")
    A(f"s_cmp_ge_u32 s2, {NWG}")
    A("s_cbranch_scc1 helper")
    big_decode(A)
    A("s_sub_u32 s46, s33, 21")
    A("s_movk_i32 s32, 896")
    A("s_cmp_lt_u32 s33, 21")
    A("s_cselect_b32 s32, 2688, s32")
    A("s_cselect_b32 s34, s33, s46")
    A("s_lshl_b32 s34, s34, 7")
    A("s_lshl_b32 s35, s40, 3")
    A("s_mul_i32 s35, s35, s32")
    A("s_add_u32 s34, s34, s35")
    A("s_lshl_b32 s38, s32, 5")
    unit_dma_voff(A, V_WD, "s43", None, "s32", 24, 25)
    A(f"v_lshrrev_b32 v24, 3, {v(VL)}")
    A("v_lshrrev_b32 v25, 1, v24")
    A(f"v_xor_b32 v25, v25, {v(VL)}")
    A("v_and_b32 v25, 7, v25")
    A(f"v_mul_u32_u24 {v(V_XD)}, 896, v24")
    A(f"v_lshl_add_u32 {v(V_XD)}, v25, 4, {v(V_XD)}")
    A(f"v_xor_b32 {v(V_XD2)}, 64, {v(V_XD)}")
    A(f"v_add_u32 {v(V_XD2)}, {8*896-1024}, {v(V_XD2)}")
    A("s_lshl_b32 s35, s17, 3")
    A("s_add_u32 s35, s35, s19")
    A(f"s_mul_i32 s35, s35, {RT_BYTES}")
    A("s_waitcnt lgkmcnt(0)")
    A.srd(20, 4, 5, ACT_BYTES)
    A(f"s_mov_b32 s26, {D*D*2}")
    A("s_cmp_lt_u32 s33, 21")
    A("s_cselect_b32 s24, s6, s8")
    A("s_cselect_b32 s25, s7, s9")
    A(f"s_cselect_b32 s26, {D*3*D*2}, s26")
    A("s_and_b32 s25, s25, 0xffff")
    A("s_mov_b32 s27, 0x00020000")
    PF0 = os.environ.get("PF0", "0")
    if PF0 != "0":
        A("s_lshl_b32 s60, s2, 3")
        A("s_add_u32 s60, s60, s19")
        A("s_lshl_b32 s60, s60, 10")
        A.srd(72, 6, 7, D * 3 * D * 2)
        A.srd(76, 8, 9, D * D * 2)
        A(f"s_sub_u32 s61, s60, {1176*1024}")
        A.vmem(f"buffer_load_dwordx4 v[212:215], {v(L16)}, s[72:75], s60 offen", "pf0")
        A.vmem(f"buffer_load_dwordx4 v[212:215], {v(L16)}, s[76:79], s61 offen", "pf0")
        if PF0 == "2":
            A.vmem(f"buffer_load_dwordx4 v[212:215], {v(L16)}, s[20:23], s60 offen", "pf0")
    P1PRO = int(os.environ.get("P1PRO", "2"))
    DMA_SAVE = dict(gen3.DMA_AT)
    if P1PRO == 4:
        gen3.DMA_AT.clear()
        gen3.DMA_AT.update({1: 4, 3: 5, 5: 6})
    if P1PRO == 3:
        gen3.DMA_AT.clear()
        gen3.DMA_AT.update({0: 3, 1: 4, 3: 5, 5: 6})
    for ds in range(P1PRO):
        for p in big_dma_parts(A, ds, 128, V_XD2):
            p()
    A.srd(28, 58, 59, WS_SIZE)
    if PFCODE:
        lc = A.newlabel("pfc")
        A("s_getpc_b64 s[60:61]")
        A.label("k_pc")
        A("s_lshr_b32 s70, s2, 3")
        A("s_lshl_b32 s70, s70, 3")
        A("s_add_u32 s70, s70, s19")
        A("s_lshl_b32 s70, s70, 10")
        A(f"s_cmp_ge_u32 s70, k_codeend-k_pc")
        A(f"s_cbranch_scc1 {lc}")
        A(f"v_add_u32 v204, s70, {v(L16)}")
        A("global_load_dwordx4 v[208:211], v204, s[60:61]")
        A.label(lc)
    stamp(A)
    A(f"v_lshrrev_b32 v24, 1, {v(VI)}")
    A(f"v_xor_b32 v24, v24, {v(VG)}")
    A("v_lshlrev_b32 v24, 4, v24")
    A(f"v_lshl_add_u32 v24, {v(VI)}, 7, v24")
    A("s_lshl_b32 s42, s40, 12")
    A(f"v_add_u32 {v(V_XR[0])}, s42, v24")
    A(f"v_xor_b32 {v(V_XR[2])}, 64, {v(V_XR[0])}")
    A(f"v_add_u32 {v(V_XR[1])}, {2*SLOT}, {v(V_XR[0])}")
    A(f"v_add_u32 {v(V_XR[3])}, {2*SLOT}, {v(V_XR[2])}")
    unit_bases(A, PB4, "pair", 24, 25, 26)
    unit_dma_voff(A, U896, "0", None, 896, 24, 25)
    unit_dma_voff(A, U896S, "0", "4", 896, 24, 25)
    A(f"v_lshrrev_b32 v24, 1, {v(VG)}")
    A(f"v_lshlrev_b32 {v(CSO)}, 5, {v(VG)}")
    A(f"v_lshl_add_u32 {v(CSO)}, v24, 4, {v(CSO)}")
    A("s_lshl_b32 s39, s17, 7")
    A("s_lshl_b32 s42, s40, 5")
    A("s_add_u32 s39, s39, s42")
    A("s_load_dwordx2 s[62:63], s[0:1], 16")
    A("s_load_dwordx4 s[64:67], s[0:1], 40")
    A("s_load_dwordx2 s[68:69], s[0:1], 56")
    A("v_mov_b32 v252, 0")
    A.vmem(f"global_load_dword v200, v252, s[56:57]{SC}", "tok")
    snap = A.vm_snapshot()
    PK = 32

    def pf_hook():
        A("s_lshl_b32 s60, s2, 3")
        A("s_add_u32 s60, s60, s19")
        A("s_lshl_b32 s60, s60, 10")
        lst = ((64, D * D * 2, 0), (66, D * F * 2, 0), (62, D * D * 2, 392), (68, D * F * 2, 224))
        if PFLATE:
            lst = lst[:1]
        for q, (lo, size, base) in enumerate(lst):
            A.srd(72, lo, lo + 1, size)
            A(f"s_sub_u32 s61, s60, {base*1024}")
            A.vmem(f"buffer_load_dwordx4 v[204:207], {v(L16)}, s[72:75], s61 offen", "pf")
        if PFWS:
            A(f"s_add_u32 s61, s60, {WS_O}")
            A.vmem(f"buffer_load_dwordx4 v[204:207], {v(L16)}, s[28:31], s61 offen", "pf")

    def tok_hook():
        l = A.newlabel("tk")
        A.vm_wait("tok")
        A(f"v_readfirstlane_b32 s{TOK}, v200")
        tok_ok(A)
        A(f"s_cbranch_scc1 {l}")
        get_token(A)
        A.label(l)

    A("s_sub_u32 s42, s33, 14")
    A("s_cmp_lt_u32 s42, 7")
    A("s_cbranch_scc1 p1_v")
    big_bases(A, PB4)
    A("s_cmp_ge_u32 s33, 21")
    A("s_cbranch_scc1 p1_w1")
    big_mainloop(A, False, 128, V_XD2, True, hooks={7: tok_hook, PFAT: pf_hook})
    A("s_cmp_ge_u32 s33, 7")
    A("s_cselect_b32 s43, 7, 0")
    A(f"s_cselect_b32 s42, {WS_K}, 0")
    A("s_sub_u32 s46, s33, s43")
    A("s_lshl_b32 s46, s46, 11")
    A("s_add_u32 s42, s42, s46")
    A("s_mul_i32 s43, s39, 896")
    A("s_add_u32 s42, s42, s43")
    A(f"s_add_u32 s43, s42, {RT_BYTES}")
    for j in range(2):
        for q in range(8):
            A(f"v_cvt_pk_bf16_f32 {v(PK+8*j+q)}, {v(ACC+16*j+2*q)}, {v(ACC+16*j+2*q+1)}")
        for tp in range(2):
            A(f"buffer_store_dwordx4 {v(PK+8*j+4*tp,4)}, {v(L16)}, s[28:31], s{42+j} offen offset:{1024*tp}{SC}")
    A("s_branch p1_done")
    A.label("p1_v")
    A.vm_restore(snap)
    unit_bases(A, 28, "nat", 24, 25, 26)
    big_bases(A, 28)
    A("s_sub_u32 s46, s33, 14")
    A("s_lshl_b32 s47, s39, 6")
    A(f"s_add_u32 s47, s47, {WS_V}")
    A("s_lshl_b32 s44, s46, 6")
    for t in range(4):
        o = 184 + t
        A(f"v_add_u32 v24, s44, {v(VI)}")
        A(f"v_add_u32 v24, {16*t}, v24")
        A("v_mul_u32_u24 v25, 2341, v24")
        A("v_lshrrev_b32 v25, 16, v25")
        A("v_mul_u32_u24 v26, 28, v25")
        A("v_sub_u32 v26, v24, v26")
        A(f"v_lshlrev_b32 {v(o)}, 17, v25")
        A("v_lshrrev_b32 v27, 4, v26")
        A(f"v_lshl_add_u32 {v(o)}, v27, 10, {v(o)}")
        A("v_and_b32 v27, 15, v26")
        A(f"v_lshl_add_u32 {v(o)}, v27, 4, {v(o)}")
        A(f"v_lshl_add_u32 {v(o)}, {v(VG)}, 8, {v(o)}")
    A("s_lshl_b32 s44, s46, 4")
    A("s_mul_i32 s45, s44, 9363")
    A("s_lshr_b32 s45, s45, 16")
    A(f"v_add_u32 v24, s45, {v(VG)}")
    A("v_mul_u32_u24 v25, 7, v24")
    A("v_add_u32 v25, 6, v25")
    A("s_add_u32 s44, s44, 16")
    A("v_lshlrev_b32 v24, 17, v24")
    A(f"v_lshrrev_b32 v26, 2, {v(VI)}")
    A("v_lshl_add_u32 v24, v26, 4, v24")
    A(f"v_and_b32 v27, 3, {v(VI)}")
    A("v_lshl_add_u32 v24, v27, 8, v24")
    A("v_cmp_eq_u32 vcc, 0, v26")
    A("v_mov_b32 v27, 0x3f803f80")
    A("s_nop 0")
    A("v_cndmask_b32 v188, 0, v27, vcc")
    for r in range(1, 4):
        A(f"v_mov_b32 v{188+r}, v188")
    A("v_cmp_gt_u32 vcc, s44, v25")
    A("s_and_saveexec_b64 s[44:45], vcc")
    A.vmem(f"buffer_store_dwordx4 v[188:191], v24, s[28:31], s47 offen offset:{1024+12*16}{SC}", "ones")
    A("s_mov_b64 exec, -1")
    big_mainloop(A, True, 128, V_XD2, True, hooks={7: tok_hook, PFAT: pf_hook})
    A("s_nop 4")
    for t in range(4):
        pk = PK + 4 * t
        for j in range(2):
            src = ACC + 16 * j + 4 * t
            A(f"v_cvt_pk_bf16_f32 {v(pk+2*j)}, {v(src)}, {v(src+1)}")
            A(f"v_cvt_pk_bf16_f32 {v(pk+2*j+1)}, {v(src+2)}, {v(src+3)}")
        A(f"buffer_store_dwordx4 {v(pk,4)}, {v(184+t)}, s[28:31], s47 offen{SC}")
    A("s_branch p1_done")
    A.label("p1_w1")
    A.vm_restore(snap)
    MR, RS, CS = [140, 142], [144, 146], 164
    A("s_lshl_b32 s42, s17, 1")
    A(f"v_add_u32 v201, s42, {v(VL)}")
    A("v_writelane_b32 v201, s46, 2")
    A(f"v_lshlrev_b32 v201, 7, v201")
    A(f"v_add_u32 v201, {NWG*128}, v201")
    A(f"v_add_u32 v202, s39, {v(VI)}")
    A("v_lshlrev_b32 v202, 3, v202")
    A(f"s_mov_b32 s44, {WS_LN1}")
    A("s_lshl_b32 s45, s46, 8")
    A(f"s_add_u32 s45, s45, {WS_CS}")
    A(f"v_xor_b32 v203, 16, {v(CSO)}")

    def w1_loads(tag):
        for j in range(2):
            A.vmem(f"buffer_load_dwordx2 {v(180+2*j,2)}, v202, s[28:31], s44 offen offset:{128*j}{SL}", tag)
        for t in range(4):
            A.vmem(f"buffer_load_dwordx4 {v(CS+4*t,4)}, {v(203 if t & 1 else CSO)}, s[28:31], s45 offen offset:{128*(t>>1)}{SL}", tag)

    sp = Spec(A, 201, 7, w1_loads)

    def h7():
        tok_hook()
        sp.stage1()

    A.srd_off(52, 58, 59, WS_HS, ACT_BYTES)
    A("s_lshl_b32 s47, s46, 3")
    for tp in range(2):
        A(f"v_add_u32 v24, s47, {v(VG)}")
        if tp:
            A("v_add_u32 v24, 4, v24")
        A("v_mul_u32_u24 v25, 4682, v24")
        A("v_lshrrev_b32 v25, 16, v25")
        A("v_lshrrev_b32 v26, 1, v25")
        A("v_add_u32 v26, 1, v26")
        A("v_and_b32 v25, 1, v25")
        A("v_sub_u32 v27, 0, v25")
        A("v_xor_b32 v26, v26, v27")
        A("v_add_u32 v26, v26, v25")
        A(f"v_add_u32 v26, v26, {v(VI)}")
        A("v_add_u32 v26, s39, v26")
        for j in range(2):
            o = 184 + 2 * j + tp
            if j:
                A("v_add_u32 v26, 16, v26")
            A("v_lshrrev_b32 v25, 4, v26")
            A("v_mul_u32_u24 v25, 14336, v25")
            A("v_and_b32 v27, 15, v26")
            A("v_lshl_add_u32 v25, v27, 4, v25")
            A("v_lshl_add_u32 v25, v24, 8, v25")
            A("v_cmp_gt_u32 vcc, 2048, v26")
            A("v_mov_b32 v27, 0x80000000")
            A("s_nop 0")
            A(f"v_cndmask_b32 {v(o)}, v27, v25, vcc")
    A("s_cmp_lg_u32 s40, 0")
    A("s_cbranch_scc1 p1_zd")
    A("s_cmp_eq_u32 s17, 0")
    A("s_cselect_b32 s48, 0, 1")
    A("s_cbranch_scc1 p1_z")
    A("s_cmp_lg_u32 s17, 15")
    A("s_cbranch_scc1 p1_zd")
    A.label("p1_z")
    A(f"v_and_b32 v24, 7, {v(VL)}")
    A("v_add_u32 v24, s47, v24")
    A("v_mul_u32_u24 v25, 4682, v24")
    A("v_lshrrev_b32 v25, 16, v25")
    A(f"v_lshrrev_b32 v26, 3, {v(VL)}")
    A("v_lshrrev_b32 v27, 1, v25")
    A("v_cmp_le_u32 s[50:51], v26, v27")
    A("v_and_b32 v25, 1, v25")
    A("v_cmp_eq_u32 vcc, s48, v25")
    A("s_and_b64 s[50:51], s[50:51], vcc")
    A("v_sub_u32 v27, 15, v26")
    A("s_cmp_eq_u32 s48, 0")
    A(f"s_cselect_b32 s49, 0, {127*14336}")
    A("s_cbranch_scc1 p1_z2")
    A("v_mov_b32 v26, v27")
    A.label("p1_z2")
    A("v_lshlrev_b32 v26, 4, v26")
    A("v_lshl_add_u32 v26, v24, 8, v26")
    for r in range(4):
        A(f"v_mov_b32 {v(188+r)}, 0")
    A("s_mov_b64 exec, s[50:51]")
    A(f"buffer_store_dwordx4 v[188:191], v26, s[52:55], s49 offen{SC}")
    A("s_mov_b64 exec, -1")
    A.label("p1_zd")
    big_mainloop(A, False, 128, V_XD2, True, hooks={7: tok_hook, PFAT: pf_hook, 10: sp.stage1, 12: sp.stage2})
    sp.finish()
    for j in range(2):
        row_consts(A, 140 + 8 * j, 180 + 2 * j, 181 + 2 * j)

    def st1(j, pk):
        for tp in range(2):
            A(f"buffer_store_dwordx4 {v(pk+4*tp,4)}, {v(184+2*j+tp)}, s[52:55], 0 offen{SC}")

    gelu_epi(A, CS, (140, 148), 48, 32, st1)
    A("s_branch p1_done")
    A.label("helper")
    gen3.DMA_AT.clear()
    gen3.DMA_AT.update(DMA_SAVE)
    A.vm_restore([])
    A("s_load_dwordx2 s[10:11], s[0:1], 64")
    A("s_load_dwordx2 s[12:13], s[0:1], 48")
    A(f"s_sub_u32 s14, s2, {NWG}")
    for r in (236, 237, 238, 239, 241, 242, 243):
        A(f"v_mov_b32 v{r}, 0")
    A(f"v_lshrrev_b32 v4, 3, {v(VL)}")
    A(f"v_and_b32 v5, 7, {v(VL)}")
    A("v_lshlrev_b32 v5, 4, v5")
    A("s_lshl_b32 s15, s14, 6")
    A("s_lshl_b32 s16, s19, 3")
    A("s_add_u32 s15, s15, s16")
    A("v_add_u32 v4, s15, v4")
    A("v_mul_u32_u24 v6, 896, v4")
    A("v_add_u32 v6, v6, v5")
    A("s_waitcnt lgkmcnt(0)")
    A.srd(20, 4, 5, ACT_BYTES)
    A.srd(28, 58, 59, WS_SIZE)
    A.srd(48, 10, 11, D * 2)
    XB_, GB_, FB_ = 8, 40, 72
    for j in range(7):
        A.vmem(f"buffer_load_dwordx4 {v(XB_+4*j,4)}, v6, s[20:23], 0 offen offset:{128*j}", "hx")
    A(f"v_lshrrev_b32 v7, 3, {v(VL)}")

    def cs_setup(item_s):
        A(f"s_cmp_lt_u32 {item_s}, 7")
        A("s_cselect_b32 s24, s8, s12")
        A("s_cselect_b32 s25, s9, s13")
        A("s_movk_i32 s32, 896")
        A(f"s_cselect_b32 s32, s32, {F*2}")
        A(f"s_cselect_b32 s33, 0, 7")
        A(f"s_mov_b32 s26, {D*F*2}")
        A(f"s_cselect_b32 s26, {D*D*2}, s26")
        A("s_and_b32 s25, s25, 0xffff")
        A("s_mov_b32 s27, 0x00020000")
        A(f"s_sub_u32 s33, {item_s}, s33")
        A("s_lshl_b32 s33, s33, 7")
        A("s_mul_i32 s34, s19, 56")
        A("s_mul_i32 s34, s34, s32")
        A("s_add_u32 s33, s33, s34")
        A("v_mul_lo_u32 v130, v7, s32")
        A("v_add_u32 v130, v130, v5")
        A("s_lshl_b32 s32, s32, 3")
        for j in range(7):
            A.vmem(f"buffer_load_dwordx4 {v(132+4*j,4)}, v130, s[24:27], s33 offen", "hw")
            A("s_add_u32 s33, s33, s32")

    def cs_finish(item_s):
        A.vm_wait("hw")
        for j in range(7):
            for q in range(4):
                src = 132 + 4 * j + q
                if j == 0:
                    A(f"v_lshlrev_b32 {v(160+2*q)}, 16, {v(src)}")
                    A(f"v_and_b32 {v(161+2*q)}, 0xffff0000, {v(src)}")
                else:
                    A(f"v_lshlrev_b32 v168, 16, {v(src)}")
                    A(f"v_and_b32 v169, 0xffff0000, {v(src)}")
                    A(f"v_pk_add_f32 {v(160+2*q,2)}, {v(160+2*q,2)}, v[168:169]")
        A("s_nop 1")
        for q in range(4):
            A(f"v_permlane32_swap_b32 {v(160+2*q)}, {v(161+2*q)}")
        A("s_nop 0")
        for q in range(4):
            A(f"v_add_f32 {v(160+2*q)}, {v(160+2*q)}, {v(161+2*q)}")
        A("s_nop 1")
        for q in range(2):
            A(f"v_permlane16_swap_b32 {v(160+4*q)}, {v(162+4*q)}")
        A("s_nop 0")
        for q in range(2):
            A(f"v_add_f32 {v(160+4*q)}, {v(160+4*q)}, {v(162+4*q)}")
        A("s_nop 1")
        for q in range(2):
            A(f"v_add_f32_dpp {v(160+4*q)}, {v(160+4*q)}, {v(160+4*q)} row_ror:8 row_mask:0xf bank_mask:0xf")
        A("s_lshl_b32 s33, s19, 8")
        A("v_lshlrev_b32 v170, 1, v5")
        A(f"v_and_b32 v171, 1, {v(VG)}")
        A("v_lshl_add_u32 v170, v171, 3, v170")
        A(f"v_lshrrev_b32 v171, 1, {v(VG)}")
        A("v_lshl_add_u32 v170, v171, 2, v170")
        A("v_add_u32 v170, s33, v170")
        A("ds_write_b32 v170, v160")
        A("ds_write_b32 v170, v164 offset:16")
        A("s_waitcnt lgkmcnt(0)")
        A("s_barrier")
        l = A.newlabel("csw")
        A("s_cmp_lg_u32 s19, 0")
        A(f"s_cbranch_scc1 {l}")
        A(f"v_lshlrev_b32 v170, 2, {v(VL)}")
        for w in range(8):
            A(f"ds_read_b32 {v(160+w)}, v170 offset:{256*w}")
        A("s_waitcnt lgkmcnt(0)")
        for w in range(1, 8):
            A(f"v_add_f32 v160, v160, {v(160+w)}")
        A(f"s_lshl_b32 s33, {item_s}, 8")
        A(f"s_add_u32 s33, s33, {WS_CS}")
        A(f"buffer_store_dword v160, v170, s[28:31], s33 offen{SC}")
        A.label(l)

    def helper_pf():
        A("s_load_dwordx2 s[62:63], s[0:1], 16")
        A("s_load_dwordx4 s[64:67], s[0:1], 40")
        A("s_load_dwordx2 s[68:69], s[0:1], 56")
        A("s_lshl_b32 s60, s14, 3")
        A("s_add_u32 s60, s60, s19")
        A("s_lshl_b32 s60, s60, 10")
        A("s_waitcnt lgkmcnt(0)")
        for lo, size in ((64, D * D * 2), (66, D * F * 2), (62, D * D * 2), (68, D * F * 2)):
            A.srd(72, lo, lo + 1, size)
            for off in range(0, size, 262144):
                A(f"s_add_u32 s61, s60, {off}")
                A(f"buffer_load_dwordx4 v[204:207], {v(L16)}, s[72:75], s61 offen")

    cs_setup("s14")
    for j in range(7):
        A.vmem(f"buffer_load_dwordx4 {v(GB_+4*j,4)}, v5, s[48:51], 0 offen offset:{128*j}", "hg")
    if PFSM:
        A("s_lshl_b32 s33, s14, 3")
        A("s_add_u32 s33, s33, s19")
        A("s_lshl_b32 s33, s33, 11")
        A(f"s_add_u32 s33, s33, {WS_FLAG}")
        for q in range(2):
            A.vmem(f"buffer_load_dwordx4 v[204:207], {v(L16)}, s[28:31], s33 offen offset:{1024*q}", "pf")
    lt = A.newlabel("tok")
    A("s_or_b32 s85, s14, s19")
    A("s_cmp_lg_u32 s85, 0")
    A(f"s_cbranch_scc1 {lt}")
    A("s_or_b32 s85, s82, 1")
    A("v_mov_b32 v252, 0")
    A("v_mov_b32 v253, s85")
    A("s_mov_b64 exec, 1")
    A(f"global_store_dword v252, v253, s[56:57]{SC}")
    A("s_mov_b64 exec, -1")
    A.label(lt)
    if STAMPS:
        NST[0] -= 1
        stamp(A)
    if PFH == "1":
        A.vm_wait("hg")
        helper_pf()
    A.vm_wait("hx")
    for j in range(28):
        A(f"v_lshlrev_b32 {v(FB_+2*j)}, 16, {v(XB_+j)}")
        A(f"v_and_b32 {v(FB_+2*j+1)}, 0xffff0000, {v(XB_+j)}")
    A(f"v_pk_add_f32 v[128:129], {v(FB_,2)}, {v(FB_+2,2)}")
    for j in range(2, 28):
        A(f"v_pk_add_f32 v[128:129], v[128:129], {v(FB_+2*j,2)}")
    A("v_add_f32 v128, v128, v129")
    red8(A, 128, 0)
    A(f"v_mul_f32 v128, {f32bits(1.0/448):#x}, v128")
    A("v_sub_f32 v172, 0, v128")
    A("v_mov_b32 v173, v172")
    for j in range(28):
        A(f"v_pk_add_f32 {v(174+2*(j&3),2)}, {v(FB_+2*j,2)}, v[172:173]")
        if j == 0:
            A(f"v_pk_mul_f32 v[182:183], {v(174,2)}, {v(174,2)}")
        else:
            A(f"v_pk_fma_f32 v[182:183], {v(174+2*(j&3),2)}, {v(174+2*(j&3),2)}, v[182:183]")
    A("v_add_f32 v129, v182, v183")
    red8(A, 129, 0)
    A(f"v_mul_f32 v129, {f32bits(1.0/448):#x}, v129")
    ln_finish(A, 128, 129)
    A("v_lshlrev_b32 v170, 3, v4")
    A(f"s_mov_b32 s33, {WS_LN1}")
    A("s_mov_b32 exec_lo, 0x01010101")
    A("s_mov_b32 exec_hi, 0x01010101")
    A.vmem(f"buffer_store_dwordx2 v[128:129], v170, s[28:31], s33 offen{SC}", "hst")
    A("s_mov_b64 exec, -1")
    cs_finish("s14")
    get_token(A)
    A("s_barrier")
    flag_store(A, 0)
    A.vm_restore([])
    if STAMPS:
        keep = NST[0]
        NST[0] = 20
        stamp(A)
        NST[0] = keep
    if PFH == "2":
        helper_pf()
    A("s_add_u32 s15, s14, 32")
    A("s_cmp_ge_u32 s15, 35")
    A("s_cbranch_scc1 h_no2")
    cs_setup("s15")
    cs_finish("s15")
    A.label("h_no2")
    for j in range(28):
        A(f"v_lshlrev_b32 v168, 16, {v(GB_+j)}")
        A(f"v_and_b32 v169, 0xffff0000, {v(GB_+j)}")
        A(f"v_pk_mul_f32 {v(FB_+2*j,2)}, {v(FB_+2*j,2)}, v[168:169]")
    for j in range(56):
        rbf(A, FB_ + j)
    A(f"v_pk_add_f32 v[128:129], {v(FB_,2)}, {v(FB_+2,2)}")
    for j in range(2, 28):
        A(f"v_pk_add_f32 v[128:129], v[128:129], {v(FB_+2*j,2)}")
    A("v_add_f32 v128, v128, v129")
    red8(A, 128, 0)
    rbf(A, 128)
    A(f"v_mul_f32 v128, {f32bits(-LOG2E):#x}, v128")
    A("v_exp_f32 v128, v128")
    A("s_nop 0")
    A("v_add_f32 v128, 1.0, v128")
    A("v_rcp_f32 v128, v128")
    A("s_nop 0")
    rbf(A, 128)
    A("v_lshlrev_b32 v170, 2, v4")
    A(f"s_mov_b32 s33, {WS_G}")
    A("s_mov_b32 exec_lo, 0x01010101")
    A("s_mov_b32 exec_hi, 0x01010101")
    A(f"buffer_store_dword v128, v170, s[28:31], s33 offen{SC}")
    A("s_mov_b64 exec, -1")
    A("s_waitcnt vmcnt(0)")
    A("s_barrier")
    flag_store(A, 1)
    A.label("p1_done")
    A.vm_restore(["x"])
    stamp(A)
    L_X2, L_KV = 57344, 163840 - 49152
    A("s_load_dwordx2 s[4:5], s[0:1], 0")
    A("s_load_dwordx2 s[6:7], s[0:1], 40")
    A("s_load_dwordx2 s[8:9], s[0:1], 48")
    A("s_and_b32 s14, s2, 7")
    A("s_lshr_b32 s15, s2, 3")
    small_decode(A)
    A("s_and_b32 s46, s19, 3")
    A("s_lshr_b32 s47, s19, 2")
    A("s_lshr_b32 s16, s15, 4")
    A("s_lshl_b32 s48, s14, 1")
    A("s_add_u32 s48, s48, s16")
    A("s_and_b32 s49, s15, 15")
    A(f"s_cmp_ge_u32 s2, {NWG}")
    A("s_cbranch_scc1 p2_now2")
    A(f"v_mov_b32 v5, {v(U896)}")
    l = A.newlabel("sw")
    A("s_bitcmp1_b32 s19, 1")
    A(f"s_cbranch_scc0 {l}")
    A(f"v_mov_b32 v5, {v(U896S)}")
    A.label(l)
    A("s_and_b32 s38, s19, 1")
    A("s_lshl_b32 s38, s38, 6")
    A("v_xor_b32 v5, s38, v5")
    A("s_lshl_b32 s38, s18, 7")
    A(f"s_mul_i32 s39, s19, {8*896}")
    A("s_add_u32 s38, s38, s39")
    A("s_lshl_b32 s39, s19, 10")
    A("s_waitcnt lgkmcnt(0)")
    A.srd(20, 4, 5, ACT_BYTES)
    A.srd(24, 6, 7, D * D * 2)
    A("s_barrier")
    for u in range(7):
        A("s_mov_b32 m0, s39")
        A("s_add_u32 s39, s39, 8192")
        A.vmem("buffer_load_dwordx4 v5, s[24:27], s38 offen lds", "w2")
        A(f"s_add_u32 s38, s38, {64*896}")
    A("s_waitcnt vmcnt(7)")
    A("s_barrier")
    flag_store(A, 0)
    if PFLATE:
        lp_ = A.newlabel("pfl")
        A("s_cmp_eq_u32 s19, 0")
        A(f"s_cbranch_scc1 {lp_}")
        A("s_mul_i32 s60, s2, 7")
        A("s_add_u32 s60, s60, s19")
        A("s_sub_u32 s60, s60, 1")
        A("s_lshl_b32 s60, s60, 10")
        for lo, size in ((66, D * F * 2), (68, D * F * 2), (62, D * D * 2)):
            A.srd(72, lo, lo + 1, size)
            A(f"buffer_load_dwordx4 v[204:207], {v(L16)}, s[72:75], s60 offen")
        A.label(lp_)
    if L2WARM:
        A("s_lshl_b32 s36, s15, 3")
        A("s_add_u32 s36, s36, s19")
        A(f"s_mul_i32 s36, s36, {2*F*2}")
        A("s_and_b32 s37, s14, 1")
        A("s_mul_i32 s37, s37, 1792")
        A("s_add_u32 s36, s36, s37")
        A.srd(68, 8, 9, D * F * 2)
        for q in range(2):
            A(f"buffer_load_dwordx4 {v(208+8*q,4)}, {v(L16)}, s[68:71], s36 offen")
            A("s_mov_b32 exec_hi, 0x0000ffff")
            A(f"buffer_load_dwordx4 {v(212+8*q,4)}, {v(L16)}, s[68:71], s36 offen offset:1024")
            A("s_mov_b32 exec_hi, -1")
            A(f"s_add_u32 s36, s36, {F*2}")
    A.label("p2_now2")

    def deps2():
        A(f"v_mul_u32_u24 v232, 5958, {v(VL)}")
        A("v_lshrrev_b32 v232, 16, v232")
        A("v_mul_u32_u24 v233, 11, v232")
        A(f"v_sub_u32 v233, {v(VL)}, v233")
        A("v_add_u32 v232, s49, v232")
        A("v_subrev_u32 v232, 2, v232")
        A("v_max_i32 v232, 0, v232")
        A("s_lshl_b32 s85, s17, 6")
        A(f"v_subrev_u32 v234, 33, {v(VL)}")
        A("v_lshrrev_b32 v235, 2, v234")
        A("v_mul_u32_u24 v235, 67, v235")
        A("v_add_u32 v235, s85, v235")
        A("v_subrev_u32 v235, 2, v235")
        A("v_max_i32 v235, 0, v235")
        A("v_min_i32 v235, 2047, v235")
        A("v_lshrrev_b32 v235, 7, v235")
        A("v_and_b32 v234, 3, v234")
        A("v_add_u32 v234, 10, v234")
        A(f"v_cmp_lt_u32 vcc, 32, {v(VL)}")
        A("s_nop 1")
        A("v_cndmask_b32 v232, v232, v235, vcc")
        A("v_cndmask_b32 v233, v233, v234, vcc")
        big_id(A, 252, 232, 233, 234)
        A(f"s_cmp_lt_u32 s2, {NWG}")
        A("s_cselect_b32 exec_hi, 0x1ff, 1")

    QF, C0, C16, FB, SCB, PB, TM, OA = 8, 12, 16, 20, 36, 104, 140, 160
    QK = 200
    AF, WFB, AC, XR, TB = 32, 64, 96, 112, 16
    A("s_mul_i32 s50, s48, 7")
    A("s_lshr_b32 s50, s50, 1")
    A("s_lshl_b32 s51, s49, 3")
    A("s_mul_i32 s52, s19, 3")
    A("s_add_u32 s52, s52, s51")
    A("s_sub_u32 s52, s52, 16")
    A("s_lshl_b32 s54, s50, 8")
    A("s_mul_i32 s55, s19, 3072")
    A(f"s_add_u32 s55, s55, {L_KV}")
    A("s_lshl_b32 s40, s48, 17")
    A(f"s_add_u32 s40, s40, {WS_V}")
    for j in range(3):
        A(f"s_add_i32 s41, s52, {j}")
        A("s_max_i32 s41, s41, 0")
        A(f"s_mul_i32 s{62+j}, s41, {RT_BYTES}")
        A(f"s_add_u32 s{62+j}, s{62+j}, s54")
        A(f"s_add_u32 s{62+j}, s{62+j}, {WS_K}")
        A("s_lshl_b32 s41, s41, 10")
        A(f"s_add_u32 s{65+j}, s41, s40")
    A("s_add_u32 s52, s51, s19")
    A(f"s_mul_i32 s52, s52, {RT_BYTES}")
    A("s_add_u32 s53, s52, s54")
    A("s_lshl_b32 s32, s17, 2")
    A("s_add_u32 s32, s32, s46")
    A(f"s_mul_i32 s33, s32, {RT_BYTES}")
    A(f"s_mul_i32 s34, s47, {7*1024}")
    A("s_add_u32 s34, s34, s33")
    A(f"s_add_u32 s34, s34, {WS_HS}")
    A("s_add_u32 s35, s34, 4096")
    poll(A, deps2, "s_waitcnt vmcnt(0)")
    A.vm_restore([])
    stamp(A)
    A(f"s_cmp_ge_u32 s2, {NWG}")
    A("s_cbranch_scc1 p2_noa")
    for u in range(7):
        A.vmem(f"buffer_load_dwordx4 {v(AF+4*u,4)}, {v(L16)}, s[28:31], s{34+u//4} offen offset:{1024*(u%4)}{SL}", ("a", u))
    A.label("p2_noa")
    for j in range(3):
        A(f"s_add_u32 m0, s55, {1024*j}")
        A("s_nop 0")
        A.vmem(f"buffer_load_dwordx4 {v(L16)}, s[28:31], s{62+j} offen{SL} lds", "kv")
        A(f"s_add_u32 m0, s55, {24576+1024*j}")
        A("s_nop 0")
        A.vmem(f"buffer_load_dwordx4 {v(L16)}, s[28:31], s{65+j} offen{SL} lds", "kv")
    A.vmem(f"buffer_load_dwordx4 {v(QK,4)}, {v(L16)}, s[28:31], s53 offen{SL}", "kv")
    A(f"s_cmp_ge_u32 s2, {NWG}")
    A("s_cbranch_scc1 p2_attn")
    A("s_lshl_b32 s40, s32, 4")
    A(f"v_add_u32 v8, s40, {v(VI)}")
    A("v_mul_u32_u24 v9, 896, v8")
    A(f"v_lshrrev_b32 v10, 1, {v(CSO)}")
    A("v_xor_b32 v11, 8, v10")
    A("v_add_u32 v11, v11, v9")
    A("v_add_u32 v9, v10, v9")
    A("s_lshl_b32 s40, s18, 7")
    A("s_lshl_b32 s41, s47, 6")
    A("s_add_u32 s40, s40, s41")
    A.vmem(f"buffer_load_dwordx2 {v(XR,2)}, v9, s[20:23], s40 offen", "x")
    A.vmem(f"buffer_load_dwordx2 {v(XR+2,2)}, v11, s[20:23], s40 offen", "x")
    A(f"s_mul_i32 s41, s47, {7*4096}")
    for t in range(4):
        A(f"v_add_u32 {v(TB+t)}, s41, {v(PB4+t)}")
    for r in unit_reads(TB, 0, WFB):
        A(r)
    A("s_xor_b32 s41, s19, 4")
    A("s_lshl_b32 s41, s41, 11")
    A(f"s_add_u32 s41, s41, {L_X2}")
    A(f"v_add_u32 v12, s41, {v(L16)}")
    A("s_lshl_b32 s41, s19, 11")
    A(f"s_add_u32 s41, s41, {L_X2}")
    A(f"v_add_u32 v13, s41, {v(L16)}")
    for u in range(7):
        A.vm_wait(("a", u), " lgkmcnt(0)")
        rd = unit_reads(TB, (u + 1) * 4096, WFB + 16 * ((u + 1) & 1)) if u < 6 else []
        for t in range(4):
            c = v(AC + 4 * t, 4)
            A(f"v_mfma_f32_16x16x32_bf16 {c}, {v(WFB+16*(u&1)+4*t,4)}, {v(AF+4*u,4)}, {c if u else 0}")
            for r in rd[4*t:4*t+4] if t < 2 else []:
                A(r)
    A.vm_wait("x")
    XU = 32
    for j in range(4):
        A(f"v_lshlrev_b32 {v(XU+2*j)}, 16, {v(XR+j)}")
        A(f"v_and_b32 {v(XU+2*j+1)}, 0xffff0000, {v(XR+j)}")
    A("s_cmp_eq_u32 s47, 0")
    A("s_cbranch_scc1 p2_x0")
    for r in range(8):
        A(f"v_swap_b32 {v(AC+r)}, {v(AC+8+r)}")
    A.label("p2_x0")
    for t in range(2):
        A(f"ds_write_b128 v12, {v(AC+8+4*t,4)} offset:{1024*t}")
    A("s_lshl_b32 s40, s18, 11")
    A("s_add_u32 s40, s40, s33")
    A("s_lshl_b32 s41, s47, 10")
    A("s_add_u32 s40, s40, s41")
    A(f"s_add_u32 s40, s40, {WS_X1}")
    A("s_waitcnt lgkmcnt(0)")
    A("s_barrier")
    for t in range(2):
        A(f"ds_read_b128 {v(AC+8+4*t,4)}, v13 offset:{1024*t}")
    A("s_waitcnt lgkmcnt(0)")
    for r in range(8):
        A(f"v_add_f32 {v(AC+r)}, {v(AC+r)}, {v(AC+8+r)}")
    for r in range(8):
        A(f"v_add_f32 {v(AC+r)}, {v(AC+r)}, {v(XU+r)}")
    for j in range(4):
        A(f"v_cvt_pk_bf16_f32 {v(X1K+j)}, {v(AC+2*j)}, {v(AC+2*j+1)}")
    A.vmem(f"buffer_store_dwordx4 {v(X1K,4)}, {v(L16)}, s[28:31], s40 offen{SC}", "st")
    for r in range(8):
        rbf(A, AC + r)
    A(f"v_add_f32 v12, {v(AC)}, {v(AC+1)}")
    for r in range(2, 8):
        A(f"v_add_f32 v12, v12, {v(AC+r)}")
    xlane_g(A, "v_add_f32", 12, 14, 15)
    A(f"v_mul_f32 v14, {f32bits(1.0/32):#x}, v12")
    for r in range(8):
        A(f"v_sub_f32 {v(AC+r)}, {v(AC+r)}, v14")
    A(f"v_mul_f32 v13, {v(AC)}, {v(AC)}")
    for r in range(1, 8):
        A(f"v_fmac_f32 v13, {v(AC+r)}, {v(AC+r)}")
    xlane_g(A, "v_add_f32", 13, 14, 15)
    A("v_lshlrev_b32 v8, 7, v8")
    A("s_lshl_b32 s40, s18, 4")
    A("s_lshl_b32 s41, s47, 3")
    A("s_add_u32 s40, s40, s41")
    A(f"s_add_u32 s40, s40, {WS_ST}")
    A("s_mov_b64 exec, 0xffff")
    A.vmem(f"buffer_store_dwordx2 v[12:13], v8, s[28:31], s40 offen{SC}", "st")
    A("s_mov_b64 exec, -1")
    A("s_branch p2_attn2")
    A.label("p2_attn")
    A("s_waitcnt vmcnt(0)")
    A("s_barrier")
    A.label("p2_attn2")
    A.vm_restore(["st"])
    stamp(A)
    A("s_load_dwordx4 s[4:7], s[0:1], 40")
    A("s_load_dwordx2 s[8:9], s[0:1], 56")
    A("s_load_dwordx2 s[10:11], s[0:1], 16")
    A("s_lshl_b32 s61, s19, 10")
    A(f"s_add_u32 s61, s61, {L_KV}")
    A(f"v_add_u32 v4, s61, {v(L16)}")
    for i in range(3):
        A(f"ds_read_b128 {v(FB+4*(i%4),4)}, v4 offset:{1024*i}")
    A(f"v_mov_b32 {v(TM+1)}, {NEGBIG:#x}")
    for r in range(4):
        A(f"v_lshl_add_u32 {v(TM)}, {v(VG)}, 2, {r}")
        A(f"v_cmp_gt_u32 vcc, {v(TM)}, {v(VI)}")
        A(f"v_mov_b32 {v(QF+r)}, {v(QK+r)}")
        A("s_nop 0")
        A(f"v_cndmask_b32 {v(C0+r)}, {v(TM+1)}, 0, vcc")
        A(f"v_cndmask_b32 {v(C16+r)}, 0, {v(TM+1)}, vcc")
    A("s_lshr_b32 s53, s48, 1")
    A("s_mul_i32 s53, s53, 7")
    A("s_add_u32 s53, s53, 3")
    A("s_lshr_b32 s53, s53, 1")
    A("s_xor_b32 s53, s53, s48")
    A("s_bitcmp1_b32 s48, 0")
    A("s_cselect_b32 exec_lo, 0xffff, 0")
    A("s_cselect_b32 exec_hi, 0, 0xffff0000")
    A("s_bitcmp1_b32 s53, 0")
    A("s_cbranch_scc1 p2_q01")
    A(f"v_mov_b32 {v(QF+2)}, 0")
    A(f"v_mov_b32 {v(QF+3)}, 0")
    A("s_branch p2_qz")
    A.label("p2_q01")
    A(f"v_mov_b32 {v(QF)}, 0")
    A(f"v_mov_b32 {v(QF+1)}, 0")
    A.label("p2_qz")
    A("s_mov_b64 exec, -1")
    A("s_add_u32 s61, s51, s19")
    A("s_sub_i32 s61, 16, s61")
    A("s_cmp_gt_i32 s61, 0")
    A("s_cbranch_scc1 p2_qkslow")
    for slow in range(2):
        if slow:
            A.label("p2_qkslow")
        for i in range(17):
            if i + 3 < 17:
                A(f"ds_read_b128 {v(FB+4*((i+3)%4),4)}, v4 offset:{1024*(i+3)}")
            A(f"s_waitcnt lgkmcnt({min(3, 16-i)})")
            c = v(C0, 4) if i == 0 else (v(C16, 4) if i == 16 else "0")
            if slow and i < 16:
                l1, l2 = A.newlabel("k2i"), A.newlabel("k2j")
                A(f"s_cmp_gt_i32 s61, {i}")
                A(f"s_cbranch_scc1 {l1}")
            A(f"v_mfma_f32_16x16x32_bf16 {v(SCB+4*i,4)}, {v(FB+4*(i%4),4)}, {v(QF,4)}, {c}")
            if slow and i < 16:
                A(f"s_branch {l2}")
                A.label(l1)
                for r in range(4):
                    A(f"v_mov_b32 {v(SCB+4*i+r)}, {NEGBIG:#x}")
                A.label(l2)
        if not slow:
            A("s_branch p2_qkdone")
    A.label("p2_qkdone")
    A("s_lshr_b32 s61, s19, 1")
    A("s_lshl_b32 s61, s61, 11")
    A(f"s_add_u32 s61, s61, {L_KV+24576}")
    A(f"v_add_u32 v5, s61, {v(L16)}")
    for j in range(2):
        A(f"ds_read_b128 {v(FB+4*j,4)}, v5 offset:{1024*j}")
    M = TM
    KL, NB = TM + 17, TM + 18
    A(f"v_max3_f32 {v(M)}, {v(SCB)}, {v(SCB+1)}, {v(SCB+2)}")
    A(f"v_max3_f32 {v(M+1)}, {v(SCB+3)}, {v(SCB+4)}, {v(SCB+5)}")
    idx, k = 6, 0
    while idx < 68:
        A(f"v_max3_f32 {v(M+k)}, {v(M+k)}, {v(SCB+idx)}, {v(SCB+idx+1)}")
        idx += 2
        k ^= 1
    A(f"v_max_f32 {v(M)}, {v(M)}, {v(M+1)}")
    xlane_g(A, "v_max_f32", M, M + 1, M + 2)
    A(f"v_mov_b32 {v(KL)}, {f32bits(SCALE*LOG2E):#x}")
    A(f"v_mul_f32 {v(NB)}, {f32bits(-SCALE*LOG2E):#x}, {v(M)}")
    A("s_mul_i32 s60, s48, 7")
    A(f"v_add_u32 v6, s60, {v(VG)}")
    A(f"v_and_b32 {v(TM)}, 1, v6")
    A("v_lshrrev_b32 v6, 1, v6")
    A("v_lshlrev_b32 v6, 8, v6")
    A(f"v_lshl_add_u32 v6, {v(TM)}, 3, v6")
    A(f"v_lshl_add_u32 v6, {v(VI)}, 4, v6")
    A(f"s_add_u32 s60, s52, {WS_O}")
    big_decode(A)
    PITCH = F * 2
    A(f"s_mul_i32 s34, s40, {8*PITCH}")
    A("s_lshl_b32 s35, s33, 7")
    A("s_add_u32 s34, s34, s35")
    A(f"s_mov_b32 s38, {32*PITCH}")
    A("s_and_b32 s42, s40, 2")
    A("s_lshl_b32 s42, s42, 1")
    gen3.V_WD = 204
    unit_dma_voff(A, 204, "s43", "s42", PITCH, 205, 206)
    A(f"v_cmp_lt_u32 vcc, 6, {v(VL)}")
    A("s_lshl_b32 s85, s17, 1")
    A("v_mov_b32 v232, s85")
    A("v_addc_co_u32 v232, vcc, 0, v232, vcc")
    A(f"v_cmp_lt_u32 vcc, 6, {v(VL)}")
    A(f"v_subrev_u32 v233, 7, {v(VL)}")
    A("s_nop 0")
    A(f"v_cndmask_b32 v233, {v(VL)}, v233, vcc")
    A("v_and_b32 v234, 3, v232")
    A("v_mul_u32_u24 v234, 7, v234")
    A("v_add_u32 v234, v234, v233")
    A("v_lshrrev_b32 v232, 2, v232")
    A("v_lshl_add_u32 v232, v234, 3, v232")
    A("s_add_u32 s85, s33, 7")
    A("s_and_b32 s85, s85, 31")
    A(f"s_add_u32 s85, s85, {NWG}")
    A("v_writelane_b32 v232, s85, 14")
    A("v_lshlrev_b32 v232, 7, v232")
    A("v_add_u32 v232, 32768, v232")
    sp3 = Spec(A, 232, 0x7fff, lambda tag: None)
    A("s_lshl_b32 s35, s17, 3")
    A("s_add_u32 s35, s35, s19")
    A(f"s_mul_i32 s35, s35, {RT_BYTES}")
    A(f"s_add_u32 s35, s35, {WS_X1}")
    A(f"v_mov_b32 {v(V_XD)}, {v(L16)}")
    A.srd(20, 58, 59, WS_SIZE)
    A("s_mov_b32 s98, 0")

    def early_x():
        lx = A.newlabel("ex")
        A.vm_wait("sflag")
        A(f"v_cmp_ne_u32 s[96:97], s{TOK}, v253")
        A(f"s_cmp_ge_u32 s2, {NWG}")
        A(f"s_cbranch_scc1 {lx}")
        A("s_and_b64 s[96:97], s[96:97], 0x7fff")
        A(f"s_cbranch_scc1 {lx}")
        snap_x = A.vm_snapshot()
        gen3.XSC[0] = SL
        for ds in range(2):
            big_dma_parts(A, ds, 2048, V_XD)[0]()
        gen3.XSC[0] = ""
        A.vm_restore(snap_x)
        A("s_mov_b32 s98, 1")
        A.label(lx)
    A.srd(24, 6, 7, D * F * 2)
    A("s_waitcnt vmcnt(0)")
    A("s_barrier")
    A.vm_restore([])
    A(f"s_cmp_ge_u32 s2, {NWG}")
    A("s_cbranch_scc1 p2_now3")
    flag_store(A, 1)
    for ds in range(3):
        for p in big_dma_parts(A, ds, 2048, V_XD)[1:]:
            p()
    if L2WARM:
        A("s_lshl_b32 s44, s15, 3")
        A("s_add_u32 s44, s44, s19")
        A("s_mul_i32 s45, s44, 1792")
        A("s_mul_i32 s44, s44, 7168")
        A.srd(68, 8, 9, D * F * 2)
        A.srd(72, 10, 11, D * D * 2)
        for q in range(7):
            A.vmem(f"buffer_load_dwordx4 v[208:211], {v(L16)}, s[68:71], s44 offen offset:{1024*(q%4)}", "warm")
            if q == 3:
                A("s_add_u32 s44, s44, 4096")
        for q in range(2):
            A.vmem(f"buffer_load_dwordx4 v[208:211], {v(L16)}, s[72:75], s45 offen offset:{896*q}", "warm")
    A.label("p2_now3")
    A("s_bitcmp1_b32 s19, 0")
    A("s_cbranch_scc1 p2_odd")
    for par in range(2):
        if par:
            A.label("p2_odd")
        zs = 17 if par == 0 else 0
        A(f"v_mov_b32 {v(PB+2*zs)}, 0")
        A(f"v_mov_b32 {v(PB+2*zs+1)}, 0")
        nread = 2
        if par:
            A.vm_restore(snap_att)
        snap_att = A.vm_snapshot()
        for c in range(9):
            if c == SP3C:
                sp3.stage1()
            if c == SP3C + 2:
                early_x()
            els = []
            for half in range(2):
                slot = 2 * c + half
                if slot != zs:
                    els += [SCB + 4 * (slot - par) + r for r in range(4)]
            for e in els:
                A(f"v_fma_f32 {v(e)}, {v(e)}, {v(KL)}, {v(NB)}")
            for e in els:
                A(f"v_exp_f32 {v(e)}, {v(e)}")
            while nread < min(18, 2 * c + 4):
                A(f"ds_read_b128 {v(FB+4*(nread%4),4)}, v5 offset:{1024*nread}")
                nread += 1
            if c >= 7:
                A("s_nop 0")
            for half in range(2):
                slot = 2 * c + half
                if slot == zs:
                    continue
                i = slot - par
                A(f"v_cvt_pk_bf16_f32 {v(PB+2*slot)}, {v(SCB+4*i)}, {v(SCB+4*i+1)}")
                A(f"v_cvt_pk_bf16_f32 {v(PB+2*slot+1)}, {v(SCB+4*i+2)}, {v(SCB+4*i+3)}")
            A(f"s_waitcnt lgkmcnt({nread - (2*c+2)})")
            A("s_nop 0")
            for dt in range(2):
                A(f"v_mfma_f32_16x16x32_bf16 {v(OA+4*dt,4)}, {v(FB+4*((2*c+dt)%4),4)}, {v(PB+4*c,4)}, {v(OA+4*dt,4) if c else 0}")
        if par == 0:
            A("s_branch p2_out")
    A.label("p2_out")
    A(f"v_mov_b32 {v(TM)}, 0")
    A("s_lshl_b32 s42, s40, 12")
    A(f"v_add_u32 {v(V_XR[0])}, s42, {v(L16)}")
    A(f"v_add_u32 {v(V_XR[1])}, {2*SLOT}, {v(V_XR[0])}")
    A("s_mov_b32 exec_lo, 0")
    A("s_mov_b32 exec_hi, 0xffff0000")
    A(f"v_mov_b32 {v(TM)}, {v(OA+4)}")
    A("s_mov_b64 exec, -1")
    xlane_g(A, "v_add_f32", TM, TM + 1, TM + 2)
    A(f"v_rcp_f32 {v(TM)}, {v(TM)}")
    A("s_nop 0")
    for r in range(8):
        A(f"v_mul_f32 {v(OA+r)}, {v(TM)}, {v(OA+r)}")
    for r in range(4):
        A(f"v_cvt_pk_bf16_f32 {v(TM+4+r)}, {v(OA+2*r)}, {v(OA+2*r+1)}")
    A.vmem(f"buffer_store_dwordx2 {v(TM+4,2)}, v6, s[28:31], s60 offen{SC}", "ost")
    ex48(A)
    A.vmem(f"buffer_store_dwordx2 {v(TM+6,2)}, v6, s[28:31], s60 offen offset:512{SC}", "ost")
    exall(A)
    l3 = A.newlabel("p3go")
    A(f"s_cmp_lt_u32 s2, {NWG}")
    A(f"s_cbranch_scc1 {l3}")
    A("s_waitcnt vmcnt(0)")
    A("s_barrier")
    flag_store(A, 2)
    A("s_endpgm")
    A.label(l3)
    big_bases(A, PB4)
    A("s_lshl_b32 s39, s17, 3")
    A("s_lshl_b32 s42, s40, 1")
    A("s_add_u32 s39, s39, s42")
    A("s_lshl_b32 s42, s39, 4")
    A(f"v_add_u32 v24, s42, {v(VI)}")
    A("v_lshlrev_b32 v24, 7, v24")
    A(f"v_lshl_add_u32 v24, {v(VG)}, 5, v24")
    A(f"s_mov_b32 s46, {WS_ST}")
    A("s_lshl_b32 s45, s33, 8")
    A(f"s_add_u32 s45, s45, {WS_CS + 7*256}")
    A(f"v_xor_b32 v203, 16, {v(CSO)}")
    stamp(A)
    l = A.newlabel("sp3")
    A("s_cmp_eq_u32 s98, 1")
    A(f"s_cbranch_scc1 {l}")
    A("s_mov_b64 exec, 0x7fff")
    spin(A, 232)
    gen3.XSC[0] = SL
    for ds in range(2):
        big_dma_parts(A, ds, 2048, V_XD)[0]()
    A.label(l)
    stamp(A)
    STR = 180

    def h3a():
        for j in range(2):
            for q in range(2):
                A.vmem(f"buffer_load_dwordx4 {v(STR+8*j+4*q,4)}, v24, s[28:31], s46 offen offset:{2048*j+16*q}{SL}", "st")
        for t in range(4):
            A.vmem(f"buffer_load_dwordx4 {v(CS+4*t,4)}, {v(203 if t & 1 else CSO)}, s[28:31], s45 offen offset:{128*(t>>1)}{SL}", "st")
        A("s_load_dwordx2 s[4:5], s[0:1], 16")
        A("s_load_dwordx2 s[6:7], s[0:1], 56")
        A("s_load_dwordx2 s[8:9], s[0:1], 72")

    RS4, PF4 = 6, 4
    RING = RS4 * 4096
    L4_WO, L4_R = 0, 57344
    OFB = 204
    def o_loads(tag):
        for u in range(7):
            A.vmem(f"buffer_load_dwordx4 {v(OFB+4*u,4)}, {v(L16)}, s[28:31], s{62+u//4} offen offset:{1024*(u%4)}{SL}", tag)
        A.vmem(f"buffer_load_dword v247, v246, s[28:31], s64 offen{SL}", tag)

    sp4 = Spec(A, 245, 0x1ffff, o_loads)

    def h3b():
        A("s_mul_i32 s16, s15, 9363")
        A("s_lshr_b32 s16, s16, 16")
        A("s_mul_i32 s69, s16, 7")
        A("s_sub_u32 s69, s15, s69")
        A("s_lshl_b32 s68, s14, 2")
        A("s_add_u32 s68, s68, s16")
        A(f"v_and_b32 v245, 1, {v(VL)}")
        A("v_lshlrev_b32 v245, 4, v245")
        A("s_lshr_b32 s85, s68, 1")
        A("v_add_u32 v245, s85, v245")
        A(f"v_lshrrev_b32 v246, 1, {v(VL)}")
        A("v_lshl_add_u32 v245, v245, 3, v246")
        A("v_lshlrev_b32 v245, 7, v245")
        A("v_add_u32 v245, 65536, v245")
        A(f"s_add_u32 s85, s68, {NWG}")
        A("s_lshl_b32 s85, s85, 7")
        A("s_add_u32 s85, s85, 32768")
        A("v_writelane_b32 v245, s85, 16")
        A("s_lshl_b32 s70, s68, 2")
        A("s_add_u32 s70, s70, s40")
        A(f"s_mul_i32 s62, s70, {RT_BYTES}")
        A(f"s_mul_i32 s63, s41, {7*1024}")
        A("s_add_u32 s62, s62, s63")
        A(f"s_add_u32 s62, s62, {WS_O}")
        A("s_add_u32 s63, s62, 4096")
        A("s_lshl_b32 s85, s70, 4")
        A(f"v_add_u32 v244, s85, {v(VI)}")
        A("v_lshlrev_b32 v246, 2, v244")
        A(f"s_mov_b32 s64, {WS_G}")
        sp4.stage1()

    def h3c():
        A.vm_wait("st")
        A("s_mov_b32 exec_lo, 0")
        A("s_mov_b32 exec_hi, 0xffff0000")
        for j in range(2):
            for r in range(4, 8):
                A(f"v_mov_b32 {v(STR+8*j+r)}, 0")
        A("s_mov_b64 exec, -1")
        for j in range(2):
            b = STR + 8 * j
            m, q = 198, 199
            A(f"v_add_f32 {v(m)}, {v(b)}, {v(b+2)}")
            A(f"v_add_f32 {v(q)}, {v(b+4)}, {v(b+6)}")
            A(f"v_add_f32 {v(m)}, {v(m)}, {v(q)}")
            xlane_g(A, "v_add_f32", m, 196, 197)
            A(f"v_mul_f32 {v(m)}, {f32bits(1.0/448):#x}, {v(m)}")
            A(f"v_add_f32 {v(q)}, {v(b+1)}, {v(b+3)}")
            A(f"v_add_f32 {v(q)}, {v(q)}, {v(b+5)}")
            A(f"v_add_f32 {v(q)}, {v(q)}, {v(b+7)}")
            for r in (0, 2, 4, 6):
                A(f"v_mul_f32 {v(b+r)}, {f32bits(1.0/32):#x}, {v(b+r)}")
                A(f"v_sub_f32 {v(b+r)}, {v(b+r)}, {v(m)}")
            A(f"v_mul_f32 {v(b)}, {v(b)}, {v(b)}")
            A(f"v_fmac_f32 {v(b)}, {v(b+2)}, {v(b+2)}")
            ex48(A)
            A(f"v_fmac_f32 {v(b)}, {v(b+4)}, {v(b+4)}")
            A(f"v_fmac_f32 {v(b)}, {v(b+6)}, {v(b+6)}")
            exall(A)
            A(f"v_fmamk_f32 {v(q)}, {v(b)}, {f32bits(32.0):#x}, {v(q)}")
            xlane_g(A, "v_add_f32", q, 196, 197)
            A(f"v_mul_f32 {v(q)}, {f32bits(1.0/448):#x}, {v(q)}")
            ln_finish(A, m, q)
            row_consts(A, 140 + 8 * j, m, q)
        A(f"s_mul_i32 s42, s39, {H3_RT_BYTES}")
        A("s_lshl_b32 s43, s33, 11")
        A("s_add_u32 s42, s42, s43")
        A(f"s_add_u32 s42, s42, {WS_H3}")
        A(f"s_add_u32 s43, s42, {H3_RT_BYTES}")

    consts = (148, 150, 152)
    big_mainloop(A, False, 2048, V_XD, False, wdone=(0, 1, 2), hooks={4: lambda: flag_store(A, 2), 7: h3a, 9: h3b, 11: h3c})
    gen3.XSC[0] = ""
    stamp(A)
    A(f"v_mov_b32 v6, {v(U896)}")
    A("s_and_b32 s85, s19, 1")
    A("s_lshl_b32 s85, s85, 6")
    A("v_xor_b32 v6, s85, v6")
    A("v_xor_b32 v7, 64, v6")
    A("s_lshl_b32 s66, s69, 7")
    A(f"s_mul_i32 s65, s19, {7*8*896}")
    A("s_add_u32 s65, s65, s66")
    A("s_mul_i32 s67, s19, 7168")
    A.srd(20, 4, 5, D * D * 2)
    A("s_barrier")
    fill3 = []
    for u in range(7):
        def f_(u=u):
            A("s_mov_b32 m0, s67")
            A("s_add_u32 s67, s67, 1024")
            A.vmem(f"buffer_load_dwordx4 v{6+(u&1)}, s[20:23], s65 offen lds", "wo")
            A(f"s_add_u32 s65, s65, {8*896}")
        fill3.append(f_)

    def f_flag():
        A.vm_wait("sflag")
        A(f"v_cmp_ne_u32 s[96:97], s{TOK}, v253")
    fill3.append(f_flag)
    for u in range(7):
        fill3.append(lambda u=u: A.vmem(f"buffer_load_dwordx4 {v(OFB+4*u,4)}, {v(L16)}, s[28:31], s{62+u//4} offen offset:{1024*(u%4)}{SL}", "sdata"))
    fill3.append(lambda: A.vmem(f"buffer_load_dword v247, v246, s[28:31], s64 offen{SL}", "sdata"))

    class Inter:
        def __init__(self, n):
            self.n, self.c = n, 0

        def __call__(self, line):
            A(line)
            self.c += 1
            if self.c % self.n == 0 and fill3:
                fill3.pop(0)()

    def st3(j, pk):
        for tp in range(2):
            A.vmem(f"buffer_store_dwordx4 {v(pk+4*tp,4)}, {v(L16)}, s[28:31], s{42+j} offen offset:{1024*tp}{SC}", "hst")

    gelu_epi(Inter(FILLN), CS, (140, 148), 48, 32, st3)
    while fill3:
        fill3.pop(0)()
    stamp(A)
    NA = PF4 + 2
    AFB = 32
    WFB = AFB + NA * 8
    ACB = WFB + 32
    AWO = ACB + 32
    WOF = AWO + 16
    assert WOF + 32 <= OFB
    GR = 247
    TB, TO = 20, 24
    af = lambda sx, j: AFB + ((sx % NA) * 2 + j) * 4
    ac = lambda j, t: v(ACB + (j * 4 + t) * 4, 4)
    for m in range(1, 4):
        A(f"v_add_u32 v{8+m}, {4096*m}, {v(L16)}")
    A(f"v_mov_b32 v8, {v(L16)}")
    A(f"v_mov_b32 v4, {v(U896)}")
    l = A.newlabel("sw")
    A("s_cmp_eq_u32 s41, 0")
    A(f"s_cbranch_scc1 {l}")
    A(f"v_mov_b32 v4, {v(U896S)}")
    A.label(l)
    A("v_xor_b32 v5, 64, v4")
    A("s_lshl_b32 s32, s68, 2")
    A("s_lshl_b32 s33, s41, 1")
    A("s_add_u32 s32, s32, s33")
    A(f"s_mul_i32 s32, s32, {H3_RT_BYTES}")
    A(f"s_mul_i32 s33, s40, {14*1024}")
    A("s_add_u32 s32, s32, s33")
    A(f"s_add_u32 s32, s32, {WS_H3}")
    A(f"s_add_u32 s33, s32, {H3_RT_BYTES}")
    A(f"s_mul_i32 s36, s40, {448*896}")
    A(f"s_mul_i32 s34, s41, {16*896}")
    A("s_add_u32 s36, s36, s34")
    A("s_add_u32 s36, s36, s66")
    A(f"s_mul_i32 s35, s40, {RING}")
    A(f"s_add_u32 s35, s35, {L4_R}")
    A("s_lshl_b32 s37, s41, 11")
    A("s_add_u32 s37, s37, s35")
    A(f"s_mul_i32 s44, s41, {7*4096}")
    for t in range(4):
        A(f"v_add_u32 {v(TO+t)}, s44, {v(PB4+t)}")
        A(f"v_add_u32 {v(TB+t)}, s35, {v(PB4+t)}")
    A.srd(24, 6, 7, F * D * 2)
    A.srd(48, 8, 9, ACT_BYTES)

    ROT = os.environ.get("ROT", "0") == "1"
    if ROT:
        A("s_lshl_b32 s72, s69, 1")
        A(f"s_add_u32 s73, s36, {14*32*896}")
        A(f"s_mul_i32 s74, s72, {32*896}")
        A("s_add_u32 s36, s36, s74")
        A(f"s_add_u32 s75, s32, {14*1024}")
        A("s_lshl_b32 s74, s72, 10")
        A("s_add_u32 s32, s32, s74")

    def w_parts(sx):
        parts = []
        for j in range(2):
            def p(j=j):
                A(f"s_add_u32 m0, s37, {(sx%RS4)*4096 + j*1024}")
                A("s_nop 0")
                A.vmem(f"buffer_load_dwordx4 v{4+j}, s[24:27], s36 offen lds", ("w", sx))
                A(f"s_add_u32 s36, s36, {8*896 if j == 0 else 24*896}")
                if ROT and j == 1:
                    A(f"s_sub_u32 s74, s36, {14*32*896}")
                    A("s_cmp_ge_u32 s36, s73")
                    A("s_cselect_b32 s36, s74, s36")
            parts.append(p)
        return parts

    def a_parts(sx):
        if ROT:
            def p0():
                A(f"s_add_u32 s33, s32, {H3_RT_BYTES}")
                A.vmem(f"buffer_load_dwordx4 {v(af(sx,0),4)}, v8, s[28:31], s32 offen{SL}", ("ld", sx))

            def p1():
                A.vmem(f"buffer_load_dwordx4 {v(af(sx,1),4)}, v8, s[28:31], s33 offen{SL}", ("ld", sx))
                A("s_add_u32 s32, s32, 1024")
                A(f"s_sub_u32 s74, s32, {14*1024}")
                A("s_cmp_ge_u32 s32, s75")
                A("s_cselect_b32 s32, s74, s32")
            return [p0, p1]
        return [lambda j=j: A.vmem(f"buffer_load_dwordx4 {v(af(sx,j),4)}, v{8+sx//4}, s[28:31], s{32+j} offen offset:{1024*(sx%4)}{SL}", ("ld", sx)) for j in range(2)]

    sp4.finish()
    A("s_barrier")
    for r in unit_reads(TO, 0, WOF):
        A(r)
    for u in range(7):
        A("s_waitcnt lgkmcnt(0)")
        rd = unit_reads(TO, (u + 1) * 4096, WOF + 16 * ((u + 1) & 1)) if u < 6 else []
        for t in range(4):
            c = v(AWO + 4 * t, 4)
            A(f"v_mfma_f32_16x16x32_bf16 {c}, {v(WOF+16*(u&1)+4*t,4)}, {v(OFB+4*u,4)}, {c if u else 0}")
            for r in rd[4*t:4*t+4] if t < 2 else []:
                A(r)
            if t >= 2 and u >= 1:
                w_parts(u - 1)[t - 2]()
        if u == 1:
            A.vm_wait("hst")
            A("s_barrier")
            flag_store(A, 3)
    stamp(A)

    def deps4b():
        A("s_lshr_b32 s85, s68, 1")
        A("v_mov_b32 v232, s85")
        A(f"v_mov_b32 v233, {v(VL)}")
        big_id(A, 252, 232, 233, 234)
        A(f"v_add_u32 v252, {3*32768}, v252")
        A("s_mov_b64 exec, 0x3fff")

    poll(A, deps4b, "s_waitcnt vmcnt(0)")
    A.vm_restore([])
    stamp(A)
    na = [0]

    def take_a(n, limit):
        out = []
        while n > 0 and na[0] < 14 and na[0] <= limit:
            out += a_parts(na[0])
            na[0] += 1
            n -= 1
        return out

    for p in take_a(3, 2):
        p()
    for r in unit_reads(TB, 0, WFB):
        A(r)
    for sx in range(14):
        tags = [("ld", sx)]
        bar = sx % 2 == 0 and 0 < sx < 13
        if bar:
            tags += [("w", t) for t in (sx + 1, sx + 2) if 5 < t < 14]
        A.vm_wait(tags, " lgkmcnt(0)")
        if bar:
            A("s_barrier")
        rd = unit_reads(TB, ((sx + 1) % RS4) * 4096, WFB + 16 * ((sx + 1) & 1)) if sx < 13 else []
        parts = take_a(2, sx + 1 + PF4)
        wt = [6] if sx == 2 else []
        wt += [sx + 5] if 2 <= sx and sx + 5 < 14 else []
        for t in wt:
            parts += w_parts(t)
        mf = [f"v_mfma_f32_16x16x32_bf16 {ac(j,t)}, {v(WFB+16*(sx&1)+4*t,4)}, {v(af(sx,j),4)}, {ac(j,t) if sx else 0}" for t in range(4) for j in range(2)]
        E4 = os.environ.get("E4", "")
        for i, m in enumerate(mf):
            if "m" not in E4:
                A(m)
            for _ in range(2):
                if rd:
                    r_ = rd.pop(0)
                    if "r" not in E4:
                        A(r_)
            for _ in range(-(-len(parts) // (len(mf) - i))):
                parts.pop(0)()
        assert not rd and not parts
    stamp(A)
    A("s_lshl_b32 s52, s40, 14")
    A("s_lshl_b32 s53, s41, 13")
    A("s_add_u32 s52, s52, s53")
    A("v_add_u32 v12, s52, v8")
    A("s_lshl_b32 s52, s41, 14")
    A("s_lshl_b32 s53, s40, 12")
    A("s_add_u32 s52, s52, s53")
    A("s_add_u32 s52, s52, 65536")
    A("v_add_u32 v13, s52, v8")
    A("s_barrier")
    for t in range(4):
        A(f"ds_write_b128 v13, {v(AWO+4*t,4)} offset:{t*1024}")
    for j in range(2):
        for t in range(4):
            A(f"ds_write_b128 v12, {ac(j,t)} offset:{(j*4+t)*1024}")
    A("s_lshl_b32 s52, s40, 12")
    A("s_lshl_b32 s53, s41, 11")
    A("s_add_u32 s52, s52, s53")
    A("v_add_u32 v12, s52, v8")
    A("v_add_u32 v13, 65536, v12")
    XU = OFB
    for j in range(4):
        A(f"v_lshlrev_b32 {v(XU+2*j)}, 16, {v(X1K+j)}")
        A(f"v_and_b32 {v(XU+2*j+1)}, 0xffff0000, {v(X1K+j)}")
    A(f"v_sub_f32 v19, 1.0, {v(GR)}")
    rbf(A, 19)
    A("v_mul_u32_u24 v14, 896, v244")
    A(f"v_lshrrev_b32 v16, 1, {v(CSO)}")
    A("v_xor_b32 v15, 8, v16")
    A("v_add_u32 v15, v15, v14")
    A("v_add_u32 v14, v16, v14")
    A("s_lshl_b32 s53, s41, 6")
    A("s_add_u32 s52, s66, s53")
    A("s_waitcnt lgkmcnt(0)")
    A("s_barrier")
    RB = 32
    for q in range(4):
        for t in range(2):
            A(f"ds_read_b128 {v(RB+8*q+4*t,4)}, v12 offset:{16384*q + 1024*t}")
    for q in range(2):
        for t in range(2):
            A(f"ds_read_b128 {v(RB+32+8*q+4*t,4)}, v13 offset:{16384*q + 1024*t}")
    A("s_waitcnt lgkmcnt(4)")
    for r in range(8):
        A(f"v_add_f32 {v(RB+r)}, {v(RB+r)}, {v(RB+8+r)}")
        A(f"v_add_f32 {v(RB+16+r)}, {v(RB+16+r)}, {v(RB+24+r)}")
    for r in range(8):
        A(f"v_add_f32 {v(RB+r)}, {v(RB+r)}, {v(RB+16+r)}")
    for r in range(8):
        A(f"v_add_f32 {v(RB+r)}, {v(RB+r)}, {v(XU+r)}")
    for r in range(8):
        A(f"v_mul_f32 {v(RB+r)}, v19, {v(RB+r)}")
    A("s_waitcnt lgkmcnt(0)")
    AU = RB + 32
    for r in range(8):
        A(f"v_add_f32 {v(AU+r)}, {v(AU+r)}, {v(AU+8+r)}")
    for r in range(8):
        A(f"v_fmac_f32 {v(RB+r)}, {v(GR)}, {v(AU+r)}")
    for j in range(4):
        A(f"v_cvt_pk_bf16_f32 {v(XU+j)}, {v(RB+2*j)}, {v(RB+2*j+1)}")
    A(f"buffer_store_dwordx2 {v(XU,2)}, v14, s[48:51], s52 offen")
    A(f"buffer_store_dwordx2 {v(XU+2,2)}, v15, s[48:51], s52 offen")
    stamp(A)
    A.label(Lend)
    A("s_endpgm")
    if PFCODE:
        for _ in range(256):
            A("s_nop 0")
        A.label("k_codeend")
        for _ in range(256):
            A("s_nop 0")
        A("s_endpgm")
    return A.text()


def build():
    hdr = open("gated_mix__sliding_block__mixer_s_mlp__prompt.s.ref").read().split("; Override launch")[0]
    out = hdr + "; @launch grid=(256,1,1) block=(512,1,1) lds=163840\n"
    out += '.amdgcn_target "amdgcn-amd-amdhsa--gfx950"\n.text\n'
    out += kernel_head(KNAME) + gen()
    out += '.section .rodata,"a"\n' + kernel_desc(KNAME, 256, 256)
    return out


if __name__ == "__main__":
    dst = sys.argv[1] if len(sys.argv) > 1 else "gated_mix__sliding_block__mixer_s_mlp__prompt.s"
    open(dst, "w").write(build())
    print("wrote", dst)
```

```python
import os
import sys
from asmlib import Asm, v, a, s, f32bits, kernel_desc, kernel_head
import gen3
from gen2 import (lane_setup, xlane_g, rbf, ln_finish, gelu_consts, ex48, exall,
                  S, D, F, MB, WS_K, WS_V, WS_HS, WS_X1, WS_O, WS_H3, WS_G, WS_ST, WS_SIZE, WS_DBG, ACT_BYTES, RT_BYTES,
                  H3_RT_BYTES, LOG2E, SCALE, NEGBIG, STAMPS, VL, VI, VG)
from gen3 import (unit_bases, unit_dma_voff, unit_reads, big_mainloop, big_dma_parts, big_decode,
                  gelu_epilogue, small_decode, SLOT, V_XD, V_XD2, V_WD, V_XR, V_TB, ACC, NWG)

KNAME = "gated_mix__sliding_block__mixer_s_mlp__prompt_kernel"
WS_FLAG = 26 * MB
if os.environ.get("COMPACT", "1") == "1":
    WS_K = 1835008
    WS_V = 3670016
    WS_HS = 5767168
    WS_X1 = 7602176
    WS_O = 9437184
    WS_FLAG = 11272192
    WS_H3 = 11796480
WS_ST = WS_FLAG + 131072
WS_G = WS_FLAG + 393216
WS_LN1 = WS_FLAG + 409600
WS_CS = WS_FLAG + 425984
TOK = 84
PB4 = 236
L16 = 240
U896, U896S = 241, 242
CSO = 243
X1K = 248
SC = " sc1"
SL = " sc1"
SP3C = int(os.environ.get("SP3C", "5"))
PFAT = int(os.environ.get("PFAT", "8"))
PFWS = os.environ.get("PFWS", "0") == "1"
PFSM = os.environ.get("PFSM", "1") == "1"
PFCODE = os.environ.get("PFCODE", "1") == "1"
PFLATE = os.environ.get("PFLATE", "0") == "1"
PFH = os.environ.get("PFH", "0")
FILLN = int(os.environ.get("FILLN", "1"))
R9 = os.environ.get("R9", "0") == "1"
B4 = os.environ.get("B4", "0") == "1"
PUBC = int(os.environ.get("PUBC", "3"))
L2WARM = os.environ.get("L2WARM", "0") == "1"
gen3.stamp = lambda A, i: None
gen3.CZERO[0] = True
NST = [0]


def stamp(A):
    if not STAMPS:
        return
    i = NST[0]
    NST[0] += 1
    A("s_memrealtime s[86:87]")
    A("s_lshl_b32 s88, s2, 11")
    A("s_lshl_b32 s89, s19, 7")
    A("s_add_u32 s88, s88, s89")
    A(f"s_add_u32 s88, s88, {WS_DBG + 4*i}")
    A("s_mov_b64 s[90:91], exec")
    A("s_mov_b64 exec, 1")
    A("v_mov_b32 v254, 0")
    A("s_waitcnt lgkmcnt(0)")
    A("v_mov_b32 v255, s86")
    A.vmem("buffer_store_dword v255, v254, s[28:31], s88 offen", "stamp")
    A("s_mov_b64 exec, s[90:91]")


def xstamp(A, i):
    if STAMPS:
        keep = NST[0]
        NST[0] = i
        stamp(A)
        NST[0] = keep


def flag_store(A, kind):
    l = A.newlabel("pub")
    A("s_cmp_lg_u32 s19, 0")
    A(f"s_cbranch_scc1 {l}")
    A("s_lshl_b32 s85, s2, 7")
    A(f"s_add_u32 s85, s85, {WS_FLAG + kind*32768}")
    A("v_mov_b32 v252, 0")
    A(f"v_mov_b32 v253, s{TOK}")
    A("s_mov_b64 exec, 1")
    A(f"buffer_store_dword v253, v252, s[28:31], s85 offen{SC}")
    A("s_mov_b64 exec, -1")
    A.label(l)


def tok_ok(A):
    A(f"s_sub_i32 s85, s82, s{TOK}")
    A("s_cmp_lt_i32 s85, 1500")
    A(f"s_cselect_b32 s85, s{TOK}, 0")
    A("s_cmp_lg_u32 s85, 0")


def get_token(A):
    l, l2 = A.newlabel("tok"), A.newlabel("tok")
    A("v_mov_b32 v252, 0")
    A("s_mov_b32 s93, 0")
    A.label(l)
    A(f"global_load_dword v253, v252, s[56:57]{SC}")
    A("s_add_u32 s93, s93, 1")
    A("s_waitcnt vmcnt(0)")
    A(f"v_readfirstlane_b32 s{TOK}, v253")
    A("s_cmp_ge_u32 s93, 0x4000")
    A(f"s_cbranch_scc1 {l2}")
    tok_ok(A)
    A(f"s_cbranch_scc0 {l}")
    A.label(l2)


def spin(A, vaddr):
    lp = A.newlabel("pol")
    A(f"s_mov_b32 s85, {WS_FLAG}")
    A("s_mov_b32 s93, 0")
    A.label(lp)
    A(f"buffer_load_dword v253, {v(vaddr)}, s[28:31], s85 offen{SC}")
    A("s_add_u32 s93, s93, 1")
    A("s_waitcnt vmcnt(0)")
    A(f"v_cmp_ne_u32 vcc, s{TOK}, v253")
    A("s_cmp_lt_u32 s93, 0x20000")
    A("s_cselect_b64 s[94:95], vcc, 0")
    A("s_cmp_lg_u64 s[94:95], 0")
    A(f"s_cbranch_scc1 {lp}")
    A("s_mov_b64 exec, -1")


def poll(A, addr_fn, extra_wait=""):
    l = A.newlabel("pol")
    A("s_cmp_lg_u32 s19, 0")
    A(f"s_cbranch_scc1 {l}")
    addr_fn()
    spin(A, 252)
    A.label(l)
    if extra_wait:
        A(extra_wait)
    A("s_barrier")


def big_id(A, dst, rt, ct, t0):
    A(f"v_lshrrev_b32 {v(dst)}, 2, {v(rt)}")
    A(f"v_lshlrev_b32 {v(dst)}, 1, {v(dst)}")
    A(f"v_cmp_lt_u32 vcc, 6, {v(ct)}")
    A("s_nop 1")
    A(f"v_addc_co_u32 {v(dst)}, vcc, 0, {v(dst)}, vcc")
    A(f"v_cmp_lt_u32 vcc, 6, {v(ct)}")
    A(f"v_and_b32 {v(t0)}, 3, {v(rt)}")
    A(f"v_mul_u32_u24 {v(t0)}, 7, {v(t0)}")
    A(f"v_add_u32 {v(t0)}, {v(t0)}, {v(ct)}")
    A(f"v_subrev_u32 {v(rt)}, 7, {v(t0)}")
    A(f"v_cndmask_b32 {v(t0)}, {v(t0)}, {v(rt)}, vcc")
    A(f"v_lshl_add_u32 {v(dst)}, {v(t0)}, 3, {v(dst)}")
    A(f"v_lshlrev_b32 {v(dst)}, 7, {v(dst)}")


def big_bases(A, src):
    A("s_lshl_b32 s42, s41, 13")
    A("s_add_u32 s42, s42, 16384")
    A(f"s_add_u32 s43, s42, {2*SLOT}")
    for t in range(4):
        A(f"v_add_u32 {v(V_TB[1]+t)}, s43, {v(src+t)}")
        A(f"v_add_u32 {v(V_TB[0]+t)}, s42, {v(src+t)}")


class Spec:
    def __init__(self, A, vflag, mask, loads):
        self.A, self.vflag, self.mask, self.loads = A, vflag, mask, loads

    def stage1(self):
        A = self.A
        A(f"s_mov_b32 s85, {WS_FLAG}")
        A(f"s_mov_b64 exec, {self.mask:#x}")
        A.vmem(f"buffer_load_dword v253, {v(self.vflag)}, s[28:31], s85 offen{SC}", "sflag")
        A("s_mov_b64 exec, -1")

    def stage2(self):
        A = self.A
        A.vm_wait("sflag")
        A(f"v_cmp_ne_u32 s[96:97], s{TOK}, v253")
        self.loads("sdata")

    def finish(self):
        A = self.A
        l = A.newlabel("spec")
        A(f"s_and_b64 s[96:97], s[96:97], {self.mask:#x}")
        A(f"s_cbranch_scc0 {l}")
        A(f"s_mov_b64 exec, {self.mask:#x}")
        spin(A, self.vflag)
        snap = A.vm_snapshot()
        self.loads("sdata")
        A.vm_restore(snap)
        A("s_waitcnt vmcnt(0)")
        A.label(l)
        A.vm_wait("sdata")


def gelu_epi(A, cs, rowc, tmp, pk, store_fn):
    for j in range(2):
        nm, k0, k1, sd = (rowc[j] + 2 * q for q in range(4))
        pairs = [ACC + j * 16 + 2 * i for i in range(8)]
        T = [tmp + 2 * i for i in range(8)]
        for i, p in enumerate(pairs):
            A(f"v_pk_fma_f32 {v(p,2)}, {v(cs+2*i,2)}, {v(nm,2)}, {v(p,2)}")
        for i, p in enumerate(pairs):
            A(f"v_pk_mul_f32 {v(T[i],2)}, {v(p,2)}, {v(p,2)}")
        for i, p in enumerate(pairs):
            A(f"v_pk_fma_f32 {v(T[i],2)}, {v(T[i],2)}, {v(k1,2)}, {v(k0,2)}")
        for i, p in enumerate(pairs):
            A(f"v_pk_mul_f32 {v(T[i],2)}, {v(T[i],2)}, {v(p,2)}")
        for i in range(8):
            A(f"v_exp_f32 {v(T[i])}, {v(T[i])}")
            A(f"v_exp_f32 {v(T[i]+1)}, {v(T[i]+1)}")
        for i in range(8):
            A(f"v_pk_fma_f32 {v(T[i],2)}, {v(T[i],2)}, {v(sd,2)}, {v(sd,2)}")
        for i in range(8):
            A(f"v_rcp_f32 {v(T[i])}, {v(T[i])}")
            A(f"v_rcp_f32 {v(T[i]+1)}, {v(T[i]+1)}")
        for i, p in enumerate(pairs):
            A(f"v_pk_mul_f32 {v(p,2)}, {v(p,2)}, {v(T[i],2)}")
        for i, p in enumerate(pairs):
            A(f"v_cvt_pk_bf16_f32 {v(pk+8*j+i)}, {v(p)}, {v(p+1)}")
        store_fn(j, pk + 8 * j)


def row_consts(A, dst, nm, rs):
    from gen2 import GELU_C0, GELU_C1
    A(f"v_rcp_f32 {v(dst+6)}, {v(rs)}")
    A(f"v_mul_f32 {v(dst+2)}, {f32bits(GELU_C0):#x}, {v(rs)}")
    A(f"v_mul_f32 {v(dst+4)}, {v(rs)}, {v(rs)}")
    A(f"v_mul_f32 {v(dst+4)}, {v(dst+4)}, {v(rs)}")
    A(f"v_mul_f32 {v(dst+4)}, {f32bits(GELU_C1):#x}, {v(dst+4)}")
    A(f"v_mov_b32 {v(dst)}, {v(nm)}")
    for q in range(4):
        A(f"v_mov_b32 {v(dst+2*q+1)}, {v(dst+2*q)}")


def red8(A, x, t):
    for dpp in ("quad_perm:[1,0,3,2]", "quad_perm:[2,3,0,1]", "row_half_mirror"):
        A("s_nop 1")
        A(f"v_add_f32_dpp {v(x)}, {v(x)}, {v(x)} {dpp} row_mask:0xf bank_mask:0xf")


def gen():
    A = Asm()
    Lend = "k_end"
    A("s_cmp_ge_u32 s2, 256")
    A(f"s_cbranch_scc1 {Lend}")
    A("s_load_dwordx4 s[4:7], s[0:1], 0")
    A("s_load_dwordx2 s[8:9], s[0:1], 32")
    A("s_load_dwordx4 s[56:59], s[0:1], 80")
    A("s_memrealtime s[82:83]")
    lane_setup(A)
    A(f"v_lshlrev_b32 {v(L16)}, 4, {v(VL)}")
    A(f"s_cmp_ge_u32 s2, {NWG}")
    A("s_cbranch_scc1 helper")
    big_decode(A)
    A("s_sub_u32 s46, s33, 21")
    A("s_movk_i32 s32, 896")
    A("s_cmp_lt_u32 s33, 21")
    A("s_cselect_b32 s32, 2688, s32")
    A("s_cselect_b32 s34, s33, s46")
    A("s_lshl_b32 s34, s34, 7")
    A("s_lshl_b32 s35, s40, 3")
    A("s_mul_i32 s35, s35, s32")
    A("s_add_u32 s34, s34, s35")
    A("s_lshl_b32 s38, s32, 5")
    unit_dma_voff(A, V_WD, "s43", None, "s32", 24, 25)
    A(f"v_lshrrev_b32 v24, 3, {v(VL)}")
    A("v_lshrrev_b32 v25, 1, v24")
    A(f"v_xor_b32 v25, v25, {v(VL)}")
    A("v_and_b32 v25, 7, v25")
    A(f"v_mul_u32_u24 {v(V_XD)}, 896, v24")
    A(f"v_lshl_add_u32 {v(V_XD)}, v25, 4, {v(V_XD)}")
    A(f"v_xor_b32 {v(V_XD2)}, 64, {v(V_XD)}")
    A(f"v_add_u32 {v(V_XD2)}, {8*896-1024}, {v(V_XD2)}")
    A("s_lshl_b32 s35, s17, 3")
    A("s_add_u32 s35, s35, s19")
    A(f"s_mul_i32 s35, s35, {RT_BYTES}")
    A("s_waitcnt lgkmcnt(0)")
    A.srd(20, 4, 5, ACT_BYTES)
    A(f"s_mov_b32 s26, {D*D*2}")
    A("s_cmp_lt_u32 s33, 21")
    A("s_cselect_b32 s24, s6, s8")
    A("s_cselect_b32 s25, s7, s9")
    A(f"s_cselect_b32 s26, {D*3*D*2}, s26")
    A("s_and_b32 s25, s25, 0xffff")
    A("s_mov_b32 s27, 0x00020000")
    PF0 = os.environ.get("PF0", "0")
    if PF0 != "0":
        A("s_lshl_b32 s60, s2, 3")
        A("s_add_u32 s60, s60, s19")
        A("s_lshl_b32 s60, s60, 10")
        A.srd(72, 6, 7, D * 3 * D * 2)
        A.srd(76, 8, 9, D * D * 2)
        A(f"s_sub_u32 s61, s60, {1176*1024}")
        A.vmem(f"buffer_load_dwordx4 v[212:215], {v(L16)}, s[72:75], s60 offen", "pf0")
        A.vmem(f"buffer_load_dwordx4 v[212:215], {v(L16)}, s[76:79], s61 offen", "pf0")
        if PF0 == "2":
            A.vmem(f"buffer_load_dwordx4 v[212:215], {v(L16)}, s[20:23], s60 offen", "pf0")
    P1PRO = int(os.environ.get("P1PRO", "2"))
    DMA_SAVE = dict(gen3.DMA_AT)
    if P1PRO == 4:
        gen3.DMA_AT.clear()
        gen3.DMA_AT.update({1: 4, 3: 5, 5: 6})
    if P1PRO == 3:
        gen3.DMA_AT.clear()
        gen3.DMA_AT.update({0: 3, 1: 4, 3: 5, 5: 6})
    for ds in range(P1PRO):
        for p in big_dma_parts(A, ds, 128, V_XD2):
            p()
    A.srd(28, 58, 59, WS_SIZE)
    if PFCODE:
        lc = A.newlabel("pfc")
        A("s_getpc_b64 s[60:61]")
        A.label("k_pc")
        A("s_lshr_b32 s70, s2, 3")
        A("s_lshl_b32 s70, s70, 3")
        A("s_add_u32 s70, s70, s19")
        A("s_lshl_b32 s70, s70, 10")
        A(f"s_cmp_ge_u32 s70, k_codeend-k_pc")
        A(f"s_cbranch_scc1 {lc}")
        A(f"v_add_u32 v204, s70, {v(L16)}")
        A("global_load_dwordx4 v[208:211], v204, s[60:61]")
        A.label(lc)
    stamp(A)
    A(f"v_lshrrev_b32 v24, 1, {v(VI)}")
    A(f"v_xor_b32 v24, v24, {v(VG)}")
    A("v_lshlrev_b32 v24, 4, v24")
    A(f"v_lshl_add_u32 v24, {v(VI)}, 7, v24")
    A("s_lshl_b32 s42, s40, 12")
    A(f"v_add_u32 {v(V_XR[0])}, s42, v24")
    A(f"v_xor_b32 {v(V_XR[2])}, 64, {v(V_XR[0])}")
    A(f"v_add_u32 {v(V_XR[1])}, {2*SLOT}, {v(V_XR[0])}")
    A(f"v_add_u32 {v(V_XR[3])}, {2*SLOT}, {v(V_XR[2])}")
    unit_bases(A, PB4, "pair", 24, 25, 26)
    unit_dma_voff(A, U896, "0", None, 896, 24, 25)
    unit_dma_voff(A, U896S, "0", "4", 896, 24, 25)
    A(f"v_lshrrev_b32 v24, 1, {v(VG)}")
    A(f"v_lshlrev_b32 {v(CSO)}, 5, {v(VG)}")
    A(f"v_lshl_add_u32 {v(CSO)}, v24, 4, {v(CSO)}")
    A("s_lshl_b32 s39, s17, 7")
    A("s_lshl_b32 s42, s40, 5")
    A("s_add_u32 s39, s39, s42")
    A("s_load_dwordx2 s[62:63], s[0:1], 16")
    A("s_load_dwordx4 s[64:67], s[0:1], 40")
    A("s_load_dwordx2 s[68:69], s[0:1], 56")
    A("v_mov_b32 v252, 0")
    A.vmem(f"global_load_dword v200, v252, s[56:57]{SC}", "tok")
    snap = A.vm_snapshot()
    PK = 32

    def pf_hook():
        A("s_lshl_b32 s60, s2, 3")
        A("s_add_u32 s60, s60, s19")
        A("s_lshl_b32 s60, s60, 10")
        lst = ((64, D * D * 2, 0), (66, D * F * 2, 0), (62, D * D * 2, 392), (68, D * F * 2, 224))
        if PFLATE:
            lst = lst[:1]
        for q, (lo, size, base) in enumerate(lst):
            A.srd(72, lo, lo + 1, size)
            A(f"s_sub_u32 s61, s60, {base*1024}")
            A.vmem(f"buffer_load_dwordx4 v[204:207], {v(L16)}, s[72:75], s61 offen", "pf")
        if PFWS:
            A(f"s_add_u32 s61, s60, {WS_O}")
            A.vmem(f"buffer_load_dwordx4 v[204:207], {v(L16)}, s[28:31], s61 offen", "pf")

    def tok_hook():
        l = A.newlabel("tk")
        A.vm_wait("tok")
        A(f"v_readfirstlane_b32 s{TOK}, v200")
        tok_ok(A)
        A(f"s_cbranch_scc1 {l}")
        get_token(A)
        A.label(l)

    A("s_sub_u32 s42, s33, 14")
    A("s_cmp_lt_u32 s42, 7")
    A("s_cbranch_scc1 p1_v")
    big_bases(A, PB4)
    A("s_cmp_ge_u32 s33, 21")
    A("s_cbranch_scc1 p1_w1")
    big_mainloop(A, False, 128, V_XD2, True, hooks={7: tok_hook, PFAT: pf_hook})
    A("s_cmp_ge_u32 s33, 7")
    A("s_cselect_b32 s43, 7, 0")
    A(f"s_cselect_b32 s42, {WS_K}, 0")
    A("s_sub_u32 s46, s33, s43")
    A("s_lshl_b32 s46, s46, 11")
    A("s_add_u32 s42, s42, s46")
    A("s_mul_i32 s43, s39, 896")
    A("s_add_u32 s42, s42, s43")
    A(f"s_add_u32 s43, s42, {RT_BYTES}")
    for j in range(2):
        for q in range(8):
            A(f"v_cvt_pk_bf16_f32 {v(PK+8*j+q)}, {v(ACC+16*j+2*q)}, {v(ACC+16*j+2*q+1)}")
        for tp in range(2):
            A(f"buffer_store_dwordx4 {v(PK+8*j+4*tp,4)}, {v(L16)}, s[28:31], s{42+j} offen offset:{1024*tp}{SC}")
    A("s_branch p1_done")
    A.label("p1_v")
    A.vm_restore(snap)
    unit_bases(A, 28, "nat", 24, 25, 26)
    big_bases(A, 28)
    A("s_sub_u32 s46, s33, 14")
    A("s_lshl_b32 s47, s39, 6")
    A(f"s_add_u32 s47, s47, {WS_V}")
    A("s_lshl_b32 s44, s46, 6")
    for t in range(4):
        o = 184 + t
        A(f"v_add_u32 v24, s44, {v(VI)}")
        A(f"v_add_u32 v24, {16*t}, v24")
        A("v_mul_u32_u24 v25, 2341, v24")
        A("v_lshrrev_b32 v25, 16, v25")
        A("v_mul_u32_u24 v26, 28, v25")
        A("v_sub_u32 v26, v24, v26")
        A(f"v_lshlrev_b32 {v(o)}, 17, v25")
        A("v_lshrrev_b32 v27, 4, v26")
        A(f"v_lshl_add_u32 {v(o)}, v27, 10, {v(o)}")
        A("v_and_b32 v27, 15, v26")
        A(f"v_lshl_add_u32 {v(o)}, v27, 4, {v(o)}")
        A(f"v_lshl_add_u32 {v(o)}, {v(VG)}, 8, {v(o)}")
    A("s_lshl_b32 s44, s46, 4")
    A("s_mul_i32 s45, s44, 9363")
    A("s_lshr_b32 s45, s45, 16")
    A(f"v_add_u32 v24, s45, {v(VG)}")
    A("v_mul_u32_u24 v25, 7, v24")
    A("v_add_u32 v25, 6, v25")
    A("s_add_u32 s44, s44, 16")
    A("v_lshlrev_b32 v24, 17, v24")
    A(f"v_lshrrev_b32 v26, 2, {v(VI)}")
    A("v_lshl_add_u32 v24, v26, 4, v24")
    A(f"v_and_b32 v27, 3, {v(VI)}")
    A("v_lshl_add_u32 v24, v27, 8, v24")
    A("v_cmp_eq_u32 vcc, 0, v26")
    A("v_mov_b32 v27, 0x3f803f80")
    A("s_nop 0")
    A("v_cndmask_b32 v188, 0, v27, vcc")
    for r in range(1, 4):
        A(f"v_mov_b32 v{188+r}, v188")
    A("v_cmp_gt_u32 vcc, s44, v25")
    A("s_and_saveexec_b64 s[44:45], vcc")
    A.vmem(f"buffer_store_dwordx4 v[188:191], v24, s[28:31], s47 offen offset:{1024+12*16}{SC}", "ones")
    A("s_mov_b64 exec, -1")
    big_mainloop(A, True, 128, V_XD2, True, hooks={7: tok_hook, PFAT: pf_hook})
    A("s_nop 4")
    for t in range(4):
        pk = PK + 4 * t
        for j in range(2):
            src = ACC + 16 * j + 4 * t
            A(f"v_cvt_pk_bf16_f32 {v(pk+2*j)}, {v(src)}, {v(src+1)}")
            A(f"v_cvt_pk_bf16_f32 {v(pk+2*j+1)}, {v(src+2)}, {v(src+3)}")
        A(f"buffer_store_dwordx4 {v(pk,4)}, {v(184+t)}, s[28:31], s47 offen{SC}")
    A("s_branch p1_done")
    A.label("p1_w1")
    A.vm_restore(snap)
    MR, RS, CS = [140, 142], [144, 146], 164
    A("s_lshl_b32 s42, s17, 1")
    A(f"v_add_u32 v201, s42, {v(VL)}")
    A("v_writelane_b32 v201, s46, 2")
    A(f"v_lshlrev_b32 v201, 7, v201")
    A(f"v_add_u32 v201, {NWG*128}, v201")
    A(f"v_add_u32 v202, s39, {v(VI)}")
    A("v_lshlrev_b32 v202, 3, v202")
    A(f"s_mov_b32 s44, {WS_LN1}")
    A("s_lshl_b32 s45, s46, 8")
    A(f"s_add_u32 s45, s45, {WS_CS}")
    A(f"v_xor_b32 v203, 16, {v(CSO)}")

    def w1_loads(tag):
        for j in range(2):
            A.vmem(f"buffer_load_dwordx2 {v(180+2*j,2)}, v202, s[28:31], s44 offen offset:{128*j}{SL}", tag)
        for t in range(4):
            A.vmem(f"buffer_load_dwordx4 {v(CS+4*t,4)}, {v(203 if t & 1 else CSO)}, s[28:31], s45 offen offset:{128*(t>>1)}{SL}", tag)

    sp = Spec(A, 201, 7, w1_loads)

    def h7():
        tok_hook()
        sp.stage1()

    A.srd_off(52, 58, 59, WS_HS, ACT_BYTES)
    A("s_lshl_b32 s47, s46, 3")
    for tp in range(2):
        A(f"v_add_u32 v24, s47, {v(VG)}")
        if tp:
            A("v_add_u32 v24, 4, v24")
        A("v_mul_u32_u24 v25, 4682, v24")
        A("v_lshrrev_b32 v25, 16, v25")
        A("v_lshrrev_b32 v26, 1, v25")
        A("v_add_u32 v26, 1, v26")
        A("v_and_b32 v25, 1, v25")
        A("v_sub_u32 v27, 0, v25")
        A("v_xor_b32 v26, v26, v27")
        A("v_add_u32 v26, v26, v25")
        A(f"v_add_u32 v26, v26, {v(VI)}")
        A("v_add_u32 v26, s39, v26")
        for j in range(2):
            o = 184 + 2 * j + tp
            if j:
                A("v_add_u32 v26, 16, v26")
            A("v_lshrrev_b32 v25, 4, v26")
            A("v_mul_u32_u24 v25, 14336, v25")
            A("v_and_b32 v27, 15, v26")
            A("v_lshl_add_u32 v25, v27, 4, v25")
            A("v_lshl_add_u32 v25, v24, 8, v25")
            A("v_cmp_gt_u32 vcc, 2048, v26")
            A("v_mov_b32 v27, 0x80000000")
            A("s_nop 0")
            A(f"v_cndmask_b32 {v(o)}, v27, v25, vcc")
    A("s_cmp_lg_u32 s40, 0")
    A("s_cbranch_scc1 p1_zd")
    A("s_cmp_eq_u32 s17, 0")
    A("s_cselect_b32 s48, 0, 1")
    A("s_cbranch_scc1 p1_z")
    A("s_cmp_lg_u32 s17, 15")
    A("s_cbranch_scc1 p1_zd")
    A.label("p1_z")
    A(f"v_and_b32 v24, 7, {v(VL)}")
    A("v_add_u32 v24, s47, v24")
    A("v_mul_u32_u24 v25, 4682, v24")
    A("v_lshrrev_b32 v25, 16, v25")
    A(f"v_lshrrev_b32 v26, 3, {v(VL)}")
    A("v_lshrrev_b32 v27, 1, v25")
    A("v_cmp_le_u32 s[50:51], v26, v27")
    A("v_and_b32 v25, 1, v25")
    A("v_cmp_eq_u32 vcc, s48, v25")
    A("s_and_b64 s[50:51], s[50:51], vcc")
    A("v_sub_u32 v27, 15, v26")
    A("s_cmp_eq_u32 s48, 0")
    A(f"s_cselect_b32 s49, 0, {127*14336}")
    A("s_cbranch_scc1 p1_z2")
    A("v_mov_b32 v26, v27")
    A.label("p1_z2")
    A("v_lshlrev_b32 v26, 4, v26")
    A("v_lshl_add_u32 v26, v24, 8, v26")
    for r in range(4):
        A(f"v_mov_b32 {v(188+r)}, 0")
    A("s_mov_b64 exec, s[50:51]")
    A(f"buffer_store_dwordx4 v[188:191], v26, s[52:55], s49 offen{SC}")
    A("s_mov_b64 exec, -1")
    A.label("p1_zd")
    big_mainloop(A, False, 128, V_XD2, True, hooks={7: tok_hook, PFAT: pf_hook, 10: sp.stage1, 12: sp.stage2})
    sp.finish()
    for j in range(2):
        row_consts(A, 140 + 8 * j, 180 + 2 * j, 181 + 2 * j)

    def st1(j, pk):
        for tp in range(2):
            A(f"buffer_store_dwordx4 {v(pk+4*tp,4)}, {v(184+2*j+tp)}, s[52:55], 0 offen{SC}")

    gelu_epi(A, CS, (140, 148), 48, 32, st1)
    A("s_branch p1_done")
    A.label("helper")
    gen3.DMA_AT.clear()
    gen3.DMA_AT.update(DMA_SAVE)
    A.vm_restore([])
    A("s_load_dwordx2 s[10:11], s[0:1], 64")
    A("s_load_dwordx2 s[12:13], s[0:1], 48")
    A(f"s_sub_u32 s14, s2, {NWG}")
    for r in (236, 237, 238, 239, 241, 242, 243):
        A(f"v_mov_b32 v{r}, 0")
    A(f"v_lshrrev_b32 v4, 3, {v(VL)}")
    A(f"v_and_b32 v5, 7, {v(VL)}")
    A("v_lshlrev_b32 v5, 4, v5")
    A("s_lshl_b32 s15, s14, 6")
    A("s_lshl_b32 s16, s19, 3")
    A("s_add_u32 s15, s15, s16")
    A("v_add_u32 v4, s15, v4")
    A("v_mul_u32_u24 v6, 896, v4")
    A("v_add_u32 v6, v6, v5")
    A("s_waitcnt lgkmcnt(0)")
    A.srd(20, 4, 5, ACT_BYTES)
    A.srd(28, 58, 59, WS_SIZE)
    A.srd(48, 10, 11, D * 2)
    XB_, GB_, FB_ = 8, 40, 72
    for j in range(7):
        A.vmem(f"buffer_load_dwordx4 {v(XB_+4*j,4)}, v6, s[20:23], 0 offen offset:{128*j}", "hx")
    A(f"v_lshrrev_b32 v7, 3, {v(VL)}")

    def cs_setup(item_s):
        A(f"s_cmp_lt_u32 {item_s}, 7")
        A("s_cselect_b32 s24, s8, s12")
        A("s_cselect_b32 s25, s9, s13")
        A("s_movk_i32 s32, 896")
        A(f"s_cselect_b32 s32, s32, {F*2}")
        A(f"s_cselect_b32 s33, 0, 7")
        A(f"s_mov_b32 s26, {D*F*2}")
        A(f"s_cselect_b32 s26, {D*D*2}, s26")
        A("s_and_b32 s25, s25, 0xffff")
        A("s_mov_b32 s27, 0x00020000")
        A(f"s_sub_u32 s33, {item_s}, s33")
        A("s_lshl_b32 s33, s33, 7")
        A("s_mul_i32 s34, s19, 56")
        A("s_mul_i32 s34, s34, s32")
        A("s_add_u32 s33, s33, s34")
        A("v_mul_lo_u32 v130, v7, s32")
        A("v_add_u32 v130, v130, v5")
        A("s_lshl_b32 s32, s32, 3")
        for j in range(7):
            A.vmem(f"buffer_load_dwordx4 {v(132+4*j,4)}, v130, s[24:27], s33 offen", "hw")
            A("s_add_u32 s33, s33, s32")

    def cs_finish(item_s):
        A.vm_wait("hw")
        for j in range(7):
            for q in range(4):
                src = 132 + 4 * j + q
                if j == 0:
                    A(f"v_lshlrev_b32 {v(160+2*q)}, 16, {v(src)}")
                    A(f"v_and_b32 {v(161+2*q)}, 0xffff0000, {v(src)}")
                else:
                    A(f"v_lshlrev_b32 v168, 16, {v(src)}")
                    A(f"v_and_b32 v169, 0xffff0000, {v(src)}")
                    A(f"v_pk_add_f32 {v(160+2*q,2)}, {v(160+2*q,2)}, v[168:169]")
        A("s_nop 1")
        for q in range(4):
            A(f"v_permlane32_swap_b32 {v(160+2*q)}, {v(161+2*q)}")
        A("s_nop 0")
        for q in range(4):
            A(f"v_add_f32 {v(160+2*q)}, {v(160+2*q)}, {v(161+2*q)}")
        A("s_nop 1")
        for q in range(2):
            A(f"v_permlane16_swap_b32 {v(160+4*q)}, {v(162+4*q)}")
        A("s_nop 0")
        for q in range(2):
            A(f"v_add_f32 {v(160+4*q)}, {v(160+4*q)}, {v(162+4*q)}")
        A("s_nop 1")
        for q in range(2):
            A(f"v_add_f32_dpp {v(160+4*q)}, {v(160+4*q)}, {v(160+4*q)} row_ror:8 row_mask:0xf bank_mask:0xf")
        A("s_lshl_b32 s33, s19, 8")
        A("v_lshlrev_b32 v170, 1, v5")
        A(f"v_and_b32 v171, 1, {v(VG)}")
        A("v_lshl_add_u32 v170, v171, 3, v170")
        A(f"v_lshrrev_b32 v171, 1, {v(VG)}")
        A("v_lshl_add_u32 v170, v171, 2, v170")
        A("v_add_u32 v170, s33, v170")
        A("ds_write_b32 v170, v160")
        A("ds_write_b32 v170, v164 offset:16")
        A("s_waitcnt lgkmcnt(0)")
        A("s_barrier")
        l = A.newlabel("csw")
        A("s_cmp_lg_u32 s19, 0")
        A(f"s_cbranch_scc1 {l}")
        A(f"v_lshlrev_b32 v170, 2, {v(VL)}")
        for w in range(8):
            A(f"ds_read_b32 {v(160+w)}, v170 offset:{256*w}")
        A("s_waitcnt lgkmcnt(0)")
        for w in range(1, 8):
            A(f"v_add_f32 v160, v160, {v(160+w)}")
        A(f"s_lshl_b32 s33, {item_s}, 8")
        A(f"s_add_u32 s33, s33, {WS_CS}")
        A(f"buffer_store_dword v160, v170, s[28:31], s33 offen{SC}")
        A.label(l)

    def helper_pf():
        A("s_load_dwordx2 s[62:63], s[0:1], 16")
        A("s_load_dwordx4 s[64:67], s[0:1], 40")
        A("s_load_dwordx2 s[68:69], s[0:1], 56")
        A("s_lshl_b32 s60, s14, 3")
        A("s_add_u32 s60, s60, s19")
        A("s_lshl_b32 s60, s60, 10")
        A("s_waitcnt lgkmcnt(0)")
        for lo, size in ((64, D * D * 2), (66, D * F * 2), (62, D * D * 2), (68, D * F * 2)):
            A.srd(72, lo, lo + 1, size)
            for off in range(0, size, 262144):
                A(f"s_add_u32 s61, s60, {off}")
                A(f"buffer_load_dwordx4 v[204:207], {v(L16)}, s[72:75], s61 offen")

    cs_setup("s14")
    for j in range(7):
        A.vmem(f"buffer_load_dwordx4 {v(GB_+4*j,4)}, v5, s[48:51], 0 offen offset:{128*j}", "hg")
    if PFSM:
        A("s_lshl_b32 s33, s14, 3")
        A("s_add_u32 s33, s33, s19")
        A("s_lshl_b32 s33, s33, 11")
        A(f"s_add_u32 s33, s33, {WS_FLAG}")
        for q in range(2):
            A.vmem(f"buffer_load_dwordx4 v[204:207], {v(L16)}, s[28:31], s33 offen offset:{1024*q}", "pf")
    lt = A.newlabel("tok")
    A("s_or_b32 s85, s14, s19")
    A("s_cmp_lg_u32 s85, 0")
    A(f"s_cbranch_scc1 {lt}")
    A("s_or_b32 s85, s82, 1")
    A("v_mov_b32 v252, 0")
    A("v_mov_b32 v253, s85")
    A("s_mov_b64 exec, 1")
    A(f"global_store_dword v252, v253, s[56:57]{SC}")
    A("s_mov_b64 exec, -1")
    A.label(lt)
    if STAMPS:
        NST[0] -= 1
        stamp(A)
    if PFH == "1":
        A.vm_wait("hg")
        helper_pf()
    A.vm_wait("hx")
    for j in range(28):
        A(f"v_lshlrev_b32 {v(FB_+2*j)}, 16, {v(XB_+j)}")
        A(f"v_and_b32 {v(FB_+2*j+1)}, 0xffff0000, {v(XB_+j)}")
    A(f"v_pk_add_f32 v[128:129], {v(FB_,2)}, {v(FB_+2,2)}")
    for j in range(2, 28):
        A(f"v_pk_add_f32 v[128:129], v[128:129], {v(FB_+2*j,2)}")
    A("v_add_f32 v128, v128, v129")
    red8(A, 128, 0)
    A(f"v_mul_f32 v128, {f32bits(1.0/448):#x}, v128")
    A("v_sub_f32 v172, 0, v128")
    A("v_mov_b32 v173, v172")
    for j in range(28):
        A(f"v_pk_add_f32 {v(174+2*(j&3),2)}, {v(FB_+2*j,2)}, v[172:173]")
        if j == 0:
            A(f"v_pk_mul_f32 v[182:183], {v(174,2)}, {v(174,2)}")
        else:
            A(f"v_pk_fma_f32 v[182:183], {v(174+2*(j&3),2)}, {v(174+2*(j&3),2)}, v[182:183]")
    A("v_add_f32 v129, v182, v183")
    red8(A, 129, 0)
    A(f"v_mul_f32 v129, {f32bits(1.0/448):#x}, v129")
    ln_finish(A, 128, 129)
    A("v_lshlrev_b32 v170, 3, v4")
    A(f"s_mov_b32 s33, {WS_LN1}")
    A("s_mov_b32 exec_lo, 0x01010101")
    A("s_mov_b32 exec_hi, 0x01010101")
    A.vmem(f"buffer_store_dwordx2 v[128:129], v170, s[28:31], s33 offen{SC}", "hst")
    A("s_mov_b64 exec, -1")
    cs_finish("s14")
    get_token(A)
    A("s_barrier")
    flag_store(A, 0)
    A.vm_restore([])
    if STAMPS:
        keep = NST[0]
        NST[0] = 20
        stamp(A)
        NST[0] = keep
    if PFH == "2":
        helper_pf()
    A("s_add_u32 s15, s14, 32")
    A("s_cmp_ge_u32 s15, 35")
    A("s_cbranch_scc1 h_no2")
    cs_setup("s15")
    cs_finish("s15")
    A.label("h_no2")
    for j in range(28):
        A(f"v_lshlrev_b32 v168, 16, {v(GB_+j)}")
        A(f"v_and_b32 v169, 0xffff0000, {v(GB_+j)}")
        A(f"v_pk_mul_f32 {v(FB_+2*j,2)}, {v(FB_+2*j,2)}, v[168:169]")
    for j in range(56):
        rbf(A, FB_ + j)
    A(f"v_pk_add_f32 v[128:129], {v(FB_,2)}, {v(FB_+2,2)}")
    for j in range(2, 28):
        A(f"v_pk_add_f32 v[128:129], v[128:129], {v(FB_+2*j,2)}")
    A("v_add_f32 v128, v128, v129")
    red8(A, 128, 0)
    rbf(A, 128)
    A(f"v_mul_f32 v128, {f32bits(-LOG2E):#x}, v128")
    A("v_exp_f32 v128, v128")
    A("s_nop 0")
    A("v_add_f32 v128, 1.0, v128")
    A("v_rcp_f32 v128, v128")
    A("s_nop 0")
    rbf(A, 128)
    A("v_lshlrev_b32 v170, 2, v4")
    A(f"s_mov_b32 s33, {WS_G}")
    A("s_mov_b32 exec_lo, 0x01010101")
    A("s_mov_b32 exec_hi, 0x01010101")
    A(f"buffer_store_dword v128, v170, s[28:31], s33 offen{SC}")
    A("s_mov_b64 exec, -1")
    A("s_waitcnt vmcnt(0)")
    A("s_barrier")
    flag_store(A, 1)
    A.label("p1_done")
    A.vm_restore(["x"])
    stamp(A)
    L_X2, L_KV = 57344, 163840 - 49152
    A("s_load_dwordx2 s[4:5], s[0:1], 0")
    A("s_load_dwordx2 s[6:7], s[0:1], 40")
    A("s_load_dwordx2 s[8:9], s[0:1], 48")
    A("s_and_b32 s14, s2, 7")
    A("s_lshr_b32 s15, s2, 3")
    small_decode(A)
    A("s_and_b32 s46, s19, 3")
    A("s_lshr_b32 s47, s19, 2")
    A("s_lshr_b32 s16, s15, 4")
    A("s_lshl_b32 s48, s14, 1")
    A("s_add_u32 s48, s48, s16")
    A("s_and_b32 s49, s15, 15")
    A(f"s_cmp_ge_u32 s2, {NWG}")
    A("s_cbranch_scc1 p2_now2")
    A(f"v_mov_b32 v5, {v(U896)}")
    l = A.newlabel("sw")
    A("s_bitcmp1_b32 s19, 1")
    A(f"s_cbranch_scc0 {l}")
    A(f"v_mov_b32 v5, {v(U896S)}")
    A.label(l)
    A("s_and_b32 s38, s19, 1")
    A("s_lshl_b32 s38, s38, 6")
    A("v_xor_b32 v5, s38, v5")
    A("s_lshl_b32 s38, s18, 7")
    A(f"s_mul_i32 s39, s19, {8*896}")
    A("s_add_u32 s38, s38, s39")
    A("s_lshl_b32 s39, s19, 10")
    A("s_waitcnt lgkmcnt(0)")
    A.srd(20, 4, 5, ACT_BYTES)
    A.srd(24, 6, 7, D * D * 2)
    A("s_barrier")
    for u in range(7):
        A("s_mov_b32 m0, s39")
        A("s_add_u32 s39, s39, 8192")
        A.vmem("buffer_load_dwordx4 v5, s[24:27], s38 offen lds", "w2")
        A(f"s_add_u32 s38, s38, {64*896}")
    A("s_waitcnt vmcnt(7)")
    A("s_barrier")
    flag_store(A, 0)
    if PFLATE:
        lp_ = A.newlabel("pfl")
        A("s_cmp_eq_u32 s19, 0")
        A(f"s_cbranch_scc1 {lp_}")
        A("s_mul_i32 s60, s2, 7")
        A("s_add_u32 s60, s60, s19")
        A("s_sub_u32 s60, s60, 1")
        A("s_lshl_b32 s60, s60, 10")
        for lo, size in ((66, D * F * 2), (68, D * F * 2), (62, D * D * 2)):
            A.srd(72, lo, lo + 1, size)
            A(f"buffer_load_dwordx4 v[204:207], {v(L16)}, s[72:75], s60 offen")
        A.label(lp_)
    if L2WARM:
        A("s_lshl_b32 s36, s15, 3")
        A("s_add_u32 s36, s36, s19")
        A(f"s_mul_i32 s36, s36, {2*F*2}")
        A("s_and_b32 s37, s14, 1")
        A("s_mul_i32 s37, s37, 1792")
        A("s_add_u32 s36, s36, s37")
        A.srd(68, 8, 9, D * F * 2)
        for q in range(2):
            A(f"buffer_load_dwordx4 {v(208+8*q,4)}, {v(L16)}, s[68:71], s36 offen")
            A("s_mov_b32 exec_hi, 0x0000ffff")
            A(f"buffer_load_dwordx4 {v(212+8*q,4)}, {v(L16)}, s[68:71], s36 offen offset:1024")
            A("s_mov_b32 exec_hi, -1")
            A(f"s_add_u32 s36, s36, {F*2}")
    A.label("p2_now2")

    def deps2():
        A(f"v_mul_u32_u24 v232, 5958, {v(VL)}")
        A("v_lshrrev_b32 v232, 16, v232")
        A("v_mul_u32_u24 v233, 11, v232")
        A(f"v_sub_u32 v233, {v(VL)}, v233")
        A("v_add_u32 v232, s49, v232")
        A("v_subrev_u32 v232, 2, v232")
        A("v_max_i32 v232, 0, v232")
        A("s_lshl_b32 s85, s17, 6")
        A(f"v_subrev_u32 v234, 33, {v(VL)}")
        A("v_lshrrev_b32 v235, 2, v234")
        A("v_mul_u32_u24 v235, 67, v235")
        A("v_add_u32 v235, s85, v235")
        A("v_subrev_u32 v235, 2, v235")
        A("v_max_i32 v235, 0, v235")
        A("v_min_i32 v235, 2047, v235")
        A("v_lshrrev_b32 v235, 7, v235")
        A("v_and_b32 v234, 3, v234")
        A("v_add_u32 v234, 10, v234")
        A(f"v_cmp_lt_u32 vcc, 32, {v(VL)}")
        A("s_nop 1")
        A("v_cndmask_b32 v232, v232, v235, vcc")
        A("v_cndmask_b32 v233, v233, v234, vcc")
        big_id(A, 252, 232, 233, 234)
        A(f"s_cmp_lt_u32 s2, {NWG}")
        A("s_cselect_b32 exec_hi, 0x1ff, 1")

    QF, C0, C16, FB, SCB, PB, TM, OA = 8, 12, 16, 20, 36, 104, 140, 160
    QK = 200
    AF, WFB, AC, XR, TB = 32, 64, 96, 112, 16
    A("s_mul_i32 s50, s48, 7")
    A("s_lshr_b32 s50, s50, 1")
    A("s_lshl_b32 s51, s49, 3")
    A("s_mul_i32 s52, s19, 3")
    A("s_add_u32 s52, s52, s51")
    A("s_sub_u32 s52, s52, 16")
    A("s_lshl_b32 s54, s50, 8")
    A("s_mul_i32 s55, s19, 3072")
    A(f"s_add_u32 s55, s55, {L_KV}")
    A("s_lshl_b32 s40, s48, 17")
    A(f"s_add_u32 s40, s40, {WS_V}")
    for j in range(3):
        A(f"s_add_i32 s41, s52, {j}")
        A("s_max_i32 s41, s41, 0")
        A(f"s_mul_i32 s{62+j}, s41, {RT_BYTES}")
        A(f"s_add_u32 s{62+j}, s{62+j}, s54")
        A(f"s_add_u32 s{62+j}, s{62+j}, {WS_K}")
        A("s_lshl_b32 s41, s41, 10")
        A(f"s_add_u32 s{65+j}, s41, s40")
    A("s_add_u32 s52, s51, s19")
    A(f"s_mul_i32 s52, s52, {RT_BYTES}")
    A("s_add_u32 s53, s52, s54")
    A("s_lshl_b32 s32, s17, 2")
    A("s_add_u32 s32, s32, s46")
    A(f"s_mul_i32 s33, s32, {RT_BYTES}")
    A(f"s_mul_i32 s34, s47, {7*1024}")
    A("s_add_u32 s34, s34, s33")
    A(f"s_add_u32 s34, s34, {WS_HS}")
    A("s_add_u32 s35, s34, 4096")
    poll(A, deps2, "s_waitcnt vmcnt(0)")
    A.vm_restore([])
    stamp(A)
    A(f"s_cmp_ge_u32 s2, {NWG}")
    A("s_cbranch_scc1 p2_noa")
    for u in range(7):
        A.vmem(f"buffer_load_dwordx4 {v(AF+4*u,4)}, {v(L16)}, s[28:31], s{34+u//4} offen offset:{1024*(u%4)}{SL}", ("a", u))
    A.label("p2_noa")
    for j in range(3):
        A(f"s_add_u32 m0, s55, {1024*j}")
        A("s_nop 0")
        A.vmem(f"buffer_load_dwordx4 {v(L16)}, s[28:31], s{62+j} offen{SL} lds", "kv")
        A(f"s_add_u32 m0, s55, {24576+1024*j}")
        A("s_nop 0")
        A.vmem(f"buffer_load_dwordx4 {v(L16)}, s[28:31], s{65+j} offen{SL} lds", "kv")
    A.vmem(f"buffer_load_dwordx4 {v(QK,4)}, {v(L16)}, s[28:31], s53 offen{SL}", "kv")
    A(f"s_cmp_ge_u32 s2, {NWG}")
    A("s_cbranch_scc1 p2_attn")
    A("s_lshl_b32 s40, s32, 4")
    A(f"v_add_u32 v8, s40, {v(VI)}")
    A("v_mul_u32_u24 v9, 896, v8")
    A(f"v_lshrrev_b32 v10, 1, {v(CSO)}")
    A("v_xor_b32 v11, 8, v10")
    A("v_add_u32 v11, v11, v9")
    A("v_add_u32 v9, v10, v9")
    A("s_lshl_b32 s40, s18, 7")
    A("s_lshl_b32 s41, s47, 6")
    A("s_add_u32 s40, s40, s41")
    A.vmem(f"buffer_load_dwordx2 {v(XR,2)}, v9, s[20:23], s40 offen", "x")
    A.vmem(f"buffer_load_dwordx2 {v(XR+2,2)}, v11, s[20:23], s40 offen", "x")
    A(f"s_mul_i32 s41, s47, {7*4096}")
    for t in range(4):
        A(f"v_add_u32 {v(TB+t)}, s41, {v(PB4+t)}")
    for r in unit_reads(TB, 0, WFB):
        A(r)
    A("s_xor_b32 s41, s19, 4")
    A("s_lshl_b32 s41, s41, 11")
    A(f"s_add_u32 s41, s41, {L_X2}")
    A(f"v_add_u32 v12, s41, {v(L16)}")
    A("s_lshl_b32 s41, s19, 11")
    A(f"s_add_u32 s41, s41, {L_X2}")
    A(f"v_add_u32 v13, s41, {v(L16)}")
    for u in range(7):
        A.vm_wait(("a", u), " lgkmcnt(0)")
        rd = unit_reads(TB, (u + 1) * 4096, WFB + 16 * ((u + 1) & 1)) if u < 6 else []
        for t in range(4):
            c = v(AC + 4 * t, 4)
            A(f"v_mfma_f32_16x16x32_bf16 {c}, {v(WFB+16*(u&1)+4*t,4)}, {v(AF+4*u,4)}, {c if u else 0}")
            for r in rd[4*t:4*t+4] if t < 2 else []:
                A(r)
    A.vm_wait("x")
    XU = 32
    for j in range(4):
        A(f"v_lshlrev_b32 {v(XU+2*j)}, 16, {v(XR+j)}")
        A(f"v_and_b32 {v(XU+2*j+1)}, 0xffff0000, {v(XR+j)}")
    A("s_cmp_eq_u32 s47, 0")
    A("s_cbranch_scc1 p2_x0")
    for r in range(8):
        A(f"v_swap_b32 {v(AC+r)}, {v(AC+8+r)}")
    A.label("p2_x0")
    for t in range(2):
        A(f"ds_write_b128 v12, {v(AC+8+4*t,4)} offset:{1024*t}")
    A("s_lshl_b32 s40, s18, 11")
    A("s_add_u32 s40, s40, s33")
    A("s_lshl_b32 s41, s47, 10")
    A("s_add_u32 s40, s40, s41")
    A(f"s_add_u32 s40, s40, {WS_X1}")
    A("s_waitcnt lgkmcnt(0)")
    A("s_barrier")
    for t in range(2):
        A(f"ds_read_b128 {v(AC+8+4*t,4)}, v13 offset:{1024*t}")
    A("s_waitcnt lgkmcnt(0)")
    for r in range(8):
        A(f"v_add_f32 {v(AC+r)}, {v(AC+r)}, {v(AC+8+r)}")
    for r in range(8):
        A(f"v_add_f32 {v(AC+r)}, {v(AC+r)}, {v(XU+r)}")
    for j in range(4):
        A(f"v_cvt_pk_bf16_f32 {v(X1K+j)}, {v(AC+2*j)}, {v(AC+2*j+1)}")
    A.vmem(f"buffer_store_dwordx4 {v(X1K,4)}, {v(L16)}, s[28:31], s40 offen{SC}", "st")
    for r in range(8):
        rbf(A, AC + r)
    A(f"v_add_f32 v12, {v(AC)}, {v(AC+1)}")
    for r in range(2, 8):
        A(f"v_add_f32 v12, v12, {v(AC+r)}")
    xlane_g(A, "v_add_f32", 12, 14, 15)
    A(f"v_mul_f32 v14, {f32bits(1.0/32):#x}, v12")
    for r in range(8):
        A(f"v_sub_f32 {v(AC+r)}, {v(AC+r)}, v14")
    A(f"v_mul_f32 v13, {v(AC)}, {v(AC)}")
    for r in range(1, 8):
        A(f"v_fmac_f32 v13, {v(AC+r)}, {v(AC+r)}")
    xlane_g(A, "v_add_f32", 13, 14, 15)
    A("v_lshlrev_b32 v8, 7, v8")
    A("s_lshl_b32 s40, s18, 4")
    A("s_lshl_b32 s41, s47, 3")
    A("s_add_u32 s40, s40, s41")
    A(f"s_add_u32 s40, s40, {WS_ST}")
    A("s_mov_b64 exec, 0xffff")
    A.vmem(f"buffer_store_dwordx2 v[12:13], v8, s[28:31], s40 offen{SC}", "st")
    A("s_mov_b64 exec, -1")
    A("s_branch p2_attn2")
    A.label("p2_attn")
    A("s_waitcnt vmcnt(0)")
    A("s_barrier")
    A.label("p2_attn2")
    A.vm_restore(["st"])
    stamp(A)
    A("s_load_dwordx4 s[4:7], s[0:1], 40")
    A("s_load_dwordx2 s[8:9], s[0:1], 56")
    A("s_load_dwordx2 s[10:11], s[0:1], 16")
    A("s_lshl_b32 s61, s19, 10")
    A(f"s_add_u32 s61, s61, {L_KV}")
    A(f"v_add_u32 v4, s61, {v(L16)}")
    for i in range(3):
        A(f"ds_read_b128 {v(FB+4*(i%4),4)}, v4 offset:{1024*i}")
    A(f"v_mov_b32 {v(TM+1)}, {NEGBIG:#x}")
    for r in range(4):
        A(f"v_lshl_add_u32 {v(TM)}, {v(VG)}, 2, {r}")
        A(f"v_cmp_gt_u32 vcc, {v(TM)}, {v(VI)}")
        A(f"v_mov_b32 {v(QF+r)}, {v(QK+r)}")
        A("s_nop 0")
        A(f"v_cndmask_b32 {v(C0+r)}, {v(TM+1)}, 0, vcc")
        A(f"v_cndmask_b32 {v(C16+r)}, 0, {v(TM+1)}, vcc")
    A("s_lshr_b32 s53, s48, 1")
    A("s_mul_i32 s53, s53, 7")
    A("s_add_u32 s53, s53, 3")
    A("s_lshr_b32 s53, s53, 1")
    A("s_xor_b32 s53, s53, s48")
    A("s_bitcmp1_b32 s48, 0")
    A("s_cselect_b32 exec_lo, 0xffff, 0")
    A("s_cselect_b32 exec_hi, 0, 0xffff0000")
    A("s_bitcmp1_b32 s53, 0")
    A("s_cbranch_scc1 p2_q01")
    A(f"v_mov_b32 {v(QF+2)}, 0")
    A(f"v_mov_b32 {v(QF+3)}, 0")
    A("s_branch p2_qz")
    A.label("p2_q01")
    A(f"v_mov_b32 {v(QF)}, 0")
    A(f"v_mov_b32 {v(QF+1)}, 0")
    A.label("p2_qz")
    A("s_mov_b64 exec, -1")
    A("s_add_u32 s61, s51, s19")
    A("s_sub_i32 s61, 16, s61")
    A("s_cmp_gt_i32 s61, 0")
    A("s_cbranch_scc1 p2_qkslow")
    for slow in range(2):
        if slow:
            A.label("p2_qkslow")
        for i in range(17):
            if i + 3 < 17:
                A(f"ds_read_b128 {v(FB+4*((i+3)%4),4)}, v4 offset:{1024*(i+3)}")
            A(f"s_waitcnt lgkmcnt({min(3, 16-i)})")
            c = v(C0, 4) if i == 0 else (v(C16, 4) if i == 16 else "0")
            if slow and i < 16:
                l1, l2 = A.newlabel("k2i"), A.newlabel("k2j")
                A(f"s_cmp_gt_i32 s61, {i}")
                A(f"s_cbranch_scc1 {l1}")
            A(f"v_mfma_f32_16x16x32_bf16 {v(SCB+4*i,4)}, {v(FB+4*(i%4),4)}, {v(QF,4)}, {c}")
            if slow and i < 16:
                A(f"s_branch {l2}")
                A.label(l1)
                for r in range(4):
                    A(f"v_mov_b32 {v(SCB+4*i+r)}, {NEGBIG:#x}")
                A.label(l2)
        if not slow:
            A("s_branch p2_qkdone")
    A.label("p2_qkdone")
    A("s_lshr_b32 s61, s19, 1")
    A("s_lshl_b32 s61, s61, 11")
    A(f"s_add_u32 s61, s61, {L_KV+24576}")
    A(f"v_add_u32 v5, s61, {v(L16)}")
    for j in range(2):
        A(f"ds_read_b128 {v(FB+4*j,4)}, v5 offset:{1024*j}")
    M = TM
    KL, NB = TM + 17, TM + 18
    A(f"v_max3_f32 {v(M)}, {v(SCB)}, {v(SCB+1)}, {v(SCB+2)}")
    A(f"v_max3_f32 {v(M+1)}, {v(SCB+3)}, {v(SCB+4)}, {v(SCB+5)}")
    idx, k = 6, 0
    while idx < 68:
        A(f"v_max3_f32 {v(M+k)}, {v(M+k)}, {v(SCB+idx)}, {v(SCB+idx+1)}")
        idx += 2
        k ^= 1
    A(f"v_max_f32 {v(M)}, {v(M)}, {v(M+1)}")
    xlane_g(A, "v_max_f32", M, M + 1, M + 2)
    A(f"v_mov_b32 {v(KL)}, {f32bits(SCALE*LOG2E):#x}")
    A(f"v_mul_f32 {v(NB)}, {f32bits(-SCALE*LOG2E):#x}, {v(M)}")
    A("s_mul_i32 s60, s48, 7")
    A(f"v_add_u32 v6, s60, {v(VG)}")
    A(f"v_and_b32 {v(TM)}, 1, v6")
    A("v_lshrrev_b32 v6, 1, v6")
    A("v_lshlrev_b32 v6, 8, v6")
    A(f"v_lshl_add_u32 v6, {v(TM)}, 3, v6")
    A(f"v_lshl_add_u32 v6, {v(VI)}, 4, v6")
    A(f"s_add_u32 s60, s52, {WS_O}")
    big_decode(A)
    PITCH = F * 2
    A(f"s_mul_i32 s34, s40, {8*PITCH}")
    A("s_lshl_b32 s35, s33, 7")
    A("s_add_u32 s34, s34, s35")
    A(f"s_mov_b32 s38, {32*PITCH}")
    A("s_and_b32 s42, s40, 2")
    A("s_lshl_b32 s42, s42, 1")
    gen3.V_WD = 204
    unit_dma_voff(A, 204, "s43", "s42", PITCH, 205, 206)
    A(f"v_cmp_lt_u32 vcc, 6, {v(VL)}")
    A("s_lshl_b32 s85, s17, 1")
    A("v_mov_b32 v232, s85")
    A("v_addc_co_u32 v232, vcc, 0, v232, vcc")
    A(f"v_cmp_lt_u32 vcc, 6, {v(VL)}")
    A(f"v_subrev_u32 v233, 7, {v(VL)}")
    A("s_nop 0")
    A(f"v_cndmask_b32 v233, {v(VL)}, v233, vcc")
    A("v_and_b32 v234, 3, v232")
    A("v_mul_u32_u24 v234, 7, v234")
    A("v_add_u32 v234, v234, v233")
    A("v_lshrrev_b32 v232, 2, v232")
    A("v_lshl_add_u32 v232, v234, 3, v232")
    A("s_add_u32 s85, s33, 7")
    A("s_and_b32 s85, s85, 31")
    A(f"s_add_u32 s85, s85, {NWG}")
    A("v_writelane_b32 v232, s85, 14")
    A("v_lshlrev_b32 v232, 7, v232")
    A("v_add_u32 v232, 32768, v232")
    sp3 = Spec(A, 232, 0x7fff, lambda tag: None)
    A("s_lshl_b32 s35, s17, 3")
    A("s_add_u32 s35, s35, s19")
    A(f"s_mul_i32 s35, s35, {RT_BYTES}")
    A(f"s_add_u32 s35, s35, {WS_X1}")
    A(f"v_mov_b32 {v(V_XD)}, {v(L16)}")
    A.srd(20, 58, 59, WS_SIZE)
    A("s_mov_b32 s98, 0")

    def early_x():
        lx = A.newlabel("ex")
        A.vm_wait("sflag")
        A(f"v_cmp_ne_u32 s[96:97], s{TOK}, v253")
        A(f"s_cmp_ge_u32 s2, {NWG}")
        A(f"s_cbranch_scc1 {lx}")
        A("s_and_b64 s[96:97], s[96:97], 0x7fff")
        A(f"s_cbranch_scc1 {lx}")
        snap_x = A.vm_snapshot()
        gen3.XSC[0] = SL
        for ds in range(2):
            big_dma_parts(A, ds, 2048, V_XD)[0]()
        gen3.XSC[0] = ""
        A.vm_restore(snap_x)
        A("s_mov_b32 s98, 1")
        A.label(lx)
    A.srd(24, 6, 7, D * F * 2)
    A("s_waitcnt vmcnt(0)")
    A("s_barrier")
    A.vm_restore([])
    A(f"s_cmp_ge_u32 s2, {NWG}")
    A("s_cbranch_scc1 p2_now3")
    flag_store(A, 1)
    for ds in range(3):
        for p in big_dma_parts(A, ds, 2048, V_XD)[1:]:
            p()
    if L2WARM:
        A("s_lshl_b32 s44, s15, 3")
        A("s_add_u32 s44, s44, s19")
        A("s_mul_i32 s45, s44, 1792")
        A("s_mul_i32 s44, s44, 7168")
        A.srd(68, 8, 9, D * F * 2)
        A.srd(72, 10, 11, D * D * 2)
        for q in range(7):
            A.vmem(f"buffer_load_dwordx4 v[208:211], {v(L16)}, s[68:71], s44 offen offset:{1024*(q%4)}", "warm")
            if q == 3:
                A("s_add_u32 s44, s44, 4096")
        for q in range(2):
            A.vmem(f"buffer_load_dwordx4 v[208:211], {v(L16)}, s[72:75], s45 offen offset:{896*q}", "warm")
    A.label("p2_now3")
    A("s_bitcmp1_b32 s19, 0")
    A("s_cbranch_scc1 p2_odd")
    for par in range(2):
        if par:
            A.label("p2_odd")
        zs = 17 if par == 0 else 0
        A(f"v_mov_b32 {v(PB+2*zs)}, 0")
        A(f"v_mov_b32 {v(PB+2*zs+1)}, 0")
        nread = 2
        if par:
            A.vm_restore(snap_att)
        snap_att = A.vm_snapshot()
        for c in range(9):
            if c == SP3C:
                sp3.stage1()
            if c == SP3C + 2:
                early_x()
            els = []
            for half in range(2):
                slot = 2 * c + half
                if slot != zs:
                    els += [SCB + 4 * (slot - par) + r for r in range(4)]
            for e in els:
                A(f"v_fma_f32 {v(e)}, {v(e)}, {v(KL)}, {v(NB)}")
            for e in els:
                A(f"v_exp_f32 {v(e)}, {v(e)}")
            while nread < min(18, 2 * c + 4):
                A(f"ds_read_b128 {v(FB+4*(nread%4),4)}, v5 offset:{1024*nread}")
                nread += 1
            if c >= 7:
                A("s_nop 0")
            for half in range(2):
                slot = 2 * c + half
                if slot == zs:
                    continue
                i = slot - par
                A(f"v_cvt_pk_bf16_f32 {v(PB+2*slot)}, {v(SCB+4*i)}, {v(SCB+4*i+1)}")
                A(f"v_cvt_pk_bf16_f32 {v(PB+2*slot+1)}, {v(SCB+4*i+2)}, {v(SCB+4*i+3)}")
            A(f"s_waitcnt lgkmcnt({nread - (2*c+2)})")
            A("s_nop 0")
            for dt in range(2):
                A(f"v_mfma_f32_16x16x32_bf16 {v(OA+4*dt,4)}, {v(FB+4*((2*c+dt)%4),4)}, {v(PB+4*c,4)}, {v(OA+4*dt,4) if c else 0}")
        if par == 0:
            A("s_branch p2_out")
    A.label("p2_out")
    A(f"v_mov_b32 {v(TM)}, 0")
    A("s_lshl_b32 s42, s40, 12")
    A(f"v_add_u32 {v(V_XR[0])}, s42, {v(L16)}")
    A(f"v_add_u32 {v(V_XR[1])}, {2*SLOT}, {v(V_XR[0])}")
    A("s_mov_b32 exec_lo, 0")
    A("s_mov_b32 exec_hi, 0xffff0000")
    A(f"v_mov_b32 {v(TM)}, {v(OA+4)}")
    A("s_mov_b64 exec, -1")
    xlane_g(A, "v_add_f32", TM, TM + 1, TM + 2)
    A(f"v_rcp_f32 {v(TM)}, {v(TM)}")
    A("s_nop 0")
    for r in range(8):
        A(f"v_mul_f32 {v(OA+r)}, {v(TM)}, {v(OA+r)}")
    for r in range(4):
        A(f"v_cvt_pk_bf16_f32 {v(TM+4+r)}, {v(OA+2*r)}, {v(OA+2*r+1)}")
    A.vmem(f"buffer_store_dwordx2 {v(TM+4,2)}, v6, s[28:31], s60 offen{SC}", "ost")
    ex48(A)
    A.vmem(f"buffer_store_dwordx2 {v(TM+6,2)}, v6, s[28:31], s60 offen offset:512{SC}", "ost")
    exall(A)
    l3 = A.newlabel("p3go")
    A(f"s_cmp_lt_u32 s2, {NWG}")
    A(f"s_cbranch_scc1 {l3}")
    A("s_waitcnt vmcnt(0)")
    A("s_barrier")
    flag_store(A, 2)
    A("s_endpgm")
    A.label(l3)
    big_bases(A, PB4)
    A("s_lshl_b32 s39, s17, 3")
    A("s_lshl_b32 s42, s40, 1")
    A("s_add_u32 s39, s39, s42")
    A("s_lshl_b32 s42, s39, 4")
    A(f"v_add_u32 v24, s42, {v(VI)}")
    A("v_lshlrev_b32 v24, 7, v24")
    A(f"v_lshl_add_u32 v24, {v(VG)}, 5, v24")
    A(f"s_mov_b32 s46, {WS_ST}")
    A("s_lshl_b32 s45, s33, 8")
    A(f"s_add_u32 s45, s45, {WS_CS + 7*256}")
    A(f"v_xor_b32 v203, 16, {v(CSO)}")
    stamp(A)
    l = A.newlabel("sp3")
    A("s_cmp_eq_u32 s98, 1")
    A(f"s_cbranch_scc1 {l}")
    A("s_mov_b64 exec, 0x7fff")
    spin(A, 232)
    gen3.XSC[0] = SL
    for ds in range(2):
        big_dma_parts(A, ds, 2048, V_XD)[0]()
    A.label(l)
    stamp(A)
    STR = 180

    def h3a():
        for j in range(2):
            for q in range(2):
                A.vmem(f"buffer_load_dwordx4 {v(STR+8*j+4*q,4)}, v24, s[28:31], s46 offen offset:{2048*j+16*q}{SL}", "st")
        for t in range(4):
            A.vmem(f"buffer_load_dwordx4 {v(CS+4*t,4)}, {v(203 if t & 1 else CSO)}, s[28:31], s45 offen offset:{128*(t>>1)}{SL}", "st")
        A("s_load_dwordx2 s[4:5], s[0:1], 16")
        A("s_load_dwordx2 s[6:7], s[0:1], 56")
        A("s_load_dwordx2 s[8:9], s[0:1], 72")

    RS4, PF4 = 6, 4
    RING = RS4 * 4096
    L4_WO, L4_R = 0, 57344
    OFB = 204
    def o_loads(tag):
        for u in range(7):
            A.vmem(f"buffer_load_dwordx4 {v(OFB+4*u,4)}, {v(L16)}, s[28:31], s{62+u//4} offen offset:{1024*(u%4)}{SL}", tag)
        A.vmem(f"buffer_load_dword v247, v246, s[28:31], s64 offen{SL}", tag)

    sp4 = Spec(A, 245, 0x1ffff, o_loads)

    def h3b():
        A("s_mul_i32 s16, s15, 9363")
        A("s_lshr_b32 s16, s16, 16")
        A("s_mul_i32 s69, s16, 7")
        A("s_sub_u32 s69, s15, s69")
        A("s_lshl_b32 s68, s14, 2")
        A("s_add_u32 s68, s68, s16")
        A(f"v_and_b32 v245, 1, {v(VL)}")
        A("v_lshlrev_b32 v245, 4, v245")
        A("s_lshr_b32 s85, s68, 1")
        A("v_add_u32 v245, s85, v245")
        A(f"v_lshrrev_b32 v246, 1, {v(VL)}")
        A("v_lshl_add_u32 v245, v245, 3, v246")
        A("v_lshlrev_b32 v245, 7, v245")
        A("v_add_u32 v245, 65536, v245")
        A(f"s_add_u32 s85, s68, {NWG}")
        A("s_lshl_b32 s85, s85, 7")
        A("s_add_u32 s85, s85, 32768")
        A("v_writelane_b32 v245, s85, 16")
        A("s_lshl_b32 s70, s68, 2")
        A("s_add_u32 s70, s70, s40")
        A(f"s_mul_i32 s62, s70, {RT_BYTES}")
        A(f"s_mul_i32 s63, s41, {7*1024}")
        A("s_add_u32 s62, s62, s63")
        A(f"s_add_u32 s62, s62, {WS_O}")
        A("s_add_u32 s63, s62, 4096")
        A("s_lshl_b32 s85, s70, 4")
        A(f"v_add_u32 v244, s85, {v(VI)}")
        A("v_lshlrev_b32 v246, 2, v244")
        A(f"s_mov_b32 s64, {WS_G}")
        sp4.stage1()

    def h3c():
        A.vm_wait("st")
        A("s_mov_b32 exec_lo, 0")
        A("s_mov_b32 exec_hi, 0xffff0000")
        for j in range(2):
            for r in range(4, 8):
                A(f"v_mov_b32 {v(STR+8*j+r)}, 0")
        A("s_mov_b64 exec, -1")
        for j in range(2):
            b = STR + 8 * j
            m, q = 198, 199
            A(f"v_add_f32 {v(m)}, {v(b)}, {v(b+2)}")
            A(f"v_add_f32 {v(q)}, {v(b+4)}, {v(b+6)}")
            A(f"v_add_f32 {v(m)}, {v(m)}, {v(q)}")
            xlane_g(A, "v_add_f32", m, 196, 197)
            A(f"v_mul_f32 {v(m)}, {f32bits(1.0/448):#x}, {v(m)}")
            A(f"v_add_f32 {v(q)}, {v(b+1)}, {v(b+3)}")
            A(f"v_add_f32 {v(q)}, {v(q)}, {v(b+5)}")
            A(f"v_add_f32 {v(q)}, {v(q)}, {v(b+7)}")
            for r in (0, 2, 4, 6):
                A(f"v_mul_f32 {v(b+r)}, {f32bits(1.0/32):#x}, {v(b+r)}")
                A(f"v_sub_f32 {v(b+r)}, {v(b+r)}, {v(m)}")
            A(f"v_mul_f32 {v(b)}, {v(b)}, {v(b)}")
            A(f"v_fmac_f32 {v(b)}, {v(b+2)}, {v(b+2)}")
            ex48(A)
            A(f"v_fmac_f32 {v(b)}, {v(b+4)}, {v(b+4)}")
            A(f"v_fmac_f32 {v(b)}, {v(b+6)}, {v(b+6)}")
            exall(A)
            A(f"v_fmamk_f32 {v(q)}, {v(b)}, {f32bits(32.0):#x}, {v(q)}")
            xlane_g(A, "v_add_f32", q, 196, 197)
            A(f"v_mul_f32 {v(q)}, {f32bits(1.0/448):#x}, {v(q)}")
            ln_finish(A, m, q)
            row_consts(A, 140 + 8 * j, m, q)
        A(f"s_mul_i32 s42, s39, {H3_RT_BYTES}")
        A("s_lshl_b32 s43, s33, 11")
        A("s_add_u32 s42, s42, s43")
        A(f"s_add_u32 s42, s42, {WS_H3}")
        A(f"s_add_u32 s43, s42, {H3_RT_BYTES}")

    consts = (148, 150, 152)
    big_mainloop(A, False, 2048, V_XD, False, wdone=(0, 1, 2), hooks={4: lambda: flag_store(A, 2), 7: h3a, 9: h3b, 11: h3c})
    gen3.XSC[0] = ""
    stamp(A)
    A(f"v_mov_b32 v6, {v(U896)}")
    A("s_and_b32 s85, s19, 1")
    A("s_lshl_b32 s85, s85, 6")
    A("v_xor_b32 v6, s85, v6")
    A("v_xor_b32 v7, 64, v6")
    A("s_lshl_b32 s66, s69, 7")
    A(f"s_mul_i32 s65, s19, {7*8*896}")
    A("s_add_u32 s65, s65, s66")
    A("s_mul_i32 s67, s19, 7168")
    A.srd(20, 4, 5, D * D * 2)
    A("s_barrier")
    fill3 = []
    for u in range(7):
        def f_(u=u):
            A("s_mov_b32 m0, s67")
            A("s_add_u32 s67, s67, 1024")
            A.vmem(f"buffer_load_dwordx4 v{6+(u&1)}, s[20:23], s65 offen lds", "wo")
            A(f"s_add_u32 s65, s65, {8*896}")
        fill3.append(f_)

    def f_flag():
        A.vm_wait("sflag")
        A(f"v_cmp_ne_u32 s[96:97], s{TOK}, v253")
    fill3.append(f_flag)
    for u in range(7):
        fill3.append(lambda u=u: A.vmem(f"buffer_load_dwordx4 {v(OFB+4*u,4)}, {v(L16)}, s[28:31], s{62+u//4} offen offset:{1024*(u%4)}{SL}", "sdata"))
    fill3.append(lambda: A.vmem(f"buffer_load_dword v247, v246, s[28:31], s64 offen{SL}", "sdata"))

    class Inter:
        def __init__(self, n):
            self.n, self.c = n, 0

        def __call__(self, line):
            A(line)
            self.c += 1
            if self.c % self.n == 0 and fill3:
                fill3.pop(0)()

    def st3(j, pk):
        for tp in range(2):
            A.vmem(f"buffer_store_dwordx4 {v(pk+4*tp,4)}, {v(L16)}, s[28:31], s{42+j} offen offset:{1024*tp}{SC}", "hst")

    gelu_epi(Inter(FILLN), CS, (140, 148), 48, 32, st3)
    while fill3:
        fill3.pop(0)()
    stamp(A)
    NA = PF4 + 2
    AFB = 32
    WFB = AFB + NA * 8
    ACB = WFB + 32
    AWO = ACB + 32
    WOF = AWO + 16
    assert WOF + 32 <= OFB
    GR = 247
    TB, TO = 20, 24
    af = lambda sx, j: AFB + ((sx % NA) * 2 + j) * 4
    ac = lambda j, t: v(ACB + (j * 4 + t) * 4, 4)
    for m in range(1, 4):
        A(f"v_add_u32 v{8+m}, {4096*m}, {v(L16)}")
    A(f"v_mov_b32 v8, {v(L16)}")
    A(f"v_mov_b32 v4, {v(U896)}")
    l = A.newlabel("sw")
    A("s_cmp_eq_u32 s41, 0")
    A(f"s_cbranch_scc1 {l}")
    A(f"v_mov_b32 v4, {v(U896S)}")
    A.label(l)
    A("v_xor_b32 v5, 64, v4")
    A("s_lshl_b32 s32, s68, 2")
    A("s_lshl_b32 s33, s41, 1")
    A("s_add_u32 s32, s32, s33")
    A(f"s_mul_i32 s32, s32, {H3_RT_BYTES}")
    A(f"s_mul_i32 s33, s40, {14*1024}")
    A("s_add_u32 s32, s32, s33")
    A(f"s_add_u32 s32, s32, {WS_H3}")
    A(f"s_add_u32 s33, s32, {H3_RT_BYTES}")
    A(f"s_mul_i32 s36, s40, {448*896}")
    A(f"s_mul_i32 s34, s41, {16*896}")
    A("s_add_u32 s36, s36, s34")
    A("s_add_u32 s36, s36, s66")
    A(f"s_mul_i32 s35, s40, {RING}")
    A(f"s_add_u32 s35, s35, {L4_R}")
    A("s_lshl_b32 s37, s41, 11")
    A("s_add_u32 s37, s37, s35")
    A(f"s_mul_i32 s44, s41, {7*4096}")
    for t in range(4):
        A(f"v_add_u32 {v(TO+t)}, s44, {v(PB4+t)}")
        A(f"v_add_u32 {v(TB+t)}, s35, {v(PB4+t)}")
    A.srd(24, 6, 7, F * D * 2)
    A.srd(48, 8, 9, ACT_BYTES)
    TB2 = 28
    if R9:
        A("s_mul_i32 s72, s40, 12288")
        A("s_lshl_b32 s71, s41, 11")
        A("s_add_u32 s71, s71, s72")
        for t in range(4):
            A(f"v_add_u32 {v(TB2+t)}, s72, {v(PB4+t)}")

    def w_reads(t):
        dst = WFB + 16 * (t & 1)
        if R9:
            if 6 <= t < 9:
                return unit_reads(TB2, (t - 6) * 4096, dst)
            return unit_reads(TB, (t - 9 if t >= 9 else t) * 4096, dst)
        return unit_reads(TB, (t % RS4) * 4096, dst)

    ROT = os.environ.get("ROT", "0") == "1"
    if ROT:
        A("s_lshl_b32 s72, s69, 1")
        A(f"s_add_u32 s73, s36, {14*32*896}")
        A(f"s_mul_i32 s74, s72, {32*896}")
        A("s_add_u32 s36, s36, s74")
        A(f"s_add_u32 s75, s32, {14*1024}")
        A("s_lshl_b32 s74, s72, 10")
        A("s_add_u32 s32, s32, s74")

    def w_parts(sx):
        parts = []
        for j in range(2):
            def p(j=j):
                if R9 and 6 <= sx < 9:
                    A(f"s_add_u32 m0, s71, {(sx-6)*4096 + j*1024}")
                else:
                    A(f"s_add_u32 m0, s37, {((sx-9 if sx >= 9 else sx) if R9 else sx%RS4)*4096 + j*1024}")
                A("s_nop 0")
                A.vmem(f"buffer_load_dwordx4 v{4+j}, s[24:27], s36 offen lds", ("w", sx))
                A(f"s_add_u32 s36, s36, {8*896 if j == 0 else 24*896}")
                if ROT and j == 1:
                    A(f"s_sub_u32 s74, s36, {14*32*896}")
                    A("s_cmp_ge_u32 s36, s73")
                    A("s_cselect_b32 s36, s74, s36")
            parts.append(p)
        return parts

    def a_parts(sx):
        if ROT:
            def p0():
                A(f"s_add_u32 s33, s32, {H3_RT_BYTES}")
                A.vmem(f"buffer_load_dwordx4 {v(af(sx,0),4)}, v8, s[28:31], s32 offen{SL}", ("ld", sx))

            def p1():
                A.vmem(f"buffer_load_dwordx4 {v(af(sx,1),4)}, v8, s[28:31], s33 offen{SL}", ("ld", sx))
                A("s_add_u32 s32, s32, 1024")
                A(f"s_sub_u32 s74, s32, {14*1024}")
                A("s_cmp_ge_u32 s32, s75")
                A("s_cselect_b32 s32, s74, s32")
            return [p0, p1]
        return [lambda j=j: A.vmem(f"buffer_load_dwordx4 {v(af(sx,j),4)}, v{8+sx//4}, s[28:31], s{32+j} offen offset:{1024*(sx%4)}{SL}", ("ld", sx)) for j in range(2)]

    sp4.finish()
    A("s_barrier")
    for r in unit_reads(TO, 0, WOF):
        A(r)
    for u in range(7):
        A("s_waitcnt lgkmcnt(0)")
        rd = unit_reads(TO, (u + 1) * 4096, WOF + 16 * ((u + 1) & 1)) if u < 6 else []
        for t in range(4):
            c = v(AWO + 4 * t, 4)
            A(f"v_mfma_f32_16x16x32_bf16 {c}, {v(WOF+16*(u&1)+4*t,4)}, {v(OFB+4*u,4)}, {c if u else 0}")
            for r in rd[4*t:4*t+4] if t < 2 else []:
                A(r)
            if t >= 2 and u >= 1:
                w_parts(u - 1)[t - 2]()
        if u == 1:
            A.vm_wait("hst")
            A("s_barrier")
            flag_store(A, 3)
    if R9:
        A("s_barrier")
        for t in (6, 7, 8):
            for p in w_parts(t):
                p()
    stamp(A)

    def deps4b():
        A("s_lshr_b32 s85, s68, 1")
        A("v_mov_b32 v232, s85")
        A(f"v_mov_b32 v233, {v(VL)}")
        big_id(A, 252, 232, 233, 234)
        A(f"v_add_u32 v252, {3*32768}, v252")
        A("s_mov_b64 exec, 0x3fff")

    poll(A, deps4b, "s_waitcnt vmcnt(0)")
    A.vm_restore([])
    stamp(A)
    na = [0]

    def take_a(n, limit):
        out = []
        while n > 0 and na[0] < 14 and na[0] <= limit:
            out += a_parts(na[0])
            na[0] += 1
            n -= 1
        return out

    for p in take_a(3, 2):
        p()
    for r in unit_reads(TB, 0, WFB):
        A(r)
    for sx in range(14):
        tags = [("ld", sx)]
        if R9:
            bar = sx in (2, 5, 8, 11)
            if bar:
                tags += [("w", t) for t in {2: [], 5: [], 8: [9, 10, 11], 11: [12, 13]}[sx]]
            wt = {2: [9], 3: [10], 4: [11], 5: [12], 6: [13]}.get(sx, [])
        elif B4:
            bar = sx in (1, 4, 7, 10)
            if bar:
                tags += [("w", t) for t in {1: [], 4: [6, 7], 7: [8, 9, 10], 10: [11, 12, 13]}[sx]]
            wt = {1: [6], 2: [7], 4: [8], 5: [9], 6: [10], 7: [11], 8: [12], 9: [13]}.get(sx, [])
        else:
            bar = sx % 2 == 0 and 0 < sx < 13
            if bar:
                tags += [("w", t) for t in (sx + 1, sx + 2) if 5 < t < 14]
            wt = [6] if sx == 2 else []
            wt += [sx + 5] if 2 <= sx and sx + 5 < 14 else []
        A.vm_wait(tags, " lgkmcnt(0)")
        if bar:
            A("s_barrier")
        rd = w_reads(sx + 1) if sx < 13 else []
        parts = take_a(2, sx + 1 + PF4)
        for t in wt:
            parts += w_parts(t)
        mf = [f"v_mfma_f32_16x16x32_bf16 {ac(j,t)}, {v(WFB+16*(sx&1)+4*t,4)}, {v(af(sx,j),4)}, {ac(j,t) if sx else 0}" for t in range(4) for j in range(2)]
        E4 = os.environ.get("E4", "")
        for i, m in enumerate(mf):
            if "m" not in E4:
                A(m)
            for _ in range(2):
                if rd:
                    r_ = rd.pop(0)
                    if "r" not in E4:
                        A(r_)
            for _ in range(-(-len(parts) // (len(mf) - i))):
                parts.pop(0)()
        assert not rd and not parts
    stamp(A)
    A("s_lshl_b32 s52, s40, 14")
    A("s_lshl_b32 s53, s41, 13")
    A("s_add_u32 s52, s52, s53")
    A("v_add_u32 v12, s52, v8")
    A("s_lshl_b32 s52, s41, 14")
    A("s_lshl_b32 s53, s40, 12")
    A("s_add_u32 s52, s52, s53")
    A("s_add_u32 s52, s52, 65536")
    A("v_add_u32 v13, s52, v8")
    A("s_barrier")
    for t in range(4):
        A(f"ds_write_b128 v13, {v(AWO+4*t,4)} offset:{t*1024}")
    for j in range(2):
        for t in range(4):
            A(f"ds_write_b128 v12, {ac(j,t)} offset:{(j*4+t)*1024}")
    A("s_lshl_b32 s52, s40, 12")
    A("s_lshl_b32 s53, s41, 11")
    A("s_add_u32 s52, s52, s53")
    A("v_add_u32 v12, s52, v8")
    A("v_add_u32 v13, 65536, v12")
    XU = OFB
    for j in range(4):
        A(f"v_lshlrev_b32 {v(XU+2*j)}, 16, {v(X1K+j)}")
        A(f"v_and_b32 {v(XU+2*j+1)}, 0xffff0000, {v(X1K+j)}")
    A(f"v_sub_f32 v19, 1.0, {v(GR)}")
    rbf(A, 19)
    A("v_mul_u32_u24 v14, 896, v244")
    A(f"v_lshrrev_b32 v16, 1, {v(CSO)}")
    A("v_xor_b32 v15, 8, v16")
    A("v_add_u32 v15, v15, v14")
    A("v_add_u32 v14, v16, v14")
    A("s_lshl_b32 s53, s41, 6")
    A("s_add_u32 s52, s66, s53")
    A("s_waitcnt lgkmcnt(0)")
    A("s_barrier")
    RB = 32
    for q in range(4):
        for t in range(2):
            A(f"ds_read_b128 {v(RB+8*q+4*t,4)}, v12 offset:{16384*q + 1024*t}")
    for q in range(2):
        for t in range(2):
            A(f"ds_read_b128 {v(RB+32+8*q+4*t,4)}, v13 offset:{16384*q + 1024*t}")
    A("s_waitcnt lgkmcnt(4)")
    for r in range(8):
        A(f"v_add_f32 {v(RB+r)}, {v(RB+r)}, {v(RB+8+r)}")
        A(f"v_add_f32 {v(RB+16+r)}, {v(RB+16+r)}, {v(RB+24+r)}")
    for r in range(8):
        A(f"v_add_f32 {v(RB+r)}, {v(RB+r)}, {v(RB+16+r)}")
    for r in range(8):
        A(f"v_add_f32 {v(RB+r)}, {v(RB+r)}, {v(XU+r)}")
    for r in range(8):
        A(f"v_mul_f32 {v(RB+r)}, v19, {v(RB+r)}")
    A("s_waitcnt lgkmcnt(0)")
    AU = RB + 32
    for r in range(8):
        A(f"v_add_f32 {v(AU+r)}, {v(AU+r)}, {v(AU+8+r)}")
    for r in range(8):
        A(f"v_fmac_f32 {v(RB+r)}, {v(GR)}, {v(AU+r)}")
    for j in range(4):
        A(f"v_cvt_pk_bf16_f32 {v(XU+j)}, {v(RB+2*j)}, {v(RB+2*j+1)}")
    A(f"buffer_store_dwordx2 {v(XU,2)}, v14, s[48:51], s52 offen")
    A(f"buffer_store_dwordx2 {v(XU+2,2)}, v15, s[48:51], s52 offen")
    stamp(A)
    A.label(Lend)
    A("s_endpgm")
    if PFCODE:
        for _ in range(256):
            A("s_nop 0")
        A.label("k_codeend")
        for _ in range(256):
            A("s_nop 0")
        A("s_endpgm")
    return A.text()


def build():
    hdr = open("gated_mix__sliding_block__mixer_s_mlp__prompt.s.ref").read().split("; Override launch")[0]
    out = hdr + "; @launch grid=(256,1,1) block=(512,1,1) lds=163840\n"
    out += '.amdgcn_target "amdgcn-amd-amdhsa--gfx950"\n.text\n'
    out += kernel_head(KNAME) + gen()
    out += '.section .rodata,"a"\n' + kernel_desc(KNAME, 256, 256)
    return out


if __name__ == "__main__":
    dst = sys.argv[1] if len(sys.argv) > 1 else "gated_mix__sliding_block__mixer_s_mlp__prompt.s"
    open(dst, "w").write(build())
    print("wrote", dst)
```
